```python
import torch

def _softmax(x, axis=-1):
    return torch.softmax(x, dim=axis)
def _gelu(x):
    return torch.nn.functional.gelu(x, approximate="tanh")
def _silu(x):
    return torch.nn.functional.silu(x)
def _sigmoid(x):
    return torch.sigmoid(x)
def _layernorm(x, axis=-1, eps=1e-5):
    m = x.mean(dim=axis, keepdim=True)
    v = x.var(dim=axis, keepdim=True, unbiased=False)
    return (x - m) / torch.sqrt(v + eps)
def _scatter_add(tgt, idx, src, axis=0):
    return tgt.clone().index_add_(axis, idx, src)
def _segment_sum(src, seg, n):
    out = torch.zeros((n,) + src.shape[1:], dtype=src.dtype)
    return out.index_add_(0, seg, src)
def _pad(x, pw):
    flat = tuple(v for pair in reversed(pw) for v in pair)
    return torch.nn.functional.pad(x, flat)

kernel_name = 'gated_mix__mha_block__moe_arch_mod__prompt'

def setup_inputs():

    _w = (lambda a: (lambda t: t.to(torch.bfloat16) if t.is_floating_point() else t)(torch.as_tensor(a)))
    def _A_setup():
        B, S, D, H = 1, 2048, 576, 32
        return {
            "x": _w((lambda *s: torch.randn(*s, dtype=torch.bfloat16) * 0.05)(B, S, D)),
            "wqkv": _w((lambda *s: torch.randn(*s, dtype=torch.bfloat16) * 0.8)(D, 3 * D)),
            "wo": _w((lambda *s: torch.randn(*s, dtype=torch.bfloat16) * 0.1)(D, D)),
        }
    _A_in = _A_setup()

    def _B_setup():
        B, S, D, F, C = 1, 2048, 576, 4608, 2
        return {
            "x": _w((lambda *s: torch.randn(*s, dtype=torch.bfloat16) * 0.05)(B, S, D)),
            "w_r": _w((lambda *s: torch.randn(*s, dtype=torch.bfloat16) * 3.2)(D)),
            "w_gate": _w((lambda *s: torch.randn(*s, dtype=torch.bfloat16) * 0.2)(D, F)),
            "w_up": _w((lambda *s: torch.randn(*s, dtype=torch.bfloat16) * 0.2)(D, F)),
            "w_down": _w((lambda *s: torch.randn(*s, dtype=torch.bfloat16) * 0.2)(F, D)),
        }
    _B_in = _B_setup()

    return {
        "A_x": _A_in["x"],
        "A_wqkv": _A_in["wqkv"],
        "A_wo": _A_in["wo"],
        "B_x": _B_in["x"],
        "B_w_r": _B_in["w_r"],
        "B_w_gate": _B_in["w_gate"],
        "B_w_up": _B_in["w_up"],
        "B_w_down": _B_in["w_down"],
        "gate_w": _w((lambda *s: torch.randn(*s, dtype=torch.bfloat16) * 0.05)(576) * 16.0),
    }

def reference(A_x, A_wqkv, A_wo, B_x, B_w_r, B_w_gate, B_w_up, B_w_down, gate_w):
    def _A_ref(x, wqkv, wo):
        B, S, D = x.shape
        H = 32
        Dh = D // H
        qkv = (lambda x, *d: x.permute(*d))((x @ wqkv).reshape(B, S, 3, H, Dh), 2, 0, 3, 1, 4)
        q, k, v = qkv[0], qkv[1], qkv[2]
        scores = torch.einsum("bhqd,bhkd->bhqk", q, k) * (Dh ** -0.5)
        p = _softmax(scores, axis=-1)
        o = torch.einsum("bhqk,bhkd->bhqd", p, v)
        return (lambda x, *d: x.permute(*d))(o, 0, 2, 1, 3).reshape(B, S, D) @ wo

    def _B_ref(x, w_r, w_gate, w_up, w_down):
        B, S, D = x.shape
        C = 2
        r = x @ w_r
        idx = torch.argsort(-r, axis=-1)[:, :C]
        idx_e = (lambda x, n, axis: torch.repeat_interleave(x, n, dim=axis))(idx.reshape(B, C, 1), D, axis=2)
        x_sel = (lambda x, i, axis: torch.take_along_dim(x, i, dim=axis))(x, idx_e, axis=1)
        g = _silu(x_sel @ w_gate)
        u = x_sel @ w_up
        y = (g * u) @ w_down
        r_sel = _sigmoid((lambda x, i, axis: torch.take_along_dim(x, i, dim=axis))(r, idx, axis=1))
        y = y * r_sel.reshape(B, C, 1)
        b_off = (torch.arange(B) * S).reshape(B, 1)
        flat_idx = (idx + b_off).reshape(B * C)
        zero = (x * 0.0).reshape(B * S, D)
        upd = _scatter_add(zero, flat_idx, y.reshape(B * C, D), axis=0)
        return x + upd.reshape(B, S, D)

    x = A_x
    g = _sigmoid((x * gate_w).sum(-1, keepdims=True))
    a = _A_ref(x, A_wqkv, A_wo)
    b = _B_ref(x, B_w_r, B_w_gate, B_w_up, B_w_down)
    return g * a + (1 - g) * b
```

```python
class Asm:
    def __init__(self):
        self.L = []
    def __call__(self, s=""):
        for line in s.strip("\n").split("\n"):
            t = line.strip()
            if not t:
                continue
            if t.endswith(":") or t.startswith("."):
                self.L.append(t)
            else:
                self.L.append("    " + t)
    def text(self):
        return "\n".join(self.L) + "\n"

def vr(a, n=1):
    return f"v{a}" if n == 1 else f"v[{a}:{a+n-1}]"
def sr(a, n=1):
    return f"s{a}" if n == 1 else f"s[{a}:{a+n-1}]"

def srd(a, d, lo, hi, nbytes):
    if lo != d: a(f"s_mov_b32 s{d}, s{lo}")
    if hi != d + 1: a(f"s_mov_b32 s{d+1}, s{hi}")
    a(f"s_mov_b32 s{d+2}, {nbytes}")
    a(f"s_mov_b32 s{d+3}, 0x00020000")

def kernel_begin(a, name):
    a(f".globl {name}\n.p2align 8\n.type {name},@function\n{name}:")

def descriptor(name, vgpr, sgpr=96, agpr=0):
    acc = (vgpr + 3) // 4 * 4
    nfv = acc + agpr if agpr else vgpr
    return f""".p2align 6
.amdhsa_kernel {name}
  .amdhsa_next_free_vgpr {nfv}
  .amdhsa_next_free_sgpr {sgpr}
  .amdhsa_accum_offset {acc}
  .amdhsa_group_segment_fixed_size 0
  .amdhsa_kernarg_size 96
  .amdhsa_user_sgpr_count 2
  .amdhsa_user_sgpr_kernarg_segment_ptr 1
  .amdhsa_system_sgpr_workgroup_id_x 1
  .amdhsa_float_denorm_mode_32 3
.end_amdhsa_kernel
"""

HEADER = """; Kernarg layout for this problem (96 bytes, ptrs only, base s[0:1]):
"""
import struct
def f32bits(x):
    return "0x%08x" % struct.unpack("<I", struct.pack("<f", x))[0]
```

```python
import sys, math
from gen_common import *

XB = 2359296; WB = 1990656; WOB = 663552; WGB = 5308416
TGS = 1728 * 32
WS_QKV = 0
WS_OM = 0x700000
WS_OR = 0x900000
WS_KEY = 0x940000
WS_G = 0x941000
WS_SEL = 0x943000
WS_Y = 0x944000
WS_END = 0x950000
QSCALE = (18 ** -0.5) * math.log2(math.e)

def mf32(d, a, b, c=None):
    cs = vr(d, 16) if c is None else ("0" if c == 0 else vr(c, 16))
    return f"v_mfma_f32_32x32x16_bf16 {vr(d,16)}, {vr(a,4)}, {vr(b,4)}, {cs}"
def mf16(d, a, b, c=None):
    cs = vr(d, 4) if c is None else ("0" if c == 0 else vr(c, 4))
    return f"v_mfma_f32_16x16x32_bf16 {vr(d,4)}, {vr(a,4)}, {vr(b,4)}, {cs}"

def rne_bf16(a, v, tmp=None):
    a(f"v_cvt_pk_bf16_f32 v{v}, v{v}, v{v}")
    a(f"v_and_b32 v{v}, 0xffff0000, v{v}")

def sigmoid(a, v):
    a(f"v_mul_f32 v{v}, {f32bits(-math.log2(math.e))}, v{v}")
    a(f"v_exp_f32 v{v}, v{v}")
    a("s_nop 0")
    a(f"v_add_f32 v{v}, 1.0, v{v}")
    a(f"v_rcp_f32 v{v}, v{v}")
    a("s_nop 0")

def gen_k1(a, NB=4):
    kernel_begin(a, "k1_kernel")
    a("""
    s_cmp_ge_u32 s2, 256
    s_cbranch_scc1 k1_end
    s_load_dwordx4 s[4:7], s[0:1], 0
    s_load_dwordx2 s[16:17], s[0:1], 88
    s_load_dwordx2 s[20:21], s[0:1], 32
    s_load_dwordx2 s[22:23], s[0:1], 64
    v_and_b32 v1, 63, v0
    v_lshrrev_b32 v2, 6, v0
    s_and_b32 s24, s2, 3          ; rbg
    s_bfe_u32 s25, s2, 0x10002    ; ctg
    v_readfirstlane_b32 s30, v2   ; wave
    s_lshr_b32 s26, s2, 3         ; idx
    s_cmp_ge_u32 s2, 224
    s_cbranch_scc1 k1_rg
    s_and_b32 s27, s26, 3
    s_lshl2_add_u32 s27, s24, s27 ; rb
    s_lshr_b32 s28, s26, 2
    s_mul_i32 s29, s25, 7
    s_add_u32 s28, s28, s29       ; ct
    """)
    a("""
    s_lshl_b32 s31, s27, 7
    s_lshl_b32 s32, s30, 5
    s_add_u32 s31, s31, s32
    v_lshrrev_b32 v3, 3, v1
    v_add_u32 v3, s31, v3
    v_mul_u32_u24 v3, 1152, v3
    v_and_b32 v12, 7, v1
    v_lshrrev_b32 v13, 4, v1
    v_xor_b32 v12, v12, v13
    v_lshl_add_u32 v4, v12, 4, v3
    v_xor_b32 v12, 4, v12
    v_lshl_add_u32 v5, v12, 4, v3
    v_add_u32 v5, 8192, v5
    v_add_u32 v6, 16384, v4
    v_add_u32 v7, 16384, v5
    s_lshl_b32 s32, s30, 4
    v_add_u32 v3, s32, v13
    v_mul_u32_u24 v3, 3456, v3
    v_and_b32 v12, 15, v1
    v_lshlrev_b32 v14, 2, v13
    v_xor_b32 v12, v12, v14
    v_lshl_add_u32 v3, v12, 4, v3
    s_lshl_b32 s33, s28, 8
    v_add_u32 v8, s33, v3
    v_add_u32 v9, 12800, v8
    v_add_u32 v10, 25600, v8
    v_add_u32 v11, 38400, v8
    s_lshl_b32 s34, s30, 12       ; wave*4096
    s_waitcnt lgkmcnt(0)
    """)
    srd(a, 8, 4, 5, XB)
    srd(a, 12, 6, 7, WB)
    srd(a, 16, 16, 17, WS_END)
    def dma(c):
        slot = (c % NB) * 32768
        a(f"s_add_u32 m0, s34, {slot}")
        a(f"s_mov_b32 s35, {c*128}")
        for u in range(4):
            a(f"buffer_load_dwordx4 v{4+u}, s[8:11], s35 offen offset:{u*1024} lds")
        a(f"s_add_u32 m0, s34, {slot+16384}")
        a(f"s_mov_b32 s35, {c*221184}")
        for u in range(4):
            a(f"buffer_load_dwordx4 v{8+u}, s[12:15], s35 offen offset:{u*1024} lds")
    for c in range(NB - 1):
        dma(c)
    a("""
    s_lshr_b32 s36, s30, 1        ; wm
    s_and_b32 s37, s30, 1         ; wn
    v_and_b32 v3, 19, v1          ; bits 0,1,4
    v_bfe_u32 v12, v1, 2, 1
    v_lshl_or_b32 v3, v12, 3, v3
    v_bfe_u32 v12, v1, 3, 1
    v_lshl_or_b32 v3, v12, 2, v3  ; tok(i)
    v_bfe_u32 v12, v3, 1, 3       ; f
    v_lshrrev_b32 v13, 5, v1      ; hh
    v_xor_b32 v12, v12, v13
    v_lshlrev_b32 v12, 4, v12
    v_lshl_or_b32 v12, v3, 7, v12
    s_lshl_b32 s38, s36, 13
    v_add_u32 v16, s38, v12
    v_xor_b32 v17, 32, v16
    v_xor_b32 v18, 64, v16
    v_xor_b32 v19, 96, v16
    v_bfe_u32 v3, v1, 2, 2        ; r
    v_lshl_add_u32 v12, v13, 3, v3
    v_lshlrev_b32 v12, 8, v12     ; (8hh+r)*256
    s_lshl_b32 s38, s37, 1
    v_xor_b32 v14, s38, v3
    v_lshl_or_b32 v12, v14, 6, v12
    v_bfe_u32 v14, v1, 4, 1
    v_lshl_or_b32 v12, v14, 5, v12
    v_and_b32 v14, 3, v1
    v_lshl_or_b32 v12, v14, 3, v12
    v_add_u32 v20, 16384, v12
    v_xor_b32 v21, 64, v20
    """)
    ACC = 64; FR = 32
    def reads(kk):
        p = kk & 1; A = FR + 16 * p; B = A + 8
        for mt in range(2):
            a(f"ds_read_b128 {vr(A+4*mt,4)}, v{22+kk} offset:{4096*mt}")
        for nt in range(2):
            for m in range(2):
                a(f"ds_read_b64_tr_b16 {vr(B+4*nt+2*m,2)}, v{26+nt} offset:{(16*kk+4*m)*256}")
    def mfmas(kk, first):
        p = kk & 1; A = FR + 16 * p; B = A + 8
        for mt in range(2):
            for nt in range(2):
                a(mf32(ACC + 16 * (2 * mt + nt), A + 4 * mt, B + 4 * nt, 0 if first else None))
    for c in range(9):
        slot = (c % NB) * 32768
        for i in range(6):
            a(f"v_add_u32 v{22+i}, {slot}, v{16+i}")
        inflight = min(8, c + NB - 2) - c
        a(f"s_waitcnt vmcnt({8*inflight})")
        a("s_barrier")
        reads(0)
        if c + NB - 1 <= 8:
            dma(c + NB - 1)
        if c > 0:
            mfmas(3, False)
        for kk in range(3):
            reads(kk + 1)
            a("s_waitcnt lgkmcnt(6)")
            mfmas(kk, c == 0 and kk == 0)
        a("s_waitcnt lgkmcnt(0)")
    mfmas(3, False)
    a(f"""
    s_lshl_b32 s38, s28, 7
    s_lshl_b32 s39, s37, 6
    s_add_u32 s38, s38, s39       ; col0
    s_cmp_ge_u32 s38, 1728
    s_cbranch_scc1 k1_end
    s_cmp_lt_u32 s38, 576
    s_cselect_b32 s40, {f32bits(QSCALE)}, 1.0
    s_mov_b32 s41, s40
    s_lshl_b32 s39, s27, 3
    s_lshl2_add_u32 s39, s36, s39
    s_mul_i32 s39, s39, {TGS}
    s_lshl_b32 s38, s38, 5
    s_add_u32 s39, s39, s38
    v_and_b32 v3, 31, v1
    v_lshlrev_b32 v3, 5, v3
    v_lshrrev_b32 v12, 5, v1
    v_lshl_or_b32 v3, v12, 4, v3
    s_nop 7
    """)
    for mt in range(2):
        for nt in range(2):
            D = ACC + 16 * (2 * mt + nt)
            for r in range(0, 16, 2):
                a(f"v_pk_mul_f32 {vr(D+r,2)}, {vr(D+r,2)}, s[40:41]")
            for r in range(0, 16, 2):
                a(f"v_cvt_pk_bf16_f32 v{D+r//2}, v{D+r}, v{D+r+1}")
            for hf in range(2):
                a(f"s_add_u32 s42, s39, {(2*mt+hf)*TGS}")
                a(f"buffer_store_dwordx4 {vr(D+4*hf,4)}, v3, s[16:19], s42 offen offset:{nt*1024}")
    a("s_endpgm")
    a("""
k1_rg:
    s_sub_u32 s26, s26, 28
    s_lshl2_add_u32 s26, s25, s26
    s_lshl_b32 s27, s24, 3
    s_add_u32 s26, s26, s27
    s_lshl2_add_u32 s27, s26, s30
    s_lshl_b32 s28, s27, 4           ; row0
    v_lshrrev_b32 v3, 3, v1
    v_add_u32 v4, s28, v3            ; row
    v_mul_u32_u24 v5, 1152, v4
    v_and_b32 v6, 7, v1
    v_lshlrev_b32 v6, 4, v6
    v_add_u32 v5, v5, v6
    v_add_u32 v7, 9216, v5
    s_waitcnt lgkmcnt(0)
    """)
    srd(a, 16, 16, 17, WS_END)
    for i in range(9):
        a(f"global_load_dwordx4 {vr(16+4*i,4)}, v5, s[4:5] offset:{128*i}")
    for i in range(9):
        a(f"global_load_dwordx4 {vr(88+4*i,4)}, v6, s[20:21] offset:{128*i}")
    for i in range(9):
        a(f"global_load_dwordx4 {vr(124+4*i,4)}, v6, s[22:23] offset:{128*i}")
    for i in range(9):
        a(f"global_load_dwordx4 {vr(52+4*i,4)}, v7, s[4:5] offset:{128*i}")
    a(f"""
    v_mov_b32 v8, 0
    v_mov_b32 v9, 0
    v_mov_b32 v10, 0
    v_mov_b32 v11, 0
    v_lshlrev_b32 v12, 4, v0
    s_mul_i32 s29, s26, 1152
    s_add_u32 s29, s29, {WS_Y}
    v_cmp_gt_u32 vcc, 72, v0
    s_and_saveexec_b64 s[32:33], vcc
    s_cbranch_execz k1_rg_nz
    buffer_store_dwordx4 v[8:11], v12, s[16:19], s29 offen
k1_rg_nz:
    s_mov_b64 exec, s[32:33]
    s_nop 1
    s_waitcnt vmcnt(0)
    """)
    for i in range(36):
        a(f"v_dot2c_f32_bf16 v8, v{16+i}, v{88+i}")
        a(f"v_dot2c_f32_bf16 v9, v{52+i}, v{88+i}")
        a(f"v_dot2c_f32_bf16 v10, v{16+i}, v{124+i}")
        a(f"v_dot2c_f32_bf16 v11, v{52+i}, v{124+i}")
    a("s_nop 2")
    for mode in ("quad_perm:[1,0,3,2]", "quad_perm:[2,3,0,1]", "row_half_mirror"):
        for v in (8, 9, 10, 11):
            a(f"v_add_f32_dpp v{v}, v{v}, v{v} {mode} row_mask:0xf bank_mask:0xf")
    for v in (10, 11):
        rne_bf16(a, v); sigmoid(a, v); rne_bf16(a, v)
    a(f"""
    v_ashrrev_i32 v12, 31, v8
    v_or_b32 v12, 0x80000000, v12
    v_xor_b32 v8, v8, v12
    v_and_b32 v8, 0xfffff800, v8
    v_sub_u32 v12, 2047, v4
    v_or_b32 v8, v8, v12
    v_ashrrev_i32 v12, 31, v9
    v_or_b32 v12, 0x80000000, v12
    v_xor_b32 v9, v9, v12
    v_and_b32 v9, 0xfffff800, v9
    v_sub_u32 v12, 2039, v4
    v_or_b32 v9, v9, v12
    v_lshlrev_b32 v13, 2, v4
    s_mov_b32 s29, {WS_G}
    buffer_store_dword v10, v13, s[16:19], s29 offen
    buffer_store_dword v11, v13, s[16:19], s29 offen offset:32
    v_max_u32 v14, v8, v9
    v_min_u32 v15, v8, v9
    s_nop 1
    v_mov_b32_dpp v8, v14 row_ror:8 row_mask:0xf bank_mask:0xf
    v_mov_b32_dpp v9, v15 row_ror:8 row_mask:0xf bank_mask:0xf
    v_min_u32 v12, v8, v14
    v_max_u32 v14, v8, v14
    v_max3_u32 v15, v12, v9, v15
    """)
    for sw in ("v_permlane16_swap_b32", "v_permlane32_swap_b32"):
        a(f"""
        v_mov_b32 v8, v14
        v_mov_b32 v9, v15
        s_nop 1
        {sw} v8, v14
        {sw} v9, v15
        s_nop 1
        v_min_u32 v12, v8, v14
        v_max_u32 v14, v8, v14
        v_max3_u32 v15, v12, v9, v15
        """)
    a(f"""
    s_lshl_b32 s29, s27, 3
    s_add_u32 s29, s29, {WS_KEY}
    v_mov_b32 v12, 0
    buffer_store_dwordx2 v[14:15], v12, s[16:19], s29 offen
k1_end:
    s_endpgm
    """)
    return descriptor("k1_kernel", 160)

def wave_max_u32(a, v, t, sdst):
    for mode in ("quad_perm:[1,0,3,2]", "quad_perm:[2,3,0,1]", "row_half_mirror", "row_mirror"):
        a("s_nop 1")
        a(f"v_max_u32_dpp v{v}, v{v}, v{v} {mode} row_mask:0xf bank_mask:0xf")
    for sw in ("v_permlane16_swap_b32", "v_permlane32_swap_b32"):
        a(f"""
        v_mov_b32 v{t}, v{v}
        s_nop 1
        {sw} v{t}, v{v}
        s_nop 1
        v_max_u32 v{v}, v{t}, v{v}
        """)
    a("s_nop 0")
    a(f"v_readfirstlane_b32 s{sdst}, v{v}")

def top2(a, K, T, so):
    a(f"""
    v_min_u32 v{T}, v{K}, v{K+2}
    v_max_u32 v{K}, v{K}, v{K+2}
    v_max3_u32 v{K+1}, v{T}, v{K+1}, v{K+3}
    v_mov_b32 v{K+2}, v{K}
    """)
    wave_max_u32(a, K + 2, T, so)
    a(f"""
    v_cmp_eq_u32 vcc, v{K+2}, v{K}
    s_nop 1
    v_cndmask_b32 v{K+2}, v{K}, v{K+1}, vcc
    """)
    wave_max_u32(a, K + 2, T, so + 1)

def gen_km(a):
    kernel_begin(a, "km_kernel")
    L_GU = 0; L_DN = 73728; L_P = 110592; L_H = L_P + 2048
    a(f"""
    s_cmp_ge_u32 s2, 144
    s_cbranch_scc1 km_end
    s_load_dwordx2 s[4:5], s[0:1], 0
    s_load_dwordx4 s[20:23], s[0:1], 40
    s_load_dwordx2 s[12:13], s[0:1], 56
    s_load_dwordx2 s[16:17], s[0:1], 88
    v_and_b32 v1, 63, v0
    v_lshrrev_b32 v2, 6, v0
    s_and_b32 s24, s2, 7
    s_mul_i32 s24, s24, 18
    v_readfirstlane_b32 s30, v2
    s_lshr_b32 s25, s2, 3
    s_add_u32 s24, s24, s25
    s_lshr_b32 s31, s30, 1           ; kq
    s_mul_i32 s32, s31, 144
    v_lshrrev_b32 v3, 2, v1
    v_add_u32 v3, s32, v3
    v_mul_u32_u24 v3, 9216, v3
    v_and_b32 v4, 3, v1
    v_lshl_add_u32 v3, v4, 4, v3
    v_lshlrev_b32 v4, 4, v1          ; lane*16
    s_mul_i32 s33, s30, 9216
    s_waitcnt lgkmcnt(0)
    s_bitcmp1_b32 s30, 0
    s_cselect_b32 s8, s22, s20
    s_cselect_b32 s9, s23, s21
    """)
    srd(a, 8, 8, 9, WGB)
    srd(a, 12, 12, 13, WGB)
    srd(a, 16, 16, 17, WS_END)
    a(f"s_mov_b32 s34, {WS_KEY}")
    a("buffer_load_dwordx4 v[8:11], v4, s[16:19], s34 offen")
    a("s_lshl_b32 s35, s24, 6")
    for s in range(9):
        a(f"s_add_u32 m0, s33, {s*1024}")
        a(f"s_add_u32 s34, s35, {s*16*9216}")
        a("buffer_load_dwordx4 v3, s[8:11], s34 offen lds")
    a(f"""
    s_mul_i32 s35, s24, 36864
    s_lshl_b32 s36, s30, 10
    s_add_u32 s35, s35, s36
    s_add_u32 s36, s36, {L_DN}
    """)
    for i in range(5):
        if i == 4:
            a("s_cmp_ge_u32 s30, 4\ns_cbranch_scc1 km_nodn")
        a(f"s_add_u32 m0, s36, {i*8192}")
        a(f"s_add_u32 s34, s35, {i*8192}")
        a("buffer_load_dwordx4 v4, s[12:15], s34 offen lds")
    a("km_nodn:")
    a("s_waitcnt vmcnt(13)")
    top2(a, 8, 12, 40)
    a(f"""
    s_and_b32 s42, s40, 0x7ff
    s_sub_u32 s42, 2047, s42        ; idx0
    s_and_b32 s43, s41, 0x7ff
    s_sub_u32 s43, 2047, s43        ; idx1
    s_mul_i32 s42, s42, 1152
    s_mul_i32 s43, s43, 1152
    v_mov_b32 v5, s42
    v_mov_b32 v6, s43
    v_and_b32 v7, 4, v1
    v_cmp_eq_u32 vcc, 0, v7
    s_lshl_b32 s32, s32, 1
    v_lshrrev_b32 v13, 5, v1        ; hh
    v_cndmask_b32 v5, v6, v5, vcc
    v_lshl_add_u32 v5, v13, 4, v5
    v_add_u32 v5, s32, v5
    """)
    for s in range(9):
        a(f"global_load_dwordx4 {vr(16+4*s,4)}, v5, s[4:5] offset:{32*s}")
    a(f"""
    s_or_b32 s34, s2, s30
    s_cmp_lg_u32 s34, 0
    s_cbranch_scc1 km_nosel
    v_mov_b32 v8, s40
    v_mov_b32 v9, s41
    v_mov_b32 v10, 0
    s_mov_b32 s34, {WS_SEL}
    buffer_store_dwordx2 v[8:9], v10, s[16:19], s34 offen
km_nosel:
    v_bfe_u32 v6, v1, 2, 2          ; r
    v_lshl_add_u32 v6, v13, 3, v6   ; 8hh + r
    v_bfe_u32 v7, v1, 4, 1
    v_lshlrev_b32 v7, 5, v7
    v_and_b32 v12, 3, v1
    v_lshl_or_b32 v7, v12, 3, v7    ; cg*32 + c*8
    v_lshl_add_u32 v14, v6, 6, v7
    v_add_u32 v14, s33, v14
    v_mul_u32_u24 v15, 1152, v6
    v_add_u32 v15, v15, v7
    s_lshl_b32 s34, s30, 6
    s_add_u32 s34, s34, {L_DN}
    v_add_u32 v15, s34, v15
    s_waitcnt vmcnt(0)
    """)
    for s in range(9):
        for m in range(2):
            a(f"ds_read_b64_tr_b16 {vr(52+4*s+2*m,2)}, v14 offset:{(16*s+4*m)*64}")
    a("s_waitcnt lgkmcnt(0)")
    for s in range(9):
        a(mf32(96, 16 + 4 * s, 52 + 4 * s, 0 if s == 0 else None))
    a(f"""
    v_lshlrev_b32 v6, 2, v1
    s_lshl_b32 s34, s30, 8
    v_add_u32 v7, s34, v6
    s_nop 9
    ds_write_b32 v7, v96 offset:{L_P - 65536 if False else 0}
    """.replace("ds_write_b32 v7, v96 offset:0", f"v_add_u32 v7, {L_P}, v7\nds_write_b32 v7, v96"))
    a(f"""
    v_add_u32 v6, {L_P}, v6
    s_waitcnt lgkmcnt(0)
    s_barrier
    """)
    for w in range(8):
        a(f"ds_read_b32 v{16+w}, v6 offset:{w*256}")
    for t in range(3):
        for m in range(2):
            for mm in range(2):
                a(f"ds_read_b64_tr_b16 {vr(52+8*t+4*m+2*mm,2)}, v15 offset:{(16*m+4*mm)*1152 + t*512}")
    a("""
    s_waitcnt lgkmcnt(12)
    v_add_f32 v16, v16, v18
    v_add_f32 v17, v17, v19
    v_add_f32 v20, v20, v22
    v_add_f32 v21, v21, v23
    v_add_f32 v16, v16, v20
    v_add_f32 v17, v17, v21
    """)
    rne_bf16(a, 16); rne_bf16(a, 17)
    a("v_mov_b32 v18, v16")
    sigmoid(a, 18)
    a("v_mul_f32 v16, v16, v18")
    rne_bf16(a, 16)
    a(f"""
    v_mul_f32 v16, v16, v17
    v_cvt_pk_bf16_f32 v16, v16, v16
    s_lshl_b32 s34, s30, 7
    s_add_u32 s34, s34, {L_H}
    v_lshl_add_u32 v6, v1, 1, s34
    ds_write_b16 v6, v16
    v_and_b32 v7, 4, v1
    v_lshlrev_b32 v7, 4, v7
    v_lshl_or_b32 v7, v13, 4, v7
    v_add_u32 v7, s34, v7
    s_waitcnt lgkmcnt(0)
    ds_read_b128 v[16:19], v7
    ds_read_b128 v[20:23], v7 offset:32
    s_and_b32 s34, s2, 7
    s_mul_i32 s34, s34, 4608
    s_lshl_b32 s35, s30, 7
    s_add_u32 s34, s34, s35
    s_add_u32 s34, s34, {WS_Y}
    v_and_b32 v6, 31, v1
    v_lshlrev_b32 v6, 2, v6
    v_mul_u32_u24 v7, 2304, v13
    v_add_u32 v6, v6, v7
    s_waitcnt lgkmcnt(0)
    """)
    for t in range(3):
        a(mf32(96 + 16 * t, 16, 52 + 8 * t, 0))
        a(mf32(96 + 16 * t, 20, 56 + 8 * t))
    a("s_nop 11")
    a("buffer_atomic_add_f32 v96, v6, s[16:19], s34 offen")
    a("buffer_atomic_add_f32 v112, v6, s[16:19], s34 offen offset:1024")
    a("s_cmp_ge_u32 s30, 2\ns_cbranch_scc1 km_end")
    a("buffer_atomic_add_f32 v128, v6, s[16:19], s34 offen offset:2048")
    a("km_end:\ns_endpgm")
    return descriptor("km_kernel", 144), L_H + 1024

def gen_k2(a, UN=4):
    kernel_begin(a, "k2_kernel")
    L_Q = 147456
    S = [64, 96]; NEGM = 128; O = 48; QM = 8; QR = 12; KM = 16; KR = 14; V = [24, 144]; IDX = 7
    aKM, aKR, aV = 4, 5, 6
    a(f"""
    s_cmp_ge_u32 s2, 256
    s_cbranch_scc1 k2_end
    s_load_dwordx2 s[16:17], s[0:1], 88
    v_and_b32 v1, 63, v0
    v_lshrrev_b32 v2, 6, v0
    s_and_b32 s24, s2, 31            ; h
    s_lshr_b32 s25, s2, 5            ; j
    v_readfirstlane_b32 s30, v2
    s_mul_i32 s26, s24, 576
    """)
    a("s_mov_b32 s31, 0x38e38e39")
    a("s_mov_b32 s33, %d" % TGS)
    for t in range(9):
        a(f"""
        v_add_u32 v3, {t*512}, v0
        v_mul_hi_u32 v8, v3, s31
        v_lshrrev_b32 v8, 4, v8          ; tg
        v_mul_u32_u24 v9, 72, v8
        v_sub_u32 v9, v3, v9             ; e
        v_lshlrev_b32 v10, 4, v9
        v_add_u32 v10, {576*32}, v10     ; K source
        v_lshlrev_b32 v11, 5, v9
        v_add_u32 v11, {1152*32 - 36*32}, v11
        v_cmp_lt_u32 vcc, 53, v9
        v_subrev_u32 v12, {18*32 - 16}, v11
        v_mul_lo_u32 v8, v8, s33
        v_cndmask_b32 v11, v11, v12, vcc
        v_cmp_gt_u32 vcc, 36, v9
        s_nop 1
        v_cndmask_b32 v10, v11, v10, vcc
        v_add_u32 v{100+t}, v8, v10
        """)
    a(f"""
    s_lshl_b32 s27, s25, 4
    s_lshl1_add_u32 s27, s30, s27
    s_mul_i32 s27, s27, {TGS}
    s_add_u32 s27, s27, s26
    v_lshlrev_b32 v3, 4, v1
    s_mul_i32 s28, s30, 1280
    s_add_u32 s28, s28, {L_Q}
    s_lshl_b32 s29, s30, 10
    s_waitcnt lgkmcnt(0)
    """)
    srd(a, 16, 16, 17, WS_END)
    a(f"""
    s_mov_b32 exec_hi, 0xf
    s_mov_b32 m0, s28
    s_add_u32 s34, s27, {TGS}
    buffer_load_dwordx4 v3, s[16:19], s27 offen lds
    s_add_u32 m0, s28, 640
    s_nop 0
    buffer_load_dwordx4 v3, s[16:19], s34 offen lds
    s_mov_b32 exec_hi, -1
    """)
    for t in range(18):
        a(f"s_add_u32 m0, s29, {t*8192}")
        if t == 9:
            a(f"s_add_u32 s26, s26, {64*TGS}")
        else:
            a("s_nop 0")
        a(f"buffer_load_dwordx4 v{100 + t % 9}, s[16:19], s26 offen lds")
    a(f"""
    v_lshrrev_b32 v13, 5, v1         ; hh
    v_bfe_u32 v9, v1, 2, 2           ; r
    v_and_b32 v10, 3, v1
    v_lshlrev_b32 v10, 3, v10        ; c*8
    v_bfe_u32 v11, v1, 4, 1          ; G&1
    v_lshl_add_u32 v12, v13, 3, v9
    v_lshl_or_b32 v12, v12, 5, v10   ; (8hh+r)*32 + c*8
    v_mul_u32_u24 v8, 1152, v11
    v_add_u32 v{aKM}, v8, v12
    v_mul_u32_u24 v8, 640, v11
    v_add3_u32 v2, v8, v12, s28
    v_and_b32 v9, 1, v9
    v_lshl_or_b32 v9, v9, 5, v10
    v_add_u32 v9, 512, v9            ; (16 + (r&1))*32 + c*8
    v_add3_u32 v3, v8, v9, s28
    v_lshrrev_b32 v8, 4, v1
    v_mul_u32_u24 v8, 1152, v8
    v_add_u32 v{aKR}, v8, v9
    v_and_b32 v8, 31, v1
    v_lshlrev_b32 v8, 4, v8
    v_mul_u32_u24 v9, 288, v13
    v_add_u32 v8, v8, v9
    v_add_u32 v{aV}, 576, v8
    v_mov_b32 v{IDX}, 0xdddddddd
    s_mov_b32 s36, 0x3ffff
    s_mov_b32 s37, 0x3ffff
    """)
    for i in range(16):
        a(f"v_mov_b32 v{NEGM+i}, 0")
        a(f"v_mov_b32 v{O+i}, 0")
        a(f"v_mov_b32 v{V[0]+i}, 0x3f803f80")
        a(f"v_mov_b32 v{V[1]+i}, 0x3f803f80")
    a(f"""
    s_waitcnt vmcnt(18)
    ds_read_b64_tr_b16 {vr(QM,2)}, v2
    ds_read_b64_tr_b16 {vr(QM+2,2)}, v2 offset:128
    ds_read_b64_tr_b16 {vr(QR,2)}, v3
    s_waitcnt vmcnt(0)
    s_barrier
    """)
    def kreads(off):
        return [f"ds_read_b64_tr_b16 {vr(KM+4*T+2*m,2)}, v{aKM} offset:{off + T*2304 + m*128}" for T in range(2) for m in range(2)]
    def krread(off):
        return f"ds_read_b64_tr_b16 {vr(KR,2)}, v{aKR} offset:{off}"
    def vreads(p, off):
        return ["s_mov_b64 exec, s[36:37]"] + [f"ds_read_b128 {vr(V[p]+4*g,4)}, v{aV} offset:{off + g*1152}" for g in range(4)] + ["s_mov_b64 exec, -1"]
    def m2b(Y): return f"v_mfma_f32_32x32x4_2b_bf16 {vr(Y,32)}, {vr(KR,2)}, {vr(QR,2)}, {vr(Y,32)}"
    def smf(p, g): return f"v_smfmac_f32_32x32x32_bf16 {vr(O,16)}, {vr(V[p]+4*g,4)}, {vr(S[p]+8*g,8)}, v{IDX}"
    def exps(p, lo, hi): return [f"v_exp_f32 v{S[p]+i}, v{S[p]+i}" for i in range(lo, hi)]
    for x in kreads(0) + [krread(0)] + vreads(0, 0): a(x)
    for i in range(24, 32): a(f"v_mov_b32 v{S[1]+i}, 0")
    a("s_waitcnt lgkmcnt(4)")
    a(f"v_mov_b32 v{QR+1}, 0")
    a(mf32(S[0], KM, QM, NEGM)); a(mf32(S[0] + 16, KM + 4, QM, NEGM))
    for x in kreads(4608): a(x)
    a("s_nop 7")
    a(m2b(S[0]))
    a(krread(4608))
    a("s_nop 15\ns_nop 3")
    a(f"s_mov_b32 s38, {32 // UN}")
    a(".p2align 6\nk2_loop:")
    for u in range(UN):
        p = u & 1; q = 1 - p
        offK = (u + 2) * 4608; offV = (u + 1) * 4608
        seq = []
        seq += exps(p, 0, 2)
        seq += [smf(q, 3)]
        seq += exps(p, 2, 5)
        seq += ["s_waitcnt lgkmcnt(1)", mf32(S[q], KM, QM, NEGM)]
        seq += vreads(q, offV)
        seq += exps(p, 5, 8)
        seq += [mf32(S[q] + 16, KM + 4, QM, NEGM)]
        seq += kreads(offK)
        seq += exps(p, 8, 11)
        seq += [smf(p, 0)]
        seq += exps(p, 11, 16)
        seq += ["s_waitcnt lgkmcnt(8)", m2b(S[q]), krread(offK)]
        seq += exps(p, 16, 23)
        seq += [smf(p, 1)]
        seq += exps(p, 23, 27)
        seq += [smf(p, 2)]
        if u == UN - 1:
            seq += [f"v_add_u32 v{r}, {UN*4608}, v{r}" for r in (aKM, aKR, aV)]
            seq += ["s_sub_u32 s38, s38, 1", "s_cmp_lg_u32 s38, 0"]
        else:
            seq += ["s_nop 2"]
        seq += exps(p, 27, 32)
        for x in seq: a(x)
    a("s_cbranch_scc1 k2_loop")
    a("s_nop 1")
    a(smf(1, 3))
    a(f"""
    s_lshl3_add_u32 s27, s25, s30
    s_lshl_b32 s27, s27, 5
    s_add_u32 s27, s27, s24           ; tile*32 + h
    s_lshl_b32 s28, s27, 10
    s_add_u32 s28, s28, {WS_OM}
    s_lshl_b32 s29, s27, 7
    s_add_u32 s29, s29, {WS_OR}
    v_lshlrev_b32 v2, 4, v1
    v_lshlrev_b32 v3, 2, v1
    s_waitcnt lgkmcnt(0)
    s_nop 4
    v_rcp_f32 v8, v{O+10}
    s_nop 0
    """)
    for i in range(10):
        a(f"v_mul_f32 v{O+i}, v{O+i}, v8")
    for i in range(5):
        a(f"v_cvt_pk_bf16_f32 v{O+i}, v{O+2*i}, v{O+2*i+1}")
    a(f"""
    buffer_store_dwordx4 {vr(O,4)}, v2, s[16:19], s28 offen
    s_mov_b32 exec_hi, 0
    buffer_store_dword v{O+4}, v3, s[16:19], s29 offen
k2_end:
    s_endpgm
    """)
    return descriptor("k2_kernel", 160), L_Q + 8 * 1280

def gen_k3(a):
    kernel_begin(a, "k3_kernel")
    L_T = 73728
    a(f"""
    s_cmp_ge_u32 s2, 288
    s_cbranch_scc1 k3_end
    s_load_dwordx2 s[4:5], s[0:1], 0
    s_load_dwordx2 s[8:9], s[0:1], 16
    s_load_dwordx2 s[12:13], s[0:1], 72
    s_load_dwordx2 s[16:17], s[0:1], 88
    v_and_b32 v1, 63, v0
    v_lshrrev_b32 v2, 6, v0
    s_and_b32 s24, s2, 31            ; row block (64 tokens)
    s_lshr_b32 s25, s2, 5            ; col block
    v_readfirstlane_b32 s30, v2
    ; wo dma: 8 rows x 128B per instr; lds [576][128B], 16B unit swizzle u ^= ((k>>1)&1)
    v_lshrrev_b32 v3, 3, v1
    v_and_b32 v4, 7, v1
    v_bfe_u32 v5, v1, 4, 1
    v_xor_b32 v4, v4, v5
    s_lshl_b32 s31, s30, 3
    v_add_u32 v3, s31, v3
    v_mul_u32_u24 v3, 1152, v3
    v_lshl_add_u32 v3, v4, 4, v3
    s_lshl_b32 s32, s25, 7           ; col byte offset
    s_lshl_b32 s33, s30, 10
    ; o fragments: token tile = 2*rb + (w>>1), a = w&1
    s_lshr_b32 s34, s30, 1
    s_lshl1_add_u32 s34, s24, s34
    s_and_b32 s35, s30, 1
    v_and_b32 v6, 15, v1             ; t
    v_lshrrev_b32 v7, 4, v1          ; kg
    s_lshl_b32 s36, s35, 4
    v_add_u32 v8, s36, v6            ; 16a + t
    v_lshlrev_b32 v9, 9, v7
    v_lshl_add_u32 v9, v8, 4, v9     ; main voffset: kg*512 + (16a+t)*16
    v_lshlrev_b32 v10, 9, v7
    v_lshl_add_u32 v10, v8, 2, v10   ; rem voffset: 4*kg*128 + (16a+t)*4
    s_lshl_b32 s36, s34, 15
    s_add_u32 s36, s36, {WS_OM}
    s_lshl_b32 s37, s34, 12
    s_add_u32 s37, s37, {WS_OR}
    ; final layout: row = 64rb + 16w + (l>>3) (+8), 16B unit l&7
    s_lshl_b32 s38, s24, 6
    s_lshl4_add_u32 s38, s30, s38
    v_lshrrev_b32 v11, 3, v1
    v_add_u32 v11, s38, v11          ; row
    v_mul_u32_u24 v12, 1152, v11
    v_and_b32 v4, 7, v1
    v_lshl_add_u32 v12, v4, 4, v12
    v_add_u32 v12, s32, v12          ; x/out voffset
    v_add_u32 v13, 9216, v12
    v_lshlrev_b32 v14, 2, v11
    s_waitcnt lgkmcnt(0)
    s_load_dwordx2 s[40:41], s[16:17], {WS_SEL & 0xfffff}
    """.replace(f"s_load_dwordx2 s[40:41], s[16:17], {WS_SEL & 0xfffff}",
                f"s_add_u32 s42, s16, {WS_SEL}\ns_addc_u32 s43, s17, 0\ns_load_dwordx2 s[40:41], s[42:43], 0"))
    srd(a, 4, 4, 5, XB)
    srd(a, 8, 8, 9, WOB)
    srd(a, 12, 12, 13, XB)
    srd(a, 16, 16, 17, WS_END)
    for i in range(18):
        a(f"s_add_u32 m0, s33, {i*4096}")
        a(f"s_add_u32 s39, s32, {i*32*1152}")
        a("buffer_load_dwordx4 v3, s[8:11], s39 offen lds")
    OF = 32
    for s in range(16):
        if s % 2 == 0: a(f"s_add_u32 s39, s36, {s*2048}")
        a(f"buffer_load_dwordx4 {vr(OF+4*s,4)}, v9, s[16:19], s39 offen offset:{(s%2)*2048}")
    for s in range(2):
        for i in range(4):
            a(f"buffer_load_dword v{OF+64+4*s+i}, v10, s[16:19], s37 offen offset:{s*2048+i*128}")
    a(f"""
    buffer_load_dwordx4 v[16:19], v12, s[4:7], 0 offen
    buffer_load_dwordx4 v[20:23], v13, s[4:7], 0 offen
    s_mov_b32 s39, {WS_G}
    buffer_load_dword v24, v14, s[16:19], s39 offen
    buffer_load_dword v25, v14, s[16:19], s39 offen offset:32
    """)
    a(f"""
    v_bfe_u32 v2, v1, 2, 2           ; r
    v_and_b32 v3, 3, v1              ; c
    v_lshrrev_b32 v4, 5, v1          ; kg>>1
    v_bfe_u32 v5, v1, 4, 1           ; hh
    v_mul_u32_u24 v6, 18, v4
    v_lshl_add_u32 v6, v5, 2, v6
    v_add_u32 v6, v6, v2
    v_lshlrev_b32 v6, 7, v6
    v_lshl_or_b32 v6, v3, 5, v6
    v_bfe_u32 v8, v1, 3, 1           ; r>>1
    v_xor_b32 v9, v8, v4
    v_lshl_or_b32 v26, v9, 4, v6
    v_xor_b32 v27, 16, v26
    v_lshl_add_u32 v6, v7, 2, v8
    v_mul_u32_u24 v6, 18, v6
    v_and_b32 v9, 1, v2
    v_add3_u32 v6, v6, v9, 16
    v_lshlrev_b32 v6, 7, v6
    v_lshl_or_b32 v6, v3, 5, v6
    v_lshl_or_b32 v28, v8, 4, v6
    v_xor_b32 v29, 16, v28
    v_add_u32 v30, 36864, v26
    v_add_u32 v31, 36864, v27
    s_waitcnt vmcnt(28) lgkmcnt(0)
    s_barrier
    """)
    ACC = 112; W = [128, 144]
    def wreads(s):
        p = s & 1
        for n in range(4):
            for m in range(2):
                if s < 16:
                    reg = (26 if s < 8 else 30) + (n >> 1); off = (36 * (s % 8) + 8 * m) * 128 + 8 * (n & 1)
                else:
                    reg = 28 + (n >> 1); off = (18 * (16 * (s - 16) + 2 * m)) * 128 + 8 * (n & 1)
                a(f"ds_read_b64_tr_b16 {vr(W[p]+4*n+2*m,2)}, v{reg} offset:{off}")
    wreads(0)
    for s in range(18):
        if s < 17:
            wreads(s + 1)
        vm = 27 - s if s < 16 else (8 if s == 16 else 4)
        a(f"s_waitcnt vmcnt({vm}) lgkmcnt({8 if s < 17 else 0})")
        for n in range(4):
            a(mf16(ACC + 4 * n, W[s & 1] + 4 * n, OF + 4 * s, 0 if s == 0 else None))
    a(f"""
    s_lshl_b32 s39, s30, 11
    s_add_u32 s39, s39, {L_T}
    v_and_b32 v6, 15, v1
    v_lshlrev_b32 v2, 7, v6
    v_lshlrev_b32 v3, 1, v7
    v_and_b32 v4, 7, v6
    v_xor_b32 v3, v3, v4
    v_lshl_or_b32 v2, v3, 4, v2
    v_add_u32 v2, s39, v2
    v_xor_b32 v3, 16, v2
    v_lshrrev_b32 v4, 3, v1
    v_and_b32 v5, 7, v1
    v_xor_b32 v5, v5, v4
    v_lshlrev_b32 v4, 7, v4
    v_lshl_or_b32 v4, v5, 4, v4
    v_add_u32 v4, s39, v4
    """)
    for n in range(4):
        a(f"v_cvt_pk_bf16_f32 v{32+2*n}, v{ACC+4*n}, v{ACC+4*n+1}")
        a(f"v_cvt_pk_bf16_f32 v{33+2*n}, v{ACC+4*n+2}, v{ACC+4*n+3}")
    a(f"""
    ds_write_b128 v2, v[32:35]
    ds_write_b128 v3, v[36:39]
    s_waitcnt lgkmcnt(0)
    ds_read_b128 v[32:35], v4
    ds_read_b128 v[36:39], v4 offset:1024
    s_waitcnt vmcnt(0)
    """)
    for i in range(8):
        a(f"v_lshlrev_b32 v{48+2*i}, 16, v{16+i}")
        a(f"v_and_b32 v{49+2*i}, 0xffff0000, v{16+i}")
    for t in range(2):
        a(f"""
        s_and_b32 s42, s{40+t}, 0x7ff
        s_sub_u32 s42, 2047, s42
        s_sub_u32 s43, s42, s38
        s_cmp_ge_u32 s43, 16
        s_cbranch_scc1 k3_not{t}
        v_and_b32 v5, 7, v1
        v_lshlrev_b32 v5, 5, v5
        s_lshl_b32 s44, s25, 8
        s_add_u32 s44, s44, {WS_Y + t*2304}
        """)
        for rep in range(8):
            a(f"buffer_load_dwordx4 {vr(64+8*rep,4)}, v5, s[16:19], s44 offen")
            a(f"buffer_load_dwordx4 {vr(68+8*rep,4)}, v5, s[16:19], s44 offen offset:16")
            a("s_add_u32 s44, s44, 4608")
        a(f"""
        s_and_b32 s45, s{40+t}, 0xfffff800
        s_xor_b32 s46, s45, 0x80000000
        s_not_b32 s47, s45
        s_bitcmp1_b32 s45, 31
        s_cselect_b32 s45, s46, s47
        v_mov_b32 v6, s45
        """)
        rne_bf16(a, 6); sigmoid(a, 6); rne_bf16(a, 6)
        a("s_waitcnt vmcnt(0)")
        for rep in range(1, 8):
            for i in range(8):
                a(f"v_add_f32 v{64+i}, v{64+i}, v{64+8*rep+i}")
        for i in range(8):
            rne_bf16(a, 64 + i)
            a(f"v_mul_f32 v{64+i}, v{64+i}, v6")
            rne_bf16(a, 64 + i)
        for hf in range(2):
            a(f"""
            v_add_u32 v5, {8*hf}, v11
            v_cmp_eq_u32 vcc, s42, v5
            s_and_saveexec_b64 s[48:49], vcc
            """)
            for i in range(8):
                a(f"v_add_f32 v{48+8*hf+i}, v{48+8*hf+i}, v{64+i}")
                rne_bf16(a, 48 + 8 * hf + i)
            a("s_mov_b64 exec, s[48:49]")
        a(f"k3_not{t}:")
    a("v_sub_f32 v26, 1.0, v24\nv_sub_f32 v27, 1.0, v25")
    rne_bf16(a, 26); rne_bf16(a, 27)
    a("s_waitcnt lgkmcnt(0)")
    for i in range(8):
        hf = i // 4
        a(f"""
        v_lshlrev_b32 v64, 16, v{32+i}
        v_and_b32 v65, 0xffff0000, v{32+i}
        v_mul_f32 v64, v64, v{24+hf}
        v_mul_f32 v65, v65, v{24+hf}
        v_mul_f32 v66, v{48+2*i}, v{26+hf}
        v_mul_f32 v67, v{49+2*i}, v{26+hf}
        v_cvt_pk_bf16_f32 v64, v64, v65
        v_cvt_pk_bf16_f32 v66, v66, v67
        v_and_b32 v65, 0xffff0000, v64
        v_lshlrev_b32 v64, 16, v64
        v_and_b32 v67, 0xffff0000, v66
        v_lshlrev_b32 v66, 16, v66
        v_add_f32 v64, v64, v66
        v_add_f32 v65, v65, v67
        v_cvt_pk_bf16_f32 v{32+i}, v64, v65
        """)
    a("""
    buffer_store_dwordx4 v[32:35], v12, s[12:15], 0 offen
    buffer_store_dwordx4 v[36:39], v13, s[12:15], 0 offen
k3_end:
    s_endpgm
    """)
    return descriptor("k3_kernel", 160), L_T + 4 * 2048

def build(extra_empty=0):
    a = Asm()
    a('.amdgcn_target "amdgcn-amd-amdhsa--gfx950"\n.text')
    d1 = gen_k1(a)
    dm, lm = gen_km(a)
    d2, l2 = gen_k2(a)
    d3, l3 = gen_k3(a)
    descs = [d1, dm, d2, d3]
    launches = [("k1_kernel", 256, 256, 131072), ("km_kernel", 144, 512, lm), ("k2_kernel", 256, 512, l2), ("k3_kernel", 288, 256, l3)]
    if extra_empty:
        kernel_begin(a, "k0_kernel")
        a("s_endpgm")
        descs.append(descriptor("k0_kernel", 8))
        launches = launches + [("k0_kernel", 256, 256, 0)] * extra_empty
    hdr = HEADER + "".join(f"; @launch kernel={k} grid=({g},1,1) block=({b},1,1) lds={l}\n" for k, g, b, l in launches)
    return hdr + a.text() + '.section .rodata,"a"\n' + "".join(descs)

if __name__ == "__main__":
    out = sys.argv[1]
    open(out, "w").write(build(int(sys.argv[2]) if len(sys.argv) > 2 else 0))
```

```python
import sys, math
from gen_common import *

NAME = "gated_mix__mha_block__moe_arch_mod__prompt_kernel"
XB = 2359296; WB = 1990656; WOB = 663552; WGB = 5308416
QSCALE = (18 ** -0.5) * math.log2(math.e)
JS = 884736; HS = 27648
WS_GLB = 0; WS_LOC = 0x700000
WS_OG = 0xE00000; WS_OL = 0x1040000
O_REM = 0x200000
WS_FG1 = 0x1280000
WS_FL1 = 0x1288000
WS_FL2 = 0x1289000
WS_KEY = 0x128B000
WS_SEL = 0x128B400
WS_G = 0x128C000
WS_Y = 0x128E000
WS_END = 0x1298000
KV0 = 9216; SLOT = 18432; L_QS = KV0 + 7 * SLOT; MISC = 156672
M_CNT = MISC; M_DONE = MISC + 4; M_BAD = MISC + 8; M_SEL = MISC + 16
M_P = MISC + 256; M_H = MISC + 2304; M_Y = MISC + 2816
L_CB = KV0; L_WO = 29696; L_A0 = 8192; L_A1 = 122368; AS = 336
LDS_BYTES = 163840
SPIN = 1 << 16
pX, pW, pWO, pWR, pWG, pWU, pWD, pGW, pOUT, pDBG, pWS = 32, 34, 36, 40, 42, 44, 46, 48, 50, 52, 54
sWAVE, sJ, sM, sMODE, sREG = 3, 4, 5, 6, 7
RW = "s[16:19]"
RD = "s[20:23]"

def mf32(d, a, b, c=None):
    cs = vr(d, 16) if c is None else ("0" if c == 0 else vr(c, 16))
    return f"v_mfma_f32_32x32x16_bf16 {vr(d,16)}, {vr(a,4)}, {vr(b,4)}, {cs}"
def mf16(d, a, b, c=None):
    cs = vr(d, 4) if c is None else ("0" if c == 0 else vr(c, 4))
    return f"v_mfma_f32_16x16x32_bf16 {vr(d,4)}, {vr(a,4)}, {vr(b,4)}, {cs}"
def rne_bf16(a, v):
    a(f"v_cvt_pk_bf16_f32 v{v}, v{v}, v{v}")
    a(f"v_and_b32 v{v}, 0xffff0000, v{v}")
def sigmoid(a, v):
    a(f"v_mul_f32 v{v}, {f32bits(-math.log2(math.e))}, v{v}")
    a(f"v_exp_f32 v{v}, v{v}")
    a("s_nop 0")
    a(f"v_add_f32 v{v}, 1.0, v{v}")
    a(f"v_rcp_f32 v{v}, v{v}")
    a("s_nop 0")
_uid = [0]
def uid(p):
    _uid[0] += 1
    return f"L_{p}{_uid[0]}"
def poll(a, load, check, sleep=0, preloaded=False):
    l = uid("poll"); e = uid("ok"); c = uid("chk")
    a(f"s_mov_b32 s30, {SPIN}")
    if preloaded: a(f"s_branch {c}")
    a(f"{l}:")
    a(load)
    if preloaded: a(f"{c}:")
    a("s_waitcnt vmcnt(0) lgkmcnt(0)")
    a(check)
    a(f"s_cbranch_vccz {e}")
    if sleep: a(f"s_sleep {sleep}")
    a(f"s_sub_u32 s30, s30, 1\ns_cmp_lg_u32 s30, 0\ns_cbranch_scc1 {l}")
    a(f"{e}:")
def regaddr(a, t0): a(f"v_and_b32 v{t0}, 7, v1\nv_lshlrev_b32 v{t0}, 5, v{t0}")
def regload(t0, t1): return f"buffer_load_dword v{t1}, v{t0}, {RD}, 0 offen sc1"
def regwait(a, t0, t1, preloaded=False, sleep=0):
    if not preloaded: regaddr(a, t0)
    poll(a, regload(t0, t1),
         f"v_readlane_b32 s31, v{t1}, s{sJ}\nv_and_b32 v{t1}, 63, v{t1}\nv_cmp_ne_u32 vcc, 32, v{t1}", preloaded=preloaded, sleep=sleep)
    a(f"s_lshl_b32 s30, s{sREG}, 5\ns_cmp_eq_u32 s30, s31\ns_cselect_b32 s{sMODE}, 1, 0")
def wave_max_u32(a, v, t, sdst):
    for mode in ("quad_perm:[1,0,3,2]", "quad_perm:[2,3,0,1]", "row_half_mirror", "row_mirror"):
        a("s_nop 1")
        a(f"v_max_u32_dpp v{v}, v{v}, v{v} {mode} row_mask:0xf bank_mask:0xf")
    for sw in ("v_permlane16_swap_b32", "v_permlane32_swap_b32"):
        a(f"v_mov_b32 v{t}, v{v}\ns_nop 1\n{sw} v{t}, v{v}\ns_nop 1\nv_max_u32 v{v}, v{t}, v{v}")
    a("s_nop 0")
    a(f"v_readfirstlane_b32 s{sdst}, v{v}")
def top2(a, K, T, so):
    a(f"""
    v_min_u32 v{T}, v{K}, v{K+2}
    v_max_u32 v{K}, v{K}, v{K+2}
    v_max3_u32 v{K+1}, v{T}, v{K+1}, v{K+3}
    v_mov_b32 v{K+2}, v{K}
    """)
    wave_max_u32(a, K + 2, T, so)
    a(f"v_cmp_eq_u32 vcc, v{K+2}, v{K}\ns_nop 1\nv_cndmask_b32 v{K+2}, v{K}, v{K+1}, vcc")
    wave_max_u32(a, K + 2, T, so + 1)

aK, aKR, aV, vINC, IDX, vXO, vROW, vG, XD = 2, 3, 4, 5, 6, 7, 8, 9, 12
QM, QR, KR, KM, V, O, S = 16, 24, 26, 28, 32, 40, [72, 104]
T0 = 136

def final_addr(a):
    a(f"""
    v_mul_u32_u24 v{vROW}, 7282, v0
    v_lshrrev_b32 v{vROW}, 16, v{vROW}
    v_mul_u32_u24 v10, 9, v{vROW}
    v_sub_u32 v10, v0, v10
    s_and_b32 s24, s{sM}, 3
    s_lshl2_add_u32 s24, s{sJ}, s24
    s_lshl_b32 s24, s24, 6
    s_lshr_b32 s25, s{sM}, 2
    s_mul_i32 s25, s25, 144
    v_add_u32 v11, s24, v{vROW}
    v_mul_u32_u24 v{vXO}, 1152, v11
    v_lshl_add_u32 v{vXO}, v10, 4, v{vXO}
    v_add_u32 v{vXO}, s25, v{vXO}
    v_lshl_or_b32 v{vROW}, v10, 8, v{vROW}
    v_lshlrev_b32 v{vG}, 2, v11
    """)
def final_loads(a):
    a(f"""
    s_mov_b32 s24, {WS_G}
    buffer_load_dwordx4 {vr(XD,4)}, v{vXO}, s[8:11], 0 offen
    buffer_load_dword v{vG}, v{vG}, {RW}, s24 offen sc1
    """)

def gen(o={}):
    a = Asm()
    a('.amdgcn_target "amdgcn-amd-amdhsa--gfx950"\n.text')
    kernel_begin(a, NAME)
    a(f"""
    s_cmp_ge_u32 s2, 256
    s_cbranch_scc1 L_end
    s_load_dwordx16 s[32:47], s[0:1], 0
    s_load_dwordx8 s[48:55], s[0:1], 64
    v_lshrrev_b32 v2, 6, v0
    v_and_b32 v1, 63, v0
    s_and_b32 s{sJ}, s2, 7
    v_readfirstlane_b32 s{sWAVE}, v2
    s_lshr_b32 s{sM}, s2, 3
    s_getreg_b32 s24, hwreg(HW_REG_XCC_ID)
    s_and_b32 s24, s24, 15
    s_mul_i32 s25, s24, s24
    s_lshl_b32 s25, s25, 10
    s_add_u32 s25, s25, s24
    s_lshl_b32 s25, s25, 6
    s_add_u32 s{sREG}, s25, 1
    s_mov_b32 s18, {WS_END}
    s_mov_b32 s19, 0x00020000
    s_mov_b32 s22, 256
    s_mov_b32 s23, 0x00020000
    s_mov_b32 s11, 0x00020000
    s_cmp_ge_u32 s{sWAVE}, 8
    s_cbranch_scc1 L_service
    s_cmp_ge_u32 s{sM}, 28
    s_cbranch_scc1 L_spare_ld
    """)
    a(f"""
    s_and_b32 s26, s{sM}, 1
    s_lshl2_add_u32 s27, s26, s{sJ}
    s_cmp_ge_u32 s27, 9
    s_cselect_b32 s28, 9, 0
    s_sub_u32 s27, s27, s28
    {"s_mov_b32 s27, 0" if o.get("norot") else ""}
    v_lshrrev_b32 v13, 4, v1
    s_lshl_b32 s29, s{sWAVE}, 12
    s_cmp_ge_u32 s{sWAVE}, 4
    s_cbranch_scc1 L_ldw
    s_lshl1_add_u32 s26, s{sJ}, s26    ; rb
    s_lshl2_add_u32 s26, s26, s{sWAVE}
    s_lshl_b32 s26, s26, 5
    v_lshrrev_b32 v3, 3, v1
    v_add_u32 v3, s26, v3
    v_mul_u32_u24 v3, 1152, v3
    v_and_b32 v12, 7, v1
    v_xor_b32 v12, v12, v13
    v_lshl_add_u32 v4, v12, 4, v3
    v_xor_b32 v5, 64, v4
    v_add_u32 v5, 8192, v5
    v_add_u32 v6, 16384, v4
    v_add_u32 v7, 16384, v5
    s_movk_i32 s28, 128
    s_mov_b32 s10, {XB}
    s_waitcnt lgkmcnt(0)
    s_mov_b32 s8, s{pX}
    s_mov_b32 s9, s{pX+1}
    s_branch L_ldgo
L_ldw:
    s_lshl_b32 s26, s{sWAVE}, 4
    s_sub_u32 s26, s26, 64
    v_add_u32 v3, s26, v13
    v_mul_u32_u24 v3, 3456, v3
    v_and_b32 v12, 15, v1
    v_lshlrev_b32 v14, 2, v13
    v_xor_b32 v12, v12, v14
    v_lshl_add_u32 v3, v12, 4, v3
    s_lshr_b32 s26, s{sM}, 1
    s_lshl_b32 s26, s26, 8
    v_add_u32 v4, s26, v3
    v_add_u32 v5, 12800, v4
    v_add_u32 v6, 25600, v4
    v_add_u32 v7, 38400, v4
    s_mov_b32 s28, 221184
    s_mov_b32 s10, {WB}
    s_waitcnt lgkmcnt(0)
    s_mov_b32 s8, s{pW}
    s_mov_b32 s9, s{pW+1}
L_ldgo:
    s_mul_i32 s27, s27, s28            ; soffset
    s_mul_i32 s26, s28, 9              ; wrap
    s_mov_b32 s25, 0
L_ldloop:
    s_mov_b32 m0, s29
    s_add_u32 s29, s29, 32768
    """)
    for u in range(4):
        a(f"buffer_load_dwordx4 v{4+u}, s[8:11], s27 offen offset:{u*1024} lds")
    a(f"""
    s_and_b32 s29, s29, 0x1ffff
    s_add_u32 s27, s27, s28
    s_cmp_eq_u32 s27, s26
    s_cselect_b32 s27, 0, s27
    s_add_u32 s25, s25, 1
    s_cmp_lt_u32 s25, 3
    s_cbranch_scc1 L_ldloop
    s_waitcnt vmcnt(8)
    s_barrier
    s_cmp_lt_u32 s25, 9
    s_cbranch_scc1 L_ldloop
    s_waitcnt vmcnt(4)
    s_barrier
    s_waitcnt vmcnt(0)
    s_barrier
    s_mov_b32 s16, s{pWS}
    s_mov_b32 s17, s{pWS+1}
    s_branch L_att_setup
L_spare_ld:
    s_waitcnt lgkmcnt(0)
    s_mov_b32 s16, s{pWS}
    s_mov_b32 s17, s{pWS+1}
L_att_setup:
    s_mov_b32 s20, s{pDBG}
    s_mov_b32 s21, s{pDBG+1}
    s_mov_b32 s8, s{pX}
    s_mov_b32 s9, s{pX+1}
    s_mov_b32 s10, {XB}
    """)
    regaddr(a, T0 + 14); a(regload(T0 + 14, T0 + 15))
    final_addr(a)
    a(f"""
    s_lshr_b32 s12, s{sWAVE}, 2        ; kh
    s_and_b32 s13, s{sWAVE}, 3         ; qg
    s_mul_i32 s24, s12, 9216
    s_add_u32 s24, s24, {KV0}
    v_lshrrev_b32 v{T0}, 5, v1         ; hh
    v_bfe_u32 v{T0+1}, v1, 2, 2        ; r
    v_and_b32 v{T0+2}, 3, v1
    v_lshlrev_b32 v{T0+2}, 3, v{T0+2}  ; 8c
    v_bfe_u32 v{T0+3}, v1, 4, 1        ; G&1
    v_lshl_add_u32 v{T0+4}, v{T0}, 3, v{T0+1}
    v_lshl_or_b32 v{T0+4}, v{T0+4}, 5, v{T0+2}     ; (8hh+r)*32 + 8c
    v_mul_u32_u24 v{T0+5}, 1152, v{T0+3}
    v_add3_u32 v{aK}, v{T0+5}, v{T0+4}, s24
    v_and_b32 v{T0+1}, 1, v{T0+1}
    v_lshl_or_b32 v{T0+1}, v{T0+1}, 5, v{T0+2}
    v_add_u32 v{T0+1}, 512, v{T0+1}                ; (16+(r&1))*32 + 8c
    v_lshrrev_b32 v{T0+6}, 4, v1                   ; G
    v_mul_u32_u24 v{T0+5}, 1152, v{T0+6}
    v_add3_u32 v{aKR}, v{T0+5}, v{T0+1}, s24
    s_mul_i32 s25, s13, 2304
    s_add_u32 s25, s25, {L_QS}
    s_xor_b32 s26, s12, 1
    s_lshl_b32 s27, s26, 1
    v_xor_b32 v{T0+6}, s27, v{T0+6}
    v_mul_u32_u24 v{T0+5}, 576, v{T0+6}
    v_add3_u32 v{T0+10}, v{T0+5}, v{T0+1}, s25     ; q rem
    v_mul_u32_u24 v{T0+5}, 576, v{T0+3}
    v_add3_u32 v{T0+5}, v{T0+5}, v{T0+4}, s25
    s_mul_i32 s26, s26, 1152
    s_mul_i32 s27, s12, 1152
    v_add_u32 v{T0+8}, s26, v{T0+5}                ; q main a=0
    v_add_u32 v{T0+9}, s27, v{T0+5}                ; q main a=1
    v_and_b32 v{T0+1}, 31, v1
    v_lshlrev_b32 v{T0+2}, 4, v{T0}
    v_lshl_or_b32 v{T0+3}, v{T0+1}, 5, v{T0+2}
    v_xor_b32 v{T0+2}, 16, v{T0+2}
    v_lshl_add_u32 v{T0+4}, v{T0+1}, 3, v{T0+2}
    v_add_u32 v{T0+4}, 384, v{T0+4}
    v_cmp_gt_u32 vcc, 16, v{T0+1}
    s_add_u32 s24, s24, 576
    v_add_u32 v{T0+2}, 128, v{T0+2}
    v_cndmask_b32 v{T0+3}, v{T0+4}, v{T0+3}, vcc
    v_add_u32 v{T0+3}, s24, v{T0+3}
    s_mov_b32 vcc_lo, 0x0011ffff
    s_mov_b32 vcc_hi, 0x0011ffff
    v_mov_b32 v{T0+4}, {SLOT}
    v_mov_b32 v{IDX}, 0xdddddddd
    v_cndmask_b32 v{aV}, v{T0+2}, v{T0+3}, vcc
    v_cndmask_b32 v{vINC}, 0, v{T0+4}, vcc
    s_mul_i32 s24, s{sM}, 18
    s_add_u32 s25, s24, 17
    s_lshr_b32 s24, s24, 6
    s_lshr_b32 s25, s25, 6
    s_sub_u32 s25, s25, s24
    v_bfe_u32 v{T0+1}, v1, 2, 1
    v_and_b32 v{T0+1}, s25, v{T0+1}
    v_lshrrev_b32 v{T0+2}, 3, v1
    v_min_u32 v{T0+2}, 2, v{T0+2}
    v_mul_u32_u24 v{T0+2}, 9, v{T0+2}
    v_add3_u32 v{T0+1}, v{T0+1}, v{T0+2}, s24      ; col64
    v_and_b32 v{T0+2}, 3, v1                       ; b
    v_lshlrev_b32 v{T0+3}, 7, v{T0+2}
    v_lshl_or_b32 v{T0+3}, v{T0+1}, 2, v{T0+3}
    s_lshl_b32 s24, s{sJ}, 9
    s_add_u32 s24, s24, {WS_FL1}
    v_add_u32 v{T0+11}, s24, v{T0+3}
    v_and_b32 v{T0+3}, 30, v{T0+1}
    v_lshrrev_b32 v{T0+4}, 1, v{T0+2}
    v_or_b32 v{T0+3}, v{T0+3}, v{T0+4}             ; m'
    v_lshlrev_b32 v{T0+3}, 10, v{T0+3}
    v_and_b32 v{T0+2}, 1, v{T0+2}
    v_and_b32 v{T0+1}, 1, v{T0+1}
    v_lshl_or_b32 v{T0+1}, v{T0+2}, 1, v{T0+1}
    v_lshl_or_b32 v{T0+3}, v{T0+1}, 2, v{T0+3}
    s_lshl_b32 s24, s{sJ}, 7
    s_add_u32 s24, s24, {WS_FG1}
    v_add_u32 v{T0+12}, s24, v{T0+3}
    """)
    for i in range(32): a(f"v_mov_b32 v{O+i}, 0")
    for i in range(4): a(f"v_mov_b32 v{V+4+i}, 0")
    for i in range(24, 32): a(f"v_mov_b32 v{S[1]+i}, 0")
    a(f"""
    s_barrier
    s_cmp_lt_u32 s{sM}, 28
    s_cbranch_scc1 L_nopre
    s_sub_u32 s24, s{sM}, 28
    s_mul_i32 s24, s24, {JS // 4}
    s_mul_i32 s25, s{sJ}, {JS}
    s_add_u32 s24, s24, s25
    s_add_u32 s24, s24, {WS_LOC}
    v_lshlrev_b32 v{T0+1}, 7, v0
    """)
    if not o.get("nopre"):
        for i in range(4):
            if i == 3: a(f"v_min_u32 v{T0+1}, {191*128}, v{T0+1}")
            a(f"buffer_load_dword v{T0+2}, v{T0+1}, {RW}, s24 offen\ns_add_u32 s24, s24, 65536")
    a(f"""
L_nopre:
    v_lshrrev_b32 v{T0+1}, 3, v1
    v_mul_u32_u24 v{T0+1}, 1152, v{T0+1}
    v_and_b32 v{T0+2}, 7, v1
    v_lshl_add_u32 v{T0+1}, v{T0+2}, 2, v{T0+1}
    v_mov_b32 v{T0+3}, 0x3f803f80
    ds_write_b32 v{T0+1}, v{T0+3} offset:128
    """)
    regwait(a, T0 + 14, T0 + 15, preloaded=True, sleep=4)
    if o.get("slow"): a(f"s_mov_b32 s{sMODE}, 0")
    a(f"""
    s_cmp_eq_u32 s{sMODE}, 1
    s_cselect_b32 s15, {WS_LOC}, {WS_GLB}
    s_cselect_b64 vcc, -1, 0
    s_mul_i32 s24, s{sJ}, {JS}
    s_add_u32 s15, s15, s24
    s_mul_i32 s24, s{sM}, {HS}
    s_add_u32 s15, s15, s24
    v_cndmask_b32 v{T0+11}, v{T0+12}, v{T0+11}, vcc
    v_lshlrev_b32 v{T0+13}, 4, v0
    s_lshl_b32 s25, s{sWAVE}, 10
    s_add_u32 s26, s25, {L_QS - 18432 + 16384}
    s_add_u32 s25, s25, {KV0}
    s_add_u32 s27, s25, 16384
    s_cmp_lt_u32 s{sWAVE}, 2
    s_cselect_b32 s27, s27, s26
    ; STAMP 1
    """)
    poll(a, f"buffer_load_dword v{T0+2}, v{T0+11}, {RW}, 0 offen sc1", f"v_cmp_ne_u32 vcc, 1, v{T0+2}")
    a(f"""
    ; STAMP 2
    s_mov_b32 m0, s25
    s_add_u32 s24, s15, 8192
    buffer_load_dwordx4 v{T0+13}, {RW}, s15 offen sc1 lds
    s_add_u32 m0, s25, 8192
    s_add_u32 s28, s15, 16384
    buffer_load_dwordx4 v{T0+13}, {RW}, s24 offen sc1 lds
    s_mov_b32 m0, s27
    s_cmp_ge_u32 s{sWAVE}, 3
    buffer_load_dwordx4 v{T0+13}, {RW}, s28 offen sc1 lds
    s_cbranch_scc1 L_no4
    s_add_u32 m0, s26, 8192
    s_add_u32 s28, s15, 24576
    buffer_load_dwordx4 v{T0+13}, {RW}, s28 offen sc1 lds
L_no4:
    s_waitcnt vmcnt(0)
    s_barrier                          ; B0
    """)
    def toff(t): return t * 2304 if t < 4 else SLOT + (t - 4) * 2304
    def kreads(off): return [f"ds_read_b64_tr_b16 {vr(KM+2*m,2)}, v{aK} offset:{off + m*128}" for m in range(2)]
    def krread(off): return f"ds_read_b64_tr_b16 {vr(KR,2)}, v{aKR} offset:{off}"
    def vread(g, off): return f"ds_read_b128 {vr(V+4*g,4)}, v{aV} offset:{off + g*1152}"
    def m2b(Y, ab): return f"v_mfma_f32_32x32x4_2b_bf16 {vr(Y,32)}, {vr(KR,2)}, {vr(QR,2)}, {vr(Y,32)} cbsz:1 abid:{ab}"
    def smf(p, i): return f"v_smfmac_f32_32x32x32_bf16 {vr(O+16*(i>>1),16)}, {vr(V+4*(i&1),4)}, {vr(S[p]+8*i,8)}, v{IDX}"
    def exps(p, lo, hi): return [f"v_exp_f32 v{S[p]+i}, v{S[p]+i}" for i in range(lo, hi)]
    for x in kreads(0): a(x)
    for t in range(2):
        for m in range(2):
            a(f"ds_read_b64_tr_b16 {vr(QM+4*t+2*m,2)}, v{T0+8+t} offset:{m*128}")
    a(f"ds_read_b64_tr_b16 {vr(QR,2)}, v{T0+10}")
    a(krread(0))
    a("s_setprio 2\ns_mov_b32 s14, 0\ns_waitcnt lgkmcnt(2)")
    a(mf32(S[0], KM, QM, 0)); a(mf32(S[0] + 16, KM, QM + 4, 0))
    for x in kreads(toff(1)): a(x)
    a(vread(0, 0))
    a(f"s_waitcnt lgkmcnt(3)\nv_mov_b32 v{QR+1}, 0\ns_nop 4")
    a(m2b(S[0], 0))
    a("s_nop 15\ns_nop 3")
    a("; STAMP 3")
    a(".p2align 6\nL_att:")
    for u in range(4):
        p = u & 1; q = 1 - p
        seq = []
        seq += exps(p, 0, 2)
        seq += [smf(q, 3), vread(1, toff(u))]
        seq += exps(p, 2, 5)
        seq += [f"s_waitcnt lgkmcnt({3 if u & 1 else 2})", mf32(S[q], KM, QM, 0)]
        seq += exps(p, 5, 8)
        seq += [mf32(S[q] + 16, KM, QM + 4, 0), "s_waitcnt lgkmcnt(1)"]
        seq += exps(p, 8, 11)
        seq += [smf(p, 0), "s_waitcnt lgkmcnt(0)"]
        if u == 2: seq += ["s_bitcmp1_b32 11, s14"]
        if u == 3: seq += ["s_add_u32 s14, s14, 1"]
        seq += exps(p, 11, 16)
        seq += [m2b(S[q], (u + 1) & 1)]
        seq += exps(p, 16, 24)
        if u == 3:
            seq += [f"v_add_u32 v{aK}, {SLOT}, v{aK}", f"v_add_u32 v{aKR}, {SLOT}, v{aKR}", f"v_add_u32 v{aV}, v{vINC}, v{aV}"]
        seq += [smf(p, 1)]
        if u == 2: seq += ["s_cbranch_scc1 L_att_bar", "L_att_back:"]
        seq += kreads(toff(u + 2) if u < 3 else toff(1))
        seq += exps(p, 24, 27)
        seq += [smf(p, 2), vread(0, toff(u + 1) if u < 3 else 0)]
        if u % 2 == 0: seq += [krread(toff(u + 2))]
        if u == 1: seq += ["s_cmp_ge_u32 s14, 5", "s_cbranch_scc1 L_att_prio", "L_att_back2:"]
        if u == 3: seq += ["s_cmp_lt_u32 s14, 8"]
        seq += exps(p, 27, 32)
        for x in seq: a(x)
    a("s_cbranch_scc1 L_att")
    a("; STAMP 4")
    a(f"""
    s_mul_i32 s24, s{sWAVE}, 2560
    s_add_u32 s24, s24, {L_CB}
    {smf(1, 3)}
    s_mov_b32 s29, 0
L_combine:
    v_lshl_add_u32 v{T0}, v1, 4, s24
    v_lshl_add_u32 v{T0+1}, v1, 3, s24
    s_xor_b32 s25, s{sWAVE}, 4
    s_mul_i32 s25, s25, 2560
    s_add_u32 s25, s25, {L_CB}
    v_lshl_add_u32 v{T0+2}, v1, 4, s25
    v_lshl_add_u32 v{T0+3}, v1, 3, s25
    ds_write_b128 v{T0}, {vr(O,4)}
    ds_write_b128 v{T0}, {vr(O+4,4)} offset:1024
    ds_write_b64 v{T0+1}, {vr(O+8,2)} offset:2048
    v_mov_b32 v{T0+4}, {M_BAD}
    v_subrev_u32 v{T0+5}, {(127-40) << 23}, v{O+9}
    v_subrev_u32 v{T0+6}, {(127-40) << 23}, v{O+25}
    v_max_u32 v{T0+5}, v{T0+5}, v{T0+6}
    v_cmp_lt_u32 vcc, {80 << 23}, v{T0+5}
    s_cbranch_vccz L_lok
    ds_write_b32 v{T0+4}, v{IDX}
L_lok:
    s_waitcnt lgkmcnt(0)
    s_barrier                          ; BE
    ds_read_b32 v{T0+4}, v{T0+4}
    ds_read_b64 {vr(O+8,2)}, v{T0+3} offset:2048
    ds_read_b128 {vr(O,4)}, v{T0+2}
    ds_read_b128 {vr(O+4,4)}, v{T0+2} offset:1024
    s_lshl2_add_u32 s24, s{sJ}, s13
    s_lshl1_add_u32 s24, s24, s12
    s_lshl_b32 s24, s24, 5
    s_add_u32 s24, s24, s{sM}          ; tile*32 + h
    s_mul_i32 s28, s{sMODE}, {WS_OL - WS_OG}
    s_add_u32 s28, s28, {WS_OG}
    s_lshl_b32 s25, s24, 10
    s_add_u32 s25, s25, s28
    s_lshl_b32 s26, s24, 7
    s_add_u32 s26, s26, s28
    s_add_u32 s26, s26, {O_REM}
    s_lshl_b32 s27, s24, 2
    s_add_u32 s27, s27, {WS_FL2}
    v_lshlrev_b32 v{T0}, 4, v1
    v_and_b32 v{T0+1}, 31, v1
    v_lshrrev_b32 v{T0+5}, 5, v1
    v_lshl_or_b32 v{T0+1}, v{T0+1}, 1, v{T0+5}
    v_lshlrev_b32 v{T0+1}, 1, v{T0+1}
    s_waitcnt lgkmcnt(2)
    v_cmp_lt_u32 vcc, s29, v{T0+4}
    v_add_f32 v{O+9}, v{O+9}, v{O+25}
    s_cbranch_vccnz L_fallback
    v_rcp_f32 v{O+10}, v{O+9}
    v_add_f32 v{O+8}, v{O+8}, v{O+24}
    s_waitcnt lgkmcnt(0)
    """)
    for i in range(0, 8, 2): a(f"v_pk_add_f32 {vr(O+i,2)}, {vr(O+i,2)}, {vr(O+16+i,2)}")
    a(f"v_mul_f32 v{O+8}, v{O+8}, v{O+10}")
    for i in range(0, 8, 2): a(f"v_pk_mul_f32 {vr(O+i,2)}, {vr(O+i,2)}, {vr(O+10,2)} op_sel_hi:[1,0]")
    for i in range(4): a(f"v_cvt_pk_bf16_f32 v{O+i}, v{O+2*i}, v{O+2*i+1}")
    a(f"""
    v_cvt_pk_bf16_f32 v{O+4}, v{O+8}, v{O+8}
    v_mov_b32 v{T0+6}, 1
    v_mov_b32 v{T0+7}, 0
    s_cmp_eq_u32 s{sMODE}, 1
    s_cbranch_scc0 L_ostore_g
    buffer_store_dwordx4 {vr(O,4)}, v{T0}, {RW}, s25 offen
    buffer_store_short v{O+4}, v{T0+1}, {RW}, s26 offen
    s_mov_b64 exec, 1
    s_waitcnt vmcnt(0)
    buffer_store_dword v{T0+6}, v{T0+7}, {RW}, s27 offen
L_ostored:
    s_mov_b64 exec, -1
    """)
    OF = 72; ACC = 108; W = [128, 148]
    a(f"""
    s_and_b32 s24, s{sM}, 3
    s_lshl2_add_u32 s24, s{sJ}, s24
    s_lshr_b32 s25, s13, 1
    s_lshl1_add_u32 s24, s24, s25
    s_lshl1_add_u32 s24, s24, s12
    s_lshl_b32 s24, s24, 4
    s_lshl_b32 s25, s24, 10
    s_add_u32 s25, s25, s28
    s_lshl_b32 s26, s24, 7
    s_add_u32 s26, s26, s28
    s_add_u32 s26, s26, {O_REM}
    s_lshl_b32 s27, s24, 2
    s_add_u32 s27, s27, {WS_FL2}
    v_and_b32 v16, 15, v1              ; t
    v_lshlrev_b32 v17, 2, v16
    v_lshrrev_b32 v18, 4, v1           ; kg
    s_and_b32 s24, s13, 1
    s_lshl_b32 s24, s24, 4
    v_add_u32 v19, s24, v16
    v_lshlrev_b32 v20, 9, v18
    v_lshl_add_u32 v21, v19, 2, v20
    v_lshl_add_u32 v20, v19, 4, v20
    """)
    poll(a, f"buffer_load_dword v22, v17, {RW}, s27 offen sc1", "v_cmp_ne_u32 vcc, 1, v22")
    a("; STAMP 5")
    for s in range(8):
        a(f"buffer_load_dwordx4 {vr(OF+4*s,4)}, v20, {RW}, s25 offen offset:{(s%2)*2048} sc1")
        if s % 2: a("s_add_u32 s25, s25, 4096")
    for i in range(4):
        a(f"buffer_load_dword v{OF+32+i}, v21, {RW}, s26 offen offset:{i*128} sc1")
    a(f"""
    v_bfe_u32 v22, v1, 2, 2            ; r
    v_and_b32 v23, 3, v1
    v_lshlrev_b32 v23, 3, v23          ; 8c
    v_lshrrev_b32 v24, 5, v1
    v_mul_u32_u24 v24, 18, v24
    v_bfe_u32 v25, v1, 4, 1
    v_lshl_add_u32 v24, v25, 2, v24
    v_add_u32 v24, v24, v22
    v_mul_u32_u24 v24, 160, v24
    s_mul_i32 s24, s12, {288*160}
    s_add_u32 s24, s24, {L_WO}
    v_add3_u32 v26, v24, v23, s24
    v_lshrrev_b32 v24, 1, v22
    v_lshl_add_u32 v24, v18, 2, v24
    v_mul_u32_u24 v24, 18, v24
    v_and_b32 v25, 1, v22
    v_add3_u32 v24, v24, v25, 16
    v_mul_u32_u24 v24, 160, v24
    v_add3_u32 v27, v24, v23, s24
    s_lshl_b32 s24, s13, 4
    v_add_u32 v24, s24, v16
    v_mul_u32_u24 v24, {AS}, v24
    s_mul_i32 s24, s12, {L_A1 - L_A0}
    s_add_u32 s24, s24, {L_A0}
    v_lshlrev_b32 v25, 4, v18
    v_add3_u32 v28, v24, v25, s24
    s_barrier
    """)
    def wreads(s):
        for n in range(5):
            for m in range(2):
                reg, off = (26, (36 * s + 8 * m) * 160 + 32 * n) if s < 8 else (27, 36 * m * 160 + 32 * n)
                a(f"ds_read_b64_tr_b16 {vr(W[s&1]+4*n+2*m,2)}, v{reg} offset:{off}")
    wreads(0)
    for s in range(9):
        if s < 8: wreads(s + 1)
        a(f"s_waitcnt vmcnt({11 - s if s < 8 else 0}) lgkmcnt({10 if s < 8 else 0})")
        for n in range(5):
            a(mf16(ACC + 4 * n, W[s & 1] + 4 * n, OF + 4 * s, 0 if s == 0 else None))
    a("s_nop 3")
    for n in range(5):
        if n == 0: a("s_nop 0")
        a(f"ds_write_b128 v28, {vr(ACC+4*n,4)} offset:{64*n}")
        if n < 4: a("s_nop 0")
    a(f"""
L_final:
    v_and_b32 v16, 0xff, v{vROW}
    v_lshrrev_b32 v17, 8, v{vROW}
    v_mul_u32_u24 v18, {AS}, v16
    v_lshl_add_u32 v18, v17, 5, v18
    v_add_u32 v19, {L_A1}, v18
    v_mov_b32 v20, {M_SEL}
    s_and_b32 s24, s{sM}, 3
    s_lshl2_add_u32 s24, s{sJ}, s24
    s_lshl_b32 s24, s24, 6
    s_mov_b32 s8, s{pOUT}
    s_mov_b32 s9, s{pOUT+1}
    s_waitcnt lgkmcnt(0)
    s_barrier                          ; BA
    ; STAMP 6
    ds_read_b64 v[20:21], v20
    ds_read_b128 v[24:27], v18 offset:{L_A0}
    ds_read_b128 v[32:35], v19
    ds_read_b128 v[28:31], v18 offset:{L_A0 + 16}
    ds_read_b128 v[36:39], v19 offset:16
    """)
    for i in range(4):
        a(f"v_lshlrev_b32 v{40+2*i}, 16, v{XD+i}\nv_and_b32 v{41+2*i}, 0xffff0000, v{XD+i}")
    a(f"v_sub_f32 v10, 1.0, v{vG}")
    rne_bf16(a, 10)
    a(f"""
    v_add_u32 v16, s24, v16
    v_sub_u32 v16, 2047, v16
    s_waitcnt lgkmcnt(4)
    v_and_b32 v20, 0x7ff, v20
    v_and_b32 v21, 0x7ff, v21
    v_cmp_eq_u32 s[26:27], v20, v16
    v_cmp_eq_u32 vcc, v21, v16
    s_or_b64 s[26:27], s[26:27], vcc
    s_cbranch_scc1 L_routed
L_mix:
    v_mov_b32 v8, v{vG}
    s_waitcnt lgkmcnt(0)
    """)
    for i in range(0, 8, 2): a(f"v_pk_add_f32 {vr(24+i,2)}, {vr(24+i,2)}, {vr(32+i,2)}")
    for i in range(0, 8, 2): a(f"v_pk_mul_f32 {vr(40+i,2)}, {vr(40+i,2)}, v[10:11] op_sel_hi:[1,0]")
    for i in range(4): a(f"v_cvt_pk_bf16_f32 v{32+i}, v{24+2*i}, v{25+2*i}")
    for i in range(4): a(f"v_cvt_pk_bf16_f32 v{36+i}, v{40+2*i}, v{41+2*i}")
    for i in range(4): a(f"v_lshlrev_b32 v{24+2*i}, 16, v{32+i}\nv_and_b32 v{25+2*i}, 0xffff0000, v{32+i}")
    for i in range(0, 8, 2): a(f"v_pk_mul_f32 {vr(24+i,2)}, {vr(24+i,2)}, v[8:9]")
    for i in range(4): a(f"v_lshlrev_b32 v{40+2*i}, 16, v{36+i}\nv_and_b32 v{41+2*i}, 0xffff0000, v{36+i}")
    for i in range(4): a(f"v_cvt_pk_bf16_f32 v{32+i}, v{24+2*i}, v{25+2*i}")
    for i in range(4): a(f"v_lshlrev_b32 v{24+2*i}, 16, v{32+i}\nv_and_b32 v{25+2*i}, 0xffff0000, v{32+i}")
    for i in range(0, 8, 2): a(f"v_pk_add_f32 {vr(24+i,2)}, {vr(24+i,2)}, {vr(40+i,2)}")
    for i in range(4): a(f"v_cvt_pk_bf16_f32 v{32+i}, v{24+2*i}, v{25+2*i}")
    a(f"""
    buffer_store_dwordx4 v[32:35], v{vXO}, s[8:11], 0 offen
L_end:
    s_endpgm
    """)
    a(f"""
L_att_bar:
    s_barrier                          ; B1 / B2 / B3
    s_cmp_lg_u32 s14, 3
    s_cbranch_scc1 L_att_back
    """)
    final_loads(a)
    a(f"""
    s_branch L_att_back
L_att_prio:
    s_setprio 1
    s_cmp_lt_u32 s14, 7
    s_cbranch_scc1 L_att_back2
    s_setprio 0
    s_branch L_att_back2
L_ostore_g:
    buffer_store_dwordx4 {vr(O,4)}, v{T0}, {RW}, s25 offen sc1
    buffer_store_short v{O+4}, v{T0+1}, {RW}, s26 offen sc1
    s_mov_b64 exec, 1
    s_waitcnt vmcnt(0)
    buffer_store_dword v{T0+6}, v{T0+7}, {RW}, s27 offen sc1
    s_branch L_ostored
L_routed:
    v_lshlrev_b32 v17, 5, v17
    v_add_u32 v22, {M_Y + 320}, v17
    v_add_u32 v17, {M_Y}, v17
    v_cndmask_b32 v17, v17, v22, vcc
    ds_read_b128 v[48:51], v17
    ds_read_b128 v[52:55], v17 offset:16
    s_mov_b64 exec, s[26:27]
    s_waitcnt lgkmcnt(0)
    """)
    for i in range(8):
        a(f"v_add_f32 v{40+i}, v{40+i}, v{48+i}")
        rne_bf16(a, 40 + i)
    a("s_mov_b64 exec, -1\ns_branch L_mix")
    M0r, M1r = T0 + 8, T0 + 9
    def slow_qk():
        for x in kreads(0): a(x)
        a(krread(0))
    a(f"""
L_fallback:
    s_waitcnt lgkmcnt(0)
    s_barrier
    s_barrier
    s_mul_i32 s24, s12, 9216
    s_add_u32 s24, s24, {8 * SLOT}
    v_subrev_u32 v{aK}, s24, v{aK}
    v_subrev_u32 v{aKR}, s24, v{aKR}
    v_lshlrev_b32 v{T0}, 3, v{vINC}
    v_sub_u32 v{aV}, v{aV}, v{T0}
    v_mov_b32 v{M0r}, 0xff800000
    v_mov_b32 v{M1r}, 0xff800000
    s_mov_b32 s14, 0
L_fb_max:
    """)
    for t in range(2):
        for x in kreads(t * 2304): a(x)
        if t == 0: a(krread(0))
        a("s_waitcnt lgkmcnt(0)")
        a(mf32(S[0], KM, QM, 0)); a(mf32(S[0] + 16, KM, QM + 4, 0))
        a("s_nop 9"); a(m2b(S[0], t)); a("s_nop 15\ns_nop 3")
        for i in range(0, 16, 2):
            a(f"v_max3_f32 v{M0r}, v{S[0]+i}, v{S[0]+i+1}, v{M0r}")
            a(f"v_max3_f32 v{M1r}, v{S[0]+16+i}, v{S[0]+17+i}, v{M1r}")
    a(f"""
    v_add_u32 v{aK}, 4608, v{aK}
    v_add_u32 v{aKR}, 4608, v{aKR}
    s_add_u32 s14, s14, 1
    s_cmp_lt_u32 s14, 32
    s_cbranch_scc1 L_fb_max
    v_mov_b32 v{T0}, v{M0r}
    v_mov_b32 v{T0+1}, v{M1r}
    s_mul_i32 s24, s12, 9216
    s_sub_u32 s24, {8 * SLOT}, s24
    v_permlane32_swap_b32 v{T0}, v{M0r}
    v_permlane32_swap_b32 v{T0+1}, v{M1r}
    v_subrev_u32 v{aK}, s24, v{aK}
    v_subrev_u32 v{aKR}, s24, v{aKR}
    v_max_f32 v{M0r}, v{T0}, v{M0r}
    v_max_f32 v{M1r}, v{T0+1}, v{M1r}
    """)
    for i in range(32): a(f"v_mov_b32 v{O+i}, 0")
    a("s_mov_b32 s14, 0\nL_fb_pv:")
    for t in range(4):
        for x in kreads(t * 2304): a(x)
        if t % 2 == 0: a(krread(t * 2304))
        a(vread(0, t * 2304)); a(vread(1, t * 2304))
        a("s_waitcnt lgkmcnt(0)")
        a(mf32(S[0], KM, QM, 0)); a(mf32(S[0] + 16, KM, QM + 4, 0))
        a("s_nop 9"); a(m2b(S[0], t & 1)); a("s_nop 15\ns_nop 3")
        for i in range(32):
            a(f"v_sub_f32 v{S[0]+i}, v{S[0]+i}, v{M0r + (i >> 4)}")
        for x in exps(0, 0, 32): a(x)
        a("s_nop 1")
        for i in range(4): a(smf(0, i))
    a(f"""
    v_add_u32 v{aK}, {SLOT}, v{aK}
    v_add_u32 v{aKR}, {SLOT}, v{aKR}
    v_add_u32 v{aV}, v{vINC}, v{aV}
    s_add_u32 s14, s14, 1
    s_cmp_lt_u32 s14, 8
    s_cbranch_scc1 L_fb_pv
    s_mul_i32 s24, s{sWAVE}, 2560
    s_add_u32 s24, s24, {L_CB}
    s_mov_b32 s29, -1
    s_nop 7
    s_barrier
    s_branch L_combine
    """)
    ACC1 = 64; FR = 32
    a(f"""
L_service:
    s_setprio 3
    v_mov_b32 v7, 0
    s_sub_u32 s12, s{sWAVE}, 8         ; sw
    s_lshr_b32 s13, s12, 1             ; wm
    s_and_b32 s14, s12, 1              ; wn
    s_cmp_lg_u32 s12, 0
    s_waitcnt lgkmcnt(0)
    s_mov_b32 s16, s{pWS}
    s_mov_b32 s17, s{pWS+1}
    s_mov_b32 s20, s{pDBG}
    s_mov_b32 s21, s{pDBG+1}
    s_cbranch_scc1 L_noclear
    s_mul_i32 s24, s2, 144
    s_add_u32 s24, s24, {WS_Y - 96}
    v_min_u32 v3, 59, v1
    v_lshl_add_u32 v3, v3, 2, s24
    s_lshl_b32 s24, s{sJ}, 7
    s_add_u32 s24, s24, {WS_SEL}
    v_and_b32 v4, 1, v1
    v_lshl_add_u32 v4, v4, 2, s24
    v_cmp_gt_u32 vcc, 24, v1
    s_lshl_b32 s24, s2, 2
    s_add_u32 s24, s24, {WS_KEY}
    v_cndmask_b32 v3, v3, v4, vcc
    v_mov_b32 v4, s24
    s_cmp_eq_u32 s{sM}, 28
    s_cselect_b32 s25, 20, 24
    v_cmp_gt_u32 vcc, s25, v1
    s_lshl_b32 s24, s{sJ}, 8
    s_add_u32 s24, s24, s{sM}
    s_lshl_b32 s24, s24, 2
    s_add_u32 s24, s24, {WS_FL2 - 1024}
    v_cndmask_b32 v3, v3, v4, vcc
    v_lshl_add_u32 v4, v1, 7, s24
    v_cmp_gt_u32 vcc, 16, v1
    s_lshl_b32 s24, s2, 7
    s_add_u32 s24, s24, {WS_FG1 - 16}
    v_cndmask_b32 v3, v3, v4, vcc
    v_lshl_add_u32 v4, v1, 2, s24
    v_cmp_gt_u32 vcc, 8, v1
    s_and_b32 s24, s{sM}, 1
    s_lshl1_add_u32 s24, s{sJ}, s24
    s_lshl_b32 s24, s24, 8
    s_and_b32 s25, s{sM}, 30
    s_lshl2_add_u32 s24, s25, s24
    s_add_u32 s24, s24, {WS_FL1}
    v_cndmask_b32 v3, v3, v4, vcc
    v_and_b32 v4, 1, v1
    v_lshl_add_u32 v4, v4, 2, s24
    v_lshrrev_b32 v5, 1, v1
    v_lshl_add_u32 v4, v5, 7, v4
    v_cmp_gt_u32 vcc, 4, v1
    v_mov_b32 v5, 0
    v_lshlrev_b32 v6, 2, v1
    v_cndmask_b32 v3, v3, v4, vcc
    buffer_store_dword v5, v3, {RW}, 0 offen sc1
    v_add_u32 v6, {MISC}, v6
    ds_write_b32 v6, v5
    v_mov_b32 v4, s{sREG}
    s_lshl_b32 s24, s{sJ}, 5
    s_mov_b64 exec, 1
    s_waitcnt vmcnt(0) lgkmcnt(0)
    buffer_atomic_add v4, v5, {RD}, s24 offen sc1
    s_mov_b64 exec, -1
L_noclear:
    s_cmp_ge_u32 s{sM}, 28
    s_cbranch_scc1 L_rg
    v_and_b32 v3, 19, v1
    v_bfe_u32 v12, v1, 2, 1
    v_lshl_or_b32 v3, v12, 3, v3
    v_bfe_u32 v12, v1, 3, 1
    v_lshl_or_b32 v3, v12, 2, v3
    v_bfe_u32 v12, v3, 1, 3
    v_lshrrev_b32 v13, 5, v1           ; hh
    v_xor_b32 v12, v12, v13
    v_lshlrev_b32 v12, 4, v12
    v_lshl_or_b32 v12, v3, 7, v12
    s_lshl_b32 s24, s13, 13
    v_add_u32 v16, s24, v12
    v_xor_b32 v17, 32, v16
    v_xor_b32 v18, 64, v16
    v_xor_b32 v19, 96, v16
    v_bfe_u32 v3, v1, 2, 2
    v_lshl_add_u32 v12, v13, 3, v3
    v_lshlrev_b32 v12, 8, v12
    s_lshl_b32 s24, s14, 1
    v_xor_b32 v14, s24, v3
    v_lshl_or_b32 v12, v14, 6, v12
    v_bfe_u32 v14, v1, 4, 1
    v_lshl_or_b32 v12, v14, 5, v12
    v_and_b32 v14, 3, v1
    v_lshl_or_b32 v12, v14, 3, v12
    v_add_u32 v20, 16384, v12
    v_xor_b32 v21, 64, v20
    s_and_b32 s24, s{sM}, 30
    s_add_u32 s24, s24, s14            ; col64
    s_cmp_ge_u32 s24, 9
    s_cselect_b32 s25, 1, 0
    s_cmp_ge_u32 s24, 18
    s_addc_u32 s25, s25, 0             ; matrix 0 q, 1 k, 2 v
    s_mul_i32 s26, s25, 9
    s_sub_u32 s26, s24, s26
    s_lshl_b32 s26, s26, 6
    s_lshr_b32 s27, s25, 1             ; is v
    s_mov_b32 s28, {HS}
    """)
    for nt in range(2):
        a(f"""
        v_and_b32 v3, 31, v1
        v_add3_u32 v3, v3, s26, {32*nt}
        v_mul_u32_u24 v12, 3641, v3
        v_lshrrev_b32 v12, 16, v12         ; head
        v_mul_u32_u24 v14, 18, v12
        v_sub_u32 v3, v3, v14              ; d
        v_lshrrev_b32 v14, 4, v3
        v_and_b32 v14, s27, v14
        v_xor_b32 v14, v14, v13
        v_lshlrev_b32 v14, 4, v14
        v_lshl_or_b32 v3, v3, 5, v14
        v_mad_u32_u24 v{28+nt}, v12, s28, v3
        """)
    a(f"""
    s_movk_i32 s56, 1152
    s_cmp_eq_u32 s25, 0
    s_cselect_b32 s56, 576, s56
    s_cselect_b32 s57, 18432, 0
    s_mul_i32 s27, s27, 576
    s_add_u32 s57, s57, s27
    s_and_b32 s27, s{sM}, 1
    s_lshl1_add_u32 s27, s27, s13
    s_mul_i32 s28, s27, s56
    s_lshl2_add_u32 s57, s28, s57
    s_mul_i32 s28, s{sJ}, {JS}
    s_add_u32 s57, s57, s28
    s_lshl2_add_u32 s27, s{sJ}, s27
    s_lshl_b32 s27, s27, 7
    s_lshl2_add_u32 s58, s24, s27
    s_add_u32 s58, s58, {WS_FL1}
    s_mov_b32 s59, s25
    s_cmp_eq_u32 s24, 27
    s_cselect_b32 s59, 3, s59
    """)
    for i in range(64): a(f"v_mov_b32 v{ACC1+i}, 0")
    for i in range(16): a(f"v_mov_b32 v{FR+16+i}, 0")
    a("s_mov_b32 s24, 0\ns_mov_b32 s25, 0")
    def reads(kk):
        p = kk & 1; A = FR + 16 * p; B = A + 8
        r = [f"ds_read_b128 {vr(A+4*mt,4)}, v{22+kk} offset:{4096*mt}" for mt in range(2)]
        r += [f"ds_read_b64_tr_b16 {vr(B+4*nt+2*m,2)}, v{26+nt} offset:{(16*kk+4*m)*256}" for nt in range(2) for m in range(2)]
        return r
    def mfmas(kk):
        p = kk & 1; A = FR + 16 * p; B = A + 8
        return [mf32(ACC1 + 16 * (2 * mt + nt), A + 4 * mt, B + 4 * nt) for mt in range(2) for nt in range(2)]
    for i in range(6): a(f"v_mov_b32 v{22+i}, v{16+i}")
    regaddr(a, 3)
    a("; STAMP 1")
    a("L_gemm:")
    a(f"s_barrier\ns_cmp_lg_u32 s24, 8\ns_cbranch_scc1 L_gemm2\n{regload(3, 4)}\nL_gemm2:")
    for kk in range(4):
        r = reads(kk); m = mfmas((kk + 3) & 3)
        if kk > 0: a("s_waitcnt lgkmcnt(0)")
        a(m[0]); a(r[0]); a(r[2]); a(r[3]); a(m[1]); a(r[1]); a(r[4]); a(r[5]); a(m[2])
        if kk == 3:
            a("s_add_u32 s25, s25, 32768\ns_and_b32 s25, s25, 0x1ffff")
            for i in range(3): a(f"v_add_u32 v{22+i}, s25, v{16+i}")
        a(m[3])
        if kk == 3:
            for i in range(3, 6): a(f"v_add_u32 v{22+i}, s25, v{16+i}")
    a(f"""
    s_add_u32 s24, s24, 1
    s_cmp_lt_u32 s24, 9
    s_waitcnt lgkmcnt(0)
    s_cbranch_scc1 L_gemm
    s_barrier                          ; BL
    """)
    for x in mfmas(3): a(x)
    regwait(a, 3, 4, preloaded=True)
    a("s_nop 3")
    if o.get("slow"): a(f"s_mov_b32 s{sMODE}, 0")
    a(f"""
    ; STAMP 2
    v_mov_b32 v4, 1
    v_mov_b32 v5, 0
    s_cmp_eq_u32 s59, 3
    s_cbranch_scc1 L_stored
    s_cmp_lg_u32 s59, 0
    s_cbranch_scc1 L_noscale
    s_mov_b32 s24, {f32bits(QSCALE)}
    s_mov_b32 s25, s24
    """)
    for r in range(0, 64, 2): a(f"v_pk_mul_f32 {vr(ACC1+r,2)}, {vr(ACC1+r,2)}, s[24:25]")
    a("L_noscale:")
    a(f"s_add_u32 s24, s57, {WS_LOC}\ns_cmp_eq_u32 s{sMODE}, 1\ns_cselect_b32 s18, {WS_END}, 0")
    def pk(mt, nt, hf): return FR + 4 * (4 * mt + 2 * hf + nt)
    for mt in range(2):
        for hf in range(2):
            for nt in range(2):
                D = ACC1 + 16 * (2 * mt + nt) + 8 * hf
                for r in range(4): a(f"v_cvt_pk_bf16_f32 v{pk(mt,nt,hf)+r}, v{D+2*r}, v{D+2*r+1}")
                a(f"buffer_store_dwordx4 {vr(pk(mt,nt,hf),4)}, v{28+nt}, {RW}, s24 offen")
            a("s_add_u32 s24, s24, s56")
    a(f"""
    s_cmp_ge_u32 s59, s{sMODE}
    s_cselect_b32 s18, {WS_END}, 0
    """)
    for mt in range(2):
        for hf in range(2):
            for nt in range(2):
                a(f"buffer_store_dwordx4 {vr(pk(mt,nt,hf),4)}, v{28+nt}, {RW}, s57 offen sc1")
            a("s_add_u32 s57, s57, s56")
    a(f"""
    s_mov_b32 s18, {WS_END}
    s_mov_b64 exec, 1
    s_waitcnt vmcnt(8)
    buffer_store_dword v4, v5, {RW}, s58 offen
    s_mov_b64 exec, -1
L_stored:
    s_lshl_b32 s24, s2, 7
    s_lshl2_add_u32 s24, s12, s24
    s_add_u32 s24, s24, {WS_FG1}
    s_cmp_eq_u32 s{sMODE}, 1
    s_cbranch_scc0 L_nob0
    s_barrier                          ; B0
L_nob0:
    s_mov_b64 exec, 1
    s_waitcnt vmcnt(0)
    buffer_store_dword v4, v5, {RW}, s24 offen sc1
    s_mov_b64 exec, -1
    s_cbranch_scc1 L_svc_kv
L_b0_late:
    s_barrier                          ; B0
L_svc_kv:
    ; STAMP 3
    s_mul_i32 s24, s{sM}, 18
    v_and_b32 v3, 1, v1
    v_mul_u32_u24 v3, 17, v3
    v_bfe_u32 v6, v1, 1, 1
    v_mul_u32_u24 v6, 576, v6
    v_add3_u32 v3, v3, v6, s24
    v_add_u32 v3, 576, v3
    v_lshrrev_b32 v3, 7, v3            ; ct
    v_bfe_u32 v6, v1, 2, 1
    v_lshl_or_b32 v3, v3, 1, v6        ; m'
    v_lshrrev_b32 v6, 3, v1
    v_lshl_or_b32 v3, v3, 3, v6        ; wg
    v_lshlrev_b32 v3, 7, v3
    s_mov_b32 s24, {WS_FG1}
    v_lshlrev_b32 v2, 4, v1
    s_mul_i32 s56, s{sM}, {HS}
    s_add_u32 s57, s{sJ}, 1
    s_and_b32 s57, s57, 7
    s_lshl_b32 s58, s12, 10
    s_add_u32 s59, s58, {KV0 + SLOT}
    """)
    poll(a, f"buffer_load_dwordx4 v[8:11], v3, {RW}, s24 offen sc1",
         "v_and_b32 v8, v8, v9\nv_and_b32 v10, v10, v11\nv_and_b32 v8, v8, v10\nv_cmp_ne_u32 vcc, 1, v8")
    a("; STAMP 4")
    def kvdma(end):
        l = uid("kv")
        a(f"""
{l}:
    s_mul_i32 s24, s57, {JS}
    s_add_u32 s24, s24, s56
    s_mov_b32 m0, s59
    s_add_u32 s24, s24, s58
    buffer_load_dwordx4 v2, {RW}, s24 offen sc1 lds
    s_add_u32 s58, s58, 4096
    s_cmp_ge_u32 s58, {SLOT}
    s_cselect_b32 s24, {SLOT}, 0
    s_addc_u32 s57, s57, 0
    s_and_b32 s57, s57, 7
    s_sub_u32 s58, s58, s24
    s_add_u32 s59, s59, 4096
    s_cmp_lt_u32 s59, {KV0 + SLOT + end * 1024}
    s_cbranch_scc1 {l}
        """)
    kvdma(56)
    a("s_waitcnt vmcnt(9)\n; STAMP 5\ns_barrier                          ; B1")
    kvdma(92)
    a("s_waitcnt vmcnt(9)\ns_barrier                          ; B2")
    kvdma(126)
    a(f"""
    s_lshl_b32 s24, s{sJ}, 7
    s_add_u32 s24, s24, {WS_SEL}
    v_mov_b32 v5, 0
    """)
    poll(a, f"buffer_load_dwordx2 v[8:9], v5, {RW}, s24 offen sc1", "v_min_u32 v10, v8, v9\nv_cmp_eq_u32 vcc, 0, v10")
    a(f"""
    v_readfirstlane_b32 s56, v8
    v_readfirstlane_b32 s57, v9
    v_mov_b32 v3, {M_SEL}
    ds_write_b64 v3, v[8:9]
    s_and_b32 s58, s56, 0x7ff
    s_sub_u32 s58, 2047, s58           ; idx0
    s_and_b32 s59, s57, 0x7ff
    s_sub_u32 s59, 2047, s59           ; idx1
    s_cmp_ge_u32 s{sM}, 18
    s_cbranch_scc1 L_nomoe1
    """)
    GU = 16; XF = 88; AC = 124; TR = 156
    a(f"""
    s_mul_i32 s60, s{sJ}, 18
    s_add_u32 s60, s60, s{sM}          ; chunk
    s_mul_i32 s24, s12, 144
    v_lshrrev_b32 v3, 2, v1
    v_add_u32 v3, s24, v3
    v_mul_u32_u24 v3, 9216, v3
    v_and_b32 v4, 3, v1
    v_lshl_add_u32 v3, v4, 4, v3
    s_mov_b32 s8, s{pWG}
    s_mov_b32 s9, s{pWG+1}
    s_mov_b32 s10, {WGB}
    s_lshl_b32 s25, s60, 6
    """)
    for s in range(9):
        a(f"buffer_load_dwordx4 {vr(GU+4*s,4)}, v3, s[8:11], s25 offen nt\ns_add_u32 s25, s25, {16*9216}")
    a(f"s_mov_b32 s8, s{pWU}\ns_mov_b32 s9, s{pWU+1}\ns_lshl_b32 s25, s60, 6")
    for s in range(9):
        a(f"buffer_load_dwordx4 {vr(GU+36+4*s,4)}, v3, s[8:11], s25 offen nt\ns_add_u32 s25, s25, {16*9216}")
    a(f"""
    s_mul_i32 s25, s58, 1152
    s_mul_i32 s26, s59, 1152
    s_sub_u32 s26, s26, s25
    v_bfe_i32 v4, v1, 2, 1
    v_and_b32 v4, s26, v4
    v_lshrrev_b32 v13, 5, v1
    v_lshl_add_u32 v4, v13, 4, v4
    s_lshl1_add_u32 s25, s24, s25
    v_add_u32 v4, s25, v4
    s_mov_b32 s8, s{pX}
    s_mov_b32 s9, s{pX+1}
    s_mov_b32 s10, {XB}
    """)
    for s in range(9):
        a(f"buffer_load_dwordx4 {vr(XF+4*s,4)}, v4, s[8:11], 0 offen offset:{32*s}")
    a(f"""
    s_mul_i32 s61, s12, 1152
    s_add_u32 s61, s61, 160
    v_add_u32 v6, s61, v2
    v_bfe_u32 v7, v1, 2, 2             ; r
    v_and_b32 v10, 3, v1
    v_lshlrev_b32 v10, 3, v10          ; 8c
    v_lshl_add_u32 v11, v13, 3, v7
    v_lshl_or_b32 v11, v11, 6, v10
    v_bfe_u32 v12, v1, 4, 1
    v_lshl_or_b32 v11, v12, 5, v11
    v_add_u32 v11, s61, v11
    v_lshrrev_b32 v12, 4, v1           ; kg
    v_lshl_add_u32 v14, v12, 3, v7
    v_lshl_or_b32 v14, v14, 5, v10
    v_add_u32 v14, s61, v14
    s_waitcnt lgkmcnt(0)
    s_barrier                          ; B3
    s_waitcnt vmcnt(0)
    """)
    def tr_step(src, p, addr, off2):
        a(f"ds_write_b128 v6, {vr(src,4)}")
        a(f"ds_read_b64_tr_b16 {vr(TR+4*p,2)}, v{addr}")
        a(f"ds_read_b64_tr_b16 {vr(TR+4*p+2,2)}, v{addr} offset:{off2}")
    tr_step(GU, 0, 11, 256)
    for i in range(18):
        if i < 17: tr_step(GU + 4 * (i + 1), (i + 1) & 1, 11, 256)
        a(f"s_waitcnt lgkmcnt({3 if i < 17 else 0})")
        a(mf32(AC + 16 * (i // 9), XF + 4 * (i % 9), TR + 4 * (i & 1), 0 if i % 9 == 0 else None))
        if i == 9:
            a(f"""
            v_lshrrev_b32 v3, 1, v1
            v_mul_u32_u24 v3, 1152, v3
            v_and_b32 v4, 1, v1
            v_lshl_add_u32 v3, v4, 4, v3
            s_mul_i32 s25, s60, 36864
            s_mul_i32 s26, s12, 288
            s_add_u32 s25, s25, s26
            s_mov_b32 s8, s{pWD}
            s_mov_b32 s9, s{pWD+1}
            s_mov_b32 s10, {WGB}
            """)
            for n in range(9):
                a(f"buffer_load_dwordx4 {vr(GU+4*n,4)}, v3, s[8:11], s25 offen offset:{32*n}")
    a(f"""
    v_lshlrev_b32 v3, 2, v1
    v_add_u32 v3, {M_P}, v3
    s_lshl_b32 s25, s12, 9
    v_add_u32 v4, s25, v3
    v_mov_b32 v7, {M_CNT}
    v_mov_b32 v10, 1
    s_nop 6
    ds_write_b32 v4, v{AC}
    ds_write_b32 v4, v{AC+16} offset:256
    s_mov_b64 exec, 1
    ds_add_u32 v7, v10
    s_mov_b64 exec, -1
    """)
    poll(a, "ds_read_b32 v8, v7", "v_cmp_ne_u32 vcc, 4, v8", sleep=1)
    for w in range(8): a(f"ds_read_b32 v{XF+w}, v3 offset:{256*w}")
    tr_step(GU, 0, 14, 128)
    a(f"""
    s_lshl_b32 s25, s12, 7
    s_add_u32 s25, s25, {M_H}
    v_lshl_add_u32 v3, v1, 1, s25
    v_and_b32 v4, 4, v1
    v_add_u32 v4, v4, v12
    v_lshl_add_u32 v4, v4, 4, s25
    s_waitcnt lgkmcnt(3)
    v_pk_add_f32 {vr(XF,2)}, {vr(XF,2)}, {vr(XF+2,2)}
    v_pk_add_f32 {vr(XF+4,2)}, {vr(XF+4,2)}, {vr(XF+6,2)}
    v_pk_add_f32 {vr(XF,2)}, {vr(XF,2)}, {vr(XF+4,2)}
    v_cvt_pk_bf16_f32 v{XF+1}, v{XF}, v{XF+1}
    v_lshlrev_b32 v{XF}, 16, v{XF+1}
    v_and_b32 v{XF+1}, 0xffff0000, v{XF+1}
    v_mov_b32 v{XF+2}, v{XF}
    """)
    sigmoid(a, XF + 2)
    a(f"v_mul_f32 v{XF}, v{XF}, v{XF+2}")
    rne_bf16(a, XF)
    a(f"""
    v_mul_f32 v{XF}, v{XF}, v{XF+1}
    v_cvt_pk_bf16_f32 v{XF}, v{XF}, v{XF}
    ds_write_b16 v3, v{XF}
    ds_read_b128 {vr(XF+4,4)}, v4
    """)
    DA = 52
    for n in range(9):
        if n < 8: tr_step(GU + 4 * (n + 1), (n + 1) & 1, 14, 128)
        a(f"s_waitcnt lgkmcnt({3 if n < 8 else 0})")
        a(mf16(DA + 4 * n, XF + 4, TR + 4 * (n & 1), 0))
    a(f"""
    v_and_b32 v3, 15, v1
    v_lshlrev_b32 v3, 2, v3
    v_mul_u32_u24 v4, 2304, v12
    v_add_u32 v3, v3, v4
    s_and_b32 s25, s60, 7
    s_mul_i32 s25, s25, 4608
    s_mul_i32 s26, s12, 576
    s_add_u32 s25, s25, s26
    s_add_u32 s25, s25, {WS_Y}
    s_mov_b32 exec_hi, 0
    """)
    for n in range(9):
        a(f"buffer_atomic_add_f32 v{DA+4*n}, v3, {RW}, s25 offen offset:{64*n} sc1")
    a(f"""
    s_mov_b64 exec, 1
    s_waitcnt vmcnt(0)
    ds_add_rtn_u32 v8, v7, v10 offset:4
    s_lshr_b32 s25, s{sJ}, 2
    s_lshl_b32 s25, s25, 7
    s_add_u32 s25, s25, 16
    s_waitcnt lgkmcnt(0)
    v_cmp_eq_u32 vcc, 3, v8
    s_cbranch_vccz L_notlast
    buffer_atomic_add v10, v5, {RD}, s25 offen sc1
L_notlast:
    s_mov_b64 exec, -1
    s_branch L_moedone
L_nomoe1:
    s_waitcnt lgkmcnt(0)
    s_barrier                          ; B3
L_moedone:
    ; STAMP 6
    """)
    WOR = 84
    a(f"""
    v_mul_u32_u24 v3, 7282, v1
    v_lshrrev_b32 v3, 16, v3
    v_mul_u32_u24 v4, 9, v3
    v_sub_u32 v4, v1, v4
    v_lshlrev_b32 v4, 4, v4
    s_movk_i32 s24, 160
    v_mad_u32_u24 v6, v3, s24, v4
    v_mul_u32_u24 v3, 1152, v3
    v_add_u32 v3, v3, v4
    s_mul_i32 s24, s12, {144*160}
    s_add_u32 s24, s24, {L_WO}
    v_add_u32 v6, s24, v6
    s_mul_i32 s24, s12, {144*1152}
    s_lshr_b32 s25, s{sM}, 2
    s_mul_i32 s25, s25, 144
    s_add_u32 s24, s24, s25
    s_mov_b32 s8, s{pWO}
    s_mov_b32 s9, s{pWO+1}
    s_mov_b32 s10, {WOB}
    """)
    for i in range(21):
        a(f"buffer_load_dwordx4 {vr(WOR+4*i,4)}, v3, s[8:11], s24 offen\ns_add_u32 s24, s24, {7*1152}")
    a(f"""
    s_mov_b32 s8, s{pX}
    s_mov_b32 s9, s{pX+1}
    s_mov_b32 s10, {XB}
    s_cmp_lt_u32 s12, 2
    s_cbranch_scc1 L_ysel
    s_lshl_b32 s24, s{sJ}, 8
    s_add_u32 s24, s24, s{sM}
    v_lshrrev_b32 v3, 3, v1
    v_and_b32 v4, 7, v1
    v_lshlrev_b32 v4, 7, v4
    v_lshl_or_b32 v4, v3, 15, v4
    v_lshlrev_b32 v3, 12, v3
    s_lshl_b32 s25, s24, 10
    s_lshl_b32 s24, s24, 7
    s_add_u32 s24, s24, {O_REM}
    s_cmp_eq_u32 s12, 2
    s_cselect_b32 s24, s25, s24
    s_cselect_b64 vcc, -1, 0
    s_add_u32 s24, s24, {WS_OL}
    v_cndmask_b32 v3, v3, v4, vcc
    {"" if o.get("nopre") else f"buffer_load_dword v4, v3, {RW}, s24 offen"}
    s_branch L_svc_wait
L_ysel:
    s_cmp_eq_u32 s12, 0
    s_cselect_b32 s26, s58, s59
    s_cselect_b32 s27, s56, s57
    s_and_b32 s24, s{sM}, 3
    s_lshl2_add_u32 s24, s{sJ}, s24
    s_lshr_b32 s26, s26, 6
    s_cmp_lg_u32 s24, s26
    s_cbranch_scc1 L_noy
    v_and_b32 v3, 1, v1
    v_lshlrev_b32 v3, 7, v3
    """)
    poll(a, f"buffer_load_dword v4, v3, {RD}, 0 offen offset:16 sc1", "v_cmp_ne_u32 vcc, 72, v4", sleep=8)
    a(f"""
    v_min_u32 v3, 35, v1
    v_lshlrev_b32 v3, 3, v3
    s_lshr_b32 s24, s{sM}, 2
    s_mul_i32 s24, s24, 288
    s_mul_i32 s25, s12, 2304
    s_add_u32 s24, s24, s25
    s_add_u32 s24, s24, {WS_Y}
    """)
    for rep in range(8):
        a(f"buffer_load_dwordx2 {vr(16+2*rep,2)}, v3, {RW}, s24 offen sc1\ns_add_u32 s24, s24, 4608")
    a(f"""
    s_and_b32 s27, s27, 0xfffff800
    s_xor_b32 s24, s27, 0x80000000
    s_not_b32 s25, s27
    s_bitcmp1_b32 s27, 31
    s_cselect_b32 s27, s24, s25
    v_mov_b32 v10, s27
    """)
    rne_bf16(a, 10); sigmoid(a, 10); rne_bf16(a, 10)
    a(f"s_mul_i32 s24, s12, 320\ns_add_u32 s24, s24, {M_Y}\nv_add_u32 v3, s24, v3\ns_waitcnt vmcnt(0)")
    for rep in range(1, 8): a(f"v_pk_add_f32 v[16:17], v[16:17], {vr(16+2*rep,2)}")
    for i in range(2):
        rne_bf16(a, 16 + i); a(f"v_mul_f32 v{16+i}, v{16+i}, v10"); rne_bf16(a, 16 + i)
    a(f"""
    ds_write_b64 v3, v[16:17]
L_noy:
    s_cmp_lg_u32 s12, 0
    s_cbranch_scc1 L_svc_wait
    """)
    final_addr(a); final_loads(a)
    a(f"""
L_svc_wait:
    v_mov_b32 v3, {M_BAD}
    s_waitcnt vmcnt(0) lgkmcnt(0)
    s_barrier                          ; BE
    ds_read_b32 v4, v3
    s_waitcnt lgkmcnt(0)
    v_cmp_ne_u32 vcc, 0, v4
    s_cbranch_vccnz L_svc_fb
L_dump:
    """)
    for i in range(21): a(f"ds_write_b128 v6, {vr(WOR+4*i,4)} offset:{1120*i}")
    a(f"""
    s_waitcnt lgkmcnt(0)
    s_barrier                          ; BG
    s_cmp_eq_u32 s12, 0
    s_cbranch_scc1 L_final
    s_endpgm
L_svc_fb:
    s_barrier
    s_mul_i32 s56, s{sM}, {HS}
    s_mov_b32 s57, s{sJ}
    s_lshl_b32 s58, s12, 10
    s_add_u32 s59, s58, {KV0}
    """)
    kvdma(18)
    a("""
    s_waitcnt vmcnt(0)
    s_barrier
    s_barrier
    s_barrier
    s_branch L_dump
    """)
    a(f"""
L_rg:
    s_sub_u32 s26, s{sM}, 28
    s_lshl2_add_u32 s26, s{sJ}, s26
    s_lshl2_add_u32 s27, s26, s12
    s_lshl_b32 s28, s27, 4
    v_lshrrev_b32 v3, 3, v1
    v_add_u32 v4, s28, v3              ; row
    v_mul_u32_u24 v5, 1152, v4
    v_and_b32 v6, 7, v1
    v_lshlrev_b32 v6, 4, v6
    v_add_u32 v5, v5, v6
    v_add_u32 v7, 9216, v5
    """)
    for i in range(9): a(f"global_load_dwordx4 {vr(16+4*i,4)}, v5, s[{pX}:{pX+1}] offset:{128*i}")
    for i in range(9): a(f"global_load_dwordx4 {vr(88+4*i,4)}, v6, s[{pWR}:{pWR+1}] offset:{128*i}")
    for i in range(9): a(f"global_load_dwordx4 {vr(124+4*i,4)}, v6, s[{pGW}:{pGW+1}] offset:{128*i}")
    for i in range(9): a(f"global_load_dwordx4 {vr(52+4*i,4)}, v7, s[{pX}:{pX+1}] offset:{128*i}")
    a("""
    v_mov_b32 v8, 0
    v_mov_b32 v9, 0
    v_mov_b32 v10, 0
    v_mov_b32 v11, 0
    s_barrier                          ; BL
    s_waitcnt vmcnt(0)
    """)
    for i in range(36):
        a(f"v_dot2c_f32_bf16 v8, v{16+i}, v{88+i}")
        a(f"v_dot2c_f32_bf16 v9, v{52+i}, v{88+i}")
        a(f"v_dot2c_f32_bf16 v10, v{16+i}, v{124+i}")
        a(f"v_dot2c_f32_bf16 v11, v{52+i}, v{124+i}")
    a("s_nop 2")
    for mode in ("quad_perm:[1,0,3,2]", "quad_perm:[2,3,0,1]", "row_half_mirror"):
        for v in (8, 9, 10, 11):
            a(f"v_add_f32_dpp v{v}, v{v}, v{v} {mode} row_mask:0xf bank_mask:0xf")
    for v in (10, 11):
        rne_bf16(a, v); sigmoid(a, v); rne_bf16(a, v)
    a(f"""
    v_ashrrev_i32 v12, 31, v8
    v_or_b32 v12, 0x80000000, v12
    v_xor_b32 v8, v8, v12
    v_and_b32 v8, 0xfffff800, v8
    v_sub_u32 v12, 2047, v4
    v_or_b32 v8, v8, v12
    v_ashrrev_i32 v12, 31, v9
    v_or_b32 v12, 0x80000000, v12
    v_xor_b32 v9, v9, v12
    v_and_b32 v9, 0xfffff800, v9
    v_sub_u32 v12, 2039, v4
    v_or_b32 v9, v9, v12
    v_lshlrev_b32 v13, 2, v4
    s_mov_b32 s29, {WS_G}
    buffer_store_dword v10, v13, {RW}, s29 offen sc1
    buffer_store_dword v11, v13, {RW}, s29 offen offset:32 sc1
    v_max_u32 v14, v8, v9
    v_min_u32 v15, v8, v9
    s_nop 1
    v_mov_b32_dpp v8, v14 row_ror:8 row_mask:0xf bank_mask:0xf
    v_mov_b32_dpp v9, v15 row_ror:8 row_mask:0xf bank_mask:0xf
    v_min_u32 v12, v8, v14
    v_max_u32 v14, v8, v14
    v_max3_u32 v15, v12, v9, v15
    """)
    for sw in ("v_permlane16_swap_b32", "v_permlane32_swap_b32"):
        a(f"""
        v_mov_b32 v8, v14
        v_mov_b32 v9, v15
        s_nop 1
        {sw} v8, v14
        {sw} v9, v15
        s_nop 1
        v_min_u32 v12, v8, v14
        v_max_u32 v14, v8, v14
        v_max3_u32 v15, v12, v9, v15
        """)
    regwait(a, 3, 4, sleep=4)
    if o.get("slow"): a(f"s_mov_b32 s{sMODE}, 0")
    a(f"""
    s_lshl_b32 s29, s27, 3
    s_add_u32 s29, s29, {WS_KEY}
    v_mov_b32 v5, 0
    s_mov_b64 exec, 1
    buffer_store_dwordx2 v[14:15], v5, {RW}, s29 offen sc1
    s_mov_b64 exec, -1
    s_and_b32 s27, s27, 15
    s_cmp_lg_u32 s27, 0
    s_cbranch_scc1 L_b0_late
    v_lshlrev_b32 v3, 4, v1
    s_mov_b32 s29, {WS_KEY}
    """)
    poll(a, f"buffer_load_dwordx4 v[8:11], v3, {RW}, s29 offen sc1",
         "v_min_u32 v12, v8, v9\nv_min3_u32 v12, v12, v10, v11\nv_cmp_eq_u32 vcc, 0, v12", sleep=2)
    top2(a, 8, 12, 24)
    a(f"""
    s_lshl_b32 s29, s{sJ}, 7
    s_add_u32 s29, s29, {WS_SEL}
    v_mov_b32 v8, s24
    v_mov_b32 v9, s25
    s_mov_b64 exec, 1
    buffer_store_dwordx2 v[8:9], v5, {RW}, s29 offen sc1
    s_mov_b64 exec, -1
    s_branch L_b0_late
    """)
    hdr = HEADER + f"; @launch grid=(256,1,1) block=(768,1,1) lds={LDS_BYTES}\n"
    return hdr + a.text() + '.section .rodata,"a"\n' + descriptor(NAME, 168, sgpr=64)

if __name__ == "__main__":
    o = dict((k, 1) for k in sys.argv[2:])
    open(sys.argv[1], "w").write(gen(o))
```

```python
import re, sys
SB = 64
def add_stamps(asm):
    out = []; ki = -1
    names = re.findall(r"^\.globl (\w+_kernel)", asm, re.M)
    for line in asm.split("\n"):
        t = line.strip()
        if t.endswith(":") and t[:-1] in names:
            ki = names.index(t[:-1])
            out.append(line)
            out.append(f"""    s_memrealtime s[{SB}:{SB+1}]
    s_memtime s[{SB+2}:{SB+3}]
    s_load_dwordx2 s[96:97], s[0:1], 88
    v_readfirstlane_b32 s98, v0""")
            for i in range(4, 32): out.append(f"    s_mov_b32 s{SB+i}, 0")
            out.append("""    s_lshr_b32 s98, s98, 6
    s_lshl4_add_u32 s98, s2, s98
    s_lshl_b32 s98, s98, 6
    s_waitcnt lgkmcnt(0)""")
            continue
        m = re.match(r"; STAMP (\d)", t)
        if m:
            i = int(m.group(1))
            out.append(f"    s_memrealtime s[{SB+4*i}:{SB+4*i+1}]\n    s_memtime s[{SB+4*i+2}:{SB+4*i+3}]\n    s_waitcnt lgkmcnt(0)")
            continue
        if t == "s_endpgm":
            s = f"""    s_waitcnt vmcnt(0) lgkmcnt(0)
    s_memrealtime s[{SB+28}:{SB+29}]
    s_memtime s[{SB+30}:{SB+31}]
    s_mov_b64 exec, 1
    s_add_u32 s98, s98, {0x8000000 + ki*0x100000}
    s_waitcnt lgkmcnt(0)
    v_mov_b32 v4, s98
"""
            for q in range(4):
                s += f"""    v_mov_b32 v0, s{SB+8*q}
    v_mov_b32 v1, s{SB+8*q+2}
    v_mov_b32 v2, s{SB+8*q+4}
    v_mov_b32 v3, s{SB+8*q+6}
    global_store_dwordx4 v4, v[0:3], s[96:97] offset:{16*q}
    s_nop 1
"""
            out.append(s)
        out.append(line)
    txt = "\n".join(out)
    txt = re.sub(r"\.amdhsa_next_free_sgpr \d+", ".amdhsa_next_free_sgpr 102", txt)
    return txt, names
```

```python
import sys, math
from gen_common import *

NAME = "gated_mix__mha_block__moe_arch_mod__prompt_kernel"
XB = 2359296; WB = 1990656; WOB = 663552; WGB = 5308416
QSCALE = (18 ** -0.5) * math.log2(math.e)
JS = 884736; HS = 27648
WS_GLB = 0; WS_LOC = 0x700000
WS_OG = 0xE00000; WS_OL = 0x1040000
O_REM = 0x200000
WS_FG1 = 0x1280000
WS_FL1 = 0x1288000
WS_FL2 = 0x1289000
WS_KEY = 0x128B000
WS_SEL = 0x128B400
WS_Y = 0x128C000
WS_CLR = WS_FG1
WS_G = 0x1298000
WS_END = 0x129A000
KV0 = 9216; SLOT = 18432; L_QS = KV0 + 7 * SLOT; MISC = 156672
M_CNT = MISC; M_DONE = MISC + 4; M_BAD = MISC + 8; M_SEL = MISC + 16
M_C0 = MISC + 24; M_Q = MISC + 28; M_FULL = MISC + 32; M_PAST = MISC + 48
M_P = MISC + 256; M_H = MISC + 2304; M_Y = MISC + 2816; M_CB7 = MISC + 3584
L_CB = KV0 + 5 * SLOT; L_WO = KV0; L_A0 = KV0 + 6 * SLOT; L_A1 = KV0 + 7 * SLOT; AS = 288
LDS_BYTES = 163840
SPIN = 1 << 14
pX, pW, pWO, pWR, pWG, pWU, pWD, pGW, pOUT, pDBG, pWS = 32, 34, 36, 40, 42, 44, 46, 48, 50, 52, 54
sWAVE, sJ, sM, sMODE, sREG = 3, 4, 5, 6, 7
RW = "s[16:19]"
RD = "s[20:23]"

def mf32(d, a, b, c=None):
    cs = vr(d, 16) if c is None else ("0" if c == 0 else vr(c, 16))
    return f"v_mfma_f32_32x32x16_bf16 {vr(d,16)}, {vr(a,4)}, {vr(b,4)}, {cs}"
def mf16(d, a, b, c=None):
    cs = vr(d, 4) if c is None else ("0" if c == 0 else vr(c, 4))
    return f"v_mfma_f32_16x16x32_bf16 {vr(d,4)}, {vr(a,4)}, {vr(b,4)}, {cs}"
def rne_bf16(a, v):
    a(f"v_cvt_pk_bf16_f32 v{v}, v{v}, v{v}")
    a(f"v_and_b32 v{v}, 0xffff0000, v{v}")
def sigmoid(a, v):
    a(f"v_mul_f32 v{v}, {f32bits(-math.log2(math.e))}, v{v}")
    a(f"v_exp_f32 v{v}, v{v}")
    a("s_nop 0")
    a(f"v_add_f32 v{v}, 1.0, v{v}")
    a(f"v_rcp_f32 v{v}, v{v}")
    a("s_nop 0")
_uid = [0]
def uid(p):
    _uid[0] += 1
    return f"L_{p}{_uid[0]}"
def poll(a, load, check, sleep=0, preloaded=False):
    l = uid("poll"); e = uid("ok"); c = uid("chk")
    a(f"s_mov_b32 s30, {SPIN}")
    if preloaded: a(f"s_branch {c}")
    a(f"{l}:")
    a(load)
    if preloaded: a(f"{c}:")
    a("s_waitcnt lgkmcnt(0)" if load.startswith("ds_") else "s_waitcnt vmcnt(0)")
    a(check)
    a(f"s_cbranch_vccz {e}")
    if sleep: a(f"s_sleep {sleep}")
    a(f"s_sub_u32 s30, s30, 1\ns_cmp_lg_u32 s30, 0\ns_cbranch_scc1 {l}")
    a(f"{e}:")
def regaddr(a, t0): a(f"v_and_b32 v{t0}, 7, v1\nv_lshlrev_b32 v{t0}, 5, v{t0}")
def regload(t0, t1): return f"buffer_load_dword v{t1}, v{t0}, {RD}, 0 offen sc1"
def regwait(a, t0, t1, preloaded=False, sleep=0):
    if not preloaded: regaddr(a, t0)
    poll(a, regload(t0, t1),
         f"v_readlane_b32 s31, v{t1}, s{sJ}\nv_and_b32 v{t1}, 63, v{t1}\nv_cmp_ne_u32 vcc, 32, v{t1}", preloaded=preloaded, sleep=sleep)
    a(f"s_lshl_b32 s30, s{sREG}, 5\ns_cmp_eq_u32 s30, s31\ns_cselect_b32 s{sMODE}, 1, 0")
def wave_max_u32(a, v, t, sdst):
    for mode in ("quad_perm:[1,0,3,2]", "quad_perm:[2,3,0,1]", "row_half_mirror", "row_mirror"):
        a("s_nop 1")
        a(f"v_max_u32_dpp v{v}, v{v}, v{v} {mode} row_mask:0xf bank_mask:0xf")
    for sw in ("v_permlane16_swap_b32", "v_permlane32_swap_b32"):
        a(f"v_mov_b32 v{t}, v{v}\ns_nop 1\n{sw} v{t}, v{v}\ns_nop 1\nv_max_u32 v{v}, v{t}, v{v}")
    a("s_nop 0")
    a(f"v_readfirstlane_b32 s{sdst}, v{v}")
def top2(a, K, T, so):
    a(f"""
    v_min_u32 v{T}, v{K}, v{K+2}
    v_max_u32 v{K}, v{K}, v{K+2}
    v_max3_u32 v{K+1}, v{T}, v{K+1}, v{K+3}
    v_mov_b32 v{K+2}, v{K}
    """)
    wave_max_u32(a, K + 2, T, so)
    a(f"v_cmp_eq_u32 vcc, v{K+2}, v{K}\ns_nop 1\nv_cndmask_b32 v{K+2}, v{K}, v{K+1}, vcc")
    wave_max_u32(a, K + 2, T, so + 1)

aK, aKR, aV, vINC, IDX, vXO, vROW, vG, XD = 2, 3, 4, 5, 6, 7, 8, 9, 12
QM, QR, KR, KM, V, O, S = 16, 24, 26, 28, 32, 40, [72, 104]
T0 = 136
vM, vONE = 10, 11
def lds_add(a, off, addr, one):
    a(f"s_mov_b64 exec, 1\nds_add_u32 v{addr}, v{one} offset:{off - MISC}\ns_mov_b64 exec, -1")
def lds_wait(a, off, n, addr, t, sleep=1):
    poll(a, f"ds_read_b32 v{t}, v{addr} offset:{off - MISC}", f"v_cmp_ne_u32 vcc, {n}, v{t}", sleep=sleep)

def final_addr(a):
    a(f"""
    v_mul_u32_u24 v{vROW}, 7282, v0
    v_lshrrev_b32 v{vROW}, 16, v{vROW}
    v_mul_u32_u24 v10, 9, v{vROW}
    v_sub_u32 v10, v0, v10
    s_and_b32 s24, s{sM}, 3
    s_lshl2_add_u32 s24, s{sJ}, s24
    s_lshl_b32 s24, s24, 6
    s_lshr_b32 s25, s{sM}, 2
    s_mul_i32 s25, s25, 144
    v_add_u32 v11, s24, v{vROW}
    v_mul_u32_u24 v{vXO}, 1152, v11
    v_lshl_add_u32 v{vXO}, v10, 4, v{vXO}
    v_add_u32 v{vXO}, s25, v{vXO}
    v_lshl_or_b32 v{vROW}, v10, 8, v{vROW}
    v_lshlrev_b32 v{vG}, 2, v11
    """)
def final_loads(a):
    a(f"""
    s_mov_b32 s24, {WS_G}
    buffer_load_dwordx4 {vr(XD,4)}, v{vXO}, s[8:11], 0 offen
    buffer_load_dword v{vG}, v{vG}, {RW}, s24 offen sc1
    """)

def gen(o={}):
    a = Asm()
    a('.amdgcn_target "amdgcn-amd-amdhsa--gfx950"\n.text')
    kernel_begin(a, NAME)
    a(f"""
    s_cmp_ge_u32 s2, 256
    s_cbranch_scc1 L_end
    s_load_dwordx16 s[32:47], s[0:1], 0
    s_load_dwordx4 s[48:51], s[0:1], 64
    s_load_dwordx2 s[20:21], s[0:1], 80
    s_load_dwordx2 s[16:17], s[0:1], 88
    s_load_dwordx2 s[8:9], s[0:1], 0
    v_lshrrev_b32 v2, 6, v0
    v_and_b32 v1, 63, v0
    s_and_b32 s{sJ}, s2, 7
    v_readfirstlane_b32 s{sWAVE}, v2
    s_lshr_b32 s{sM}, s2, 3
    s_getreg_b32 s24, hwreg(HW_REG_XCC_ID)
    s_and_b32 s24, s24, 15
    s_mul_i32 s25, s24, s24
    s_lshl_b32 s25, s25, 10
    s_add_u32 s25, s25, s24
    s_lshl_b32 s25, s25, 6
    s_add_u32 s{sREG}, s25, 1
    s_mov_b32 s18, {WS_END}
    s_mov_b32 s19, 0x00020000
    s_mov_b32 s22, 256
    s_mov_b32 s23, 0x00020000
    s_mov_b32 s10, {XB}
    s_mov_b32 s11, 0x00020000
    s_cmp_ge_u32 s{sWAVE}, 8
    s_cbranch_scc1 L_service
    """)
    LD = T0 + 16
    a(f"""
    s_and_b32 s26, s{sM}, 1
    s_mul_i32 s57, s26, {o.get("rp", 0)}
    s_mul_i32 s28, s{sJ}, {o.get("rj", 1)}
    s_add_u32 s57, s57, s28
    s_lshr_b32 s28, s{sM}, 1
    s_mul_i32 s28, s28, {o.get("rc", 0)}
    s_add_u32 s57, s57, s28
    s_mul_i32 s28, s57, 57
    s_lshr_b32 s28, s28, 9
    s_mul_i32 s28, s28, 9
    s_sub_u32 s57, s57, s28
    v_lshrrev_b32 v13, 4, v1
    s_lshl_b32 s59, s{sWAVE}, 12
    s_cmp_ge_u32 s{sWAVE}, 4
    s_cbranch_scc1 L_ldw
    s_lshl1_add_u32 s26, s{sJ}, s26    ; rb
    s_lshl2_add_u32 s26, s26, s{sWAVE}
    s_lshl_b32 s26, s26, 5
    v_lshrrev_b32 v3, 3, v1
    v_add_u32 v3, s26, v3
    v_mul_u32_u24 v3, 1152, v3
    v_and_b32 v12, 7, v1
    v_xor_b32 v12, v12, v13
    v_lshl_add_u32 v{LD}, v12, 4, v3
    v_xor_b32 v{LD+1}, 64, v{LD}
    v_add_u32 v{LD+1}, 8192, v{LD+1}
    v_add_u32 v{LD+2}, 16384, v{LD}
    v_add_u32 v{LD+3}, 16384, v{LD+1}
    s_movk_i32 s58, 128
    s_waitcnt lgkmcnt(0)
    s_branch L_ldgo
L_ldw:
    s_lshl_b32 s26, s{sWAVE}, 4
    s_sub_u32 s26, s26, 64
    v_add_u32 v3, s26, v13
    v_mul_u32_u24 v3, 3456, v3
    v_and_b32 v12, 15, v1
    v_lshlrev_b32 v14, 2, v13
    v_xor_b32 v12, v12, v14
    v_lshl_add_u32 v3, v12, 4, v3
    s_lshr_b32 s26, s{sM}, 1
    s_lshl_b32 s26, s26, 8
    v_add_u32 v{LD}, s26, v3
    v_add_u32 v{LD+1}, 12800, v{LD}
    v_add_u32 v{LD+2}, 25600, v{LD}
    v_add_u32 v{LD+3}, 38400, v{LD}
    s_mov_b32 s58, 221184
    s_mov_b32 s10, {WB}
    s_waitcnt lgkmcnt(0)
    s_mov_b32 s8, s{pW}
    s_mov_b32 s9, s{pW+1}
L_ldgo:
    ; STAMP 7
    s_mul_i32 s57, s57, s58            ; soffset
    s_mul_i32 s56, s58, 9              ; wrap
    s_mov_b32 s60, 0
    s_cmp_ge_u32 s{sM}, 28
    s_cbranch_scc1 L_spare_ld
L_ldprime:
    """)
    def ld_chunk():
        a("s_mov_b32 m0, s59\ns_add_u32 s59, s59, 32768")
        for u in range(4):
            a(f"buffer_load_dwordx4 v{LD+u}, s[8:11], s57 offen offset:{u*1024} lds")
        a("""
        s_and_b32 s59, s59, 0x1ffff
        s_add_u32 s57, s57, s58
        s_cmp_eq_u32 s57, s56
        s_cselect_b32 s57, 0, s57
        s_add_u32 s60, s60, 1
        """)
    ld_chunk()
    a(f"""
    s_cmp_lt_u32 s60, {o.get("p0", 1)}
    s_cbranch_scc1 L_ldprime
L_spare_ld:
    """)
    final_addr(a)
    a(f"""
    s_lshr_b32 s12, s{sWAVE}, 2        ; kh
    s_and_b32 s13, s{sWAVE}, 3         ; qg
    s_mul_i32 s24, s12, 9216
    s_add_u32 s24, s24, {KV0}
    v_lshrrev_b32 v{T0}, 5, v1         ; hh
    v_bfe_u32 v{T0+1}, v1, 2, 2        ; r
    v_and_b32 v{T0+2}, 3, v1
    v_lshlrev_b32 v{T0+2}, 3, v{T0+2}  ; 8c
    v_bfe_u32 v{T0+3}, v1, 4, 1        ; G&1
    v_lshl_add_u32 v{T0+4}, v{T0}, 3, v{T0+1}
    v_lshl_or_b32 v{T0+4}, v{T0+4}, 5, v{T0+2}     ; (8hh+r)*32 + 8c
    v_mul_u32_u24 v{T0+5}, 1152, v{T0+3}
    v_add3_u32 v{aK}, v{T0+5}, v{T0+4}, s24
    v_and_b32 v{T0+1}, 1, v{T0+1}
    v_lshl_or_b32 v{T0+1}, v{T0+1}, 5, v{T0+2}
    v_add_u32 v{T0+1}, 512, v{T0+1}                ; (16+(r&1))*32 + 8c
    v_lshrrev_b32 v{T0+6}, 4, v1                   ; G
    v_mul_u32_u24 v{T0+5}, 1152, v{T0+6}
    v_add3_u32 v{aKR}, v{T0+5}, v{T0+1}, s24
    s_mul_i32 s25, s13, 2304
    s_add_u32 s25, s25, {L_QS}
    s_xor_b32 s26, s12, 1
    s_lshl_b32 s27, s26, 1
    v_xor_b32 v{T0+6}, s27, v{T0+6}
    v_mul_u32_u24 v{T0+5}, 576, v{T0+6}
    v_add3_u32 v{T0+10}, v{T0+5}, v{T0+1}, s25     ; q rem
    v_mul_u32_u24 v{T0+5}, 576, v{T0+3}
    v_add3_u32 v{T0+5}, v{T0+5}, v{T0+4}, s25
    s_mul_i32 s26, s26, 1152
    s_mul_i32 s27, s12, 1152
    v_add_u32 v{T0+8}, s26, v{T0+5}                ; q main a=0
    v_add_u32 v{T0+9}, s27, v{T0+5}                ; q main a=1
    v_and_b32 v{T0+1}, 31, v1
    v_lshlrev_b32 v{T0+2}, 4, v{T0}
    v_lshl_or_b32 v{T0+3}, v{T0+1}, 5, v{T0+2}
    v_xor_b32 v{T0+2}, 16, v{T0+2}
    v_lshl_add_u32 v{T0+4}, v{T0+1}, 3, v{T0+2}
    v_add_u32 v{T0+4}, 384, v{T0+4}
    v_cmp_gt_u32 vcc, 16, v{T0+1}
    s_add_u32 s24, s24, 576
    v_add_u32 v{T0+2}, 128, v{T0+2}
    v_cndmask_b32 v{T0+3}, v{T0+4}, v{T0+3}, vcc
    v_add_u32 v{T0+3}, s24, v{T0+3}
    s_mov_b32 vcc_lo, 0x0011ffff
    s_mov_b32 vcc_hi, 0x0011ffff
    v_mov_b32 v{T0+4}, {SLOT}
    v_mov_b32 v{IDX}, 0xdddddddd
    v_cndmask_b32 v{aV}, v{T0+2}, v{T0+3}, vcc
    v_cndmask_b32 v{vINC}, 0, v{T0+4}, vcc
    s_mul_i32 s24, s{sM}, 18
    s_add_u32 s25, s24, 17
    s_lshr_b32 s24, s24, 6
    s_lshr_b32 s25, s25, 6
    s_sub_u32 s25, s25, s24
    v_and_b32 v{T0+1}, s25, v1
    v_bfe_u32 v{T0+2}, v1, 1, 2
    v_min_u32 v{T0+2}, 2, v{T0+2}
    v_mul_u32_u24 v{T0+2}, 9, v{T0+2}
    v_add3_u32 v{T0+1}, v{T0+1}, v{T0+2}, s24      ; col64
    v_bfe_u32 v{T0+2}, v1, 3, 2                    ; b
    v_lshlrev_b32 v{T0+3}, 7, v{T0+2}
    v_lshl_or_b32 v{T0+3}, v{T0+1}, 2, v{T0+3}
    s_lshl_b32 s24, s{sJ}, 9
    s_add_u32 s24, s24, {WS_FL1}
    v_add_u32 v{T0+11}, s24, v{T0+3}
    v_and_b32 v{T0+3}, 30, v{T0+1}
    v_lshrrev_b32 v{T0+4}, 1, v{T0+2}
    v_or_b32 v{T0+3}, v{T0+3}, v{T0+4}             ; m'
    v_lshlrev_b32 v{T0+3}, 10, v{T0+3}
    v_and_b32 v{T0+2}, 1, v{T0+2}
    v_and_b32 v{T0+1}, 1, v{T0+1}
    v_lshl_or_b32 v{T0+1}, v{T0+2}, 1, v{T0+1}
    v_lshl_or_b32 v{T0+3}, v{T0+1}, 2, v{T0+3}
    s_lshl_b32 s24, s{sJ}, 7
    s_add_u32 s24, s24, {WS_FG1}
    v_add_u32 v{T0+12}, s24, v{T0+3}
    """)
    for i in range(32): a(f"v_mov_b32 v{O+i}, 0")
    for i in range(4): a(f"v_mov_b32 v{V+4+i}, 0")
    for i in range(24, 32): a(f"v_mov_b32 v{S[1]+i}, 0")
    regaddr(a, T0 + 14)
    a(f"""
    v_mov_b32 v{vM}, {MISC}
    v_mov_b32 v{vONE}, 1
    s_mul_i32 s15, s{sJ}, {JS}
    s_mul_i32 s24, s{sM}, {HS}
    s_add_u32 s15, s15, s24
    s_mul_i32 s61, s{sWAVE}, {27*128}
    s_add_u32 s61, s61, s15
    s_add_u32 s61, s61, {WS_LOC}
    v_min_u32 v{T0+7}, 26, v1
    v_lshlrev_b32 v{T0+7}, 7, v{T0+7}
    v_lshrrev_b32 v{T0+1}, 3, v1
    v_mul_u32_u24 v{T0+1}, 1152, v{T0+1}
    v_and_b32 v{T0+2}, 7, v1
    v_lshl_add_u32 v{T0+1}, v{T0+2}, 2, v{T0+1}
    v_mov_b32 v{T0+3}, 0x3f803f80
    ; STAMP 14
    s_cmp_ge_u32 s{sM}, 28
    s_cbranch_scc1 L_spare_ld2
L_ldloop:
    s_cmp_lt_u32 s60, 3
    s_cbranch_scc1 L_ldnw
    s_waitcnt vmcnt(8)
    s_barrier
L_ldnw:
    """)
    ld_chunk()
    a(f"""
    s_cmp_lt_u32 s60, 9
    s_cbranch_scc1 L_ldloop
    buffer_load_dword v{T0+2}, v{T0+7}, {RW}, {"0" if o.get("nopre") else "s61"} offen sc1
    s_waitcnt vmcnt(9)
    s_barrier
    ; STAMP 8
    s_waitcnt vmcnt(5)
    s_barrier
    s_waitcnt vmcnt(1)
    s_barrier
    ; STAMP 9
L_ld_done:
    {regload(T0 + 14, T0 + 15)}
    s_mov_b32 s8, s{pX}
    s_mov_b32 s9, s{pX+1}
    s_mov_b32 s10, {XB}
    s_barrier
    ds_write_b32 v{T0+1}, v{T0+3} offset:128
    """)
    regwait(a, T0 + 14, T0 + 15, preloaded=True, sleep=4)
    if o.get("slow"): a(f"s_mov_b32 s{sMODE}, 0")
    a(f"""
    s_cmp_eq_u32 s{sMODE}, 1
    s_cselect_b32 s24, {WS_LOC}, {WS_GLB}
    s_cselect_b64 vcc, -1, 0
    s_add_u32 s15, s15, s24
    v_cndmask_b32 v{T0+11}, v{T0+12}, v{T0+11}, vcc
    v_lshlrev_b32 v{T0+13}, 4, v0
    s_lshl_b32 s25, s{sWAVE}, 10
    s_add_u32 s26, s25, {L_QS - 18432 + 16384}
    s_add_u32 s25, s25, {KV0}
    s_add_u32 s27, s25, 16384
    s_cmp_lt_u32 s{sWAVE}, 2
    s_cselect_b32 s27, s27, s26
    s_mov_b32 exec_hi, 0
    ; STAMP 1
    """)
    poll(a, f"buffer_load_dword v{T0+2}, v{T0+11}, {RW}, 0 offen sc1", f"v_cmp_ne_u32 vcc, 1, v{T0+2}", sleep=1)
    a(f"""
    ; STAMP 2
    s_mov_b32 exec_hi, -1
    s_mov_b32 m0, s25
    s_add_u32 s24, s15, 8192
    buffer_load_dwordx4 v{T0+13}, {RW}, s15 offen sc1 lds
    s_add_u32 m0, s25, 8192
    s_add_u32 s28, s15, 16384
    buffer_load_dwordx4 v{T0+13}, {RW}, s24 offen sc1 lds
    s_mov_b32 m0, s27
    s_cmp_ge_u32 s{sWAVE}, 3
    buffer_load_dwordx4 v{T0+13}, {RW}, s28 offen sc1 lds
    s_cbranch_scc1 L_no4
    s_add_u32 m0, s26, 8192
    s_add_u32 s28, s15, 24576
    buffer_load_dwordx4 v{T0+13}, {RW}, s28 offen sc1 lds
L_no4:
    s_waitcnt vmcnt(0)
    """)
    lds_add(a, M_C0, vM, vONE)
    lds_wait(a, M_C0, 8, vM, T0, sleep=0)
    def toff(t): return t * 2304 if t < 4 else SLOT + (t - 4) * 2304
    def kreads(off): return [f"ds_read_b64_tr_b16 {vr(KM+2*m,2)}, v{aK} offset:{off + m*128}" for m in range(2)]
    def krread(off): return f"ds_read_b64_tr_b16 {vr(KR,2)}, v{aKR} offset:{off}"
    def vread(g, off): return f"ds_read_b128 {vr(V+4*g,4)}, v{aV} offset:{off + g*1152}"
    def m2b(Y, ab): return f"v_mfma_f32_32x32x4_2b_bf16 {vr(Y,32)}, {vr(KR,2)}, {vr(QR,2)}, {vr(Y,32)} cbsz:1 abid:{ab}"
    def smf(p, i): return f"v_smfmac_f32_32x32x32_bf16 {vr(O+16*(i>>1),16)}, {vr(V+4*(i&1),4)}, {vr(S[p]+8*i,8)}, v{IDX}"
    def exps(p, lo, hi): return [f"v_exp_f32 v{S[p]+i}, v{S[p]+i}" for i in range(lo, hi)]
    for x in kreads(0): a(x)
    for t in range(2):
        for m in range(2):
            a(f"ds_read_b64_tr_b16 {vr(QM+4*t+2*m,2)}, v{T0+8+t} offset:{m*128}")
    a(f"ds_read_b64_tr_b16 {vr(QR,2)}, v{T0+10}")
    a(krread(0))
    a("s_setprio 2\ns_mov_b32 s14, 0\ns_mov_b32 s62, 0\ns_waitcnt lgkmcnt(2)")
    a(mf32(S[0], KM, QM, 0)); a(mf32(S[0] + 16, KM, QM + 4, 0))
    for x in kreads(toff(1)): a(x)
    a(vread(0, 0))
    a(f"s_waitcnt lgkmcnt(3)\nv_mov_b32 v{QR+1}, 0\ns_nop 4")
    a(m2b(S[0], 0))
    a("s_nop 15\ns_nop 3")
    a("; STAMP 3")
    a(".p2align 6\nL_att:")
    for u in range(4):
        p = u & 1; q = 1 - p
        seq = []
        seq += exps(p, 0, 2)
        seq += [smf(q, 3), vread(1, toff(u))]
        seq += exps(p, 2, 5)
        seq += [f"s_waitcnt lgkmcnt({3 if u & 1 else 2})", mf32(S[q], KM, QM, 0)]
        seq += exps(p, 5, 8)
        seq += [mf32(S[q] + 16, KM, QM + 4, 0), "s_waitcnt lgkmcnt(1)"]
        seq += exps(p, 8, 11)
        seq += [smf(p, 0), "s_waitcnt lgkmcnt(0)"]
        if u == 2: seq += ["s_cmp_ge_u32 s14, s62"]
        if u == 3: seq += ["s_add_u32 s14, s14, 1"]
        seq += exps(p, 11, 16)
        seq += [m2b(S[q], (u + 1) & 1)]
        seq += exps(p, 16, 24)
        if u == 3:
            seq += [f"v_add_u32 v{aK}, {SLOT}, v{aK}", f"v_add_u32 v{aKR}, {SLOT}, v{aKR}", f"v_add_u32 v{aV}, v{vINC}, v{aV}"]
        seq += [smf(p, 1)]
        if u == 2: seq += ["s_cbranch_scc1 L_att_bar", "L_att_back:"]
        seq += kreads(toff(u + 2) if u < 3 else toff(1))
        seq += exps(p, 24, 27)
        seq += [smf(p, 2), vread(0, toff(u + 1) if u < 3 else 0)]
        if u % 2 == 0: seq += [krread(toff(u + 2))]
        if u == 3: seq += ["s_cmp_lt_u32 s14, 8"]
        seq += exps(p, 27, 32)
        for x in seq: a(x)
    a("s_cbranch_scc1 L_att")
    a("; STAMP 4")
    a(f"""
    s_mov_b32 s29, 0
    s_nop 0
    {smf(1, 3)}
L_combine:
    s_mul_i32 s24, s{sWAVE}, 2560
    s_add_u32 s24, s24, {L_CB}
    s_cmp_eq_u32 s{sWAVE}, 7
    s_cselect_b32 s24, {M_CB7}, s24
    v_lshl_add_u32 v{T0}, v1, 4, s24
    v_lshl_add_u32 v{T0+1}, v1, 3, s24
    s_xor_b32 s25, s{sWAVE}, 4
    s_mul_i32 s25, s25, 2560
    s_add_u32 s25, s25, {L_CB}
    s_cmp_eq_u32 s{sWAVE}, 3
    s_cselect_b32 s25, {M_CB7}, s25
    v_lshl_add_u32 v{T0+2}, v1, 4, s25
    v_lshl_add_u32 v{T0+3}, v1, 3, s25
    ds_write_b128 v{T0}, {vr(O,4)}
    ds_write_b128 v{T0}, {vr(O+4,4)} offset:1024
    ds_write_b64 v{T0+1}, {vr(O+8,2)} offset:2048
    v_mov_b32 v{T0+4}, {M_BAD}
    v_subrev_u32 v{T0+5}, {(127-40) << 23}, v{O+9}
    v_subrev_u32 v{T0+6}, {(127-40) << 23}, v{O+25}
    v_max_u32 v{T0+5}, v{T0+5}, v{T0+6}
    v_cmp_lt_u32 vcc, {80 << 23}, v{T0+5}
    s_cbranch_vccz L_lok
    ds_write_b32 v{T0+4}, v{IDX}
L_lok:
    s_waitcnt lgkmcnt(0)
    s_barrier                          ; BE
    ; STAMP 10
    ds_read_b32 v{T0+4}, v{T0+4}
    ds_read_b64 {vr(O+8,2)}, v{T0+3} offset:2048
    ds_read_b128 {vr(O,4)}, v{T0+2}
    ds_read_b128 {vr(O+4,4)}, v{T0+2} offset:1024
    s_lshl2_add_u32 s24, s{sJ}, s13
    s_lshl1_add_u32 s24, s24, s12
    s_lshl_b32 s24, s24, 5
    s_add_u32 s24, s24, s{sM}          ; tile*32 + h
    s_mul_i32 s28, s{sMODE}, {WS_OL - WS_OG}
    s_add_u32 s28, s28, {WS_OG}
    s_lshl_b32 s25, s24, 10
    s_add_u32 s25, s25, s28
    s_lshl_b32 s26, s24, 7
    s_add_u32 s26, s26, s28
    s_add_u32 s26, s26, {O_REM}
    s_lshl_b32 s27, s24, 2
    s_add_u32 s27, s27, {WS_FL2}
    v_lshlrev_b32 v{T0}, 4, v1
    v_and_b32 v{T0+1}, 31, v1
    v_lshrrev_b32 v{T0+5}, 5, v1
    v_lshl_or_b32 v{T0+1}, v{T0+1}, 1, v{T0+5}
    v_lshlrev_b32 v{T0+1}, 1, v{T0+1}
    s_waitcnt lgkmcnt(2)
    v_cmp_lt_u32 vcc, s29, v{T0+4}
    v_add_f32 v{O+9}, v{O+9}, v{O+25}
    s_cbranch_vccnz L_fallback
    v_rcp_f32 v{O+10}, v{O+9}
    v_add_f32 v{O+8}, v{O+8}, v{O+24}
    s_waitcnt lgkmcnt(0)
    """)
    for i in range(0, 8, 2): a(f"v_pk_add_f32 {vr(O+i,2)}, {vr(O+i,2)}, {vr(O+16+i,2)}")
    a(f"v_mul_f32 v{O+8}, v{O+8}, v{O+10}")
    for i in range(0, 8, 2): a(f"v_pk_mul_f32 {vr(O+i,2)}, {vr(O+i,2)}, {vr(O+10,2)} op_sel_hi:[1,0]")
    for i in range(4): a(f"v_cvt_pk_bf16_f32 v{O+i}, v{O+2*i}, v{O+2*i+1}")
    a(f"""
    v_cvt_pk_bf16_f32 v{O+4}, v{O+8}, v{O+8}
    v_mov_b32 v{T0+6}, 1
    v_mov_b32 v{T0+7}, 0
    s_cmp_eq_u32 s{sMODE}, 1
    s_cbranch_scc0 L_ostore_g
    buffer_store_dwordx4 {vr(O,4)}, v{T0}, {RW}, s25 offen
    buffer_store_short v{O+4}, v{T0+1}, {RW}, s26 offen
    s_mov_b64 exec, 1
    s_waitcnt vmcnt(0)
    buffer_store_dword v{T0+6}, v{T0+7}, {RW}, s27 offen
L_ostored:
    ; STAMP 11
    s_mov_b64 exec, -1
    """)
    OF = 32; ACC = 68; W = [88, 108, 128, 148]
    a(f"""
    v_lshrrev_b32 v18, 4, v1           ; kg
    v_bfe_u32 v22, v1, 2, 2            ; r
    v_and_b32 v23, 3, v1
    v_lshlrev_b32 v23, 3, v23          ; 8c
    v_lshrrev_b32 v24, 5, v1
    v_mul_u32_u24 v24, 18, v24
    v_bfe_u32 v25, v1, 4, 1
    v_lshl_add_u32 v24, v25, 2, v24
    v_add_u32 v24, v24, v22
    v_mul_u32_u24 v24, 160, v24
    s_mul_i32 s24, s12, {288*160}
    s_add_u32 s24, s24, {L_WO}
    v_add3_u32 v26, v24, v23, s24
    """)
    def wreads(s):
        r = []
        for n in range(5):
            for m in range(2):
                reg, off = (26, (36 * s + 8 * m) * 160 + 32 * n) if s < 8 else (27, 36 * m * 160 + 32 * n)
                r.append(f"ds_read_b64_tr_b16 {vr(W[s&3]+4*n+2*m,2)}, v{reg} offset:{off}")
        return r
    for x in wreads(0): a(x)
    a(f"""
    v_lshrrev_b32 v24, 1, v22
    v_lshl_add_u32 v24, v18, 2, v24
    v_mul_u32_u24 v24, 18, v24
    v_and_b32 v25, 1, v22
    v_add3_u32 v24, v24, v25, 16
    v_mul_u32_u24 v24, 160, v24
    v_add3_u32 v27, v24, v23, s24
    s_and_b32 s24, s{sM}, 3
    s_lshl2_add_u32 s24, s{sJ}, s24
    s_lshr_b32 s25, s13, 1
    s_lshl1_add_u32 s24, s24, s25
    s_lshl1_add_u32 s24, s24, s12
    s_lshl_b32 s24, s24, 4
    s_lshl_b32 s25, s24, 10
    s_add_u32 s25, s25, s28
    s_lshl_b32 s26, s24, 7
    s_add_u32 s26, s26, s28
    s_add_u32 s26, s26, {O_REM}
    s_lshl_b32 s27, s24, 2
    s_add_u32 s27, s27, {WS_FL2}
    v_and_b32 v16, 15, v1              ; t
    v_lshlrev_b32 v17, 2, v16
    buffer_load_dword v22, v17, {RW}, s27 offen sc1
    s_and_b32 s24, s13, 1
    s_lshl_b32 s24, s24, 4
    v_add_u32 v19, s24, v16
    v_lshlrev_b32 v20, 9, v18
    v_lshl_add_u32 v21, v19, 2, v20
    v_lshl_add_u32 v20, v19, 4, v20
    s_lshl_b32 s24, s13, 4
    v_add_u32 v24, s24, v16
    v_mul_u32_u24 v24, {AS}, v24
    s_mul_i32 s24, s12, {L_A1 - L_A0}
    s_add_u32 s24, s24, {L_A0}
    v_lshlrev_b32 v25, 4, v18
    v_add3_u32 v28, v24, v25, s24
    """)
    for st in (1, 2, 3):
        for x in wreads(st): a(x)
    poll(a, f"buffer_load_dword v22, v17, {RW}, s27 offen sc1", "v_cmp_ne_u32 vcc, 1, v22", preloaded=True)
    a("; STAMP 5")
    for st in range(8):
        a(f"buffer_load_dwordx4 {vr(OF+4*st,4)}, v20, {RW}, s25 offen offset:{(st%2)*2048} sc1")
        if st % 2: a("s_add_u32 s25, s25, 4096")
    for i in range(4):
        a(f"buffer_load_dword v{OF+32+i}, v21, {RW}, s26 offen offset:{i*128} sc1")
    for st in range(9):
        lg = 0 if st in (0, 8) else (10 if st == 7 else (14 if st >= 4 else 15))
        if o.get("lg4") and st > 0: lg = min(lg, 4)
        a(f"s_waitcnt vmcnt({11 - st if st < 8 else 0}) lgkmcnt({lg})")
        r = wreads(st + 4) if st < 5 else []
        for n in range(5):
            a(mf16(ACC + 4 * n, W[st & 3] + 4 * n, OF + 4 * st, 0 if st == 0 else None))
            if o.get("lag"):
                if n > 0:
                    for x in r[2*n-2:2*n]: a(x)
                if n == 4:
                    a("s_nop 3")
                    for x in r[8:10]: a(x)
            else:
                for x in r[2*n:2*n+2]: a(x)
    a("; STAMP 12")
    a("s_nop 4")
    for n in range(5):
        if n == 4: a("s_mov_b32 exec_hi, 0")
        a(f"ds_write_b128 v28, {vr(ACC+4*n,4)} offset:{64*n}")
        if n < 3: a("s_nop 0")
    a("s_mov_b32 exec_hi, -1")
    a(f"""
L_final:
    v_and_b32 v16, 0xff, v{vROW}
    v_lshrrev_b32 v17, 8, v{vROW}
    v_mul_u32_u24 v18, {AS}, v16
    v_lshl_add_u32 v18, v17, 5, v18
    v_add_u32 v18, {L_A0}, v18
    v_mov_b32 v20, {M_SEL}
    s_and_b32 s24, s{sM}, 3
    s_lshl2_add_u32 s24, s{sJ}, s24
    s_lshl_b32 s24, s24, 6
    s_mov_b32 s8, s{pOUT}
    s_mov_b32 s9, s{pOUT+1}
    s_waitcnt lgkmcnt(0)
    s_barrier                          ; BA
    ; STAMP 6
    ds_read_b64 v[20:21], v20
    ds_read_b128 v[24:27], v18
    ds_read_b128 v[32:35], v18 offset:{L_A1 - L_A0}
    ds_read_b128 v[28:31], v18 offset:16
    ds_read_b128 v[36:39], v18 offset:{L_A1 - L_A0 + 16}
    """)
    for i in range(4):
        a(f"v_lshlrev_b32 v{40+2*i}, 16, v{XD+i}\nv_and_b32 v{41+2*i}, 0xffff0000, v{XD+i}")
    a(f"v_sub_f32 v10, 1.0, v{vG}")
    rne_bf16(a, 10)
    a(f"""
    v_add_u32 v16, s24, v16
    v_sub_u32 v16, 2047, v16
    s_waitcnt lgkmcnt(4)
    v_and_b32 v20, 0x7ff, v20
    v_and_b32 v21, 0x7ff, v21
    v_cmp_eq_u32 s[26:27], v20, v16
    v_cmp_eq_u32 vcc, v21, v16
    s_or_b64 s[26:27], s[26:27], vcc
    s_cbranch_scc1 L_routed
L_mix:
    v_mov_b32 v8, v{vG}
    s_waitcnt lgkmcnt(0)
    """)
    for i in range(0, 8, 2): a(f"v_pk_add_f32 {vr(24+i,2)}, {vr(24+i,2)}, {vr(32+i,2)}")
    for i in range(0, 8, 2): a(f"v_pk_mul_f32 {vr(40+i,2)}, {vr(40+i,2)}, v[10:11] op_sel_hi:[1,0]")
    for i in range(4): a(f"v_cvt_pk_bf16_f32 v{32+i}, v{24+2*i}, v{25+2*i}")
    for i in range(4): a(f"v_cvt_pk_bf16_f32 v{36+i}, v{40+2*i}, v{41+2*i}")
    for i in range(4): a(f"v_lshlrev_b32 v{24+2*i}, 16, v{32+i}\nv_and_b32 v{25+2*i}, 0xffff0000, v{32+i}")
    for i in range(0, 8, 2): a(f"v_pk_mul_f32 {vr(24+i,2)}, {vr(24+i,2)}, v[8:9]")
    for i in range(4): a(f"v_lshlrev_b32 v{40+2*i}, 16, v{36+i}\nv_and_b32 v{41+2*i}, 0xffff0000, v{36+i}")
    for i in range(4): a(f"v_cvt_pk_bf16_f32 v{32+i}, v{24+2*i}, v{25+2*i}")
    for i in range(4): a(f"v_lshlrev_b32 v{24+2*i}, 16, v{32+i}\nv_and_b32 v{25+2*i}, 0xffff0000, v{32+i}")
    for i in range(0, 8, 2): a(f"v_pk_add_f32 {vr(24+i,2)}, {vr(24+i,2)}, {vr(40+i,2)}")
    for i in range(4): a(f"v_cvt_pk_bf16_f32 v{32+i}, v{24+2*i}, v{25+2*i}")
    a(f"""
    buffer_store_dwordx4 v[32:35], v{vXO}, s[8:11], 0 offen
L_end:
    s_endpgm
    """)
    a(f"""
L_spare_ld2:
    buffer_load_dword v{T0+2}, v{T0+7}, {RW}, s61 offen sc1
    s_branch L_ld_done
L_att_bar:
    s_cmp_eq_u32 s14, 7
    s_cbranch_scc1 L_att_last
    s_cmp_lg_u32 s14, 0
    s_cbranch_scc1 L_att_full
    """)
    lds_add(a, M_Q, vM, vONE)
    a("L_att_full:")
    poll(a, f"ds_read_b32 v{T0}, v{vM} offset:{M_FULL - MISC}", f"v_cmp_ge_u32 vcc, s14, v{T0}", sleep=2)
    a(f"""
    v_readfirstlane_b32 s62, v{T0}
    s_min_u32 s62, s62, 5
    s_cmp_lt_u32 s14, 5
    s_cbranch_scc1 L_att_back
    s_setprio 1
    s_cmp_eq_u32 s14, 6
    s_cbranch_scc1 L_att_six
    ; STAMP 13
    """)
    final_loads(a)
    a("s_branch L_att_back\nL_att_six:")
    lds_add(a, M_PAST, vM, vONE)
    a("s_setprio 0\ns_branch L_att_back\nL_att_last:")
    lds_wait(a, M_PAST, 8, vM, T0 + 1, sleep=2)
    a(f"""
    s_branch L_att_back
L_ostore_g:
    buffer_store_dwordx4 {vr(O,4)}, v{T0}, {RW}, s25 offen sc1
    buffer_store_short v{O+4}, v{T0+1}, {RW}, s26 offen sc1
    s_mov_b64 exec, 1
    s_waitcnt vmcnt(0)
    buffer_store_dword v{T0+6}, v{T0+7}, {RW}, s27 offen sc1
    s_branch L_ostored
L_routed:
    v_lshlrev_b32 v17, 5, v17
    v_add_u32 v22, {M_Y + 320}, v17
    v_add_u32 v17, {M_Y}, v17
    v_cndmask_b32 v17, v17, v22, vcc
    ds_read_b128 v[48:51], v17
    ds_read_b128 v[52:55], v17 offset:16
    s_mov_b64 exec, s[26:27]
    s_waitcnt lgkmcnt(0)
    """)
    for i in range(8):
        a(f"v_add_f32 v{40+i}, v{40+i}, v{48+i}")
        rne_bf16(a, 40 + i)
    a("s_mov_b64 exec, -1\ns_branch L_mix")
    M0r, M1r = T0 + 8, T0 + 9
    def slow_qk():
        for x in kreads(0): a(x)
        a(krread(0))
    a(f"""
L_fallback:
    s_waitcnt lgkmcnt(0)
    s_barrier
    s_barrier                          ; K/V reloaded
    s_mul_i32 s24, s12, 9216
    s_add_u32 s24, s24, {8 * SLOT}
    v_subrev_u32 v{aK}, s24, v{aK}
    v_subrev_u32 v{aKR}, s24, v{aKR}
    v_lshlrev_b32 v{T0}, 3, v{vINC}
    v_sub_u32 v{aV}, v{aV}, v{T0}
    v_mov_b32 v{M0r}, 0xff800000
    v_mov_b32 v{M1r}, 0xff800000
    s_mov_b32 s14, 0
L_fb_max:
    """)
    for t in range(2):
        for x in kreads(t * 2304): a(x)
        if t == 0: a(krread(0))
        a("s_waitcnt lgkmcnt(0)")
        a(mf32(S[0], KM, QM, 0)); a(mf32(S[0] + 16, KM, QM + 4, 0))
        a("s_nop 9"); a(m2b(S[0], t)); a("s_nop 15\ns_nop 3")
        for i in range(0, 16, 2):
            a(f"v_max3_f32 v{M0r}, v{S[0]+i}, v{S[0]+i+1}, v{M0r}")
            a(f"v_max3_f32 v{M1r}, v{S[0]+16+i}, v{S[0]+17+i}, v{M1r}")
    a(f"""
    v_add_u32 v{aK}, 4608, v{aK}
    v_add_u32 v{aKR}, 4608, v{aKR}
    s_add_u32 s14, s14, 1
    s_cmp_lt_u32 s14, 32
    s_cbranch_scc1 L_fb_max
    v_mov_b32 v{T0}, v{M0r}
    v_mov_b32 v{T0+1}, v{M1r}
    s_mul_i32 s24, s12, 9216
    s_sub_u32 s24, {8 * SLOT}, s24
    v_permlane32_swap_b32 v{T0}, v{M0r}
    v_permlane32_swap_b32 v{T0+1}, v{M1r}
    v_subrev_u32 v{aK}, s24, v{aK}
    v_subrev_u32 v{aKR}, s24, v{aKR}
    v_max_f32 v{M0r}, v{T0}, v{M0r}
    v_max_f32 v{M1r}, v{T0+1}, v{M1r}
    """)
    for i in range(32): a(f"v_mov_b32 v{O+i}, 0")
    a("s_mov_b32 s14, 0\nL_fb_pv:")
    for t in range(4):
        for x in kreads(t * 2304): a(x)
        if t % 2 == 0: a(krread(t * 2304))
        a(vread(0, t * 2304)); a(vread(1, t * 2304))
        a("s_waitcnt lgkmcnt(0)")
        a(mf32(S[0], KM, QM, 0)); a(mf32(S[0] + 16, KM, QM + 4, 0))
        a("s_nop 9"); a(m2b(S[0], t & 1)); a("s_nop 15\ns_nop 3")
        for i in range(32):
            a(f"v_sub_f32 v{S[0]+i}, v{S[0]+i}, v{M0r + (i >> 4)}")
        for x in exps(0, 0, 32): a(x)
        a("s_nop 1")
        for i in range(4): a(smf(0, i))
    a(f"""
    v_add_u32 v{aK}, {SLOT}, v{aK}
    v_add_u32 v{aKR}, {SLOT}, v{aKR}
    v_add_u32 v{aV}, v{vINC}, v{aV}
    s_add_u32 s14, s14, 1
    s_cmp_lt_u32 s14, 8
    s_cbranch_scc1 L_fb_pv
    s_mov_b32 s29, -1
    s_nop 7
    s_barrier
    s_branch L_combine
    """)
    ACC1 = 64; FR = 32
    a(f"""
L_service:
    s_setprio 3
    v_mov_b32 v7, 0
    s_sub_u32 s12, s{sWAVE}, 8         ; sw
    s_lshr_b32 s13, s12, 1             ; wm
    s_and_b32 s14, s12, 1              ; wn
    s_cmp_lg_u32 s12, 0
    s_waitcnt lgkmcnt(0)
    s_cbranch_scc1 L_noclear
    v_mov_b32 v8, 0
    v_lshlrev_b32 v6, 2, v1
    v_add_u32 v6, {MISC}, v6
    ds_write_b32 v6, v8
    s_cmp_lt_u32 s{sM}, 28
    s_cbranch_scc1 L_register
    s_sub_u32 s24, s2, 224
    s_mul_i32 s24, s24, 3072
    s_add_u32 s24, s24, {WS_CLR}
    v_lshlrev_b32 v3, 4, v1
    v_mov_b32 v9, 0
    v_mov_b32 v10, 0
    v_mov_b32 v11, 0
    buffer_store_dwordx4 v[8:11], v3, {RW}, s24 offen sc1
    buffer_store_dwordx4 v[8:11], v3, {RW}, s24 offen offset:1024 sc1
    buffer_store_dwordx4 v[8:11], v3, {RW}, s24 offen offset:2048 sc1
    s_waitcnt vmcnt(0)
L_register:
    v_mov_b32 v6, s{sREG}
    s_lshl_b32 s24, s{sJ}, 5
    s_mov_b64 exec, 1
    buffer_atomic_add v6, v8, {RD}, s24 offen sc1
    s_mov_b64 exec, -1
    s_waitcnt lgkmcnt(0)
L_noclear:
    """)
    if o.get("cpf"):
        a(f"""
        s_getpc_b64 s[24:25]
L_pc:
        s_sub_u32 s24, s24, L_pc - {NAME}
        s_subb_u32 s25, s25, 0
        s_lshl_b32 s26, s12, 6
        v_add_u32 v3, s26, v1
        v_min_u32 v3, (L_codeend - {NAME} - 4) / 128, v3
        v_lshlrev_b32 v3, 7, v3
        global_load_dword v31, v3, s[24:25]
        """)
    a(f"""
    s_cmp_ge_u32 s{sM}, 28
    s_cbranch_scc1 L_rg
    v_and_b32 v3, 19, v1
    v_bfe_u32 v12, v1, 2, 1
    v_lshl_or_b32 v3, v12, 3, v3
    v_bfe_u32 v12, v1, 3, 1
    v_lshl_or_b32 v3, v12, 2, v3
    v_bfe_u32 v12, v3, 1, 3
    v_lshrrev_b32 v13, 5, v1           ; hh
    v_xor_b32 v12, v12, v13
    v_lshlrev_b32 v12, 4, v12
    v_lshl_or_b32 v12, v3, 7, v12
    s_lshl_b32 s24, s13, 13
    v_add_u32 v16, s24, v12
    v_xor_b32 v17, 32, v16
    v_xor_b32 v18, 64, v16
    v_xor_b32 v19, 96, v16
    v_bfe_u32 v3, v1, 2, 2
    v_lshl_add_u32 v12, v13, 3, v3
    v_lshlrev_b32 v12, 8, v12
    s_lshl_b32 s24, s14, 1
    v_xor_b32 v14, s24, v3
    v_lshl_or_b32 v12, v14, 6, v12
    v_bfe_u32 v14, v1, 4, 1
    v_lshl_or_b32 v12, v14, 5, v12
    v_and_b32 v14, 3, v1
    v_lshl_or_b32 v12, v14, 3, v12
    v_add_u32 v20, 16384, v12
    v_xor_b32 v21, 64, v20
    s_and_b32 s24, s{sM}, 30
    s_add_u32 s24, s24, s14            ; col64
    s_cmp_ge_u32 s24, 9
    s_cselect_b32 s25, 1, 0
    s_cmp_ge_u32 s24, 18
    s_addc_u32 s25, s25, 0             ; matrix 0 q, 1 k, 2 v
    s_mul_i32 s26, s25, 9
    s_sub_u32 s26, s24, s26
    s_lshl_b32 s26, s26, 6
    s_lshr_b32 s27, s25, 1             ; is v
    s_mov_b32 s28, {HS}
    """)
    for nt in range(2):
        a(f"""
        v_and_b32 v3, 31, v1
        v_add3_u32 v3, v3, s26, {32*nt}
        v_mul_u32_u24 v12, 3641, v3
        v_lshrrev_b32 v12, 16, v12         ; head
        v_mul_u32_u24 v14, 18, v12
        v_sub_u32 v3, v3, v14              ; d
        v_lshrrev_b32 v14, 4, v3
        v_and_b32 v14, s27, v14
        v_xor_b32 v14, v14, v13
        v_lshlrev_b32 v14, 4, v14
        v_lshl_or_b32 v3, v3, 5, v14
        v_mad_u32_u24 v{28+nt}, v12, s28, v3
        """)
    a(f"""
    s_movk_i32 s56, 1152
    s_cmp_eq_u32 s25, 0
    s_cselect_b32 s56, 576, s56
    s_cselect_b32 s57, 18432, 0
    s_mul_i32 s27, s27, 576
    s_add_u32 s57, s57, s27
    s_and_b32 s27, s{sM}, 1
    s_lshl1_add_u32 s27, s27, s13
    s_mul_i32 s28, s27, s56
    s_lshl2_add_u32 s57, s28, s57
    s_mul_i32 s28, s{sJ}, {JS}
    s_add_u32 s57, s57, s28
    s_lshl2_add_u32 s27, s{sJ}, s27
    s_lshl_b32 s27, s27, 7
    s_lshl2_add_u32 s58, s24, s27
    s_add_u32 s58, s58, {WS_FL1}
    s_mov_b32 s59, s25
    s_cmp_eq_u32 s24, 27
    s_cselect_b32 s59, 3, s59
    """)
    for i in range(64): a(f"v_mov_b32 v{ACC1+i}, 0")
    for i in range(16): a(f"v_mov_b32 v{FR+16+i}, 0")
    a("s_mov_b32 s24, 0\ns_mov_b32 s25, 0")
    def reads(kk):
        p = kk & 1; A = FR + 16 * p; B = A + 8
        r = [f"ds_read_b128 {vr(A+4*mt,4)}, v{22+kk} offset:{4096*mt}" for mt in range(2)]
        r += [f"ds_read_b64_tr_b16 {vr(B+4*nt+2*m,2)}, v{26+nt} offset:{(16*kk+4*m)*256}" for nt in range(2) for m in range(2)]
        return r
    def mfmas(kk):
        p = kk & 1; A = FR + 16 * p; B = A + 8
        return [mf32(ACC1 + 16 * (2 * mt + nt), A + 4 * mt, B + 4 * nt) for mt in range(2) for nt in range(2)]
    for i in range(6): a(f"v_mov_b32 v{22+i}, v{16+i}")
    regaddr(a, 3)
    a("; STAMP 1")
    a("L_gemm:")
    a(f"s_barrier\ns_cmp_lg_u32 s24, 8\ns_cbranch_scc1 L_gemm2\n{regload(3, 4)}\nL_gemm2:")
    if o.get("gstamp"): a("s_cmp_lg_u32 s24, 0\ns_cbranch_scc1 L_gs1\n; STAMP 7\nL_gs1:\ns_cmp_lg_u32 s24, 4\ns_cbranch_scc1 L_gs2\n; STAMP 8\nL_gs2:")
    for kk in range(4):
        r = reads(kk); m = mfmas((kk + 3) & 3)
        if kk > 0: a("s_waitcnt lgkmcnt(0)")
        a(m[0]); a(r[0]); a(r[2]); a(r[3]); a(m[1]); a(r[1]); a(r[4]); a(r[5]); a(m[2])
        if kk == 3:
            a("s_add_u32 s25, s25, 32768\ns_and_b32 s25, s25, 0x1ffff")
            for i in range(3): a(f"v_add_u32 v{22+i}, s25, v{16+i}")
        a(m[3])
        if kk == 3:
            for i in range(3, 6): a(f"v_add_u32 v{22+i}, s25, v{16+i}")
    a(f"""
    s_add_u32 s24, s24, 1
    s_cmp_lt_u32 s24, 9
    s_waitcnt lgkmcnt(0)
    s_cbranch_scc1 L_gemm
    s_barrier                          ; BL
    """)
    for x in mfmas(3): a(x)
    regwait(a, 3, 4, preloaded=True)
    a("s_nop 3")
    if o.get("slow"): a(f"s_mov_b32 s{sMODE}, 0")
    a(f"""
    ; STAMP 2
    v_mov_b32 v4, 1
    v_mov_b32 v5, 0
    s_cmp_eq_u32 s59, 3
    s_cbranch_scc1 L_stored
    s_cmp_lg_u32 s59, 0
    s_cbranch_scc1 L_noscale
    s_mov_b32 s24, {f32bits(QSCALE)}
    s_mov_b32 s25, s24
    """)
    for r in range(0, 64, 2): a(f"v_pk_mul_f32 {vr(ACC1+r,2)}, {vr(ACC1+r,2)}, s[24:25]")
    a("L_noscale:")
    a(f"s_add_u32 s24, s57, {WS_LOC}\ns_cmp_eq_u32 s{sMODE}, 1\ns_cselect_b32 s18, {WS_END}, 0")
    def pk(mt, nt, hf): return FR + 4 * (4 * mt + 2 * hf + nt)
    for mt in range(2):
        for hf in range(2):
            for nt in range(2):
                D = ACC1 + 16 * (2 * mt + nt) + 8 * hf
                for r in range(4): a(f"v_cvt_pk_bf16_f32 v{pk(mt,nt,hf)+r}, v{D+2*r}, v{D+2*r+1}")
                a(f"buffer_store_dwordx4 {vr(pk(mt,nt,hf),4)}, v{28+nt}, {RW}, s24 offen")
            a("s_add_u32 s24, s24, s56")
    a(f"""
    s_cmp_ge_u32 s59, s{sMODE}
    s_cselect_b32 s18, {WS_END}, 0
    """)
    NE = o.get("ne", 1)
    for mt in range(2):
        for hf in range(2):
            if 2 * mt + hf == NE:
                a(f"""
                s_mov_b32 s25, s18
                s_mov_b32 s18, {WS_END}
                s_mov_b64 exec, 1
                ; STAMP 9
                s_waitcnt vmcnt({2*NE})
                buffer_store_dword v4, v5, {RW}, s58 offen
                s_mov_b64 exec, -1
                s_mov_b32 s18, s25
                ; STAMP 10
                """)
            for nt in range(2):
                a(f"buffer_store_dwordx4 {vr(pk(mt,nt,hf),4)}, v{28+nt}, {RW}, s57 offen sc1")
            a("s_add_u32 s57, s57, s56")
    a(f"""
    s_mov_b32 s18, {WS_END}
L_stored:
    s_lshl_b32 s24, s2, 7
    s_lshl2_add_u32 s24, s12, s24
    s_add_u32 s24, s24, {WS_FG1}
    s_mov_b64 exec, 1
    s_waitcnt vmcnt(0)
    buffer_store_dword v4, v5, {RW}, s24 offen sc1
    s_mov_b64 exec, -1
L_svc_kv:
    ; STAMP 3
    v_mov_b32 v7, {MISC}
    v_mov_b32 v15, 1
    v_mov_b32 v5, 0
    v_lshlrev_b32 v2, 4, v1
    """)
    a("s_cmp_lg_u32 s12, 0\ns_cbranch_scc1 L_helper")
    lds_wait(a, M_C0, 8, 7, 8, sleep=2)
    a(f"""
    s_mul_i32 s24, s{sM}, 18
    v_and_b32 v3, 1, v1
    v_mul_u32_u24 v3, 17, v3
    v_bfe_u32 v6, v1, 1, 1
    v_mul_u32_u24 v6, 576, v6
    v_add3_u32 v3, v3, v6, s24
    v_add_u32 v3, 576, v3
    v_lshrrev_b32 v3, 7, v3            ; ct
    v_bfe_u32 v6, v1, 2, 1
    v_lshl_or_b32 v3, v3, 1, v6        ; m'
    v_lshrrev_b32 v6, 3, v1
    v_add3_u32 v6, v6, s{sJ}, 1
    v_and_b32 v6, 7, v6
    v_lshl_or_b32 v3, v3, 3, v6        ; wg
    v_lshlrev_b32 v3, 7, v3
    s_mov_b32 s29, {WS_FG1}
    s_mul_i32 s56, s{sM}, {HS}
    s_add_u32 s57, s{sJ}, 1
    s_mov_b32 s59, {KV0 + SLOT}
    s_mov_b64 exec, 0xff
    """)
    gl = f"buffer_load_dwordx4 v[8:11], v3, {RW}, s29 offen sc1"
    gc = "v_and_b32 v8, v8, v9\nv_and_b32 v10, v10, v11\nv_and_b32 v8, v8, v10\nv_cmp_ne_u32 vcc, 1, v8"
    poll(a, gl, gc, sleep=2)
    a("s_mov_b64 exec, -1\n; STAMP 4")
    def kvslot():
        a(f"""
        s_and_b32 s57, s57, 7
        s_mul_i32 s24, s57, {JS}
        s_add_u32 s24, s24, s56
        s_add_u32 s57, s57, 1
        """)
        for g in range(5):
            a(f"s_mov_b32 m0, s59\ns_add_u32 s59, s59, {4096 if g < 4 else 2048}")
            for u in range(4 if g < 4 else 2):
                a(f"buffer_load_dwordx4 v2, {RW}, s24 offen offset:{1024*u} sc1 lds")
            if g < 4: a("s_add_u32 s24, s24, 4096")
    def level():
        a(f"v_mov_b32 v6, s58\nds_write_b32 v7, v6 offset:{M_FULL - MISC}\ns_add_u32 s58, s58, 1")
    a("s_mov_b32 s58, 0\nL_kvloop:")
    kvslot()
    a(f"""
    s_cmp_lg_u32 s58, 0
    s_cbranch_scc1 L_kvnext
    {gl}
    s_waitcnt vmcnt(1)
    ds_write_b32 v7, v15 offset:{M_FULL - MISC}
    ; STAMP 5
    """)
    poll(a, gl, gc, sleep=4, preloaded=True)
    a(f"""
    s_mov_b32 s58, 1
    s_branch L_kvloop
L_kvnext:
    s_waitcnt vmcnt(18)
    s_min_u32 s24, s58, 5
    v_mov_b32 v6, s24
    ds_write_b32 v7, v6 offset:{M_FULL - MISC}
    s_add_u32 s58, s58, 1
    s_cmp_lt_u32 s58, 6
    s_cbranch_scc1 L_kvloop
    """)
    lds_wait(a, M_Q, 8, 7, 8, sleep=4)
    a(f"""
    s_cmp_lt_u32 s58, 7
    s_cbranch_scc1 L_kvloop
    ; STAMP 11
L_sel:
    s_lshl_b32 s24, s{sJ}, 7
    s_add_u32 s24, s24, {WS_SEL}
    """)
    poll(a, f"buffer_load_dwordx2 v[8:9], v5, {RW}, s24 offen sc1", "v_min_u32 v10, v8, v9\nv_cmp_eq_u32 vcc, 0, v10", sleep=4)
    a(f"""
    ; STAMP 12
    v_readfirstlane_b32 s56, v8
    v_readfirstlane_b32 s57, v9
    s_cmp_lg_u32 s12, 0
    s_cbranch_scc1 L_sel2
    v_mov_b32 v6, 7
    ds_write_b64 v7, v[8:9] offset:{M_SEL - MISC}
    ds_write_b32 v7, v6 offset:{M_FULL - MISC}
L_sel2:
    s_and_b32 s58, s56, 0x7ff
    s_sub_u32 s58, 2047, s58           ; idx0
    s_and_b32 s59, s57, 0x7ff
    s_sub_u32 s59, 2047, s59           ; idx1
    s_cmp_ge_u32 s{sM}, 18
    s_cbranch_scc1 L_moedone
    """)
    GU = 16; XF = 88; AC = 124; TR = 156
    a(f"""
    s_mul_i32 s60, s{sJ}, 18
    s_add_u32 s60, s60, s{sM}          ; chunk
    s_mul_i32 s24, s12, 144
    v_lshrrev_b32 v3, 2, v1
    v_add_u32 v3, s24, v3
    v_mul_u32_u24 v3, 9216, v3
    v_and_b32 v4, 3, v1
    v_lshl_add_u32 v3, v4, 4, v3
    s_mov_b32 s8, s{pWD}
    s_mov_b32 s9, s{pWD+1}
    s_mov_b32 s10, {WGB}
    s_lshl2_add_u32 s25, s60, s12
    s_mul_i32 s25, s25, 9216
    v_lshlrev_b32 v4, 7, v1
    buffer_load_dword v{TR}, v4, s[8:11], s25 offen
    buffer_load_dword v{TR}, v4, s[8:11], s25 offen offset:1024
    s_mov_b32 s8, s{pWG}
    s_mov_b32 s9, s{pWG+1}
    s_lshl_b32 s25, s60, 6
    """)
    for s in range(9):
        a(f"buffer_load_dwordx4 {vr(GU+4*s,4)}, v3, s[8:11], s25 offen\ns_add_u32 s25, s25, {16*9216}")
    a(f"s_mov_b32 s8, s{pWU}\ns_mov_b32 s9, s{pWU+1}\ns_lshl_b32 s25, s60, 6")
    for s in range(9):
        a(f"buffer_load_dwordx4 {vr(GU+36+4*s,4)}, v3, s[8:11], s25 offen\ns_add_u32 s25, s25, {16*9216}")
    a(f"""
    s_mul_i32 s25, s58, 1152
    s_mul_i32 s26, s59, 1152
    s_sub_u32 s26, s26, s25
    v_bfe_i32 v4, v1, 2, 1
    v_and_b32 v4, s26, v4
    v_lshrrev_b32 v13, 5, v1
    v_lshl_add_u32 v4, v13, 4, v4
    s_lshl1_add_u32 s25, s24, s25
    v_add_u32 v4, s25, v4
    s_mov_b32 s8, s{pX}
    s_mov_b32 s9, s{pX+1}
    s_mov_b32 s10, {XB}
    """)
    for s in range(9):
        a(f"buffer_load_dwordx4 {vr(XF+4*s,4)}, v4, s[8:11], 0 offen offset:{32*s}")
    a(f"""
    s_mul_i32 s61, s12, 1152
    s_add_u32 s61, s61, 160
    v_add_u32 v6, s61, v2
    v_bfe_u32 v9, v1, 2, 2             ; r
    v_and_b32 v10, 3, v1
    v_lshlrev_b32 v10, 3, v10          ; 8c
    v_lshl_add_u32 v11, v13, 3, v9
    v_lshl_or_b32 v11, v11, 6, v10
    v_bfe_u32 v12, v1, 4, 1
    v_lshl_or_b32 v11, v12, 5, v11
    v_add_u32 v11, s61, v11
    v_lshrrev_b32 v12, 4, v1           ; kg
    v_lshl_add_u32 v14, v12, 3, v9
    v_lshl_or_b32 v14, v14, 5, v10
    v_add_u32 v14, s61, v14
    s_waitcnt vmcnt(0) lgkmcnt(0)
    """)
    def tr_step(src, p, addr, off2):
        a(f"ds_write_b128 v6, {vr(src,4)}")
        a(f"ds_read_b64_tr_b16 {vr(TR+4*p,2)}, v{addr}")
        a(f"ds_read_b64_tr_b16 {vr(TR+4*p+2,2)}, v{addr} offset:{off2}")
    tr_step(GU, 0, 11, 256)
    for i in range(18):
        if i < 17: tr_step(GU + 4 * (i + 1), (i + 1) & 1, 11, 256)
        a(f"s_waitcnt lgkmcnt({3 if i < 17 else 0})")
        a(mf32(AC + 16 * (i // 9), XF + 4 * (i % 9), TR + 4 * (i & 1), 0 if i % 9 == 0 else None))
        if i == 9:
            a(f"""
            v_lshrrev_b32 v3, 1, v1
            v_mul_u32_u24 v3, 1152, v3
            v_and_b32 v4, 1, v1
            v_lshl_add_u32 v3, v4, 4, v3
            s_mul_i32 s25, s60, 36864
            s_mul_i32 s26, s12, 288
            s_add_u32 s25, s25, s26
            s_mov_b32 s8, s{pWD}
            s_mov_b32 s9, s{pWD+1}
            s_mov_b32 s10, {WGB}
            """)
            for n in range(9):
                a(f"buffer_load_dwordx4 {vr(GU+4*n,4)}, v3, s[8:11], s25 offen offset:{32*n}")
    a(f"""
    v_lshlrev_b32 v3, 2, v1
    v_add_u32 v3, {M_P}, v3
    s_lshl_b32 s25, s12, 9
    v_add_u32 v4, s25, v3
    s_nop 8
    ds_write_b32 v4, v{AC}
    ds_write_b32 v4, v{AC+16} offset:256
    s_mov_b64 exec, 1
    ds_add_u32 v7, v15
    s_mov_b64 exec, -1
    """)
    poll(a, "ds_read_b32 v8, v7", "v_cmp_ne_u32 vcc, 4, v8", sleep=1)
    a("s_waitcnt vmcnt(0)")
    for w in range(8): a(f"ds_read_b32 v{XF+w}, v3 offset:{256*w}")
    tr_step(GU, 0, 14, 128)
    a(f"""
    s_lshl_b32 s25, s12, 7
    s_add_u32 s25, s25, {M_H}
    v_lshl_add_u32 v3, v1, 1, s25
    v_and_b32 v4, 4, v1
    v_add_u32 v4, v4, v12
    v_lshl_add_u32 v4, v4, 4, s25
    s_waitcnt lgkmcnt(3)
    v_pk_add_f32 {vr(XF,2)}, {vr(XF,2)}, {vr(XF+2,2)}
    v_pk_add_f32 {vr(XF+4,2)}, {vr(XF+4,2)}, {vr(XF+6,2)}
    v_pk_add_f32 {vr(XF,2)}, {vr(XF,2)}, {vr(XF+4,2)}
    v_cvt_pk_bf16_f32 v{XF+1}, v{XF}, v{XF+1}
    v_lshlrev_b32 v{XF}, 16, v{XF+1}
    v_and_b32 v{XF+1}, 0xffff0000, v{XF+1}
    v_mov_b32 v{XF+2}, v{XF}
    """)
    sigmoid(a, XF + 2)
    a(f"v_mul_f32 v{XF}, v{XF}, v{XF+2}")
    rne_bf16(a, XF)
    a(f"""
    v_mul_f32 v{XF}, v{XF}, v{XF+1}
    v_cvt_pk_bf16_f32 v{XF}, v{XF}, v{XF}
    ds_write_b16 v3, v{XF}
    ds_read_b128 {vr(XF+4,4)}, v4
    """)
    DA = 52
    for n in range(9):
        if n < 8: tr_step(GU + 4 * (n + 1), (n + 1) & 1, 14, 128)
        a(f"s_waitcnt lgkmcnt({3 if n < 8 else 0})")
        a(mf16(DA + 4 * n, XF + 4, TR + 4 * (n & 1), 0))
    a(f"""
    v_and_b32 v3, 15, v1
    v_lshlrev_b32 v3, 2, v3
    v_mul_u32_u24 v4, 2304, v12
    v_add_u32 v3, v3, v4
    s_and_b32 s25, s60, 7
    s_mul_i32 s25, s25, 4608
    s_mul_i32 s26, s12, 576
    s_add_u32 s25, s25, s26
    s_add_u32 s25, s25, {WS_Y}
    s_mov_b32 exec_hi, 0
    """)
    for n in range(9):
        a(f"buffer_atomic_add_f32 v{DA+4*n}, v3, {RW}, s25 offen offset:{64*n} sc1")
    a(f"""
    s_mov_b64 exec, 1
    s_waitcnt vmcnt(0)
    ds_add_rtn_u32 v8, v7, v15 offset:4
    s_lshr_b32 s25, s{sJ}, 2
    s_lshl_b32 s25, s25, 7
    s_add_u32 s25, s25, 16
    s_waitcnt lgkmcnt(0)
    v_cmp_eq_u32 vcc, 3, v8
    s_cbranch_vccz L_notlast
    buffer_atomic_add v15, v5, {RD}, s25 offen sc1
L_notlast:
    s_mov_b64 exec, -1
L_moedone:
    ; STAMP 13
    """)
    a(f"""
    s_mov_b32 s8, s{pX}
    s_mov_b32 s9, s{pX+1}
    s_mov_b32 s10, {XB}
    v_mov_b32 v6, v7
    s_cmp_lt_u32 s12, 2
    s_cbranch_scc1 L_ysel
    s_lshl_b32 s24, s{sJ}, 8
    s_add_u32 s24, s24, s{sM}
    v_lshrrev_b32 v3, 3, v1
    v_and_b32 v4, 7, v1
    v_lshlrev_b32 v4, 7, v4
    v_lshl_or_b32 v4, v3, 15, v4
    v_lshlrev_b32 v3, 12, v3
    s_lshl_b32 s25, s24, 10
    s_lshl_b32 s24, s24, 7
    s_add_u32 s24, s24, {O_REM}
    s_cmp_eq_u32 s12, 2
    s_cselect_b32 s24, s25, s24
    s_cselect_b64 vcc, -1, 0
    s_add_u32 s24, s24, {WS_OL}
    v_cndmask_b32 v3, v3, v4, vcc
    {"" if o.get("nopre") else f"buffer_load_dword v21, v3, {RW}, s24 offen sc1"}
    s_branch L_svc_wait
L_ysel:
    s_cmp_eq_u32 s12, 0
    s_cselect_b32 s26, s58, s59
    s_cselect_b32 s27, s56, s57
    s_and_b32 s24, s{sM}, 3
    s_lshl2_add_u32 s24, s{sJ}, s24
    s_lshr_b32 s26, s26, 6
    s_cmp_lg_u32 s24, s26
    s_cbranch_scc1 L_noy
    v_and_b32 v3, 1, v1
    v_lshlrev_b32 v3, 7, v3
    """)
    poll(a, f"buffer_load_dword v4, v3, {RD}, 0 offen offset:16 sc1", "v_cmp_ne_u32 vcc, 72, v4", sleep=8)
    a(f"""
    v_min_u32 v3, 35, v1
    v_lshlrev_b32 v3, 3, v3
    s_lshr_b32 s24, s{sM}, 2
    s_mul_i32 s24, s24, 288
    s_mul_i32 s25, s12, 2304
    s_add_u32 s24, s24, s25
    s_add_u32 s24, s24, {WS_Y}
    """)
    for rep in range(8):
        a(f"buffer_load_dwordx2 {vr(16+2*rep,2)}, v3, {RW}, s24 offen sc1\ns_add_u32 s24, s24, 4608")
    a(f"""
    s_and_b32 s27, s27, 0xfffff800
    s_xor_b32 s24, s27, 0x80000000
    s_not_b32 s25, s27
    s_bitcmp1_b32 s27, 31
    s_cselect_b32 s27, s24, s25
    v_mov_b32 v10, s27
    """)
    rne_bf16(a, 10); sigmoid(a, 10); rne_bf16(a, 10)
    a(f"s_mul_i32 s24, s12, 320\ns_add_u32 s24, s24, {M_Y}\nv_add_u32 v3, s24, v3\ns_waitcnt vmcnt(0)")
    for rep in range(1, 8): a(f"v_pk_add_f32 v[16:17], v[16:17], {vr(16+2*rep,2)}")
    for i in range(2):
        rne_bf16(a, 16 + i); a(f"v_mul_f32 v{16+i}, v{16+i}, v10"); rne_bf16(a, 16 + i)
    a(f"""
    ds_write_b64 v3, v[16:17]
L_noy:
    s_cmp_lg_u32 s12, 0
    s_cbranch_scc1 L_svc_wait
    """)
    final_addr(a); final_loads(a)
    a(f"""
L_svc_wait:
    """)
    for i in range(5):
        a(f"""
        v_add_u32 v3, {64*i}, v1
        v_mul_u32_u24 v4, 6554, v3
        v_lshrrev_b32 v4, 16, v4
        v_mul_u32_u24 v5, 10, v4
        v_sub_u32 v3, v3, v5
        v_min_u32 v3, 8, v3
        v_mul_u32_u24 v4, 1152, v4
        v_lshl_add_u32 v{16+i}, v3, 4, v4
        """)
        if 0 < i < 4: a(f"v_subrev_u32 v{16+i}, {1024*i}, v{16+i}")
    lds_wait(a, M_PAST, 8, 6, 3, sleep=16)
    a(f"""
    s_mov_b32 s29, 0
L_wo:
    s_mov_b32 s4, s{pWO}
    s_mov_b32 s24, s{pWO}
    s_mov_b32 s25, s{pWO+1}
    s_mov_b32 s26, {WOB}
    s_mov_b32 s27, 0x00020000
    s_mul_i32 s56, s12, {32*1152}
    s_lshr_b32 s57, s{sM}, 2
    s_mul_i32 s57, s57, 144
    s_add_u32 s56, s56, s57
    s_mul_i32 s57, s12, 5120
    s_add_u32 s57, s57, {L_WO}
L_wo_loop:
    s_mov_b32 m0, s57
    s_nop 0
    """.replace("    s_mov_b32 s4, s{pWO}\n".format(pWO=pWO), ""))
    for i in range(4): a(f"buffer_load_dwordx4 v{16+i}, s[24:27], s56 offen offset:{1024*i} lds")
    a(f"""
    s_add_u32 m0, s57, 4096
    s_add_u32 s57, s57, 20480
    buffer_load_dwordx4 v20, s[24:27], s56 offen lds
    s_add_u32 s56, s56, {128*1152}
    s_cmp_lt_u32 s57, {L_WO + 92160}
    s_cbranch_scc1 L_wo_loop
    s_waitcnt vmcnt(0) lgkmcnt(0)
    ; STAMP 14
    s_barrier                          ; BE
    ds_read_b32 v4, v6 offset:{M_BAD - MISC}
    s_waitcnt lgkmcnt(0)
    v_cmp_lt_u32 vcc, s29, v4
    s_cbranch_vccnz L_svc_fb
    s_cmp_eq_u32 s12, 0
    s_cbranch_scc1 L_final
    s_endpgm
L_svc_fb:
    s_barrier
    s_mul_i32 s56, s{sM}, {HS}
    s_lshl1_add_u32 s57, s12, s{sJ}
    s_mul_i32 s59, s12, {2 * SLOT}
    s_add_u32 s59, s59, {KV0}
    s_mov_b32 s58, 0
L_fb_kv:
    """)
    kvslot()
    a("""
    s_add_u32 s58, s58, 1
    s_cmp_lt_u32 s58, 2
    s_cbranch_scc1 L_fb_kv
    s_waitcnt vmcnt(0)
    s_barrier
    s_mov_b32 s29, -1
    s_barrier
    s_branch L_wo
    """)
    a(f"""
L_helper:
    s_cmp_ge_u32 s{sM}, 18
    s_cselect_b32 s29, {o.get("pl", 3)}, 7
    """)
    poll(a, f"ds_read_b32 v8, v7 offset:{M_FULL - MISC}", "v_cmp_gt_u32 vcc, s29, v8", sleep=8)
    a(f"""
    s_cmp_lt_u32 s{sM}, 18
    s_cbranch_scc1 L_sel
    s_sub_u32 s24, s{sM}, 18
    s_mul_i32 s24, s24, 3
    s_add_u32 s24, s24, s12
    s_sub_u32 s24, s24, 1
    s_mul_i32 s24, s24, {14*9216}
    s_mul_i32 s25, s{sJ}, 1152
    s_add_u32 s24, s24, s25
    s_add_u32 s25, s24, {7*9216}
    v_mul_u32_u24 v3, 7282, v1
    v_lshrrev_b32 v3, 16, v3
    v_mul_u32_u24 v3, 63, v3
    v_add_lshl_u32 v3, v3, v1, 7
    s_mov_b32 s8, s{pWG}
    s_mov_b32 s9, s{pWG+1}
    s_mov_b32 s10, {0 if o.get("nompf") else WGB}
    buffer_load_dword v21, v3, s[8:11], s24 offen
    buffer_load_dword v21, v3, s[8:11], s25 offen
    s_mov_b32 s8, s{pWU}
    s_mov_b32 s9, s{pWU+1}
    buffer_load_dword v21, v3, s[8:11], s24 offen
    buffer_load_dword v21, v3, s[8:11], s25 offen
    s_branch L_sel
    """)
    a(f"""
L_rg:
    s_sub_u32 s26, s{sM}, 28
    s_lshl2_add_u32 s26, s{sJ}, s26
    s_lshl2_add_u32 s27, s26, s12
    s_lshl_b32 s28, s27, 4
    v_lshrrev_b32 v3, 3, v1
    v_add_u32 v4, s28, v3              ; row
    v_mul_u32_u24 v5, 1152, v4
    v_and_b32 v6, 7, v1
    v_lshlrev_b32 v6, 4, v6
    v_add_u32 v5, v5, v6
    v_add_u32 v7, 9216, v5
    """)
    for i in range(9): a(f"global_load_dwordx4 {vr(16+4*i,4)}, v5, s[{pX}:{pX+1}] offset:{128*i}")
    for i in range(9): a(f"global_load_dwordx4 {vr(88+4*i,4)}, v6, s[{pWR}:{pWR+1}] offset:{128*i}")
    for i in range(9): a(f"global_load_dwordx4 {vr(124+4*i,4)}, v6, s[{pGW}:{pGW+1}] offset:{128*i}")
    for i in range(9): a(f"global_load_dwordx4 {vr(52+4*i,4)}, v7, s[{pX}:{pX+1}] offset:{128*i}")
    a("""
    v_mov_b32 v8, 0
    v_mov_b32 v9, 0
    v_mov_b32 v10, 0
    v_mov_b32 v11, 0
    s_barrier                          ; BL
    s_waitcnt vmcnt(0)
    """)
    for i in range(36):
        a(f"v_dot2c_f32_bf16 v8, v{16+i}, v{88+i}")
        a(f"v_dot2c_f32_bf16 v9, v{52+i}, v{88+i}")
        a(f"v_dot2c_f32_bf16 v10, v{16+i}, v{124+i}")
        a(f"v_dot2c_f32_bf16 v11, v{52+i}, v{124+i}")
    a("s_nop 2")
    for mode in ("quad_perm:[1,0,3,2]", "quad_perm:[2,3,0,1]", "row_half_mirror"):
        for v in (8, 9, 10, 11):
            a(f"v_add_f32_dpp v{v}, v{v}, v{v} {mode} row_mask:0xf bank_mask:0xf")
    for v in (10, 11):
        rne_bf16(a, v); sigmoid(a, v); rne_bf16(a, v)
    a(f"""
    v_ashrrev_i32 v12, 31, v8
    v_or_b32 v12, 0x80000000, v12
    v_xor_b32 v8, v8, v12
    v_and_b32 v8, 0xfffff800, v8
    v_sub_u32 v12, 2047, v4
    v_or_b32 v8, v8, v12
    v_ashrrev_i32 v12, 31, v9
    v_or_b32 v12, 0x80000000, v12
    v_xor_b32 v9, v9, v12
    v_and_b32 v9, 0xfffff800, v9
    v_sub_u32 v12, 2039, v4
    v_or_b32 v9, v9, v12
    v_lshlrev_b32 v13, 2, v4
    s_mov_b32 s29, {WS_G}
    buffer_store_dword v10, v13, {RW}, s29 offen sc1
    buffer_store_dword v11, v13, {RW}, s29 offen offset:32 sc1
    v_max_u32 v14, v8, v9
    v_min_u32 v15, v8, v9
    s_nop 1
    v_mov_b32_dpp v8, v14 row_ror:8 row_mask:0xf bank_mask:0xf
    v_mov_b32_dpp v9, v15 row_ror:8 row_mask:0xf bank_mask:0xf
    v_min_u32 v12, v8, v14
    v_max_u32 v14, v8, v14
    v_max3_u32 v15, v12, v9, v15
    """)
    for sw in ("v_permlane16_swap_b32", "v_permlane32_swap_b32"):
        a(f"""
        v_mov_b32 v8, v14
        v_mov_b32 v9, v15
        s_nop 1
        {sw} v8, v14
        {sw} v9, v15
        s_nop 1
        v_min_u32 v12, v8, v14
        v_max_u32 v14, v8, v14
        v_max3_u32 v15, v12, v9, v15
        """)
    regwait(a, 3, 4, sleep=4)
    if o.get("slow"): a(f"s_mov_b32 s{sMODE}, 0")
    a(f"""
    s_lshl_b32 s29, s27, 3
    s_add_u32 s29, s29, {WS_KEY}
    v_mov_b32 v5, 0
    s_mov_b64 exec, 1
    buffer_store_dwordx2 v[14:15], v5, {RW}, s29 offen sc1
    s_mov_b64 exec, -1
    s_and_b32 s27, s27, 15
    s_cmp_lg_u32 s27, 0
    s_cbranch_scc1 L_svc_kv
    v_lshlrev_b32 v3, 4, v1
    s_mov_b32 s29, {WS_KEY}
    """)
    poll(a, f"buffer_load_dwordx4 v[8:11], v3, {RW}, s29 offen sc1",
         "v_min_u32 v12, v8, v9\nv_min3_u32 v12, v12, v10, v11\nv_cmp_eq_u32 vcc, 0, v12", sleep=2)
    top2(a, 8, 12, 24)
    a(f"""
    s_lshl_b32 s29, s{sJ}, 7
    s_add_u32 s29, s29, {WS_SEL}
    v_mov_b32 v8, s24
    v_mov_b32 v9, s25
    s_mov_b64 exec, 1
    buffer_store_dwordx2 v[8:9], v5, {RW}, s29 offen sc1
    s_mov_b64 exec, -1
    s_branch L_svc_kv
    """)
    a("L_codeend:")
    hdr = HEADER + f"; @launch grid=(256,1,1) block=(768,1,1) lds={LDS_BYTES}\n"
    return hdr + a.text() + '.section .rodata,"a"\n' + descriptor(NAME, 168, sgpr=64)

if __name__ == "__main__":
    o = dict((k.split("=")[0], int(k.split("=")[1]) if "=" in k else 1) for k in sys.argv[2:])
    open(sys.argv[1], "w").write(gen(o))
```

```python
import sys, math
from gen_common import *

NAME = "gated_mix__mha_block__moe_arch_mod__prompt_kernel"
XB = 2359296; WB = 1990656; WOB = 663552; WGB = 5308416
QSCALE = (18 ** -0.5) * math.log2(math.e)
JS = 884736; HS = 27648
WS_GLB = 0; WS_LOC = 0x700000
WS_OG = 0xE00000; WS_OL = 0x1040000
O_REM = 0x200000
WS_FG1 = 0x1280000
WS_FL1 = 0x1288000
WS_FL2 = 0x1289000
WS_KEY = 0x128B000
WS_SEL = 0x128B400
WS_Y = 0x128C000
WS_CLR = WS_FG1
WS_G = 0x1298000
WS_END = 0x129A000
KV0 = 9216; SLOT = 18432; L_QS = KV0 + 7 * SLOT; MISC = 156672
M_CNT = MISC; M_DONE = MISC + 4; M_BAD = MISC + 8; M_SEL = MISC + 16
M_C0 = MISC + 24; M_PROG = MISC + 64; M_FULL = MISC + 96; M_G = MISC + 6144
M_P = MISC + 256; M_H = MISC + 2304; M_Y = MISC + 2816; M_CB7 = MISC + 3584
L_CB = KV0 + 5 * SLOT; L_WO = KV0; L_A0 = KV0 + 6 * SLOT; L_A1 = KV0 + 7 * SLOT; AS = 288
LDS_BYTES = 163840
SPIN = 1 << 14
pX, pW, pWO, pWR, pWG, pWU, pWD, pGW, pOUT, pDBG, pWS = 32, 34, 36, 40, 42, 44, 46, 48, 50, 52, 54
sWAVE, sJ, sM, sMODE, sREG = 3, 4, 5, 6, 7
RW = "s[16:19]"
RD = "s[20:23]"

def mf32(d, a, b, c=None):
    cs = vr(d, 16) if c is None else ("0" if c == 0 else vr(c, 16))
    return f"v_mfma_f32_32x32x16_bf16 {vr(d,16)}, {vr(a,4)}, {vr(b,4)}, {cs}"
def mf16(d, a, b, c=None):
    cs = vr(d, 4) if c is None else ("0" if c == 0 else vr(c, 4))
    return f"v_mfma_f32_16x16x32_bf16 {vr(d,4)}, {vr(a,4)}, {vr(b,4)}, {cs}"
def rne_bf16(a, v):
    a(f"v_cvt_pk_bf16_f32 v{v}, v{v}, v{v}")
    a(f"v_and_b32 v{v}, 0xffff0000, v{v}")
def sigmoid(a, v):
    a(f"v_mul_f32 v{v}, {f32bits(-math.log2(math.e))}, v{v}")
    a(f"v_exp_f32 v{v}, v{v}")
    a("s_nop 0")
    a(f"v_add_f32 v{v}, 1.0, v{v}")
    a(f"v_rcp_f32 v{v}, v{v}")
    a("s_nop 0")
_uid = [0]
def uid(p):
    _uid[0] += 1
    return f"L_{p}{_uid[0]}"
def poll(a, load, check, sleep=0, preloaded=False):
    l = uid("poll"); e = uid("ok"); c = uid("chk")
    a(f"s_mov_b32 s30, {SPIN}")
    if preloaded: a(f"s_branch {c}")
    a(f"{l}:")
    a(load)
    if preloaded: a(f"{c}:")
    a("s_waitcnt lgkmcnt(0)" if load.startswith("ds_") else "s_waitcnt vmcnt(0)")
    a(check)
    a(f"s_cbranch_vccz {e}")
    if sleep: a(f"s_sleep {sleep}")
    a(f"s_sub_u32 s30, s30, 1\ns_cmp_lg_u32 s30, 0\ns_cbranch_scc1 {l}")
    a(f"{e}:")
def regaddr(a, t0): a(f"v_and_b32 v{t0}, 7, v1\nv_lshlrev_b32 v{t0}, 5, v{t0}")
def regload(t0, t1): return f"buffer_load_dword v{t1}, v{t0}, {RD}, 0 offen sc1"
def regwait(a, t0, t1, preloaded=False, sleep=0):
    if not preloaded: regaddr(a, t0)
    poll(a, regload(t0, t1),
         f"v_readlane_b32 s31, v{t1}, s{sJ}\nv_and_b32 v{t1}, 63, v{t1}\nv_cmp_ne_u32 vcc, 32, v{t1}", preloaded=preloaded, sleep=sleep)
    a(f"s_lshl_b32 s30, s{sREG}, 5\ns_cmp_eq_u32 s30, s31\ns_cselect_b32 s{sMODE}, 1, 0")
def wave_max_u32(a, v, t, sdst):
    for mode in ("quad_perm:[1,0,3,2]", "quad_perm:[2,3,0,1]", "row_half_mirror", "row_mirror"):
        a("s_nop 1")
        a(f"v_max_u32_dpp v{v}, v{v}, v{v} {mode} row_mask:0xf bank_mask:0xf")
    for sw in ("v_permlane16_swap_b32", "v_permlane32_swap_b32"):
        a(f"v_mov_b32 v{t}, v{v}\ns_nop 1\n{sw} v{t}, v{v}\ns_nop 1\nv_max_u32 v{v}, v{t}, v{v}")
    a("s_nop 0")
    a(f"v_readfirstlane_b32 s{sdst}, v{v}")
def top2(a, K, T, so):
    a(f"""
    v_min_u32 v{T}, v{K}, v{K+2}
    v_max_u32 v{K}, v{K}, v{K+2}
    v_max3_u32 v{K+1}, v{T}, v{K+1}, v{K+3}
    v_mov_b32 v{K+2}, v{K}
    """)
    wave_max_u32(a, K + 2, T, so)
    a(f"v_cmp_eq_u32 vcc, v{K+2}, v{K}\ns_nop 1\nv_cndmask_b32 v{K+2}, v{K}, v{K+1}, vcc")
    wave_max_u32(a, K + 2, T, so + 1)

aK, aKR, aV, vINC, IDX, vXO, vROW, vG, XD = 2, 3, 4, 5, 6, 7, 8, 9, 12
QM, QR, KR, KM, V, O, S = 16, 24, 26, 28, 32, 40, [72, 104]
T0 = 136
vM, vONE, vPW, vPR, vF = 10, 11, 164, 165, 166
def lds_add(a, off, addr, one):
    a(f"s_mov_b64 exec, 1\nds_add_u32 v{addr}, v{one} offset:{off - MISC}\ns_mov_b64 exec, -1")
def lds_wait(a, off, n, addr, t, sleep=1):
    poll(a, f"ds_read_b32 v{t}, v{addr} offset:{off - MISC}", f"v_cmp_ne_u32 vcc, {n}, v{t}", sleep=sleep)

def final_addr(a):
    a(f"""
    v_mul_u32_u24 v{vROW}, 7282, v0
    v_lshrrev_b32 v{vROW}, 16, v{vROW}
    v_mul_u32_u24 v10, 9, v{vROW}
    v_sub_u32 v10, v0, v10
    s_and_b32 s24, s{sM}, 3
    s_lshl2_add_u32 s24, s{sJ}, s24
    s_lshl_b32 s24, s24, 6
    s_lshr_b32 s25, s{sM}, 2
    s_mul_i32 s25, s25, 144
    v_add_u32 v11, s24, v{vROW}
    v_mul_u32_u24 v{vXO}, 1152, v11
    v_lshl_add_u32 v{vXO}, v10, 4, v{vXO}
    v_add_u32 v{vXO}, s25, v{vXO}
    v_lshl_or_b32 v{vROW}, v10, 8, v{vROW}
    """)
def final_loads(a):
    a(f"buffer_load_dwordx4 {vr(XD,4)}, v{vXO}, s[8:11], 0 offen")

def gen(o={}):
    a = Asm()
    a('.amdgcn_target "amdgcn-amd-amdhsa--gfx950"\n.text')
    kernel_begin(a, NAME)
    a(f"""
    s_cmp_ge_u32 s2, 256
    s_cbranch_scc1 L_end
    s_load_dwordx16 s[32:47], s[0:1], 0
    s_load_dwordx4 s[48:51], s[0:1], 64
    s_load_dwordx2 s[20:21], s[0:1], 80
    s_load_dwordx2 s[16:17], s[0:1], 88
    s_load_dwordx2 s[8:9], s[0:1], 0
    v_lshrrev_b32 v2, 6, v0
    v_and_b32 v1, 63, v0
    s_and_b32 s{sJ}, s2, 7
    v_readfirstlane_b32 s{sWAVE}, v2
    s_lshr_b32 s{sM}, s2, 3
    s_getreg_b32 s24, hwreg(HW_REG_XCC_ID)
    s_and_b32 s24, s24, 15
    s_mul_i32 s25, s24, s24
    s_lshl_b32 s25, s25, 10
    s_add_u32 s25, s25, s24
    s_lshl_b32 s25, s25, 6
    s_add_u32 s{sREG}, s25, 1
    s_mov_b32 s18, {WS_END}
    s_mov_b32 s19, 0x00020000
    s_mov_b32 s22, 256
    s_mov_b32 s23, 0x00020000
    s_mov_b32 s10, {XB}
    s_mov_b32 s11, 0x00020000
    s_cmp_ge_u32 s{sWAVE}, 8
    s_cbranch_scc1 L_service
    """)
    LD = T0 + 16
    a(f"""
    s_and_b32 s26, s{sM}, 1
    s_mul_i32 s57, s26, {o.get("rp", 0)}
    s_mul_i32 s28, s{sJ}, {o.get("rj", 1)}
    s_add_u32 s57, s57, s28
    s_lshr_b32 s28, s{sM}, 1
    s_mul_i32 s28, s28, {o.get("rc", 0)}
    s_add_u32 s57, s57, s28
    s_mul_i32 s28, s57, 57
    s_lshr_b32 s28, s28, 9
    s_mul_i32 s28, s28, 9
    s_sub_u32 s57, s57, s28
    v_lshrrev_b32 v13, 4, v1
    s_lshl_b32 s59, s{sWAVE}, 12
    s_cmp_ge_u32 s{sWAVE}, 4
    s_cbranch_scc1 L_ldw
    s_lshl1_add_u32 s26, s{sJ}, s26    ; rb
    s_lshl2_add_u32 s26, s26, s{sWAVE}
    s_lshl_b32 s26, s26, 5
    v_lshrrev_b32 v3, 3, v1
    v_add_u32 v3, s26, v3
    v_mul_u32_u24 v3, 1152, v3
    v_and_b32 v12, 7, v1
    v_xor_b32 v12, v12, v13
    v_lshl_add_u32 v{LD}, v12, 4, v3
    v_xor_b32 v{LD+1}, 64, v{LD}
    v_add_u32 v{LD+1}, 8192, v{LD+1}
    v_add_u32 v{LD+2}, 16384, v{LD}
    v_add_u32 v{LD+3}, 16384, v{LD+1}
    s_movk_i32 s58, 128
    s_waitcnt lgkmcnt(0)
    s_branch L_ldgo
L_ldw:
    s_lshl_b32 s26, s{sWAVE}, 4
    s_sub_u32 s26, s26, 64
    v_add_u32 v3, s26, v13
    v_mul_u32_u24 v3, 3456, v3
    v_and_b32 v12, 15, v1
    v_lshlrev_b32 v14, 2, v13
    v_xor_b32 v12, v12, v14
    v_lshl_add_u32 v3, v12, 4, v3
    s_lshr_b32 s26, s{sM}, 1
    s_lshl_b32 s26, s26, 8
    v_add_u32 v{LD}, s26, v3
    v_add_u32 v{LD+1}, 12800, v{LD}
    v_add_u32 v{LD+2}, 25600, v{LD}
    v_add_u32 v{LD+3}, 38400, v{LD}
    s_mov_b32 s58, 221184
    s_mov_b32 s10, {WB}
    s_waitcnt lgkmcnt(0)
    s_mov_b32 s8, s{pW}
    s_mov_b32 s9, s{pW+1}
L_ldgo:
    ; STAMP 7
    s_mul_i32 s57, s57, s58            ; soffset
    s_mul_i32 s56, s58, 9              ; wrap
    s_mov_b32 s60, 0
    s_cmp_ge_u32 s{sM}, 28
    s_cbranch_scc1 L_spare_ld
L_ldprime:
    """)
    def ld_chunk():
        a("s_mov_b32 m0, s59\ns_add_u32 s59, s59, 32768")
        for u in range(4):
            a(f"buffer_load_dwordx4 v{LD+u}, s[8:11], s57 offen offset:{u*1024} lds")
        a("""
        s_and_b32 s59, s59, 0x1ffff
        s_add_u32 s57, s57, s58
        s_cmp_eq_u32 s57, s56
        s_cselect_b32 s57, 0, s57
        s_add_u32 s60, s60, 1
        """)
    ld_chunk()
    a(f"""
    s_cmp_lt_u32 s60, {o.get("p0", 1)}
    s_cbranch_scc1 L_ldprime
L_spare_ld:
    """)
    final_addr(a)
    a(f"""
    s_lshr_b32 s12, s{sWAVE}, 2        ; kh
    s_and_b32 s13, s{sWAVE}, 3         ; qg
    s_mul_i32 s24, s12, 9216
    s_add_u32 s24, s24, {KV0}
    v_lshrrev_b32 v{T0}, 5, v1         ; hh
    v_bfe_u32 v{T0+1}, v1, 2, 2        ; r
    v_and_b32 v{T0+2}, 3, v1
    v_lshlrev_b32 v{T0+2}, 3, v{T0+2}  ; 8c
    v_bfe_u32 v{T0+3}, v1, 4, 1        ; G&1
    v_lshl_add_u32 v{T0+4}, v{T0}, 3, v{T0+1}
    v_lshl_or_b32 v{T0+4}, v{T0+4}, 5, v{T0+2}     ; (8hh+r)*32 + 8c
    v_mul_u32_u24 v{T0+5}, 1152, v{T0+3}
    v_add3_u32 v{aK}, v{T0+5}, v{T0+4}, s24
    v_and_b32 v{T0+1}, 1, v{T0+1}
    v_lshl_or_b32 v{T0+1}, v{T0+1}, 5, v{T0+2}
    v_add_u32 v{T0+1}, 512, v{T0+1}                ; (16+(r&1))*32 + 8c
    v_lshrrev_b32 v{T0+6}, 4, v1                   ; G
    v_mul_u32_u24 v{T0+5}, 1152, v{T0+6}
    v_add3_u32 v{aKR}, v{T0+5}, v{T0+1}, s24
    s_mul_i32 s25, s13, 2304
    s_add_u32 s25, s25, {L_QS}
    s_xor_b32 s26, s12, 1
    s_lshl_b32 s27, s26, 1
    v_xor_b32 v{T0+6}, s27, v{T0+6}
    v_mul_u32_u24 v{T0+5}, 576, v{T0+6}
    v_add3_u32 v{T0+10}, v{T0+5}, v{T0+1}, s25     ; q rem
    v_mul_u32_u24 v{T0+5}, 576, v{T0+3}
    v_add3_u32 v{T0+5}, v{T0+5}, v{T0+4}, s25
    s_mul_i32 s26, s26, 1152
    s_mul_i32 s27, s12, 1152
    v_add_u32 v{T0+8}, s26, v{T0+5}                ; q main a=0
    v_add_u32 v{T0+9}, s27, v{T0+5}                ; q main a=1
    v_and_b32 v{T0+1}, 31, v1
    v_lshlrev_b32 v{T0+2}, 4, v{T0}
    v_lshl_or_b32 v{T0+3}, v{T0+1}, 5, v{T0+2}
    v_xor_b32 v{T0+2}, 16, v{T0+2}
    v_lshl_add_u32 v{T0+4}, v{T0+1}, 3, v{T0+2}
    v_add_u32 v{T0+4}, 384, v{T0+4}
    v_cmp_gt_u32 vcc, 16, v{T0+1}
    s_add_u32 s24, s24, 576
    s_nop 0
    v_cndmask_b32 v{T0+3}, v{T0+4}, v{T0+3}, vcc
    v_add_u32 v{T0+3}, s24, v{T0+3}
    s_mov_b32 vcc_lo, 0x0011ffff
    s_mov_b32 vcc_hi, 0x0011ffff
    v_mov_b32 v{T0+4}, {SLOT}
    v_mov_b32 v{IDX}, 0xdddddddd
    v_cndmask_b32 v{aV}, v{T0+2}, v{T0+3}, vcc
    v_cndmask_b32 v{vINC}, 0, v{T0+4}, vcc
    s_mul_i32 s24, s{sM}, 18
    s_add_u32 s25, s24, 17
    s_lshr_b32 s24, s24, 6
    s_lshr_b32 s25, s25, 6
    s_sub_u32 s25, s25, s24
    v_and_b32 v{T0+1}, s25, v1
    v_bfe_u32 v{T0+2}, v1, 1, 2
    v_min_u32 v{T0+2}, 2, v{T0+2}
    v_mul_u32_u24 v{T0+2}, 9, v{T0+2}
    v_add3_u32 v{T0+1}, v{T0+1}, v{T0+2}, s24      ; col64
    v_bfe_u32 v{T0+2}, v1, 3, 2                    ; b
    v_lshlrev_b32 v{T0+3}, 7, v{T0+2}
    v_lshl_or_b32 v{T0+3}, v{T0+1}, 2, v{T0+3}
    s_lshl_b32 s24, s{sJ}, 9
    s_add_u32 s24, s24, {WS_FL1}
    v_add_u32 v{T0+11}, s24, v{T0+3}
    v_and_b32 v{T0+3}, 30, v{T0+1}
    v_lshrrev_b32 v{T0+4}, 1, v{T0+2}
    v_or_b32 v{T0+3}, v{T0+3}, v{T0+4}             ; m'
    v_lshlrev_b32 v{T0+3}, 10, v{T0+3}
    v_and_b32 v{T0+2}, 1, v{T0+2}
    v_and_b32 v{T0+1}, 1, v{T0+1}
    v_lshl_or_b32 v{T0+1}, v{T0+2}, 1, v{T0+1}
    v_lshl_or_b32 v{T0+3}, v{T0+1}, 2, v{T0+3}
    s_lshl_b32 s24, s{sJ}, 7
    s_add_u32 s24, s24, {WS_FG1}
    v_add_u32 v{T0+12}, s24, v{T0+3}
    """)
    for i in range(32): a(f"v_mov_b32 v{O+i}, 0")
    regaddr(a, T0 + 14)
    a(f"""
    v_mov_b32 v{vM}, {MISC}
    v_mov_b32 v{vONE}, 1
    s_lshl_b32 s24, s{sWAVE}, 2
    s_add_u32 s24, s24, {M_PROG}
    v_min_u32 v{vPW}, 1, v1
    v_lshl_add_u32 v{vPW}, v{vPW}, 13, s24
    v_min_u32 v{vPR}, 8, v1
    v_lshl_add_u32 v{vPR}, v{vPR}, 2, v{vM}
    s_mul_i32 s15, s{sJ}, {JS}
    s_mul_i32 s24, s{sM}, {HS}
    s_add_u32 s15, s15, s24
    s_mul_i32 s61, s{sWAVE}, {27*128}
    s_add_u32 s61, s61, s15
    s_add_u32 s61, s61, {WS_LOC}
    v_min_u32 v{T0+7}, 26, v1
    v_lshlrev_b32 v{T0+7}, 7, v{T0+7}
    v_lshrrev_b32 v{T0+1}, 3, v1
    v_mul_u32_u24 v{T0+1}, 1152, v{T0+1}
    v_and_b32 v{T0+2}, 7, v1
    v_lshl_add_u32 v{T0+1}, v{T0+2}, 2, v{T0+1}
    v_mov_b32 v{T0+3}, 0x3f803f80
    ; STAMP 14
    s_cmp_ge_u32 s{sM}, 28
    s_cbranch_scc1 L_spare_ld2
L_ldloop:
    s_cmp_lt_u32 s60, 3
    s_cbranch_scc1 L_ldnw
    s_waitcnt vmcnt(8)
    s_barrier
L_ldnw:
    """)
    ld_chunk()
    a(f"""
    s_cmp_lt_u32 s60, 9
    s_cbranch_scc1 L_ldloop
    buffer_load_dword v{T0+2}, v{T0+7}, {RW}, {"0" if o.get("nopre") else "s61"} offen sc1
    s_waitcnt vmcnt(9)
    s_barrier
    ; STAMP 8
    s_waitcnt vmcnt(5)
    s_barrier
    s_waitcnt vmcnt(1)
    s_barrier
    ; STAMP 9
L_ld_done:
    {regload(T0 + 14, T0 + 15)}
    s_mov_b32 s8, s{pX}
    s_mov_b32 s9, s{pX+1}
    s_mov_b32 s10, {XB}
    s_barrier
    ds_write_b32 v{T0+1}, v{T0+3}
    """)
    regwait(a, T0 + 14, T0 + 15, preloaded=True, sleep=4)
    if o.get("slow"): a(f"s_mov_b32 s{sMODE}, 0")
    a(f"""
    s_cmp_eq_u32 s{sMODE}, 1
    s_cselect_b32 s24, {WS_LOC}, {WS_GLB}
    s_cselect_b64 vcc, -1, 0
    s_add_u32 s15, s15, s24
    v_cndmask_b32 v{T0+11}, v{T0+12}, v{T0+11}, vcc
    v_lshlrev_b32 v{T0+13}, 4, v0
    s_lshl_b32 s25, s{sWAVE}, 10
    s_add_u32 s26, s25, {L_QS - 18432 + 16384}
    s_add_u32 s25, s25, {KV0}
    s_add_u32 s27, s25, 16384
    s_cmp_lt_u32 s{sWAVE}, 2
    s_cselect_b32 s27, s27, s26
    s_mov_b32 exec_hi, 0
    ; STAMP 1
    """)
    poll(a, f"buffer_load_dword v{T0+2}, v{T0+11}, {RW}, 0 offen sc1", f"v_cmp_ne_u32 vcc, 1, v{T0+2}", sleep=1)
    a(f"""
    ; STAMP 2
    s_mov_b32 exec_hi, -1
    s_mov_b32 m0, s25
    s_add_u32 s24, s15, 8192
    buffer_load_dwordx4 v{T0+13}, {RW}, s15 offen sc1 lds
    s_add_u32 m0, s25, 8192
    s_add_u32 s28, s15, 16384
    buffer_load_dwordx4 v{T0+13}, {RW}, s24 offen sc1 lds
    s_mov_b32 m0, s27
    s_cmp_ge_u32 s{sWAVE}, 3
    buffer_load_dwordx4 v{T0+13}, {RW}, s28 offen sc1 lds
    s_cbranch_scc1 L_no4
    s_add_u32 m0, s26, 8192
    s_add_u32 s28, s15, 24576
    buffer_load_dwordx4 v{T0+13}, {RW}, s28 offen sc1 lds
L_no4:
    s_waitcnt vmcnt(0)
    """)
    lds_add(a, M_C0, vM, vONE)
    final_loads(a)
    lds_wait(a, M_C0, 8, vM, T0, sleep=0)
    def toff(t): return t * 2304 if t < 4 else SLOT + (t - 4) * 2304
    def kreads(off): return [f"ds_read_b64_tr_b16 {vr(KM+2*m,2)}, v{aK} offset:{off + m*128}" for m in range(2)]
    def krread(off): return f"ds_read_b64_tr_b16 {vr(KR,2)}, v{aKR} offset:{off}"
    def vread(g, off): return f"ds_read_b128 {vr(V+4*g,4)}, v{aV} offset:{off + g*1152}"
    def m2b(Y, ab): return f"v_mfma_f32_32x32x4_2b_bf16 {vr(Y,32)}, {vr(KR,2)}, {vr(QR,2)}, {vr(Y,32)} cbsz:1 abid:{ab}"
    def smf(p, i): return f"v_smfmac_f32_32x32x32_bf16 {vr(O+16*(i>>1),16)}, {vr(V+4*(i&1),4)}, {vr(S[p]+8*i,8)}, v{IDX}"
    def exps(p, lo, hi): return [f"v_exp_f32 v{S[p]+i}, v{S[p]+i}" for i in range(lo, hi)]
    for x in kreads(0): a(x)
    for t in range(2):
        for m in range(2):
            a(f"ds_read_b64_tr_b16 {vr(QM+4*t+2*m,2)}, v{T0+8+t} offset:{m*128}")
    a(f"ds_read_b64_tr_b16 {vr(QR,2)}, v{T0+10}")
    a(krread(0))
    a("s_setprio 2\ns_mov_b32 s14, 0\ns_waitcnt lgkmcnt(2)")
    a(mf32(S[0], KM, QM, 0)); a(mf32(S[0] + 16, KM, QM + 4, 0))
    for x in kreads(toff(1)): a(x)
    a(vread(0, 0))
    PP = o.get("pp", 2)
    a(vread(1, 0))
    a(f"s_waitcnt lgkmcnt(4)\nv_mov_b32 v{QR+1}, 0\ns_nop 4")
    a(m2b(S[0], 0))
    a("s_setprio 0\ns_nop 15\ns_nop 2")
    a("; STAMP 3")
    a(".p2align 6\nL_att:")
    prog_rd = f"ds_read_b32 v{vF}, v{vPR} offset:{M_PROG - MISC}"
    prog_ck = f"v_cmp_ge_u32 vcc, s14, v{vF}"
    for u in range(4):
        p = u & 1; q = 1 - p
        seq = exps(p, 0, PP) + ["s_setprio 1"] + exps(p, PP, 32)
        seq += ["s_setprio 2", "s_waitcnt lgkmcnt(0)", mf32(S[q], KM, QM, 0)]
        if u == 2: seq += [prog_ck]
        if u == 3: seq += [f"ds_add_u32 v{vPW}, v{vONE}", f"v_add_u32 v{aK}, {SLOT}, v{aK}"]
        seq += [mf32(S[q] + 16, KM, QM + 4, 0)]
        if u == 2: seq += ["s_cbranch_vccnz L_att_wait", "L_att_back:"]
        seq += kreads(toff(u + 2) if u < 3 else toff(1))
        seq += ["s_nop 2", smf(p, 0), "s_nop 3", m2b(S[q], (u + 1) & 1)]
        if u % 2 == 0: seq += [krread(toff(u + 2)), "s_nop 9"]
        if u == 1: seq += [prog_rd, "s_nop 9"]
        if u == 3: seq += [f"v_add_u32 v{aKR}, {SLOT}, v{aKR}", f"v_add_u32 v{aV}, v{vINC}, v{aV}", "s_nop 8"]
        seq += [smf(p, 2), vread(0, toff(u + 1) if u < 3 else 0), "s_nop 1", smf(p, 1)]
        seq += ["s_add_u32 s14, s14, 1", "s_cmp_lt_u32 s14, 8"] if u == 3 else ["s_nop 1"]
        seq += [smf(p, 3), vread(1, toff(u + 1) if u < 3 else 0), "s_setprio 0"]
        for x in seq: a(x)
    a("s_cbranch_scc1 L_att")
    a("; STAMP 4")
    a(f"""
    s_mov_b32 s29, 0
L_combine:
    s_mul_i32 s24, s{sWAVE}, 2560
    s_add_u32 s24, s24, {L_CB}
    s_cmp_eq_u32 s{sWAVE}, 7
    s_cselect_b32 s24, {M_CB7}, s24
    v_lshl_add_u32 v{T0}, v1, 4, s24
    v_lshl_add_u32 v{T0+1}, v1, 3, s24
    s_xor_b32 s25, s{sWAVE}, 4
    s_mul_i32 s25, s25, 2560
    s_add_u32 s25, s25, {L_CB}
    s_cmp_eq_u32 s{sWAVE}, 3
    s_cselect_b32 s25, {M_CB7}, s25
    v_lshl_add_u32 v{T0+2}, v1, 4, s25
    v_lshl_add_u32 v{T0+3}, v1, 3, s25
    ds_write_b128 v{T0}, {vr(O,4)}
    ds_write_b128 v{T0}, {vr(O+4,4)} offset:1024
    ds_write_b64 v{T0+1}, {vr(O+8,2)} offset:2048
    v_mov_b32 v{T0+4}, {M_BAD}
    v_subrev_u32 v{T0+5}, {(127-40) << 23}, v{O+9}
    v_subrev_u32 v{T0+6}, {(127-40) << 23}, v{O+25}
    v_max_u32 v{T0+5}, v{T0+5}, v{T0+6}
    v_cmp_lt_u32 vcc, {80 << 23}, v{T0+5}
    s_cbranch_vccz L_lok
    ds_write_b32 v{T0+4}, v{IDX}
L_lok:
    s_waitcnt lgkmcnt(0)
    s_barrier                          ; BE
    ; STAMP 10
    ds_read_b32 v{T0+4}, v{T0+4}
    ds_read_b64 {vr(O+8,2)}, v{T0+3} offset:2048
    ds_read_b128 {vr(O,4)}, v{T0+2}
    ds_read_b128 {vr(O+4,4)}, v{T0+2} offset:1024
    s_lshl2_add_u32 s24, s{sJ}, s13
    s_lshl1_add_u32 s24, s24, s12
    s_lshl_b32 s24, s24, 5
    s_add_u32 s24, s24, s{sM}          ; tile*32 + h
    s_mul_i32 s28, s{sMODE}, {WS_OL - WS_OG}
    s_add_u32 s28, s28, {WS_OG}
    s_lshl_b32 s25, s24, 10
    s_add_u32 s25, s25, s28
    s_lshl_b32 s26, s24, 7
    s_add_u32 s26, s26, s28
    s_add_u32 s26, s26, {O_REM}
    s_lshl_b32 s27, s24, 2
    s_add_u32 s27, s27, {WS_FL2}
    v_lshlrev_b32 v{T0}, 4, v1
    v_and_b32 v{T0+1}, 31, v1
    v_lshrrev_b32 v{T0+5}, 5, v1
    v_lshl_or_b32 v{T0+1}, v{T0+1}, 1, v{T0+5}
    v_lshlrev_b32 v{T0+1}, 1, v{T0+1}
    s_waitcnt lgkmcnt(2)
    v_cmp_lt_u32 vcc, s29, v{T0+4}
    v_add_f32 v{O+9}, v{O+9}, v{O+25}
    s_cbranch_vccnz L_fallback
    v_rcp_f32 v{O+10}, v{O+9}
    v_add_f32 v{O+8}, v{O+8}, v{O+24}
    s_waitcnt lgkmcnt(0)
    """)
    for i in range(0, 8, 2): a(f"v_pk_add_f32 {vr(O+i,2)}, {vr(O+i,2)}, {vr(O+16+i,2)}")
    a(f"v_mul_f32 v{O+8}, v{O+8}, v{O+10}")
    for i in range(0, 8, 2): a(f"v_pk_mul_f32 {vr(O+i,2)}, {vr(O+i,2)}, {vr(O+10,2)} op_sel_hi:[1,0]")
    for i in range(4): a(f"v_cvt_pk_bf16_f32 v{O+i}, v{O+2*i}, v{O+2*i+1}")
    a(f"""
    v_cvt_pk_bf16_f32 v{O+4}, v{O+8}, v{O+8}
    v_mov_b32 v{T0+6}, 1
    v_mov_b32 v{T0+7}, 0
    s_cmp_eq_u32 s{sMODE}, 1
    s_cbranch_scc0 L_ostore_g
    buffer_store_dwordx4 {vr(O,4)}, v{T0}, {RW}, s25 offen
    buffer_store_short v{O+4}, v{T0+1}, {RW}, s26 offen
    s_mov_b64 exec, 1
    s_waitcnt vmcnt(0)
    buffer_store_dword v{T0+6}, v{T0+7}, {RW}, s27 offen
L_ostored:
    ; STAMP 11
    s_mov_b64 exec, -1
    """)
    OF = 32; ACC = 68; W = [88, 108, 128, 148]
    a(f"""
    v_lshrrev_b32 v18, 4, v1           ; kg
    v_bfe_u32 v22, v1, 2, 2            ; r
    v_and_b32 v23, 3, v1
    v_lshlrev_b32 v23, 3, v23          ; 8c
    v_lshrrev_b32 v24, 5, v1
    v_mul_u32_u24 v24, 18, v24
    v_bfe_u32 v25, v1, 4, 1
    v_lshl_add_u32 v24, v25, 2, v24
    v_add_u32 v24, v24, v22
    v_mul_u32_u24 v24, 160, v24
    s_mul_i32 s24, s12, {288*160}
    s_add_u32 s24, s24, {L_WO}
    v_add3_u32 v26, v24, v23, s24
    """)
    def wreads(s):
        r = []
        for n in range(5):
            for m in range(2):
                reg, off = (26, (36 * s + 8 * m) * 160 + 32 * n) if s < 8 else (27, 36 * m * 160 + 32 * n)
                r.append(f"ds_read_b64_tr_b16 {vr(W[s&3]+4*n+2*m,2)}, v{reg} offset:{off}")
        return r
    for x in wreads(0): a(x)
    a(f"""
    v_lshrrev_b32 v24, 1, v22
    v_lshl_add_u32 v24, v18, 2, v24
    v_mul_u32_u24 v24, 18, v24
    v_and_b32 v25, 1, v22
    v_add3_u32 v24, v24, v25, 16
    v_mul_u32_u24 v24, 160, v24
    v_add3_u32 v27, v24, v23, s24
    s_and_b32 s24, s{sM}, 3
    s_lshl2_add_u32 s24, s{sJ}, s24
    s_lshr_b32 s25, s13, 1
    s_lshl1_add_u32 s24, s24, s25
    s_lshl1_add_u32 s24, s24, s12
    s_lshl_b32 s24, s24, 4
    s_lshl_b32 s25, s24, 10
    s_add_u32 s25, s25, s28
    s_lshl_b32 s26, s24, 7
    s_add_u32 s26, s26, s28
    s_add_u32 s26, s26, {O_REM}
    s_lshl_b32 s27, s24, 2
    s_add_u32 s27, s27, {WS_FL2}
    v_and_b32 v16, 15, v1              ; t
    v_lshlrev_b32 v17, 2, v16
    buffer_load_dword v22, v17, {RW}, s27 offen sc1
    s_and_b32 s24, s13, 1
    s_lshl_b32 s24, s24, 4
    v_add_u32 v19, s24, v16
    v_lshlrev_b32 v20, 9, v18
    v_lshl_add_u32 v21, v19, 2, v20
    v_lshl_add_u32 v20, v19, 4, v20
    s_lshl_b32 s24, s13, 4
    v_add_u32 v24, s24, v16
    v_mul_u32_u24 v24, {AS}, v24
    s_mul_i32 s24, s12, {L_A1 - L_A0}
    s_add_u32 s24, s24, {L_A0}
    v_lshlrev_b32 v25, 4, v18
    v_add3_u32 v28, v24, v25, s24
    """)
    for st in (1, 2, 3):
        for x in wreads(st): a(x)
    poll(a, f"buffer_load_dword v22, v17, {RW}, s27 offen sc1", "v_cmp_ne_u32 vcc, 1, v22", preloaded=True)
    a("; STAMP 5")
    for st in range(8):
        a(f"buffer_load_dwordx4 {vr(OF+4*st,4)}, v20, {RW}, s25 offen offset:{(st%2)*2048} sc1")
        if st % 2: a("s_add_u32 s25, s25, 4096")
    for i in range(4):
        a(f"buffer_load_dword v{OF+32+i}, v21, {RW}, s26 offen offset:{i*128} sc1")
    for st in range(9):
        lg = 0 if st in (0, 8) else (10 if st == 7 else (14 if st >= 4 else 15))
        if o.get("lg4") and st > 0: lg = min(lg, 4)
        a(f"s_waitcnt vmcnt({11 - st if st < 8 else 0}) lgkmcnt({lg})")
        r = wreads(st + 4) if st < 5 else []
        for n in range(5):
            a(mf16(ACC + 4 * n, W[st & 3] + 4 * n, OF + 4 * st, 0 if st == 0 else None))
            if o.get("lag"):
                if n > 0:
                    for x in r[2*n-2:2*n]: a(x)
                if n == 4:
                    a("s_nop 3")
                    for x in r[8:10]: a(x)
            else:
                for x in r[2*n:2*n+2]: a(x)
    a("; STAMP 12")
    a("s_nop 4")
    for n in range(5):
        if n == 4: a("s_mov_b32 exec_hi, 0")
        a(f"ds_write_b128 v28, {vr(ACC+4*n,4)} offset:{64*n}")
        if n < 3: a("s_nop 0")
    a("s_mov_b32 exec_hi, -1")
    a(f"""
L_final:
    v_and_b32 v16, 0xff, v{vROW}
    v_lshrrev_b32 v17, 8, v{vROW}
    v_mul_u32_u24 v18, {AS}, v16
    v_lshl_add_u32 v18, v17, 5, v18
    v_add_u32 v18, {L_A0}, v18
    v_mov_b32 v20, {M_SEL}
    v_lshl_add_u32 v19, v16, 2, v20
    s_and_b32 s24, s{sM}, 3
    s_lshl2_add_u32 s24, s{sJ}, s24
    s_lshl_b32 s24, s24, 6
    s_mov_b32 s8, s{pOUT}
    s_mov_b32 s9, s{pOUT+1}
    s_waitcnt lgkmcnt(0)
    s_barrier                          ; BA
    ; STAMP 6
    ds_read_b32 v{vG}, v19 offset:{M_G - M_SEL}
    ds_read_b64 v[20:21], v20
    ds_read_b128 v[24:27], v18
    ds_read_b128 v[32:35], v18 offset:{L_A1 - L_A0}
    ds_read_b128 v[28:31], v18 offset:16
    ds_read_b128 v[36:39], v18 offset:{L_A1 - L_A0 + 16}
    """)
    for i in range(4):
        a(f"v_lshlrev_b32 v{40+2*i}, 16, v{XD+i}\nv_and_b32 v{41+2*i}, 0xffff0000, v{XD+i}")
    a(f"""
    v_add_u32 v16, s24, v16
    v_sub_u32 v16, 2047, v16
    s_waitcnt lgkmcnt(4)
    v_sub_f32 v10, 1.0, v{vG}
    """)
    rne_bf16(a, 10)
    a(f"""
    v_and_b32 v20, 0x7ff, v20
    v_and_b32 v21, 0x7ff, v21
    v_cmp_eq_u32 s[26:27], v20, v16
    v_cmp_eq_u32 vcc, v21, v16
    s_or_b64 s[26:27], s[26:27], vcc
    s_cbranch_scc1 L_routed
L_mix:
    v_mov_b32 v8, v{vG}
    s_waitcnt lgkmcnt(0)
    """)
    for i in range(0, 8, 2): a(f"v_pk_add_f32 {vr(24+i,2)}, {vr(24+i,2)}, {vr(32+i,2)}")
    for i in range(0, 8, 2): a(f"v_pk_mul_f32 {vr(40+i,2)}, {vr(40+i,2)}, v[10:11] op_sel_hi:[1,0]")
    for i in range(4): a(f"v_cvt_pk_bf16_f32 v{32+i}, v{24+2*i}, v{25+2*i}")
    for i in range(4): a(f"v_cvt_pk_bf16_f32 v{36+i}, v{40+2*i}, v{41+2*i}")
    for i in range(4): a(f"v_lshlrev_b32 v{24+2*i}, 16, v{32+i}\nv_and_b32 v{25+2*i}, 0xffff0000, v{32+i}")
    for i in range(0, 8, 2): a(f"v_pk_mul_f32 {vr(24+i,2)}, {vr(24+i,2)}, v[8:9]")
    for i in range(4): a(f"v_lshlrev_b32 v{40+2*i}, 16, v{36+i}\nv_and_b32 v{41+2*i}, 0xffff0000, v{36+i}")
    for i in range(4): a(f"v_cvt_pk_bf16_f32 v{32+i}, v{24+2*i}, v{25+2*i}")
    for i in range(4): a(f"v_lshlrev_b32 v{24+2*i}, 16, v{32+i}\nv_and_b32 v{25+2*i}, 0xffff0000, v{32+i}")
    for i in range(0, 8, 2): a(f"v_pk_add_f32 {vr(24+i,2)}, {vr(24+i,2)}, {vr(40+i,2)}")
    for i in range(4): a(f"v_cvt_pk_bf16_f32 v{32+i}, v{24+2*i}, v{25+2*i}")
    a(f"""
    buffer_store_dwordx4 v[32:35], v{vXO}, s[8:11], 0 offen
L_end:
    s_endpgm
    """)
    a(f"""
L_spare_ld2:
    buffer_load_dword v{T0+2}, v{T0+7}, {RW}, s61 offen sc1
    s_branch L_ld_done
L_att_wait:
    """)
    poll(a, prog_rd, prog_ck, sleep=1)
    a(f"""
    ; STAMP 13
    s_branch L_att_back
L_ostore_g:
    buffer_store_dwordx4 {vr(O,4)}, v{T0}, {RW}, s25 offen sc1
    buffer_store_short v{O+4}, v{T0+1}, {RW}, s26 offen sc1
    s_mov_b64 exec, 1
    s_waitcnt vmcnt(0)
    buffer_store_dword v{T0+6}, v{T0+7}, {RW}, s27 offen sc1
    s_branch L_ostored
L_routed:
    v_lshlrev_b32 v17, 5, v17
    v_add_u32 v22, {M_Y + 320}, v17
    v_add_u32 v17, {M_Y}, v17
    v_cndmask_b32 v17, v17, v22, vcc
    ds_read_b128 v[48:51], v17
    ds_read_b128 v[52:55], v17 offset:16
    s_mov_b64 exec, s[26:27]
    s_waitcnt lgkmcnt(0)
    """)
    for i in range(8):
        a(f"v_add_f32 v{40+i}, v{40+i}, v{48+i}")
        rne_bf16(a, 40 + i)
    a("s_mov_b64 exec, -1\ns_branch L_mix")
    M0r, M1r = T0 + 8, T0 + 9
    def slow_qk():
        for x in kreads(0): a(x)
        a(krread(0))
    a(f"""
L_fallback:
    s_waitcnt lgkmcnt(0)
    s_barrier
    s_barrier                          ; K/V reloaded
    s_mul_i32 s24, s12, 9216
    s_add_u32 s24, s24, {8 * SLOT}
    v_subrev_u32 v{aK}, s24, v{aK}
    v_subrev_u32 v{aKR}, s24, v{aKR}
    v_lshlrev_b32 v{T0}, 3, v{vINC}
    v_sub_u32 v{aV}, v{aV}, v{T0}
    v_mov_b32 v{M0r}, 0xff800000
    v_mov_b32 v{M1r}, 0xff800000
    s_mov_b32 s14, 0
L_fb_max:
    """)
    for t in range(2):
        for x in kreads(t * 2304): a(x)
        if t == 0: a(krread(0))
        a("s_waitcnt lgkmcnt(0)")
        a(mf32(S[0], KM, QM, 0)); a(mf32(S[0] + 16, KM, QM + 4, 0))
        a("s_nop 9"); a(m2b(S[0], t)); a("s_nop 15\ns_nop 3")
        for i in range(0, 16, 2):
            a(f"v_max3_f32 v{M0r}, v{S[0]+i}, v{S[0]+i+1}, v{M0r}")
            a(f"v_max3_f32 v{M1r}, v{S[0]+16+i}, v{S[0]+17+i}, v{M1r}")
    a(f"""
    v_add_u32 v{aK}, 4608, v{aK}
    v_add_u32 v{aKR}, 4608, v{aKR}
    s_add_u32 s14, s14, 1
    s_cmp_lt_u32 s14, 32
    s_cbranch_scc1 L_fb_max
    v_mov_b32 v{T0}, v{M0r}
    v_mov_b32 v{T0+1}, v{M1r}
    s_mul_i32 s24, s12, 9216
    s_sub_u32 s24, {8 * SLOT}, s24
    v_permlane32_swap_b32 v{T0}, v{M0r}
    v_permlane32_swap_b32 v{T0+1}, v{M1r}
    v_subrev_u32 v{aK}, s24, v{aK}
    v_subrev_u32 v{aKR}, s24, v{aKR}
    v_max_f32 v{M0r}, v{T0}, v{M0r}
    v_max_f32 v{M1r}, v{T0+1}, v{M1r}
    """)
    for i in range(32): a(f"v_mov_b32 v{O+i}, 0")
    a("s_mov_b32 s14, 0\nL_fb_pv:")
    for t in range(4):
        for x in kreads(t * 2304): a(x)
        if t % 2 == 0: a(krread(t * 2304))
        a(vread(0, t * 2304)); a(vread(1, t * 2304))
        a("s_waitcnt lgkmcnt(0)")
        a(mf32(S[0], KM, QM, 0)); a(mf32(S[0] + 16, KM, QM + 4, 0))
        a("s_nop 9"); a(m2b(S[0], t & 1)); a("s_nop 15\ns_nop 3")
        for i in range(32):
            a(f"v_sub_f32 v{S[0]+i}, v{S[0]+i}, v{M0r + (i >> 4)}")
        for x in exps(0, 0, 32): a(x)
        a("s_nop 1")
        for i in range(4): a(smf(0, i))
    a(f"""
    v_add_u32 v{aK}, {SLOT}, v{aK}
    v_add_u32 v{aKR}, {SLOT}, v{aKR}
    v_add_u32 v{aV}, v{vINC}, v{aV}
    s_add_u32 s14, s14, 1
    s_cmp_lt_u32 s14, 8
    s_cbranch_scc1 L_fb_pv
    s_mov_b32 s29, -1
    s_nop 7
    s_barrier
    s_branch L_combine
    """)
    ACC1 = 64; FR = 32
    a(f"""
L_service:
    s_setprio 3
    s_sub_u32 s12, s{sWAVE}, 8         ; sw
    s_lshr_b32 s13, s12, 1             ; wm
    s_and_b32 s14, s12, 1              ; wn
    s_cmp_lg_u32 s12, 0
    s_waitcnt lgkmcnt(0)
    s_cbranch_scc1 L_noclear
    v_mov_b32 v8, 0
    v_lshlrev_b32 v6, 2, v1
    v_add_u32 v6, {MISC}, v6
    v_lshrrev_b32 v9, 3, v1
    v_cmp_eq_u32 vcc, 2, v9
    s_nop 1
    v_cndmask_b32 v9, v8, v9, vcc
    ds_write_b32 v6, v9
    s_cmp_lt_u32 s{sM}, 28
    s_cbranch_scc1 L_register
    s_sub_u32 s24, s2, 224
    s_mul_i32 s24, s24, 3072
    s_add_u32 s24, s24, {WS_CLR}
    v_lshlrev_b32 v3, 4, v1
    v_mov_b32 v9, 0
    v_mov_b32 v10, 0
    v_mov_b32 v11, 0
    buffer_store_dwordx4 v[8:11], v3, {RW}, s24 offen sc1
    buffer_store_dwordx4 v[8:11], v3, {RW}, s24 offen offset:1024 sc1
    buffer_store_dwordx4 v[8:11], v3, {RW}, s24 offen offset:2048 sc1
    s_waitcnt vmcnt(0)
L_register:
    v_mov_b32 v6, s{sREG}
    s_lshl_b32 s24, s{sJ}, 5
    s_mov_b64 exec, 1
    buffer_atomic_add v6, v8, {RD}, s24 offen sc1
    s_mov_b64 exec, -1
    s_waitcnt lgkmcnt(0)
L_noclear:
    """)
    if o.get("cpf"):
        a(f"""
        s_getpc_b64 s[24:25]
L_pc:
        s_sub_u32 s24, s24, L_pc - {NAME}
        s_subb_u32 s25, s25, 0
        s_lshl_b32 s26, s12, 6
        v_add_u32 v3, s26, v1
        v_min_u32 v3, (L_codeend - {NAME} - 4) / 128, v3
        v_lshlrev_b32 v3, 7, v3
        global_load_dword v31, v3, s[24:25]
        """)
    a(f"""
    s_cmp_ge_u32 s{sM}, 28
    s_cbranch_scc1 L_rg
    v_and_b32 v3, 19, v1
    v_bfe_u32 v12, v1, 2, 1
    v_lshl_or_b32 v3, v12, 3, v3
    v_bfe_u32 v12, v1, 3, 1
    v_lshl_or_b32 v3, v12, 2, v3
    v_bfe_u32 v12, v3, 1, 3
    v_lshrrev_b32 v13, 5, v1           ; hh
    v_xor_b32 v12, v12, v13
    v_lshlrev_b32 v12, 4, v12
    v_lshl_or_b32 v12, v3, 7, v12
    s_lshl_b32 s24, s13, 13
    v_add_u32 v16, s24, v12
    v_xor_b32 v17, 32, v16
    v_xor_b32 v18, 64, v16
    v_xor_b32 v19, 96, v16
    v_bfe_u32 v3, v1, 2, 2
    v_lshl_add_u32 v12, v13, 3, v3
    v_lshlrev_b32 v12, 8, v12
    s_lshl_b32 s24, s14, 1
    v_xor_b32 v14, s24, v3
    v_lshl_or_b32 v12, v14, 6, v12
    v_bfe_u32 v14, v1, 4, 1
    v_lshl_or_b32 v12, v14, 5, v12
    v_and_b32 v14, 3, v1
    v_lshl_or_b32 v12, v14, 3, v12
    v_add_u32 v20, 16384, v12
    v_xor_b32 v21, 64, v20
    s_and_b32 s24, s{sM}, 30
    s_add_u32 s24, s24, s14            ; col64
    s_cmp_ge_u32 s24, 9
    s_cselect_b32 s25, 1, 0
    s_cmp_ge_u32 s24, 18
    s_addc_u32 s25, s25, 0             ; matrix 0 q, 1 k, 2 v
    s_mul_i32 s26, s25, 9
    s_sub_u32 s26, s24, s26
    s_lshl_b32 s26, s26, 6
    s_lshr_b32 s27, s25, 1             ; is v
    s_mov_b32 s28, {HS}
    """)
    for nt in range(2):
        a(f"""
        v_and_b32 v3, 31, v1
        v_add3_u32 v3, v3, s26, {32*nt}
        v_mul_u32_u24 v12, 3641, v3
        v_lshrrev_b32 v12, 16, v12         ; head
        v_mul_u32_u24 v14, 18, v12
        v_sub_u32 v3, v3, v14              ; d
        v_lshrrev_b32 v14, 4, v3
        v_and_b32 v14, s27, v14
        v_xor_b32 v14, v14, v13
        v_lshlrev_b32 v14, 4, v14
        v_lshl_or_b32 v3, v3, 5, v14
        v_mad_u32_u24 v{28+nt}, v12, s28, v3
        """)
    a(f"""
    s_movk_i32 s56, 1152
    s_cmp_eq_u32 s25, 0
    s_cselect_b32 s56, 576, s56
    s_cselect_b32 s57, 18432, 0
    s_mul_i32 s27, s27, 576
    s_add_u32 s57, s57, s27
    s_and_b32 s27, s{sM}, 1
    s_lshl1_add_u32 s27, s27, s13
    s_mul_i32 s28, s27, s56
    s_lshl2_add_u32 s57, s28, s57
    s_mul_i32 s28, s{sJ}, {JS}
    s_add_u32 s57, s57, s28
    s_lshl2_add_u32 s27, s{sJ}, s27
    s_lshl_b32 s27, s27, 7
    s_lshl2_add_u32 s58, s24, s27
    s_add_u32 s58, s58, {WS_FL1}
    s_mov_b32 s59, s25
    s_cmp_eq_u32 s24, 27
    s_cselect_b32 s59, 3, s59
    """)
    for i in range(64): a(f"v_mov_b32 v{ACC1+i}, 0")
    for i in range(16): a(f"v_mov_b32 v{FR+16+i}, 0")
    a("s_mov_b32 s24, 0\ns_mov_b32 s25, 0")
    def reads(kk):
        p = kk & 1; A = FR + 16 * p; B = A + 8
        r = [f"ds_read_b128 {vr(A+4*mt,4)}, v{22+kk} offset:{4096*mt}" for mt in range(2)]
        r += [f"ds_read_b64_tr_b16 {vr(B+4*nt+2*m,2)}, v{26+nt} offset:{(16*kk+4*m)*256}" for nt in range(2) for m in range(2)]
        return r
    def mfmas(kk):
        p = kk & 1; A = FR + 16 * p; B = A + 8
        return [mf32(ACC1 + 16 * (2 * mt + nt), A + 4 * mt, B + 4 * nt) for mt in range(2) for nt in range(2)]
    for i in range(6): a(f"v_mov_b32 v{22+i}, v{16+i}")
    regaddr(a, 3)
    a("; STAMP 1")
    a("L_gemm:")
    a(f"s_barrier\ns_cmp_lg_u32 s24, 8\ns_cbranch_scc1 L_gemm2\n{regload(3, 4)}\nL_gemm2:")
    if o.get("gstamp"): a("s_cmp_lg_u32 s24, 0\ns_cbranch_scc1 L_gs1\n; STAMP 7\nL_gs1:\ns_cmp_lg_u32 s24, 4\ns_cbranch_scc1 L_gs2\n; STAMP 8\nL_gs2:")
    for kk in range(4):
        r = reads(kk); m = mfmas((kk + 3) & 3)
        if kk > 0: a("s_waitcnt lgkmcnt(0)")
        a(m[0]); a(r[0]); a(r[2]); a(r[3]); a(m[1]); a(r[1]); a(r[4]); a(r[5]); a(m[2])
        if kk == 3:
            a("s_add_u32 s25, s25, 32768\ns_and_b32 s25, s25, 0x1ffff")
            for i in range(3): a(f"v_add_u32 v{22+i}, s25, v{16+i}")
        a(m[3])
        if kk == 3:
            for i in range(3, 6): a(f"v_add_u32 v{22+i}, s25, v{16+i}")
    a(f"""
    s_add_u32 s24, s24, 1
    s_cmp_lt_u32 s24, 9
    s_waitcnt lgkmcnt(0)
    s_cbranch_scc1 L_gemm
    s_barrier                          ; BL
    """)
    for x in mfmas(3): a(x)
    regwait(a, 3, 4, preloaded=True)
    a("s_nop 3")
    if o.get("slow"): a(f"s_mov_b32 s{sMODE}, 0")
    a(f"""
    ; STAMP 2
    v_mov_b32 v4, 1
    v_mov_b32 v5, 0
    s_cmp_eq_u32 s59, 3
    s_cbranch_scc1 L_stored
    s_cmp_lg_u32 s59, 0
    s_cbranch_scc1 L_noscale
    s_mov_b32 s24, {f32bits(QSCALE)}
    s_mov_b32 s25, s24
    """)
    for r in range(0, 64, 2): a(f"v_pk_mul_f32 {vr(ACC1+r,2)}, {vr(ACC1+r,2)}, s[24:25]")
    a("L_noscale:")
    a(f"s_add_u32 s24, s57, {WS_LOC}\ns_cmp_eq_u32 s{sMODE}, 1\ns_cselect_b32 s18, {WS_END}, 0")
    def pk(mt, nt, hf): return FR + 4 * (4 * mt + 2 * hf + nt)
    for mt in range(2):
        for hf in range(2):
            for nt in range(2):
                D = ACC1 + 16 * (2 * mt + nt) + 8 * hf
                for r in range(4): a(f"v_cvt_pk_bf16_f32 v{pk(mt,nt,hf)+r}, v{D+2*r}, v{D+2*r+1}")
                a(f"buffer_store_dwordx4 {vr(pk(mt,nt,hf),4)}, v{28+nt}, {RW}, s24 offen")
            a("s_add_u32 s24, s24, s56")
    a(f"""
    s_cmp_ge_u32 s59, s{sMODE}
    s_cselect_b32 s18, {WS_END}, 0
    """)
    NE = o.get("ne", 1)
    for mt in range(2):
        for hf in range(2):
            if 2 * mt + hf == NE:
                a(f"""
                s_mov_b32 s25, s18
                s_mov_b32 s18, {WS_END}
                s_mov_b64 exec, 1
                ; STAMP 9
                s_waitcnt vmcnt({2*NE})
                buffer_store_dword v4, v5, {RW}, s58 offen
                s_mov_b64 exec, -1
                s_mov_b32 s18, s25
                ; STAMP 10
                """)
            for nt in range(2):
                a(f"buffer_store_dwordx4 {vr(pk(mt,nt,hf),4)}, v{28+nt}, {RW}, s57 offen sc1")
            a("s_add_u32 s57, s57, s56")
    a(f"""
    s_mov_b32 s18, {WS_END}
L_stored:
    s_lshl_b32 s24, s2, 7
    s_lshl2_add_u32 s24, s12, s24
    s_add_u32 s24, s24, {WS_FG1}
    s_mov_b64 exec, 1
    s_waitcnt vmcnt(0)
    buffer_store_dword v4, v5, {RW}, s24 offen sc1
    s_mov_b64 exec, -1
L_svc_kv:
    ; STAMP 3
    """)
    vL16, vZ, vMS, v1c = 2, 5, 6, 11
    aGU, aXF, aWR, aTG, aTD, aDN, aP, aHW, aHR, aY = 21, 22, 23, 24, 25, 26, 27, 28, 29, 30
    GU = 32; XF = 104; TR = 140; AC = 156
    final_addr(a)
    a(f"""
    s_mov_b32 s15, s24
    v_mov_b32 v{vMS}, {MISC}
    v_mov_b32 v{v1c}, 1
    v_mov_b32 v{vZ}, 0
    v_lshlrev_b32 v{vL16}, 4, v1
    v_and_b32 v{vPR}, 7, v1
    v_lshl_add_u32 v{vPR}, v{vPR}, 2, v{vMS}
    """)
    for i in range(5):
        a(f"""
        v_add_u32 v3, {64*i}, v1
        v_mul_u32_u24 v4, 6554, v3
        v_lshrrev_b32 v4, 16, v4
        v_mul_u32_u24 v9, 10, v4
        v_sub_u32 v3, v3, v9
        v_min_u32 v3, 8, v3
        v_mul_u32_u24 v4, 1152, v4
        v_lshl_add_u32 v{16+i}, v3, 4, v4
        """)
        if 0 < i < 4: a(f"v_subrev_u32 v{16+i}, {1024*i}, v{16+i}")
    a(f"""
    s_mul_i32 s60, s{sJ}, 18
    s_add_u32 s60, s60, s{sM}
    v_lshrrev_b32 v3, 2, v1
    v_mul_u32_u24 v3, 9216, v3
    v_and_b32 v4, 3, v1
    v_lshl_add_u32 v{aGU}, v4, 4, v3
    v_lshlrev_b32 v4, 3, v4            ; 8c
    v_bfe_u32 v9, v1, 2, 2             ; r
    v_lshrrev_b32 v10, 4, v1           ; kg
    s_mul_i32 s61, s12, 2304
    s_add_u32 s61, s61, 32
    v_add_u32 v{aWR}, s61, v{vL16}
    v_and_b32 v3, 1, v10
    v_lshl_add_u32 v3, v3, 3, v9
    v_lshl_or_b32 v3, v3, 6, v4
    v_lshrrev_b32 v12, 5, v1
    v_mul_u32_u24 v13, 1152, v12
    v_add3_u32 v{aTG}, v3, v13, s61
    v_lshl_add_u32 v3, v10, 3, v9
    v_lshl_or_b32 v3, v3, 5, v4
    v_add_u32 v{aTD}, s61, v3
    v_lshrrev_b32 v3, 1, v1
    v_mul_u32_u24 v3, 1152, v3
    v_and_b32 v4, 1, v1
    v_lshl_add_u32 v{aDN}, v4, 4, v3
    v_lshl_add_u32 v{aP}, v1, 2, v{vMS}
    s_lshl_b32 s25, s12, 7
    s_add_u32 s25, s25, {M_H}
    v_and_b32 v3, 15, v1
    v_lshl_or_b32 v4, v12, 4, v3
    v_and_b32 v9, 16, v1
    v_lshl_add_u32 v4, v9, 1, v4
    v_lshl_add_u32 v{aHW}, v4, 1, s25
    v_and_b32 v4, 4, v1
    v_add_u32 v4, v4, v10
    v_lshl_add_u32 v{aHR}, v4, 4, s25
    v_mul_u32_u24 v4, 2304, v10
    v_lshl_add_u32 v{aY}, v3, 2, v4
    s_mul_i32 s25, s13, 576
    v_lshl_add_u32 v{aXF}, v10, 4, s25
    v_bfe_i32 v31, v1, 2, 1
    s_cmp_lg_u32 s12, 0
    s_cbranch_scc1 L_helper
    s_mul_i32 s24, s{sM}, 18
    v_and_b32 v3, 1, v1
    v_mul_u32_u24 v3, 17, v3
    v_bfe_u32 v4, v1, 1, 1
    v_mul_u32_u24 v4, 576, v4
    v_add3_u32 v3, v3, v4, s24
    v_add_u32 v3, 576, v3
    v_lshrrev_b32 v3, 7, v3            ; ct
    v_bfe_u32 v4, v1, 2, 1
    v_lshl_or_b32 v3, v3, 1, v4        ; m'
    v_lshrrev_b32 v4, 3, v1
    v_add3_u32 v4, v4, s{sJ}, 1
    v_and_b32 v4, 7, v4
    v_lshl_or_b32 v3, v3, 3, v4        ; wg
    v_lshlrev_b32 v3, 7, v3
    s_mov_b32 s29, {WS_FG1}
    s_mul_i32 s52, s{sM}, {HS}
    s_add_u32 s53, s{sJ}, 1
    s_mov_b32 s55, {KV0 + SLOT}
    """)
    if not o.get("noc0"): lds_wait(a, M_C0, 8, vMS, 4, sleep=2)
    a("s_mov_b64 exec, 0xff")
    gl = f"buffer_load_dwordx4 v[12:15], v3, {RW}, s29 offen sc1"
    gc = "v_bitop3_b32 v12, v12, v13, v14 bitop3:0x80\nv_and_b32 v12, v12, v15\nv_cmp_ne_u32 vcc, 1, v12"
    poll(a, gl, gc, sleep=2)
    a("s_mov_b64 exec, -1\n; STAMP 4")
    def kvslot():
        a(f"""
        s_and_b32 s53, s53, 7
        s_mul_i32 s24, s53, {JS}
        s_add_u32 s24, s24, s52
        s_add_u32 s53, s53, 1
        """)
        for g in range(5):
            a(f"s_mov_b32 m0, s55\ns_add_u32 s55, s55, {4096 if g < 4 else 2048}")
            for u in range(4 if g < 4 else 2):
                a(f"buffer_load_dwordx4 v{vL16}, {RW}, s24 offen offset:{1024*u} sc1 lds")
            if g < 4: a("s_add_u32 s24, s24, 4096")
    lvl_add = f"ds_add_u32 v{vMS}, v{v1c} offset:{M_FULL - MISC}"
    def level(n=1):
        a("s_mov_b64 exec, " + str((1 << n) - 1) + f"\n{lvl_add}\ns_mov_b64 exec, -1")
    a("s_mov_b32 s54, 1\nL_kvloop:")
    kvslot()
    a(f"""
    s_cmp_lg_u32 s54, 1
    s_cbranch_scc1 L_kvnext
    {gl}
    s_waitcnt vmcnt(1)
    """)
    level()
    a("; STAMP 5")
    poll(a, gl, gc, sleep=4, preloaded=True)
    a(f"""
    s_mov_b32 s54, 2
    s_branch L_kvloop
L_kvnext:
    s_add_u32 s54, s54, 1
    s_cmp_eq_u32 s54, 3
    s_cbranch_scc1 L_kvloop
    s_cmp_gt_u32 s54, 6
    s_cbranch_scc1 L_kvlate
    s_waitcnt vmcnt(18)
    """)
    level()
    a(f"""
    s_cmp_lt_u32 s54, 6
    s_cbranch_scc1 L_kvloop
    ; STAMP 11
L_sel:
    s_lshl_b32 s24, s{sJ}, 7
    s_add_u32 s24, s24, {WS_SEL}
    """)
    poll(a, f"buffer_load_dwordx2 v[12:13], v{vZ}, {RW}, s24 offen sc1", "v_min_u32 v14, v12, v13\nv_cmp_eq_u32 vcc, 0, v14", sleep=4)
    a(f"""
    ; STAMP 12
    v_readfirstlane_b32 s56, v12
    v_readfirstlane_b32 s57, v13
    s_cmp_lg_u32 s12, 0
    s_cbranch_scc1 L_sel2
    s_mov_b64 exec, 1
    ds_write_b64 v{vMS}, v[12:13] offset:{M_SEL - MISC}
    {lvl_add}
    s_mov_b64 exec, -1
L_sel2:
    s_and_b32 s58, s56, 0x7ff
    s_sub_u32 s58, 2047, s58           ; idx0
    s_and_b32 s59, s57, 0x7ff
    s_sub_u32 s59, 2047, s59           ; idx1
    s_cmp_ge_u32 s{sM}, 18
    s_cbranch_scc1 L_noffn1
    s_cmp_eq_u32 s14, 0
    s_cselect_b32 s8, s{pWG}, s{pWU}
    s_cselect_b32 s9, s{pWG+1}, s{pWU+1}
    s_mov_b32 s10, {WGB}
    s_mul_i32 s25, s13, {288*9216}
    s_lshl_b32 s24, s60, 6
    s_add_u32 s25, s25, s24
    """)
    for i in range(18):
        a(f"buffer_load_dwordx4 {vr(GU+4*i,4)}, v{aGU}, s[8:11], s25 offen\ns_add_u32 s25, s25, {16*9216}")
    a(f"""
    s_mul_i32 s25, s58, 1152
    s_mul_i32 s26, s59, 1152
    s_sub_u32 s26, s26, s25
    v_and_b32 v31, s26, v31
    v_add3_u32 v{aXF}, v{aXF}, v31, s25
    s_mov_b32 s8, s{pX}
    s_mov_b32 s9, s{pX+1}
    s_mov_b32 s10, {XB}
    """)
    for i in range(9):
        a(f"buffer_load_dwordx4 {vr(XF+4*i,4)}, v{aXF}, s[8:11], 0 offen offset:{64*i}")
    a(f"""
L_noffn1:
    s_cmp_lg_u32 s12, 0
    s_cbranch_scc1 L_nokv
    """)
    poll(a, prog_rd, f"v_cmp_gt_u32 vcc, 3, v{vF}", sleep=4)
    a(f"""
    s_branch L_kvloop
L_kvlate:
    s_cmp_eq_u32 s54, 7
    s_cbranch_scc1 L_kvloop
    s_cmp_ge_u32 s{sM}, 18
    s_cbranch_scc1 L_noffn2
    s_waitcnt vmcnt(36)
    s_branch L_ffn
L_nokv:
    s_cmp_ge_u32 s{sM}, 18
    s_cbranch_scc1 L_moedone
    s_waitcnt vmcnt(0)
L_ffn:
    ; MSTAMP 2
    """)
    def gu_step(st):
        p = st & 1
        a(f"ds_write_b128 v{aWR}, {vr(GU+8*st,4)}")
        a(f"ds_write_b128 v{aWR}, {vr(GU+8*st+4,4)} offset:1152")
        for n in range(2):
            for m in range(2):
                a(f"ds_read_b64_tr_b16 {vr(TR+8*p+4*n+2*m,2)}, v{aTG} offset:{256*m+32*n}")
    gu_step(0)
    for st in range(9):
        if st < 8: gu_step(st + 1)
        a(f"s_waitcnt lgkmcnt({6 if st < 8 else 0})")
        for n in range(2):
            a(mf16(AC + 4 * n, XF + 4 * st, TR + 8 * (st & 1) + 4 * n, 0 if st == 0 else None))
        if st == 4:
            a(f"""
            s_mul_i32 s25, s60, 36864
            s_mul_i32 s26, s12, 288
            s_add_u32 s25, s25, s26
            s_mov_b32 s8, s{pWD}
            s_mov_b32 s9, s{pWD+1}
            s_mov_b32 s10, {WGB}
            """)
            for n in range(9):
                a(f"buffer_load_dwordx4 {vr(GU+4*n,4)}, v{aDN}, s[8:11], s25 offen offset:{32*n}")
    a(f"""
    s_lshl_b32 s25, s12, 8
    v_add_u32 v3, s25, v{aP}
    s_mov_b32 s8, s{pX}
    s_mov_b32 s9, s{pX+1}
    s_mov_b32 s10, {XB}
    s_nop 1
    s_mov_b32 exec_hi, 0
    ; MSTAMP 7
    ds_write_b32 v3, v{AC} offset:{M_P - MISC}
    s_not_b64 exec, exec
    ds_write_b32 v3, v{AC+4} offset:{M_P - MISC}
    s_mov_b64 exec, 1
    ds_add_u32 v{vMS}, v{v1c}
    s_mov_b64 exec, -1
L_noffn2:
    s_waitcnt vmcnt(0)
    s_cmp_lg_u32 s12, 0
    s_cbranch_scc1 L_nolvl
    """)
    level(3)
    a(f"""
    s_cmp_ge_u32 s{sM}, 18
    s_cbranch_scc1 L_moedone
L_nolvl:
    ; MSTAMP 8
    """)
    poll(a, f"ds_read_b32 v4, v{vMS}", "v_cmp_ne_u32 vcc, 4, v4", sleep=1)
    a("; MSTAMP 9")
    for w in range(4): a(f"ds_read_b32 v{XF+w}, v{aP} offset:{M_P - MISC + 256*w}")
    def dn_step(st):
        p = st & 1
        ns = [n for n in (2 * st, 2 * st + 1) if n < 9]
        for n in ns: a(f"ds_write_b128 v{aWR}, {vr(GU+4*n,4)} offset:{1152*(n&1)}")
        for n in ns:
            for m in range(2):
                a(f"ds_read_b64_tr_b16 {vr(TR+8*p+4*(n&1)+2*m,2)}, v{aTD} offset:{1152*(n&1)+128*m}")
        return 3 * len(ns)
    dn_step(0)
    a(f"""
    s_waitcnt lgkmcnt(6)
    v_pk_add_f32 {vr(XF,2)}, {vr(XF,2)}, {vr(XF+2,2)}
    v_cvt_pk_bf16_f32 v{XF+1}, v{XF}, v{XF+1}
    v_lshlrev_b32 v{XF}, 16, v{XF+1}
    v_mul_f32 v{XF+2}, {f32bits(-math.log2(math.e))}, v{XF}
    v_exp_f32 v{XF+2}, v{XF+2}
    v_and_b32 v{XF+1}, 0xffff0000, v{XF+1}
    v_add_f32 v{XF+2}, 1.0, v{XF+2}
    v_rcp_f32 v{XF+2}, v{XF+2}
    s_and_b32 s25, s60, 7
    v_mul_f32 v{XF}, v{XF}, v{XF+2}
    """)
    rne_bf16(a, XF)
    a(f"""
    v_mul_f32 v{XF}, v{XF}, v{XF+1}
    v_cvt_pk_bf16_f32 v{XF}, v{XF}, v{XF}
    ds_write_b16 v{aHW}, v{XF}
    ds_read_b128 {vr(XF+4,4)}, v{aHR}
    """)
    DA = GU + 36
    for st in range(5):
        k = dn_step(st + 1) if st < 4 else 0
        a(f"s_waitcnt lgkmcnt({k})")
        for n in (2 * st, 2 * st + 1):
            if n < 9: a(mf16(DA + 4 * n, XF + 4, TR + 8 * (st & 1) + 4 * (n & 1), 0))
    a(f"""
    s_mul_i32 s25, s25, 4608
    s_mul_i32 s26, s12, 576
    s_add_u32 s25, s25, s26
    s_add_u32 s25, s25, {WS_Y}
    ; MSTAMP 10
    s_mov_b32 exec_hi, 0
    """)
    for n in range(9):
        a(f"buffer_atomic_add_f32 v{DA+4*n}, v{aY}, {RW}, s25 offen offset:{64*n} sc1")
    a(f"""
    s_mov_b64 exec, 1
    s_waitcnt vmcnt(0)
    ds_add_rtn_u32 v4, v{vMS}, v{v1c} offset:4
    s_lshr_b32 s25, s{sJ}, 2
    s_lshl_b32 s25, s25, 7
    s_add_u32 s25, s25, 16
    s_waitcnt lgkmcnt(0)
    v_cmp_eq_u32 vcc, 3, v4
    s_cbranch_vccz L_notlast
    buffer_atomic_add v{v1c}, v{vZ}, {RD}, s25 offen sc1
L_notlast:
    s_mov_b64 exec, -1
L_moedone:
    ; STAMP 13
    """)
    poll(a, prog_rd, f"v_cmp_gt_u32 vcc, 7, v{vF}", sleep=16)
    a(f"""
    s_mov_b32 s29, 0
L_wo:
    s_mov_b32 s24, s{pWO}
    s_mov_b32 s25, s{pWO+1}
    s_mov_b32 s26, {WOB}
    s_mov_b32 s27, 0x00020000
    s_mul_i32 s52, s12, {32*1152}
    s_lshr_b32 s53, s{sM}, 2
    s_mul_i32 s53, s53, 144
    s_add_u32 s52, s52, s53
    s_mul_i32 s53, s12, 5120
    s_add_u32 s53, s53, {L_WO}
L_wo_loop:
    s_mov_b32 m0, s53
    s_nop 0
    """)
    for i in range(4): a(f"buffer_load_dwordx4 v{16+i}, s[24:27], s52 offen offset:{1024*i} lds")
    a(f"""
    s_add_u32 m0, s53, 4096
    s_add_u32 s53, s53, 20480
    buffer_load_dwordx4 v20, s[24:27], s52 offen lds
    s_add_u32 s52, s52, {128*1152}
    s_cmp_lt_u32 s53, {L_WO + 92160}
    s_cbranch_scc1 L_wo_loop
    s_cmp_lg_u32 s29, 0
    s_cbranch_scc1 L_svc_wait
    s_cmp_ge_u32 s12, 2
    s_cbranch_scc1 L_ysel
    s_lshl_b32 s24, s{sJ}, 8
    s_add_u32 s24, s24, s{sM}
    v_lshrrev_b32 v3, 3, v1
    s_cmp_eq_u32 s12, 0
    s_cbranch_scc1 L_w8
    v_and_b32 v4, 7, v1
    v_lshlrev_b32 v4, 7, v4
    v_lshl_or_b32 v4, v3, 15, v4
    s_lshl_b32 s24, s24, 10
    s_add_u32 s24, s24, {WS_OL}
    {"" if o.get("nopre") else f"buffer_load_dword v31, v4, {RW}, s24 offen sc1"}
    s_branch L_svc_wait
L_w8:
    v_lshlrev_b32 v3, 12, v3
    s_lshl_b32 s24, s24, 7
    s_add_u32 s24, s24, {WS_OL + O_REM}
    {"" if o.get("nopre") else f"buffer_load_dword v31, v3, {RW}, s24 offen sc1"}
    buffer_load_dwordx4 {vr(XD,4)}, v{vXO}, s[8:11], 0 offen
    s_lshl_b32 s24, s15, 2
    s_add_u32 s24, s24, {WS_G - MISC}
    buffer_load_dword v4, v{aP}, {RW}, s24 offen sc1
    s_waitcnt vmcnt(0)
    ds_write_b32 v{aP}, v4 offset:{M_G - MISC}
    s_branch L_svc_wait
L_ysel:
    s_cmp_eq_u32 s12, 2
    s_cselect_b32 s26, s58, s59
    s_cselect_b32 s27, s56, s57
    s_andn2_b32 s26, s26, 63
    s_cmp_lg_u32 s15, s26
    s_cbranch_scc1 L_svc_wait
    v_and_b32 v3, 1, v1
    v_lshlrev_b32 v3, 7, v3
    """)
    poll(a, f"buffer_load_dword v4, v3, {RD}, 0 offen offset:16 sc1", "v_cmp_ne_u32 vcc, 72, v4", sleep=8)
    a(f"""
    ; MSTAMP 4
    v_min_u32 v3, 35, v1
    v_lshlrev_b32 v3, 3, v3
    s_lshr_b32 s24, s{sM}, 2
    s_mul_i32 s24, s24, 288
    s_mul_i32 s25, s14, 2304
    s_add_u32 s24, s24, s25
    s_add_u32 s24, s24, {WS_Y}
    """)
    for rp in range(8):
        a(f"buffer_load_dwordx2 {vr(32+2*rp,2)}, v3, {RW}, s24 offen sc1\ns_add_u32 s24, s24, 4608")
    a(f"""
    s_and_b32 s27, s27, 0xfffff800
    s_xor_b32 s24, s27, 0x80000000
    s_not_b32 s25, s27
    s_bitcmp1_b32 s27, 31
    s_cselect_b32 s27, s24, s25
    v_mov_b32 v10, s27
    """)
    rne_bf16(a, 10); sigmoid(a, 10); rne_bf16(a, 10)
    a(f"s_mul_i32 s24, s14, 320\ns_add_u32 s24, s24, {M_Y}\nv_add_u32 v3, s24, v3\ns_waitcnt vmcnt(0)")
    for rp in range(1, 8): a(f"v_pk_add_f32 v[32:33], v[32:33], {vr(32+2*rp,2)}")
    for i in range(2):
        rne_bf16(a, 32 + i); a(f"v_mul_f32 v{32+i}, v{32+i}, v10"); rne_bf16(a, 32 + i)
    a(f"""
    ds_write_b64 v3, v[32:33]
L_svc_wait:
    s_waitcnt vmcnt(0) lgkmcnt(0)
    ; STAMP 14
    s_barrier                          ; BE
    ds_read_b32 v4, v{vMS} offset:{M_BAD - MISC}
    s_waitcnt lgkmcnt(0)
    v_cmp_lt_u32 vcc, s29, v4
    s_cbranch_vccnz L_svc_fb
    s_cmp_eq_u32 s12, 0
    s_cbranch_scc1 L_final
    s_endpgm
L_svc_fb:
    s_barrier
    s_mul_i32 s52, s{sM}, {HS}
    s_lshl1_add_u32 s53, s12, s{sJ}
    s_mul_i32 s55, s12, {2 * SLOT}
    s_add_u32 s55, s55, {KV0}
    s_mov_b32 s54, 0
L_fb_kv:
    """)
    kvslot()
    a("""
    s_add_u32 s54, s54, 1
    s_cmp_lt_u32 s54, 2
    s_cbranch_scc1 L_fb_kv
    s_waitcnt vmcnt(0)
    s_barrier
    s_mov_b32 s29, -1
    s_barrier
    s_branch L_wo
    """)
    a(f"""
L_helper:
    """)
    poll(a, f"ds_read_b32 v4, v{vMS} offset:{M_FULL - MISC}", f"v_cmp_gt_u32 vcc, {o.get('pl', 4)}, v4", sleep=16)
    a("s_branch L_sel")
    a(f"""
L_rg:
    s_sub_u32 s26, s{sM}, 28
    s_lshl2_add_u32 s26, s{sJ}, s26
    s_lshl2_add_u32 s27, s26, s12
    s_lshl_b32 s28, s27, 4
    v_lshrrev_b32 v3, 3, v1
    v_add_u32 v4, s28, v3              ; row
    v_mul_u32_u24 v5, 1152, v4
    v_and_b32 v6, 7, v1
    v_lshlrev_b32 v6, 4, v6
    v_add_u32 v5, v5, v6
    v_add_u32 v7, 9216, v5
    """)
    for i in range(9): a(f"global_load_dwordx4 {vr(16+4*i,4)}, v5, s[{pX}:{pX+1}] offset:{128*i}")
    for i in range(9): a(f"global_load_dwordx4 {vr(88+4*i,4)}, v6, s[{pWR}:{pWR+1}] offset:{128*i}")
    for i in range(9): a(f"global_load_dwordx4 {vr(124+4*i,4)}, v6, s[{pGW}:{pGW+1}] offset:{128*i}")
    for i in range(9): a(f"global_load_dwordx4 {vr(52+4*i,4)}, v7, s[{pX}:{pX+1}] offset:{128*i}")
    a("""
    v_mov_b32 v8, 0
    v_mov_b32 v9, 0
    v_mov_b32 v10, 0
    v_mov_b32 v11, 0
    s_barrier                          ; BL
    s_waitcnt vmcnt(0)
    """)
    for i in range(36):
        a(f"v_dot2c_f32_bf16 v8, v{16+i}, v{88+i}")
        a(f"v_dot2c_f32_bf16 v9, v{52+i}, v{88+i}")
        a(f"v_dot2c_f32_bf16 v10, v{16+i}, v{124+i}")
        a(f"v_dot2c_f32_bf16 v11, v{52+i}, v{124+i}")
    a("s_nop 2")
    for mode in ("quad_perm:[1,0,3,2]", "quad_perm:[2,3,0,1]", "row_half_mirror"):
        for v in (8, 9, 10, 11):
            a(f"v_add_f32_dpp v{v}, v{v}, v{v} {mode} row_mask:0xf bank_mask:0xf")
    for v in (10, 11):
        rne_bf16(a, v); sigmoid(a, v); rne_bf16(a, v)
    a(f"""
    v_ashrrev_i32 v12, 31, v8
    v_or_b32 v12, 0x80000000, v12
    v_xor_b32 v8, v8, v12
    v_and_b32 v8, 0xfffff800, v8
    v_sub_u32 v12, 2047, v4
    v_or_b32 v8, v8, v12
    v_ashrrev_i32 v12, 31, v9
    v_or_b32 v12, 0x80000000, v12
    v_xor_b32 v9, v9, v12
    v_and_b32 v9, 0xfffff800, v9
    v_sub_u32 v12, 2039, v4
    v_or_b32 v9, v9, v12
    v_lshlrev_b32 v13, 2, v4
    s_mov_b32 s29, {WS_G}
    buffer_store_dword v10, v13, {RW}, s29 offen sc1
    buffer_store_dword v11, v13, {RW}, s29 offen offset:32 sc1
    v_max_u32 v14, v8, v9
    v_min_u32 v15, v8, v9
    s_nop 1
    v_mov_b32_dpp v8, v14 row_ror:8 row_mask:0xf bank_mask:0xf
    v_mov_b32_dpp v9, v15 row_ror:8 row_mask:0xf bank_mask:0xf
    v_min_u32 v12, v8, v14
    v_max_u32 v14, v8, v14
    v_max3_u32 v15, v12, v9, v15
    """)
    for sw in ("v_permlane16_swap_b32", "v_permlane32_swap_b32"):
        a(f"""
        v_mov_b32 v8, v14
        v_mov_b32 v9, v15
        s_nop 1
        {sw} v8, v14
        {sw} v9, v15
        s_nop 1
        v_min_u32 v12, v8, v14
        v_max_u32 v14, v8, v14
        v_max3_u32 v15, v12, v9, v15
        """)
    regwait(a, 3, 4, sleep=4)
    if o.get("slow"): a(f"s_mov_b32 s{sMODE}, 0")
    a(f"""
    s_lshl_b32 s29, s27, 3
    s_add_u32 s29, s29, {WS_KEY}
    v_mov_b32 v5, 0
    s_mov_b64 exec, 1
    buffer_store_dwordx2 v[14:15], v5, {RW}, s29 offen sc1
    s_mov_b64 exec, -1
    s_and_b32 s27, s27, 15
    s_cmp_lg_u32 s27, 0
    s_cbranch_scc1 L_svc_kv
    v_lshlrev_b32 v3, 4, v1
    s_mov_b32 s29, {WS_KEY}
    """)
    poll(a, f"buffer_load_dwordx4 v[8:11], v3, {RW}, s29 offen sc1",
         "v_min_u32 v12, v8, v9\nv_min3_u32 v12, v12, v10, v11\nv_cmp_eq_u32 vcc, 0, v12", sleep=2)
    top2(a, 8, 12, 24)
    a(f"""
    s_lshl_b32 s29, s{sJ}, 7
    s_add_u32 s29, s29, {WS_SEL}
    v_mov_b32 v8, s24
    v_mov_b32 v9, s25
    s_mov_b64 exec, 1
    buffer_store_dwordx2 v[8:9], v5, {RW}, s29 offen sc1
    s_mov_b64 exec, -1
    s_branch L_svc_kv
    """)
    a("L_codeend:")
    if o.get("mstamp"):
        a.L = [l for l in a.L if not any(l.strip() == f"; STAMP {i}" for i in (1, 2, 4, 7, 8, 9, 10))]
        a.L = [l.replace("MSTAMP", "STAMP") for l in a.L]
    hdr = HEADER + f"; @launch grid=(256,1,1) block=(768,1,1) lds={LDS_BYTES}\n"
    return hdr + a.text() + '.section .rodata,"a"\n' + descriptor(NAME, 168, sgpr=64)

if __name__ == "__main__":
    o = dict((k.split("=")[0], int(k.split("=")[1]) if "=" in k else 1) for k in sys.argv[2:])
    open(sys.argv[1], "w").write(gen(o))
```

```python
import sys, math
from gen_common import *

NAME = "gated_mix__mha_block__moe_arch_mod__prompt_kernel"
XB = 2359296; WB = 1990656; WOB = 663552; WGB = 5308416
QSCALE = (18 ** -0.5) * math.log2(math.e)
JS = 884736; HS = 27648
WS_GLB = 0; WS_LOC = 0x700000
WS_OG = 0xE00000; WS_OL = 0x1040000
O_REM = 0x200000
WS_FG1 = 0x1280000
WS_FL1 = 0x1288000
WS_FL2 = 0x1289000
WS_KEY = 0x128B000
WS_SEL = 0x128B400
WS_Y = 0x128C000
WS_CLR = WS_FG1
WS_G = 0x1298000
WS_END = 0x129A000
KV0 = 9216; SLOT = 18432; L_QS = KV0 + 7 * SLOT; MISC = 156672
M_CNT = MISC; M_DONE = MISC + 4; M_BAD = MISC + 8; M_SEL = MISC + 16
M_MODE = MISC + 12; M_C0 = MISC + 24; M_PROG = MISC + 64; M_FULL = MISC + 96; M_G = MISC + 6144
M_P = MISC + 256; M_H = MISC + 2304; M_Y = MISC + 2816; M_CB7 = MISC + 3584
L_CB = KV0 + 5 * SLOT; L_WO = KV0; L_A0 = KV0 + 6 * SLOT; L_A1 = KV0 + 7 * SLOT; AS = 288
LDS_BYTES = 163840
SPIN = 1 << 14
pX, pW, pWO, pWR, pWG, pWU, pWD, pGW, pOUT, pDBG, pWS = 32, 34, 36, 40, 42, 44, 46, 48, 50, 52, 54
sWAVE, sJ, sM, sMODE, sREG = 3, 4, 5, 6, 7
RW = "s[16:19]"
RD = "s[20:23]"

def mf32(d, a, b, c=None):
    cs = vr(d, 16) if c is None else ("0" if c == 0 else vr(c, 16))
    return f"v_mfma_f32_32x32x16_bf16 {vr(d,16)}, {vr(a,4)}, {vr(b,4)}, {cs}"
def mf16(d, a, b, c=None):
    cs = vr(d, 4) if c is None else ("0" if c == 0 else vr(c, 4))
    return f"v_mfma_f32_16x16x32_bf16 {vr(d,4)}, {vr(a,4)}, {vr(b,4)}, {cs}"
def rne_bf16(a, v):
    a(f"v_cvt_pk_bf16_f32 v{v}, v{v}, v{v}")
    a(f"v_and_b32 v{v}, 0xffff0000, v{v}")
def sigmoid(a, v):
    a(f"v_mul_f32 v{v}, {f32bits(-math.log2(math.e))}, v{v}")
    a(f"v_exp_f32 v{v}, v{v}")
    a("s_nop 0")
    a(f"v_add_f32 v{v}, 1.0, v{v}")
    a(f"v_rcp_f32 v{v}, v{v}")
    a("s_nop 0")
_uid = [0]
def uid(p):
    _uid[0] += 1
    return f"L_{p}{_uid[0]}"
def poll(a, load, check, sleep=0, preloaded=False, spin=SPIN, extra=None):
    l = uid("poll"); e = uid("ok"); c = uid("chk")
    a(f"s_mov_b32 s30, {spin}")
    if preloaded: a(f"s_branch {c}")
    a(f"{l}:")
    a(load)
    if preloaded: a(f"{c}:")
    a("s_waitcnt lgkmcnt(0)" if load.startswith("ds_") else "s_waitcnt vmcnt(0)")
    a(check)
    a(f"s_cbranch_vccz {e}")
    if extra: a(extra)
    if sleep: a(f"s_sleep {sleep}")
    a(f"s_sub_u32 s30, s30, 1\ns_cmp_lg_u32 s30, 0\ns_cbranch_scc1 {l}")
    a(f"{e}:")
def regaddr(a, t0): a(f"v_and_b32 v{t0}, 7, v1\nv_lshlrev_b32 v{t0}, 5, v{t0}")
def regload(t0, t1): return f"buffer_load_dword v{t1}, v{t0}, {RD}, 0 offen sc1"
def regwait(a, t0, t1, preloaded=False, sleep=0):
    if not preloaded: regaddr(a, t0)
    poll(a, regload(t0, t1), f"v_cmp_eq_u32 vcc, 0, v{t1}", preloaded=preloaded, sleep=sleep)
def wave_max_u32(a, v, t, sdst):
    for mode in ("quad_perm:[1,0,3,2]", "quad_perm:[2,3,0,1]", "row_half_mirror", "row_mirror"):
        a("s_nop 1")
        a(f"v_max_u32_dpp v{v}, v{v}, v{v} {mode} row_mask:0xf bank_mask:0xf")
    for sw in ("v_permlane16_swap_b32", "v_permlane32_swap_b32"):
        a(f"v_mov_b32 v{t}, v{v}\ns_nop 1\n{sw} v{t}, v{v}\ns_nop 1\nv_max_u32 v{v}, v{t}, v{v}")
    a("s_nop 0")
    a(f"v_readfirstlane_b32 s{sdst}, v{v}")
def top2(a, K, T, so):
    a(f"""
    v_min_u32 v{T}, v{K}, v{K+2}
    v_max_u32 v{K}, v{K}, v{K+2}
    v_max3_u32 v{K+1}, v{T}, v{K+1}, v{K+3}
    v_mov_b32 v{K+2}, v{K}
    """)
    wave_max_u32(a, K + 2, T, so)
    a(f"v_cmp_eq_u32 vcc, v{K+2}, v{K}\ns_nop 1\nv_cndmask_b32 v{K+2}, v{K}, v{K+1}, vcc")
    wave_max_u32(a, K + 2, T, so + 1)

aK, aKR, aV, vINC, IDX, vXO, vROW, vG, XD = 2, 3, 4, 5, 6, 7, 8, 9, 12
QM, QR, KR, KM, V, O, S = 16, 24, 26, 28, 32, 40, [72, 104]
T0 = 136
vM, vONE, vPW, vPR, vF = 10, 11, 164, 165, 166
def lds_add(a, off, addr, one):
    a(f"s_mov_b64 exec, 1\nds_add_u32 v{addr}, v{one} offset:{off - MISC}\ns_mov_b64 exec, -1")
def lds_wait(a, off, n, addr, t, sleep=1):
    poll(a, f"ds_read_b32 v{t}, v{addr} offset:{off - MISC}", f"v_cmp_ne_u32 vcc, {n}, v{t}", sleep=sleep)

def final_addr(a):
    a(f"""
    v_mul_u32_u24 v{vROW}, 7282, v0
    v_lshrrev_b32 v{vROW}, 16, v{vROW}
    v_mul_u32_u24 v10, 9, v{vROW}
    v_sub_u32 v10, v0, v10
    s_and_b32 s24, s{sM}, 3
    s_lshl2_add_u32 s24, s{sJ}, s24
    s_lshl_b32 s24, s24, 6
    s_lshr_b32 s25, s{sM}, 2
    s_mul_i32 s25, s25, 144
    v_add_u32 v11, s24, v{vROW}
    v_mul_u32_u24 v{vXO}, 1152, v11
    v_lshl_add_u32 v{vXO}, v10, 4, v{vXO}
    v_add_u32 v{vXO}, s25, v{vXO}
    v_lshl_or_b32 v{vROW}, v10, 8, v{vROW}
    """)
def final_loads(a):
    a(f"buffer_load_dwordx4 {vr(XD,4)}, v{vXO}, s[8:11], 0 offen")

def gen(o={}):
    a = Asm()
    a('.amdgcn_target "amdgcn-amd-amdhsa--gfx950"\n.text')
    kernel_begin(a, NAME)
    a(f"""
    s_cmp_ge_u32 s2, 256
    s_cbranch_scc1 L_end
    s_load_dwordx16 s[32:47], s[0:1], 0
    s_load_dwordx4 s[48:51], s[0:1], 64
    s_load_dwordx2 s[20:21], s[0:1], 80
    s_load_dwordx2 s[16:17], s[0:1], 88
    s_load_dwordx2 s[8:9], s[0:1], 0
    v_lshrrev_b32 v2, 6, v0
    v_and_b32 v1, 63, v0
    s_and_b32 s{sJ}, s2, 7
    v_readfirstlane_b32 s{sWAVE}, v2
    s_lshr_b32 s{sM}, s2, 3
    s_getreg_b32 s24, hwreg(HW_REG_XCC_ID)
    s_and_b32 s24, s24, 15
    s_add_u32 s{sREG}, {"s2" if o.get("slow") else "s24"}, 1
    s_mov_b32 s18, {WS_END}
    s_mov_b32 s19, 0x00020000
    s_mov_b32 s22, 256
    s_mov_b32 s23, 0x00020000
    s_mov_b32 s10, {XB}
    s_mov_b32 s11, 0x00020000
    s_cmp_eq_u32 s{sM}, 28
    s_cbranch_scc1 L_clear
L_cleared:
    s_cmp_ge_u32 s{sWAVE}, 8
    s_cbranch_scc1 L_service
    """)
    LD = T0 + 16
    a(f"""
    s_and_b32 s26, s{sM}, 1
    s_mul_i32 s57, s26, {o.get("rp", 0)}
    s_mul_i32 s28, s{sJ}, {o.get("rj", 1)}
    s_add_u32 s57, s57, s28
    s_lshr_b32 s28, s{sM}, 1
    s_mul_i32 s28, s28, {o.get("rc", 0)}
    s_add_u32 s57, s57, s28
    s_mul_i32 s28, s57, 57
    s_lshr_b32 s28, s28, 9
    s_mul_i32 s28, s28, 9
    s_sub_u32 s57, s57, s28
    v_lshrrev_b32 v13, 4, v1
    s_lshl_b32 s59, s{sWAVE}, 12
    s_cmp_ge_u32 s{sWAVE}, 4
    s_cbranch_scc1 L_ldw
    s_lshl1_add_u32 s26, s{sJ}, s26    ; rb
    s_lshl2_add_u32 s26, s26, s{sWAVE}
    s_lshl_b32 s26, s26, 5
    v_lshrrev_b32 v3, 3, v1
    v_add_u32 v3, s26, v3
    v_mul_u32_u24 v3, 1152, v3
    v_and_b32 v12, 7, v1
    v_xor_b32 v12, v12, v13
    v_lshl_add_u32 v{LD}, v12, 4, v3
    v_xor_b32 v{LD+1}, 64, v{LD}
    v_add_u32 v{LD+1}, 8192, v{LD+1}
    v_add_u32 v{LD+2}, 16384, v{LD}
    v_add_u32 v{LD+3}, 16384, v{LD+1}
    s_movk_i32 s58, 128
    s_waitcnt lgkmcnt(0)
    s_branch L_ldgo
L_ldw:
    s_lshl_b32 s26, s{sWAVE}, 4
    s_sub_u32 s26, s26, 64
    v_add_u32 v3, s26, v13
    v_mul_u32_u24 v3, 3456, v3
    v_and_b32 v12, 15, v1
    v_lshlrev_b32 v14, 2, v13
    v_xor_b32 v12, v12, v14
    v_lshl_add_u32 v3, v12, 4, v3
    s_lshr_b32 s26, s{sM}, 1
    s_lshl_b32 s26, s26, 8
    v_add_u32 v{LD}, s26, v3
    v_add_u32 v{LD+1}, 12800, v{LD}
    v_add_u32 v{LD+2}, 25600, v{LD}
    v_add_u32 v{LD+3}, 38400, v{LD}
    s_mov_b32 s58, 221184
    s_mov_b32 s10, {WB}
    s_waitcnt lgkmcnt(0)
    s_mov_b32 s8, s{pW}
    s_mov_b32 s9, s{pW+1}
L_ldgo:
    ; STAMP 7
    s_mul_i32 s57, s57, s58            ; soffset
    s_mul_i32 s56, s58, 9              ; wrap
    s_mov_b32 s60, 0
    s_cmp_ge_u32 s{sM}, 28
    s_cbranch_scc1 L_spare_ld
L_ldprime:
    """)
    def ld_chunk():
        a("s_mov_b32 m0, s59\ns_add_u32 s59, s59, 32768")
        for u in range(4):
            a(f"buffer_load_dwordx4 v{LD+u}, s[8:11], s57 offen offset:{u*1024} lds")
        a("""
        s_and_b32 s59, s59, 0x1ffff
        s_add_u32 s57, s57, s58
        s_cmp_eq_u32 s57, s56
        s_cselect_b32 s57, 0, s57
        s_add_u32 s60, s60, 1
        """)
    P0 = 3
    for c in range(P0):
        a(f"s_setprio {3 - c}")
        ld_chunk()
    a(f"""
    s_setprio 0
L_ldloop:
    s_waitcnt vmcnt(8)
    s_barrier
    """)
    ld_chunk()
    a(f"""
    s_cmp_lt_u32 s60, 9
    s_cbranch_scc1 L_ldloop
L_spare_ld:
    s_mul_i32 s15, s{sJ}, {JS}
    s_mul_i32 s24, s{sM}, {HS}
    s_add_u32 s15, s15, s24
    s_add_u32 s15, s15, {WS_LOC}
    s_mul_i32 s61, s{sWAVE}, {27*128}
    s_add_u32 s61, s61, s15
    v_min_u32 v{T0+7}, 26, v1
    v_lshlrev_b32 v{T0+7}, 7, v{T0+7}
    buffer_load_dword v{T0+7}, v{T0+7}, {RW}, {"0" if o.get("nopre") else "s61"} offen sc1
    """)
    def chunk_bar(n, stamp=None):
        l = uid("nb")
        a(f"s_waitcnt vmcnt({n})\ns_cmp_ge_u32 s{sM}, 28\ns_cbranch_scc1 {l}\ns_barrier\n{l}:")
        if stamp: a(f"; STAMP {stamp}")
    final_addr(a)
    a(f"""
    s_lshr_b32 s12, s{sWAVE}, 2        ; kh
    s_and_b32 s13, s{sWAVE}, 3         ; qg
    s_mul_i32 s24, s12, 9216
    s_add_u32 s24, s24, {KV0}
    v_lshrrev_b32 v{T0}, 5, v1         ; hh
    v_bfe_u32 v{T0+1}, v1, 2, 2        ; r
    v_and_b32 v{T0+2}, 3, v1
    v_lshlrev_b32 v{T0+2}, 3, v{T0+2}  ; 8c
    v_bfe_u32 v{T0+3}, v1, 4, 1        ; G&1
    v_lshl_add_u32 v{T0+4}, v{T0}, 3, v{T0+1}
    v_lshl_or_b32 v{T0+4}, v{T0+4}, 5, v{T0+2}     ; (8hh+r)*32 + 8c
    v_mul_u32_u24 v{T0+5}, 1152, v{T0+3}
    v_add3_u32 v{aK}, v{T0+5}, v{T0+4}, s24
    v_and_b32 v{T0+1}, 1, v{T0+1}
    v_lshl_or_b32 v{T0+1}, v{T0+1}, 5, v{T0+2}
    v_add_u32 v{T0+1}, 512, v{T0+1}                ; (16+(r&1))*32 + 8c
    v_lshrrev_b32 v{T0+6}, 4, v1                   ; G
    v_mul_u32_u24 v{T0+5}, 1152, v{T0+6}
    v_add3_u32 v{aKR}, v{T0+5}, v{T0+1}, s24
    s_mul_i32 s25, s13, 2304
    s_add_u32 s25, s25, {L_QS}
    s_xor_b32 s26, s12, 1
    s_lshl_b32 s27, s26, 1
    v_xor_b32 v{T0+6}, s27, v{T0+6}
    v_mul_u32_u24 v{T0+5}, 576, v{T0+6}
    v_add3_u32 v{T0+10}, v{T0+5}, v{T0+1}, s25     ; q rem
    v_mul_u32_u24 v{T0+5}, 576, v{T0+3}
    v_add3_u32 v{T0+5}, v{T0+5}, v{T0+4}, s25
    s_mul_i32 s26, s26, 1152
    s_mul_i32 s27, s12, 1152
    v_add_u32 v{T0+8}, s26, v{T0+5}                ; q main a=0
    v_add_u32 v{T0+9}, s27, v{T0+5}                ; q main a=1
    """)
    chunk_bar(9, 8)
    a(f"""
    v_and_b32 v{T0+1}, 31, v1
    v_lshlrev_b32 v{T0+2}, 4, v{T0}
    v_lshl_or_b32 v{T0+3}, v{T0+1}, 5, v{T0+2}
    v_xor_b32 v{T0+2}, 16, v{T0+2}
    v_lshl_add_u32 v{T0+4}, v{T0+1}, 3, v{T0+2}
    v_add_u32 v{T0+4}, 384, v{T0+4}
    v_cmp_gt_u32 vcc, 16, v{T0+1}
    s_add_u32 s24, s24, 576
    s_nop 0
    v_cndmask_b32 v{T0+3}, v{T0+4}, v{T0+3}, vcc
    v_add_u32 v{T0+3}, s24, v{T0+3}
    s_mov_b32 vcc_lo, 0x0011ffff
    s_mov_b32 vcc_hi, 0x0011ffff
    v_mov_b32 v{T0+4}, {SLOT}
    v_mov_b32 v{IDX}, 0xdddddddd
    v_cndmask_b32 v{aV}, v{T0+2}, v{T0+3}, vcc
    v_cndmask_b32 v{vINC}, 0, v{T0+4}, vcc
    s_mul_i32 s24, s{sM}, 18
    s_add_u32 s25, s24, 17
    s_lshr_b32 s24, s24, 6
    s_lshr_b32 s25, s25, 6
    s_sub_u32 s25, s25, s24
    v_and_b32 v{T0+1}, s25, v1
    v_bfe_u32 v{T0+2}, v1, 1, 2
    v_min_u32 v{T0+2}, 2, v{T0+2}
    v_mul_u32_u24 v{T0+2}, 9, v{T0+2}
    v_add3_u32 v{T0+1}, v{T0+1}, v{T0+2}, s24      ; col64
    v_bfe_u32 v{T0+2}, v1, 3, 2                    ; b
    v_lshlrev_b32 v{T0+3}, 7, v{T0+2}
    v_lshl_or_b32 v{T0+3}, v{T0+1}, 2, v{T0+3}
    s_lshl_b32 s24, s{sJ}, 9
    s_add_u32 s24, s24, {WS_FL1}
    v_add_u32 v{T0+11}, s24, v{T0+3}
    v_and_b32 v{T0+3}, 30, v{T0+1}
    v_lshrrev_b32 v{T0+4}, 1, v{T0+2}
    v_or_b32 v{T0+3}, v{T0+3}, v{T0+4}             ; m'
    v_lshlrev_b32 v{T0+3}, 10, v{T0+3}
    v_and_b32 v{T0+2}, 1, v{T0+2}
    v_and_b32 v{T0+1}, 1, v{T0+1}
    v_lshl_or_b32 v{T0+1}, v{T0+2}, 1, v{T0+1}
    v_lshl_or_b32 v{T0+3}, v{T0+1}, 2, v{T0+3}
    s_lshl_b32 s24, s{sJ}, 7
    s_add_u32 s24, s24, {WS_FG1 + 32}
    v_bfe_u32 v{T0+1}, v1, 1, 2
    v_min_u32 v{T0+1}, 1, v{T0+1}
    v_lshlrev_b32 v{T0+1}, 5, v{T0+1}
    v_sub_u32 v{T0+3}, v{T0+3}, v{T0+1}
    v_add_u32 v{T0+12}, s24, v{T0+3}
    """)
    chunk_bar(5)
    for i in range(32): a(f"v_mov_b32 v{O+i}, 0")
    regaddr(a, T0 + 14)
    a(f"""
    v_mov_b32 v{vM}, {MISC}
    v_mov_b32 v{vONE}, 1
    s_lshl_b32 s24, s{sWAVE}, 2
    s_add_u32 s24, s24, {M_PROG}
    v_min_u32 v{vPW}, 1, v1
    v_lshl_add_u32 v{vPW}, v{vPW}, 13, s24
    v_min_u32 v{vPR}, 8, v1
    v_lshl_add_u32 v{vPR}, v{vPR}, 2, v{vM}
    v_lshrrev_b32 v{T0+1}, 3, v1
    v_mul_u32_u24 v{T0+1}, 1152, v{T0+1}
    v_and_b32 v{T0+2}, 7, v1
    v_lshl_add_u32 v{T0+1}, v{T0+2}, 2, v{T0+1}
    v_mov_b32 v{T0+3}, 0x3f803f80
    """)
    chunk_bar(1, 9)
    a(f"""
    {regload(T0 + 14, T0 + 15)}
    s_mov_b32 s8, s{pX}
    s_mov_b32 s9, s{pX+1}
    s_mov_b32 s10, {XB}
    s_barrier
    ds_write_b32 v{T0+1}, v{T0+3}
    """)
    regwait(a, T0 + 14, T0 + 15, preloaded=True, sleep=o.get('s0', 32))
    a(f"""
    v_lshlrev_b32 v{T0+13}, 4, v0
    s_lshl_b32 s25, s{sWAVE}, 10
    s_add_u32 s26, s25, {L_QS - 18432 + 16384}
    s_add_u32 s25, s25, {KV0}
    s_add_u32 s27, s25, 16384
    s_cmp_lt_u32 s{sWAVE}, 2
    s_cselect_b32 s27, s27, s26
    s_mov_b32 exec_hi, 0
    ; STAMP 1
    """)
    poll(a, f"buffer_load_dword v{T0+2}, v{T0+11}, {RW}, 0 offen sc1\nds_read_b32 v{T0+3}, v{vM} offset:{M_MODE - MISC}",
         f"v_cmp_ne_u32 vcc, s{sREG}, v{T0+2}",
         extra=f"s_waitcnt lgkmcnt(0)\nv_cmp_eq_u32 vcc, 2, v{T0+3}\ns_cbranch_vccnz L_general1", sleep=o.get("s1", 2))
    a(f"""
L_stage1:
    ; STAMP 2
    s_mov_b32 exec_hi, -1
    s_mov_b32 m0, s25
    s_add_u32 s24, s15, 8192
    buffer_load_dwordx4 v{T0+13}, {RW}, s15 offen sc1 lds
    s_add_u32 m0, s25, 8192
    s_add_u32 s28, s15, 16384
    buffer_load_dwordx4 v{T0+13}, {RW}, s24 offen sc1 lds
    s_mov_b32 m0, s27
    s_cmp_ge_u32 s{sWAVE}, 3
    buffer_load_dwordx4 v{T0+13}, {RW}, s28 offen sc1 lds
    s_cbranch_scc1 L_no4
    s_add_u32 m0, s26, 8192
    s_add_u32 s28, s15, 24576
    buffer_load_dwordx4 v{T0+13}, {RW}, s28 offen sc1 lds
L_no4:
    s_waitcnt vmcnt(0)
    """)
    lds_add(a, M_C0, vM, vONE)
    final_loads(a)
    lds_wait(a, M_C0, 8, vM, T0, sleep=0)
    def toff(t): return t * 2304 if t < 4 else SLOT + (t - 4) * 2304
    def kreads(off): return [f"ds_read_b64_tr_b16 {vr(KM+2*m,2)}, v{aK} offset:{off + m*128}" for m in range(2)]
    def krread(off): return f"ds_read_b64_tr_b16 {vr(KR,2)}, v{aKR} offset:{off}"
    def vread(g, off): return f"ds_read_b128 {vr(V+4*g,4)}, v{aV} offset:{off + g*1152}"
    def m2b(Y, ab): return f"v_mfma_f32_32x32x4_2b_bf16 {vr(Y,32)}, {vr(KR,2)}, {vr(QR,2)}, {vr(Y,32)} cbsz:1 abid:{ab}"
    def smf(p, i): return f"v_smfmac_f32_32x32x32_bf16 {vr(O+16*(i>>1),16)}, {vr(V+4*(i&1),4)}, {vr(S[p]+8*i,8)}, v{IDX}"
    def exps(p, lo, hi): return [f"v_exp_f32 v{S[p]+i}, v{S[p]+i}" for i in range(lo, hi)]
    for x in kreads(0): a(x)
    for t in range(2):
        for m in range(2):
            a(f"ds_read_b64_tr_b16 {vr(QM+4*t+2*m,2)}, v{T0+8+t} offset:{m*128}")
    a(f"ds_read_b64_tr_b16 {vr(QR,2)}, v{T0+10}")
    a(krread(0))
    a("s_setprio 2\ns_mov_b32 s14, 0\ns_waitcnt lgkmcnt(2)")
    a(mf32(S[0], KM, QM, 0)); a(mf32(S[0] + 16, KM, QM + 4, 0))
    for x in kreads(toff(1)): a(x)
    a(vread(0, 0))
    PP = o.get("pp", 2)
    a(vread(1, 0))
    a(f"s_waitcnt lgkmcnt(4)\nv_mov_b32 v{QR+1}, 0\ns_nop 4")
    a(m2b(S[0], 0))
    a("s_setprio 0\ns_nop 15\ns_nop 2")
    a("; STAMP 3")
    a(".p2align 6\nL_att:")
    prog_rd = f"ds_read_b32 v{vF}, v{vPR} offset:{M_PROG - MISC}"
    prog_ck = f"v_cmp_ge_u32 vcc, s14, v{vF}"
    for u in range(4):
        p = u & 1; q = 1 - p
        seq = exps(p, 0, PP) + ["s_setprio 1"] + exps(p, PP, 32)
        seq += ["s_setprio 2", "s_waitcnt lgkmcnt(0)", mf32(S[q], KM, QM, 0)]
        if u == 2: seq += [prog_ck]
        if u == 3: seq += [f"ds_add_u32 v{vPW}, v{vONE}", f"v_add_u32 v{aK}, {SLOT}, v{aK}"]
        seq += [mf32(S[q] + 16, KM, QM + 4, 0)]
        if u == 2: seq += ["s_cbranch_vccnz L_att_wait", "L_att_back:"]
        seq += kreads(toff(u + 2) if u < 3 else toff(1))
        seq += ["s_nop 2", smf(p, 0), "s_nop 3", m2b(S[q], (u + 1) & 1)]
        if u % 2 == 0: seq += [krread(toff(u + 2)), "s_nop 9"]
        if u == 1: seq += [prog_rd, "s_nop 9"]
        if u == 3: seq += [f"v_add_u32 v{aKR}, {SLOT}, v{aKR}", f"v_add_u32 v{aV}, v{vINC}, v{aV}", "s_nop 8"]
        seq += [smf(p, 2), vread(0, toff(u + 1) if u < 3 else 0), "s_nop 1", smf(p, 1)]
        seq += ["s_add_u32 s14, s14, 1", "s_cmp_lt_u32 s14, 8"] if u == 3 else ["s_nop 1"]
        seq += [smf(p, 3), vread(1, toff(u + 1) if u < 3 else 0), "s_setprio 0"]
        for x in seq: a(x)
    a("s_cbranch_scc1 L_att")
    a("; STAMP 4")
    a(f"""
    s_mov_b32 s29, 0
L_combine:
    s_mul_i32 s24, s{sWAVE}, 2560
    s_add_u32 s24, s24, {L_CB}
    s_cmp_eq_u32 s{sWAVE}, 7
    s_cselect_b32 s24, {M_CB7}, s24
    v_lshl_add_u32 v{T0}, v1, 4, s24
    v_lshl_add_u32 v{T0+1}, v1, 3, s24
    s_xor_b32 s25, s{sWAVE}, 4
    s_mul_i32 s25, s25, 2560
    s_add_u32 s25, s25, {L_CB}
    s_cmp_eq_u32 s{sWAVE}, 3
    s_cselect_b32 s25, {M_CB7}, s25
    v_lshl_add_u32 v{T0+2}, v1, 4, s25
    v_lshl_add_u32 v{T0+3}, v1, 3, s25
    ds_write_b128 v{T0}, {vr(O,4)}
    ds_write_b128 v{T0}, {vr(O+4,4)} offset:1024
    ds_write_b64 v{T0+1}, {vr(O+8,2)} offset:2048
    v_mov_b32 v{T0+4}, {M_BAD}
    v_subrev_u32 v{T0+5}, {(127-40) << 23}, v{O+9}
    v_subrev_u32 v{T0+6}, {(127-40) << 23}, v{O+25}
    v_max_u32 v{T0+5}, v{T0+5}, v{T0+6}
    v_cmp_lt_u32 vcc, {80 << 23}, v{T0+5}
    s_cbranch_vccz L_lok
    ds_write_b32 v{T0+4}, v{IDX}
L_lok:
    s_waitcnt lgkmcnt(0)
    s_barrier                          ; BE
    ; STAMP 10
    ds_read_b64 {vr(T0+4,2)}, v{T0+4}
    ds_read_b64 {vr(O+8,2)}, v{T0+3} offset:2048
    ds_read_b128 {vr(O,4)}, v{T0+2}
    ds_read_b128 {vr(O+4,4)}, v{T0+2} offset:1024
    s_lshl2_add_u32 s24, s{sJ}, s13
    s_lshl1_add_u32 s24, s24, s12
    s_lshl_b32 s24, s24, 5
    s_add_u32 s24, s24, s{sM}          ; tile*32 + h
    s_lshl_b32 s25, s24, 10
    s_lshl_b32 s26, s24, 7
    s_add_u32 s26, s26, {O_REM}
    s_lshl_b32 s27, s24, 2
    s_add_u32 s27, s27, {WS_FL2}
    v_lshlrev_b32 v{T0}, 4, v1
    v_and_b32 v{T0+1}, 31, v1
    v_lshrrev_b32 v{T0+6}, 5, v1
    v_lshl_or_b32 v{T0+1}, v{T0+1}, 1, v{T0+6}
    v_lshlrev_b32 v{T0+1}, 1, v{T0+1}
    s_waitcnt lgkmcnt(2)
    v_readfirstlane_b32 s{sMODE}, v{T0+5}
    v_cmp_lt_u32 vcc, s29, v{T0+4}
    v_add_f32 v{O+9}, v{O+9}, v{O+25}
    s_cbranch_vccnz L_fallback
    s_and_b32 s28, s{sMODE}, 1
    s_mul_i32 s28, s28, {WS_OL - WS_OG}
    s_add_u32 s28, s28, {WS_OG}
    s_add_u32 s25, s25, s28
    s_add_u32 s26, s26, s28
    v_rcp_f32 v{O+10}, v{O+9}
    v_add_f32 v{O+8}, v{O+8}, v{O+24}
    s_waitcnt lgkmcnt(0)
    """)
    for i in range(0, 8, 2): a(f"v_pk_add_f32 {vr(O+i,2)}, {vr(O+i,2)}, {vr(O+16+i,2)}")
    a(f"v_mul_f32 v{O+8}, v{O+8}, v{O+10}")
    for i in range(0, 8, 2): a(f"v_pk_mul_f32 {vr(O+i,2)}, {vr(O+i,2)}, {vr(O+10,2)} op_sel_hi:[1,0]")
    for i in range(4): a(f"v_cvt_pk_bf16_f32 v{O+i}, v{O+2*i}, v{O+2*i+1}")
    a(f"""
    v_cvt_pk_bf16_f32 v{O+4}, v{O+8}, v{O+8}
    v_mov_b32 v{T0+6}, 1
    v_mov_b32 v{T0+7}, 0
    s_cmp_eq_u32 s{sMODE}, 1
    s_cbranch_scc0 L_ostore_g
    buffer_store_dwordx4 {vr(O,4)}, v{T0}, {RW}, s25 offen
    buffer_store_short v{O+4}, v{T0+1}, {RW}, s26 offen
    s_mov_b64 exec, 1
    s_waitcnt vmcnt(0)
    buffer_store_dword v{T0+6}, v{T0+7}, {RW}, s27 offen
L_ostored:
    ; STAMP 11
    s_mov_b64 exec, -1
    """)
    OF = 32; ACC = 68; W = [88, 108, 128, 148]
    a(f"""
    v_lshrrev_b32 v18, 4, v1           ; kg
    v_bfe_u32 v22, v1, 2, 2            ; r
    v_and_b32 v23, 3, v1
    v_lshlrev_b32 v23, 3, v23          ; 8c
    v_lshrrev_b32 v24, 5, v1
    v_mul_u32_u24 v24, 18, v24
    v_bfe_u32 v25, v1, 4, 1
    v_lshl_add_u32 v24, v25, 2, v24
    v_add_u32 v24, v24, v22
    v_mul_u32_u24 v24, 160, v24
    s_mul_i32 s24, s12, {288*160}
    s_add_u32 s24, s24, {L_WO}
    v_add3_u32 v26, v24, v23, s24
    """)
    def wreads(s):
        r = []
        for n in range(5):
            for m in range(2):
                reg, off = (26, (36 * s + 8 * m) * 160 + 32 * n) if s < 8 else (27, 36 * m * 160 + 32 * n)
                r.append(f"ds_read_b64_tr_b16 {vr(W[s&3]+4*n+2*m,2)}, v{reg} offset:{off}")
        return r
    for x in wreads(0): a(x)
    a(f"""
    v_lshrrev_b32 v24, 1, v22
    v_lshl_add_u32 v24, v18, 2, v24
    v_mul_u32_u24 v24, 18, v24
    v_and_b32 v25, 1, v22
    v_add3_u32 v24, v24, v25, 16
    v_mul_u32_u24 v24, 160, v24
    v_add3_u32 v27, v24, v23, s24
    s_and_b32 s24, s{sM}, 3
    s_lshl2_add_u32 s24, s{sJ}, s24
    s_lshr_b32 s25, s13, 1
    s_lshl1_add_u32 s24, s24, s25
    s_lshl1_add_u32 s24, s24, s12
    s_lshl_b32 s24, s24, 4
    s_lshl_b32 s25, s24, 10
    s_add_u32 s25, s25, s28
    s_lshl_b32 s26, s24, 7
    s_add_u32 s26, s26, s28
    s_add_u32 s26, s26, {O_REM}
    s_lshl_b32 s27, s24, 2
    s_add_u32 s27, s27, {WS_FL2}
    v_and_b32 v16, 15, v1              ; t
    v_lshlrev_b32 v17, 2, v16
    buffer_load_dword v22, v17, {RW}, s27 offen sc1
    s_and_b32 s24, s13, 1
    s_lshl_b32 s24, s24, 4
    v_add_u32 v19, s24, v16
    v_lshlrev_b32 v20, 9, v18
    v_lshl_add_u32 v21, v19, 2, v20
    v_lshl_add_u32 v20, v19, 4, v20
    s_lshl_b32 s24, s13, 4
    v_add_u32 v24, s24, v16
    v_mul_u32_u24 v24, {AS}, v24
    s_mul_i32 s24, s12, {L_A1 - L_A0}
    s_add_u32 s24, s24, {L_A0}
    v_lshlrev_b32 v25, 4, v18
    v_add3_u32 v28, v24, v25, s24
    """)
    for st in (1, 2, 3):
        for x in wreads(st): a(x)
    poll(a, f"buffer_load_dword v22, v17, {RW}, s27 offen sc1", "v_cmp_ne_u32 vcc, 1, v22", preloaded=True)
    a("; STAMP 5")
    for st in range(8):
        a(f"buffer_load_dwordx4 {vr(OF+4*st,4)}, v20, {RW}, s25 offen offset:{(st%2)*2048} sc1")
        if st % 2: a("s_add_u32 s25, s25, 4096")
    for i in range(4):
        a(f"buffer_load_dword v{OF+32+i}, v21, {RW}, s26 offen offset:{i*128} sc1")
    for st in range(9):
        lg = 0 if st in (0, 8) else (10 if st == 7 else (14 if st >= 4 else 15))
        if o.get("lg4") and st > 0: lg = min(lg, 4)
        a(f"s_waitcnt vmcnt({11 - st if st < 8 else 0}) lgkmcnt({lg})")
        r = wreads(st + 4) if st < 5 else []
        for n in range(5):
            a(mf16(ACC + 4 * n, W[st & 3] + 4 * n, OF + 4 * st, 0 if st == 0 else None))
            if o.get("lag"):
                if n > 0:
                    for x in r[2*n-2:2*n]: a(x)
                if n == 4:
                    a("s_nop 3")
                    for x in r[8:10]: a(x)
            else:
                for x in r[2*n:2*n+2]: a(x)
    a("; STAMP 12")
    a("s_nop 4")
    for n in range(5):
        if n == 4: a("s_mov_b32 exec_hi, 0")
        a(f"ds_write_b128 v28, {vr(ACC+4*n,4)} offset:{64*n}")
        if n < 3: a("s_nop 0")
    a("s_mov_b32 exec_hi, -1")
    a(f"""
L_final:
    v_and_b32 v16, 0xff, v{vROW}
    v_lshrrev_b32 v17, 8, v{vROW}
    v_mul_u32_u24 v18, {AS}, v16
    v_lshl_add_u32 v18, v17, 5, v18
    v_add_u32 v18, {L_A0}, v18
    v_mov_b32 v20, {M_SEL}
    v_lshl_add_u32 v19, v16, 2, v20
    s_and_b32 s24, s{sM}, 3
    s_lshl2_add_u32 s24, s{sJ}, s24
    s_lshl_b32 s24, s24, 6
    s_mov_b32 s8, s{pOUT}
    s_mov_b32 s9, s{pOUT+1}
    s_waitcnt lgkmcnt(0)
    s_barrier                          ; BA
    ; STAMP 6
    ds_read_b32 v{vG}, v19 offset:{M_G - M_SEL}
    ds_read_b64 v[20:21], v20
    ds_read_b128 v[24:27], v18
    ds_read_b128 v[32:35], v18 offset:{L_A1 - L_A0}
    ds_read_b128 v[28:31], v18 offset:16
    ds_read_b128 v[36:39], v18 offset:{L_A1 - L_A0 + 16}
    """)
    for i in range(4):
        a(f"v_lshlrev_b32 v{40+2*i}, 16, v{XD+i}\nv_and_b32 v{41+2*i}, 0xffff0000, v{XD+i}")
    a(f"""
    v_add_u32 v16, s24, v16
    v_sub_u32 v16, 2047, v16
    s_waitcnt lgkmcnt(4)
    v_sub_f32 v10, 1.0, v{vG}
    """)
    rne_bf16(a, 10)
    a(f"""
    v_and_b32 v20, 0x7ff, v20
    v_and_b32 v21, 0x7ff, v21
    v_cmp_eq_u32 s[26:27], v20, v16
    v_cmp_eq_u32 vcc, v21, v16
    s_or_b64 s[26:27], s[26:27], vcc
    s_cbranch_scc1 L_routed
L_mix:
    v_mov_b32 v8, v{vG}
    s_waitcnt lgkmcnt(0)
    """)
    for i in range(0, 8, 2): a(f"v_pk_add_f32 {vr(24+i,2)}, {vr(24+i,2)}, {vr(32+i,2)}")
    for i in range(0, 8, 2): a(f"v_pk_mul_f32 {vr(40+i,2)}, {vr(40+i,2)}, v[10:11] op_sel_hi:[1,0]")
    for i in range(4): a(f"v_cvt_pk_bf16_f32 v{32+i}, v{24+2*i}, v{25+2*i}")
    for i in range(4): a(f"v_cvt_pk_bf16_f32 v{36+i}, v{40+2*i}, v{41+2*i}")
    for i in range(4): a(f"v_lshlrev_b32 v{24+2*i}, 16, v{32+i}\nv_and_b32 v{25+2*i}, 0xffff0000, v{32+i}")
    for i in range(0, 8, 2): a(f"v_pk_mul_f32 {vr(24+i,2)}, {vr(24+i,2)}, v[8:9]")
    for i in range(4): a(f"v_lshlrev_b32 v{40+2*i}, 16, v{36+i}\nv_and_b32 v{41+2*i}, 0xffff0000, v{36+i}")
    for i in range(4): a(f"v_cvt_pk_bf16_f32 v{32+i}, v{24+2*i}, v{25+2*i}")
    for i in range(4): a(f"v_lshlrev_b32 v{24+2*i}, 16, v{32+i}\nv_and_b32 v{25+2*i}, 0xffff0000, v{32+i}")
    for i in range(0, 8, 2): a(f"v_pk_add_f32 {vr(24+i,2)}, {vr(24+i,2)}, {vr(40+i,2)}")
    for i in range(4): a(f"v_cvt_pk_bf16_f32 v{32+i}, v{24+2*i}, v{25+2*i}")
    a(f"""
    buffer_store_dwordx4 v[32:35], v{vXO}, s[8:11], 0 offen
L_end:
    s_endpgm
    """)
    a(f"""
L_clear:
    s_mul_i32 s24, s{sJ}, 12288
    s_add_u32 s24, s24, {WS_CLR}
    v_lshlrev_b32 v3, 4, v0
    v_mov_b32 v4, 0
    v_mov_b32 v5, 0
    v_mov_b32 v6, 0
    v_mov_b32 v7, 0
    s_waitcnt lgkmcnt(0)
    buffer_store_dwordx4 v[4:7], v3, {RW}, s24 offen sc1
    s_nop 0
    s_branch L_cleared
L_general1:
    s_sub_u32 s15, s15, {WS_LOC - WS_GLB}
    """)
    poll(a, f"buffer_load_dword v{T0+2}, v{T0+12}, {RW}, 0 offen sc1", f"v_cmp_ne_u32 vcc, 1, v{T0+2}", sleep=4)
    a(f"""
    s_branch L_stage1
L_att_wait:
    """)
    poll(a, prog_rd, prog_ck, sleep=1)
    a(f"""
    ; STAMP 13
    s_branch L_att_back
L_ostore_g:
    buffer_store_dwordx4 {vr(O,4)}, v{T0}, {RW}, s25 offen sc1
    buffer_store_short v{O+4}, v{T0+1}, {RW}, s26 offen sc1
    s_mov_b64 exec, 1
    s_waitcnt vmcnt(0)
    buffer_store_dword v{T0+6}, v{T0+7}, {RW}, s27 offen sc1
    s_branch L_ostored
L_routed:
    v_lshlrev_b32 v17, 5, v17
    v_add_u32 v22, {M_Y + 320}, v17
    v_add_u32 v17, {M_Y}, v17
    v_cndmask_b32 v17, v17, v22, vcc
    ds_read_b128 v[48:51], v17
    ds_read_b128 v[52:55], v17 offset:16
    s_mov_b64 exec, s[26:27]
    s_waitcnt lgkmcnt(0)
    """)
    for i in range(8):
        a(f"v_add_f32 v{40+i}, v{40+i}, v{48+i}")
        rne_bf16(a, 40 + i)
    a("s_mov_b64 exec, -1\ns_branch L_mix")
    M0r, M1r = T0 + 8, T0 + 9
    def slow_qk():
        for x in kreads(0): a(x)
        a(krread(0))
    a(f"""
L_fallback:
    s_waitcnt lgkmcnt(0)
    s_barrier
    s_barrier                          ; K/V reloaded
    s_mul_i32 s24, s12, 9216
    s_add_u32 s24, s24, {8 * SLOT}
    v_subrev_u32 v{aK}, s24, v{aK}
    v_subrev_u32 v{aKR}, s24, v{aKR}
    v_lshlrev_b32 v{T0}, 3, v{vINC}
    v_sub_u32 v{aV}, v{aV}, v{T0}
    v_mov_b32 v{M0r}, 0xff800000
    v_mov_b32 v{M1r}, 0xff800000
    s_mov_b32 s14, 0
L_fb_max:
    """)
    for t in range(2):
        for x in kreads(t * 2304): a(x)
        if t == 0: a(krread(0))
        a("s_waitcnt lgkmcnt(0)")
        a(mf32(S[0], KM, QM, 0)); a(mf32(S[0] + 16, KM, QM + 4, 0))
        a("s_nop 9"); a(m2b(S[0], t)); a("s_nop 15\ns_nop 3")
        for i in range(0, 16, 2):
            a(f"v_max3_f32 v{M0r}, v{S[0]+i}, v{S[0]+i+1}, v{M0r}")
            a(f"v_max3_f32 v{M1r}, v{S[0]+16+i}, v{S[0]+17+i}, v{M1r}")
    a(f"""
    v_add_u32 v{aK}, 4608, v{aK}
    v_add_u32 v{aKR}, 4608, v{aKR}
    s_add_u32 s14, s14, 1
    s_cmp_lt_u32 s14, 32
    s_cbranch_scc1 L_fb_max
    v_mov_b32 v{T0}, v{M0r}
    v_mov_b32 v{T0+1}, v{M1r}
    s_mul_i32 s24, s12, 9216
    s_sub_u32 s24, {8 * SLOT}, s24
    v_permlane32_swap_b32 v{T0}, v{M0r}
    v_permlane32_swap_b32 v{T0+1}, v{M1r}
    v_subrev_u32 v{aK}, s24, v{aK}
    v_subrev_u32 v{aKR}, s24, v{aKR}
    v_max_f32 v{M0r}, v{T0}, v{M0r}
    v_max_f32 v{M1r}, v{T0+1}, v{M1r}
    """)
    for i in range(32): a(f"v_mov_b32 v{O+i}, 0")
    a("s_mov_b32 s14, 0\nL_fb_pv:")
    for t in range(4):
        for x in kreads(t * 2304): a(x)
        if t % 2 == 0: a(krread(t * 2304))
        a(vread(0, t * 2304)); a(vread(1, t * 2304))
        a("s_waitcnt lgkmcnt(0)")
        a(mf32(S[0], KM, QM, 0)); a(mf32(S[0] + 16, KM, QM + 4, 0))
        a("s_nop 9"); a(m2b(S[0], t & 1)); a("s_nop 15\ns_nop 3")
        for i in range(32):
            a(f"v_sub_f32 v{S[0]+i}, v{S[0]+i}, v{M0r + (i >> 4)}")
        for x in exps(0, 0, 32): a(x)
        a("s_nop 1")
        for i in range(4): a(smf(0, i))
    a(f"""
    v_add_u32 v{aK}, {SLOT}, v{aK}
    v_add_u32 v{aKR}, {SLOT}, v{aKR}
    v_add_u32 v{aV}, v{vINC}, v{aV}
    s_add_u32 s14, s14, 1
    s_cmp_lt_u32 s14, 8
    s_cbranch_scc1 L_fb_pv
    s_mov_b32 s29, -1
    s_nop 7
    s_barrier
    s_branch L_combine
    """)
    ACC1 = 64; FR = 32
    a(f"""
L_service:
    s_setprio 3
    s_sub_u32 s12, s{sWAVE}, 8         ; sw
    s_lshr_b32 s13, s12, 1             ; wm
    s_and_b32 s14, s12, 1              ; wn
    s_lshl_b32 s62, s2, 7
    s_add_u32 s62, s62, {WS_FG1}
    s_mov_b32 s59, 3
    v_mov_b32 v28, 0
    v_mov_b32 v29, 0
    s_cmp_lg_u32 s12, 0
    s_waitcnt lgkmcnt(0)
    s_cbranch_scc1 L_noclear
    v_lshlrev_b32 v8, 2, v1
    v_add_u32 v8, {MISC}, v8
    v_lshrrev_b32 v9, 3, v1
    v_cmp_eq_u32 vcc, 2, v9
    s_nop 1
    v_cndmask_b32 v9, 0, v9, vcc
    ds_write_b32 v8, v9
    s_waitcnt lgkmcnt(0)
L_noclear:
    """)
    if o.get("cpf"):
        a(f"""
        s_getpc_b64 s[24:25]
L_pc:
        s_sub_u32 s24, s24, L_pc - {NAME}
        s_subb_u32 s25, s25, 0
        s_lshl_b32 s26, s12, 6
        v_add_u32 v3, s26, v1
        v_min_u32 v3, (L_codeend - {NAME} - 4) / 128, v3
        v_lshlrev_b32 v3, 7, v3
        global_load_dword v31, v3, s[24:25]
        """)
    a(f"""
    s_cmp_ge_u32 s{sM}, 28
    s_cbranch_scc1 L_rg
    v_and_b32 v3, 19, v1
    v_bfe_u32 v12, v1, 2, 1
    v_lshl_or_b32 v3, v12, 3, v3
    v_bfe_u32 v12, v1, 3, 1
    v_lshl_or_b32 v3, v12, 2, v3
    v_bfe_u32 v12, v3, 1, 3
    v_lshrrev_b32 v13, 5, v1           ; hh
    v_xor_b32 v12, v12, v13
    v_lshlrev_b32 v12, 4, v12
    v_lshl_or_b32 v12, v3, 7, v12
    s_lshl_b32 s24, s13, 13
    v_add_u32 v16, s24, v12
    v_xor_b32 v17, 32, v16
    v_xor_b32 v18, 64, v16
    v_xor_b32 v19, 96, v16
    v_bfe_u32 v3, v1, 2, 2
    v_lshl_add_u32 v12, v13, 3, v3
    v_lshlrev_b32 v12, 8, v12
    s_lshl_b32 s24, s14, 1
    v_xor_b32 v14, s24, v3
    v_lshl_or_b32 v12, v14, 6, v12
    v_bfe_u32 v14, v1, 4, 1
    v_lshl_or_b32 v12, v14, 5, v12
    v_and_b32 v14, 3, v1
    v_lshl_or_b32 v12, v14, 3, v12
    v_add_u32 v20, 16384, v12
    v_xor_b32 v21, 64, v20
    s_and_b32 s24, s{sM}, 30
    s_add_u32 s24, s24, s14            ; col64
    s_cmp_ge_u32 s24, 9
    s_cselect_b32 s25, 1, 0
    s_cmp_ge_u32 s24, 18
    s_addc_u32 s25, s25, 0             ; matrix 0 q, 1 k, 2 v
    s_mul_i32 s26, s25, 9
    s_sub_u32 s26, s24, s26
    s_lshl_b32 s26, s26, 6
    s_lshr_b32 s27, s25, 1             ; is v
    s_mov_b32 s28, {HS}
    """)
    for nt in range(2):
        a(f"""
        v_and_b32 v3, 31, v1
        v_add3_u32 v3, v3, s26, {32*nt}
        v_mul_u32_u24 v12, 3641, v3
        v_lshrrev_b32 v12, 16, v12         ; head
        v_mul_u32_u24 v14, 18, v12
        v_sub_u32 v3, v3, v14              ; d
        v_lshrrev_b32 v14, 4, v3
        v_and_b32 v14, s27, v14
        v_xor_b32 v14, v14, v13
        v_lshlrev_b32 v14, 4, v14
        v_lshl_or_b32 v3, v3, 5, v14
        v_mad_u32_u24 v{28+nt}, v12, s28, v3
        """)
    a(f"""
    s_movk_i32 s56, 1152
    s_cmp_eq_u32 s25, 0
    s_cselect_b32 s56, 576, s56
    s_cselect_b32 s57, 18432, 0
    s_mul_i32 s27, s27, 576
    s_add_u32 s57, s57, s27
    s_and_b32 s27, s{sM}, 1
    s_lshl1_add_u32 s27, s27, s13
    s_mul_i32 s28, s27, s56
    s_lshl2_add_u32 s57, s28, s57
    s_mul_i32 s28, s{sJ}, {JS}
    s_add_u32 s57, s57, s28
    s_lshl2_add_u32 s27, s{sJ}, s27
    s_lshl_b32 s27, s27, 7
    s_lshl2_add_u32 s58, s24, s27
    s_add_u32 s58, s58, {WS_FL1}
    s_mov_b32 s59, s25
    s_cmp_eq_u32 s24, 27
    s_cselect_b32 s59, 3, s59
    """)
    for i in range(64): a(f"v_mov_b32 v{ACC1+i}, 0")
    for i in range(16): a(f"v_mov_b32 v{FR+16+i}, 0")
    a(f"s_mov_b32 s24, 0\ns_mov_b32 s25, 0\ns_cmp_eq_u32 s59, 0\ns_cselect_b32 s26, {f32bits(QSCALE)}, 1.0\ns_mov_b32 s27, s26")
    a(f"s_add_u32 s28, s57, {WS_LOC}\ns_cmp_eq_u32 s59, 3\ns_cselect_b32 s18, 0, s18")
    FS = [FR, FR + 16, 128, 144]
    def reads(kk, st):
        A = FS[st]; B = A + 8
        r = [f"ds_read_b128 {vr(A+4*mt,4)}, v{22+kk} offset:{4096*mt}" for mt in range(2)]
        b = [f"ds_read_b64_tr_b16 {vr(B+4*nt+2*m,2)}, v{26+nt} offset:{(16*kk+4*m)*256}" for nt in range(2) for m in range(2)]
        return [r[0]] + b + [r[1]]
    def mfmas(st):
        A = FS[st]; B = A + 8
        return [mf32(ACC1 + 16 * (2 * mt + nt), A + 4 * mt, B + 4 * nt) for mt in range(2) for nt in range(2)]
    for i in range(6): a(f"v_mov_b32 v{22+i}, v{16+i}")
    regaddr(a, 3)
    a("; STAMP 1")
    a(".p2align 4\nL_gemm:")
    for kk in range(4):
        r = reads(kk, kk & 1); m = mfmas((kk + 1) & 1)
        a("s_waitcnt lgkmcnt(3)")
        a(m[0])
        if kk == 0:
            a("s_waitcnt lgkmcnt(0)\ns_barrier")
            if o.get("gstamp"): a("s_cmp_lg_u32 s24, 0\ns_cbranch_scc1 L_gs1\n; STAMP 7\nL_gs1:")
            a(m[1]); a(r[0]); a(r[1]); a(r[2]); a(m[2]); a(r[3]); a(r[4]); a(r[5]); a(m[3])
            a("s_add_u32 s25, s25, 32768\ns_and_b32 s25, s25, 0x1ffff\ns_add_u32 s24, s24, 1")
        else:
            a(r[0]); a(r[1]); a("s_waitcnt lgkmcnt(3)"); a(m[1]); a(r[2]); a(r[3]); a("s_waitcnt lgkmcnt(4)"); a(m[2]); a(r[4]); a(r[5]); a(m[3])
        if kk == 2:
            for i in range(3): a(f"v_add_u32 v{22+i}, s25, v{16+i}")
            a("s_cmp_lt_u32 s24, 8")
        if kk == 3:
            for i in range(3, 6): a(f"v_add_u32 v{22+i}, s25, v{16+i}")
    a("s_cbranch_scc1 L_gemm")
    order = [0, 2, 3, 1]
    m = mfmas(1)
    a(regload(3, 4))
    a("s_waitcnt lgkmcnt(3)"); a(m[0]); a("s_waitcnt lgkmcnt(0)\ns_barrier\n; STAMP 8")
    rr = [reads(kk, order[kk]) for kk in range(4)]
    for x in rr[0][:3]: a(x)
    a(m[1])
    for x in rr[1][:3]: a(x)
    a(m[2])
    for x in rr[2][:3]: a(x)
    a(m[3])
    for x in rr[3][:3]: a(x)
    def tile_mf(t): return [mfmas(order[kk])[t] for kk in range(4)]
    def tile_out(t):
        mt, nt = t >> 1, t & 1; D = ACC1 + 16 * t
        o_ = []
        for hf in range(2):
            h = [f"v_pk_mul_f32 {vr(D+8*hf+r,2)}, {vr(D+8*hf+r,2)}, s[26:27]" for r in range(0, 8, 2)]
            h += [f"v_cvt_pk_bf16_f32 v{D+4*hf+r}, v{D+8*hf+2*r}, v{D+8*hf+2*r+1}" for r in range(4)]
            h += [f"s_mul_i32 s24, s56, {2*mt+hf}", "s_add_u32 s24, s24, s28",
                  f"buffer_store_dwordx4 {vr(D+4*hf,4)}, v{28+nt}, {RW}, s24 offen"]
            o_.append(h)
        return o_
    t0 = tile_mf(0)
    for kk in range(4):
        a("s_waitcnt lgkmcnt(9)" if kk == 0 else f"s_waitcnt lgkmcnt({9 - kk})"); a(t0[kk]); a(rr[kk][3]); a(rr[kk][4])
    t1 = tile_mf(1); o0 = tile_out(0); o0 = o0[0] + o0[1]
    a("s_waitcnt lgkmcnt(6)"); a(t1[0])
    for kk in range(4): a(rr[kk][5])
    a("s_waitcnt lgkmcnt(8)"); a(t1[1])
    a("s_nop 1")
    for x in o0[:4]: a(x)
    a("s_waitcnt lgkmcnt(6)"); a(t1[2])
    for x in o0[4:11]: a(x)
    a("s_waitcnt lgkmcnt(0)\ns_barrier                          ; BL"); a(t1[3])
    pend = o0[11:]
    for t in range(2, 4):
        mm = tile_mf(t); oo = tile_out(t - 1); oo = oo[0] + oo[1]
        for x in pend[:5]: a(x)
        a(mm[0])
        for x in pend[5:]: a(x)
        a(mm[1])
        for x in oo[:5]: a(x)
        a(mm[2])
        for x in oo[5:11]: a(x)
        a(mm[3])
        pend = oo[11:]
    for x in pend: a(x)
    a("; STAMP 2\ns_nop 0")
    for h in tile_out(3):
        for x in h: a(x)
    a(f"""
    v_mov_b32 v6, s{sREG}
    v_mov_b32 v5, 0
    ; STAMP 9
    """)
    regwait(a, 3, 4, preloaded=True)
    a(f"""
    s_mov_b32 s18, {WS_END}
    s_mov_b64 exec, 1
    buffer_store_dword v6, v5, {RW}, s58 offen
    s_mov_b64 exec, -1
    ; STAMP 10
    s_sub_u32 s24, s59, 1
    s_cmp_ge_u32 s24, 2
    s_cbranch_scc1 L_stored
    """)
    def glb_stores():
        for mt in range(2):
            for hf in range(2):
                for nt in range(2):
                    a(f"buffer_store_dwordx4 {vr(ACC1+16*(2*mt+nt)+4*hf,4)}, v{28+nt}, {RW}, s57 offen sc1")
                a("s_add_u32 s57, s57, s56")
    glb_stores()
    a(f"""
L_stored:
    v_mov_b32 v4, 1
    s_lshl2_add_u32 s24, s12, s62
    s_mov_b64 exec, 1
    s_waitcnt vmcnt(0)
    buffer_store_dword v4, v5, {RW}, s24 offen sc1
    s_mov_b64 exec, -1
L_tag:
    s_cmp_lg_u32 s12, 1
    s_cbranch_scc1 L_svc_kv
    s_mov_b64 exec, 1
    buffer_store_dword v6, v5, {RW}, s62 offen offset:16 sc1
    s_mov_b64 exec, -1
L_svc_kv:
    ; STAMP 3
    """)
    vL16, vZ, vMS, v1c = 2, 5, 6, 11
    aGU, aXF, aWR, aTG, aTD, aDN, aP, aHW, aHR, aY = 21, 22, 23, 24, 25, 26, 27, 164, 167, 30
    GU = 32; XF = 104; TR = 140; AC = 156
    final_addr(a)
    a(f"""
    s_mov_b32 s15, s24
    v_mov_b32 v{vMS}, {MISC}
    v_mov_b32 v{v1c}, 1
    v_mov_b32 v{vZ}, 0
    v_lshlrev_b32 v{vL16}, 4, v1
    v_and_b32 v{vPR}, 7, v1
    v_lshl_add_u32 v{vPR}, v{vPR}, 2, v{vMS}
    """)
    for i in range(5):
        a(f"""
        v_add_u32 v3, {64*i}, v1
        v_mul_u32_u24 v4, 6554, v3
        v_lshrrev_b32 v4, 16, v4
        v_mul_u32_u24 v9, 10, v4
        v_sub_u32 v3, v3, v9
        v_min_u32 v3, 8, v3
        v_mul_u32_u24 v4, 1152, v4
        v_lshl_add_u32 v{16+i}, v3, 4, v4
        """)
        if 0 < i < 4: a(f"v_subrev_u32 v{16+i}, {1024*i}, v{16+i}")
    a(f"""
    s_mul_i32 s60, s{sJ}, 18
    s_add_u32 s60, s60, s{sM}
    v_lshrrev_b32 v3, 2, v1
    v_mul_u32_u24 v3, 9216, v3
    v_and_b32 v4, 3, v1
    v_lshl_add_u32 v{aGU}, v4, 4, v3
    v_lshlrev_b32 v4, 3, v4            ; 8c
    v_bfe_u32 v9, v1, 2, 2             ; r
    v_lshrrev_b32 v10, 4, v1           ; kg
    s_mul_i32 s61, s12, 2304
    s_add_u32 s61, s61, 32
    v_add_u32 v{aWR}, s61, v{vL16}
    v_and_b32 v3, 1, v10
    v_lshl_add_u32 v3, v3, 3, v9
    v_lshl_or_b32 v3, v3, 6, v4
    v_lshrrev_b32 v12, 5, v1
    v_mul_u32_u24 v13, 1152, v12
    v_add3_u32 v{aTG}, v3, v13, s61
    v_lshl_add_u32 v3, v10, 3, v9
    v_lshl_or_b32 v3, v3, 5, v4
    v_add_u32 v{aTD}, s61, v3
    v_lshrrev_b32 v3, 1, v1
    v_mul_u32_u24 v3, 1152, v3
    v_and_b32 v4, 1, v1
    v_lshl_add_u32 v{aDN}, v4, 4, v3
    v_lshl_add_u32 v{aP}, v1, 2, v{vMS}
    s_lshl_b32 s25, s12, 7
    s_add_u32 s25, s25, {M_H}
    v_and_b32 v3, 15, v1
    v_lshl_or_b32 v4, v12, 4, v3
    v_and_b32 v9, 16, v1
    v_lshl_add_u32 v4, v9, 1, v4
    v_lshl_add_u32 v{aHW}, v4, 1, s25
    v_and_b32 v4, 4, v1
    v_add_u32 v4, v4, v10
    v_lshl_add_u32 v{aHR}, v4, 4, s25
    v_mul_u32_u24 v4, 2304, v10
    v_lshl_add_u32 v{aY}, v3, 2, v4
    s_mul_i32 s25, s13, 576
    v_lshl_add_u32 v{aXF}, v10, 4, s25
    v_bfe_i32 v31, v1, 2, 1
    s_cmp_lg_u32 s12, 0
    s_cbranch_scc1 L_helper
    s_mul_i32 s24, s{sM}, 18
    v_and_b32 v3, 1, v1
    v_mul_u32_u24 v3, 17, v3
    v_bfe_u32 v4, v1, 1, 1
    v_mul_u32_u24 v4, 576, v4
    v_add3_u32 v3, v3, v4, s24
    v_add_u32 v3, 576, v3
    v_lshrrev_b32 v3, 7, v3            ; ct
    v_bfe_u32 v4, v1, 2, 1
    v_lshl_or_b32 v3, v3, 1, v4        ; m'
    v_lshrrev_b32 v4, 3, v1
    v_add3_u32 v4, v4, s{sJ}, 1
    v_and_b32 v4, 7, v4
    v_lshl_or_b32 v3, v3, 3, v4        ; wg
    v_lshlrev_b32 v3, 7, v3
    s_mov_b32 s29, {WS_FG1}
    s_mul_i32 s52, s{sM}, {HS}
    s_add_u32 s53, s{sJ}, 1
    s_mov_b32 s55, {KV0 + SLOT}
    """)
    if not o.get("noc0"): poll(a, f"ds_read_b32 v4, v{vMS} offset:{M_C0 - MISC}", "v_cmp_ne_u32 vcc, 8, v4", sleep=2, spin=64)
    a("s_mov_b64 exec, 0xff")
    gl = f"buffer_load_dwordx4 v[12:15], v3, {RW}, s29 offen sc1"
    gc = "v_bitop3_b32 v12, v12, v13, v14 bitop3:0x80\nv_and_b32 v12, v12, v15\nv_cmp_ne_u32 vcc, 1, v12"
    poll(a, gl, gc, sleep=2)
    a("s_mov_b64 exec, -1\n; STAMP 4")
    def kvslot():
        a(f"""
        s_and_b32 s53, s53, 7
        s_mul_i32 s24, s53, {JS}
        s_add_u32 s24, s24, s52
        s_add_u32 s53, s53, 1
        """)
        for g in range(5):
            a(f"s_mov_b32 m0, s55\ns_add_u32 s55, s55, {4096 if g < 4 else 2048}")
            for u in range(4 if g < 4 else 2):
                a(f"buffer_load_dwordx4 v{vL16}, {RW}, s24 offen offset:{1024*u} sc1 lds")
            if g < 4: a("s_add_u32 s24, s24, 4096")
    lvl_add = f"ds_add_u32 v{vMS}, v{v1c} offset:{M_FULL - MISC}"
    def level(n=1):
        a("s_mov_b64 exec, " + str((1 << n) - 1) + f"\n{lvl_add}\ns_mov_b64 exec, -1")
    a("s_mov_b32 s54, 1\nL_kvloop:")
    kvslot()
    a(f"""
    s_cmp_lg_u32 s54, 1
    s_cbranch_scc1 L_kvnext
    {gl}
    s_waitcnt vmcnt(1)
    """)
    level()
    a("; STAMP 5")
    poll(a, gl, gc, sleep=4, preloaded=True)
    a(f"""
    s_mov_b32 s54, 2
    s_branch L_kvloop
L_kvnext:
    s_add_u32 s54, s54, 1
    s_cmp_eq_u32 s54, 3
    s_cbranch_scc1 L_kvloop
    s_cmp_eq_u32 s54, 8
    s_cbranch_scc1 L_sel2
    s_waitcnt vmcnt(18)
    """)
    level()
    a(f"""
    s_cmp_lt_u32 s54, 7
    s_cbranch_scc1 L_kvloop
    ; STAMP 11
L_sel:
    s_cmp_eq_u32 s59, 0
    s_cbranch_scc1 L_qpub
L_sel1:
    s_lshl_b32 s24, s{sJ}, 7
    s_add_u32 s24, s24, {WS_SEL}
    """)
    poll(a, f"buffer_load_dwordx2 v[12:13], v{vZ}, {RW}, s24 offen sc1", "v_min_u32 v14, v12, v13\nv_cmp_eq_u32 vcc, 0, v14", sleep=4)
    a(f"""
    ; STAMP 12
    v_readfirstlane_b32 s56, v12
    v_readfirstlane_b32 s57, v13
    s_cmp_lg_u32 s12, 0
    s_cbranch_scc1 L_sel2
    s_mov_b64 exec, 1
    ds_write_b64 v{vMS}, v[12:13] offset:{M_SEL - MISC}
    {lvl_add}
    s_mov_b64 exec, -1
    """)
    poll(a, prog_rd, f"v_cmp_gt_u32 vcc, 3, v{vF}", sleep=4)
    a(f"""
    s_branch L_kvloop
L_sel2:
    s_and_b32 s58, s56, 0x7ff
    s_sub_u32 s58, 2047, s58           ; idx0
    s_and_b32 s59, s57, 0x7ff
    s_sub_u32 s59, 2047, s59           ; idx1
    s_cmp_ge_u32 s{sM}, 18
    s_cbranch_scc1 L_noffn1
    s_cmp_eq_u32 s14, 0
    s_cselect_b32 s8, s{pWG}, s{pWU}
    s_cselect_b32 s9, s{pWG+1}, s{pWU+1}
    s_mov_b32 s10, {WGB}
    s_mul_i32 s25, s13, {288*9216}
    s_lshl_b32 s24, s60, 6
    s_add_u32 s25, s25, s24
    """)
    for i in range(18):
        a(f"buffer_load_dwordx4 {vr(GU+4*i,4)}, v{aGU}, s[8:11], s25 offen\ns_add_u32 s25, s25, {16*9216}")
    a(f"""
    s_mul_i32 s25, s58, 1152
    s_mul_i32 s26, s59, 1152
    s_sub_u32 s26, s26, s25
    v_and_b32 v31, s26, v31
    v_add3_u32 v{aXF}, v{aXF}, v31, s25
    s_mov_b32 s8, s{pX}
    s_mov_b32 s9, s{pX+1}
    s_mov_b32 s10, {XB}
    """)
    for i in range(9):
        a(f"buffer_load_dwordx4 {vr(XF+4*i,4)}, v{aXF}, s[8:11], 0 offen offset:{64*i}")
    a(f"""
    s_waitcnt vmcnt(27)
    s_branch L_lvl8
L_noffn1:
    s_waitcnt vmcnt(0)
L_lvl8:
    s_cmp_lg_u32 s12, 0
    s_cbranch_scc1 L_nolvl
    """)
    level(2)
    a(f"""
L_nolvl:
    s_cmp_ge_u32 s{sM}, 18
    s_cbranch_scc1 L_moedone
    s_waitcnt vmcnt(0)
    ; MSTAMP 2
    """)
    def gu_step(st):
        p = st & 1
        a(f"ds_write_b128 v{aWR}, {vr(GU+8*st,4)}")
        a(f"ds_write_b128 v{aWR}, {vr(GU+8*st+4,4)} offset:1152")
        for n in range(2):
            for m in range(2):
                a(f"ds_read_b64_tr_b16 {vr(TR+8*p+4*n+2*m,2)}, v{aTG} offset:{256*m+32*n}")
    gu_step(0)
    for st in range(9):
        if st < 8: gu_step(st + 1)
        a(f"s_waitcnt lgkmcnt({6 if st < 8 else 0})")
        for n in range(2):
            a(mf16(AC + 4 * n, XF + 4 * st, TR + 8 * (st & 1) + 4 * n, 0 if st == 0 else None))
        if st == 4:
            a(f"""
            s_mul_i32 s25, s60, 36864
            s_mul_i32 s26, s12, 288
            s_add_u32 s25, s25, s26
            s_mov_b32 s8, s{pWD}
            s_mov_b32 s9, s{pWD+1}
            s_mov_b32 s10, {WGB}
            """)
            for n in range(9):
                a(f"buffer_load_dwordx4 {vr(GU+4*n,4)}, v{aDN}, s[8:11], s25 offen offset:{32*n}")
    a(f"""
    s_lshl_b32 s25, s12, 8
    v_add_u32 v3, s25, v{aP}
    s_mov_b32 s8, s{pX}
    s_mov_b32 s9, s{pX+1}
    s_mov_b32 s10, {XB}
    s_nop 1
    s_mov_b32 exec_hi, 0
    ; MSTAMP 7
    ds_write_b32 v3, v{AC} offset:{M_P - MISC}
    s_not_b64 exec, exec
    ds_write_b32 v3, v{AC+4} offset:{M_P - MISC}
    s_mov_b64 exec, 1
    ds_add_u32 v{vMS}, v{v1c}
    s_mov_b64 exec, -1
    s_waitcnt vmcnt(0)
    ; MSTAMP 8
    """)
    poll(a, f"ds_read_b32 v4, v{vMS}", "v_cmp_ne_u32 vcc, 4, v4", sleep=1)
    a("; MSTAMP 9")
    for w in range(4): a(f"ds_read_b32 v{XF+w}, v{aP} offset:{M_P - MISC + 256*w}")
    def dn_step(st):
        p = st & 1
        ns = [n for n in (2 * st, 2 * st + 1) if n < 9]
        for n in ns: a(f"ds_write_b128 v{aWR}, {vr(GU+4*n,4)} offset:{1152*(n&1)}")
        for n in ns:
            for m in range(2):
                a(f"ds_read_b64_tr_b16 {vr(TR+8*p+4*(n&1)+2*m,2)}, v{aTD} offset:{1152*(n&1)+128*m}")
        return 3 * len(ns)
    dn_step(0)
    a(f"""
    s_waitcnt lgkmcnt(6)
    v_pk_add_f32 {vr(XF,2)}, {vr(XF,2)}, {vr(XF+2,2)}
    v_cvt_pk_bf16_f32 v{XF+1}, v{XF}, v{XF+1}
    v_lshlrev_b32 v{XF}, 16, v{XF+1}
    v_mul_f32 v{XF+2}, {f32bits(-math.log2(math.e))}, v{XF}
    v_exp_f32 v{XF+2}, v{XF+2}
    v_and_b32 v{XF+1}, 0xffff0000, v{XF+1}
    v_add_f32 v{XF+2}, 1.0, v{XF+2}
    v_rcp_f32 v{XF+2}, v{XF+2}
    s_and_b32 s25, s60, 7
    v_mul_f32 v{XF}, v{XF}, v{XF+2}
    """)
    rne_bf16(a, XF)
    a(f"""
    v_mul_f32 v{XF}, v{XF}, v{XF+1}
    v_cvt_pk_bf16_f32 v{XF}, v{XF}, v{XF}
    ds_write_b16 v{aHW}, v{XF}
    ds_read_b128 {vr(XF+4,4)}, v{aHR}
    """)
    DA = GU + 36
    for st in range(5):
        k = dn_step(st + 1) if st < 4 else 0
        a(f"s_waitcnt lgkmcnt({k})")
        for n in (2 * st, 2 * st + 1):
            if n < 9: a(mf16(DA + 4 * n, XF + 4, TR + 8 * (st & 1) + 4 * (n & 1), 0))
    a(f"""
    s_mul_i32 s25, s25, 4608
    s_mul_i32 s26, s12, 576
    s_add_u32 s25, s25, s26
    s_add_u32 s25, s25, {WS_Y}
    ; MSTAMP 10
    s_mov_b32 exec_hi, 0
    """)
    for n in range(9):
        a(f"buffer_atomic_add_f32 v{DA+4*n}, v{aY}, {RW}, s25 offen offset:{64*n} sc1")
    a(f"""
    s_mov_b64 exec, 1
    s_waitcnt vmcnt(0)
    ds_add_rtn_u32 v4, v{vMS}, v{v1c} offset:4
    s_lshr_b32 s25, s{sJ}, 2
    s_lshl_b32 s25, s25, 7
    s_add_u32 s25, s25, 16
    s_waitcnt lgkmcnt(0)
    v_cmp_eq_u32 vcc, 3, v4
    s_cbranch_vccz L_notlast
    buffer_atomic_add v{v1c}, v{vZ}, {RD}, s25 offen sc1
L_notlast:
    s_mov_b64 exec, -1
L_moedone:
    ; STAMP 13
    """)
    poll(a, prog_rd, f"v_cmp_gt_u32 vcc, 7, v{vF}", sleep=16)
    a(f"""
    s_mov_b32 s29, 0
L_wo:
    s_mov_b32 s24, s{pWO}
    s_mov_b32 s25, s{pWO+1}
    s_mov_b32 s26, {WOB}
    s_mov_b32 s27, 0x00020000
    s_mul_i32 s52, s12, {32*1152}
    s_lshr_b32 s53, s{sM}, 2
    s_mul_i32 s53, s53, 144
    s_add_u32 s52, s52, s53
    s_mul_i32 s53, s12, 5120
    s_add_u32 s53, s53, {L_WO}
L_wo_loop:
    s_mov_b32 m0, s53
    s_nop 0
    """)
    for i in range(4): a(f"buffer_load_dwordx4 v{16+i}, s[24:27], s52 offen offset:{1024*i} lds")
    a(f"""
    s_add_u32 m0, s53, 4096
    s_add_u32 s53, s53, 20480
    buffer_load_dwordx4 v20, s[24:27], s52 offen lds
    s_add_u32 s52, s52, {128*1152}
    s_cmp_lt_u32 s53, {L_WO + 92160}
    s_cbranch_scc1 L_wo_loop
    s_cmp_lg_u32 s29, 0
    s_cbranch_scc1 L_svc_wait
    s_cmp_ge_u32 s12, 2
    s_cbranch_scc1 L_svc_wait
    s_lshl_b32 s24, s{sJ}, 8
    s_add_u32 s24, s24, s{sM}
    v_lshrrev_b32 v3, 3, v1
    s_cmp_eq_u32 s12, 0
    s_cbranch_scc1 L_w8
    v_and_b32 v4, 7, v1
    v_lshlrev_b32 v4, 7, v4
    v_lshl_or_b32 v4, v3, 15, v4
    s_lshl_b32 s24, s24, 10
    s_add_u32 s24, s24, {WS_OL}
    {"" if o.get("nopre") else f"buffer_load_dword v31, v4, {RW}, s24 offen sc1"}
    s_branch L_svc_wait
L_w8:
    v_lshlrev_b32 v3, 12, v3
    s_lshl_b32 s24, s24, 7
    s_add_u32 s24, s24, {WS_OL + O_REM}
    {"" if o.get("nopre") else f"buffer_load_dword v31, v3, {RW}, s24 offen sc1"}
    buffer_load_dwordx4 {vr(XD,4)}, v{vXO}, s[8:11], 0 offen
    s_lshl_b32 s24, s15, 2
    s_add_u32 s24, s24, {WS_G - MISC}
    buffer_load_dword v4, v{aP}, {RW}, s24 offen sc1
    s_waitcnt vmcnt(0)
    ds_write_b32 v{aP}, v4 offset:{M_G - MISC}
L_svc_wait:
    s_waitcnt vmcnt(0) lgkmcnt(0)
    ; STAMP 14
    s_barrier                          ; BE
    ds_read_b32 v4, v{vMS} offset:{M_BAD - MISC}
    s_waitcnt lgkmcnt(0)
    v_cmp_lt_u32 vcc, s29, v4
    s_cbranch_vccnz L_svc_fb
    s_cmp_eq_u32 s12, 0
    s_cbranch_scc1 L_final
    s_cmp_eq_u32 s12, 1
    s_cbranch_scc1 L_svc_end
    s_cmp_eq_u32 s12, 2
    s_cselect_b32 s26, s58, s59
    s_cselect_b32 s27, s56, s57
    s_andn2_b32 s26, s26, 63
    s_cmp_lg_u32 s15, s26
    s_cbranch_scc1 L_svc_end
    v_and_b32 v3, 1, v1
    v_lshlrev_b32 v3, 7, v3
    """)
    poll(a, f"buffer_load_dword v4, v3, {RD}, 0 offen offset:16 sc1", "v_cmp_ne_u32 vcc, 72, v4", sleep=2)
    a(f"""
    ; MSTAMP 4
    v_min_u32 v3, 35, v1
    v_lshlrev_b32 v3, 3, v3
    s_lshr_b32 s24, s{sM}, 2
    s_mul_i32 s24, s24, 288
    s_mul_i32 s25, s14, 2304
    s_add_u32 s24, s24, s25
    s_add_u32 s24, s24, {WS_Y}
    """)
    for rp in range(8):
        a(f"buffer_load_dwordx2 {vr(32+2*rp,2)}, v3, {RW}, s24 offen sc1\ns_add_u32 s24, s24, 4608")
    a(f"""
    s_and_b32 s27, s27, 0xfffff800
    s_xor_b32 s24, s27, 0x80000000
    s_not_b32 s25, s27
    s_bitcmp1_b32 s27, 31
    s_cselect_b32 s27, s24, s25
    v_mov_b32 v10, s27
    """)
    rne_bf16(a, 10); sigmoid(a, 10); rne_bf16(a, 10)
    a(f"s_mul_i32 s24, s14, 320\ns_add_u32 s24, s24, {M_Y}\nv_add_u32 v3, s24, v3\ns_waitcnt vmcnt(0)")
    for rp in range(1, 8): a(f"v_pk_add_f32 v[32:33], v[32:33], {vr(32+2*rp,2)}")
    for i in range(2):
        rne_bf16(a, 32 + i); a(f"v_mul_f32 v{32+i}, v{32+i}, v10"); rne_bf16(a, 32 + i)
    a(f"""
    ds_write_b64 v3, v[32:33]
    s_waitcnt lgkmcnt(0)
L_svc_end:
    s_endpgm
L_svc_fb:
    s_barrier
    s_mul_i32 s52, s{sM}, {HS}
    s_lshl1_add_u32 s53, s12, s{sJ}
    s_mul_i32 s55, s12, {2 * SLOT}
    s_add_u32 s55, s55, {KV0}
    s_mov_b32 s54, 0
L_fb_kv:
    """)
    kvslot()
    a("""
    s_add_u32 s54, s54, 1
    s_cmp_lt_u32 s54, 2
    s_cbranch_scc1 L_fb_kv
    s_waitcnt vmcnt(0)
    s_barrier
    s_mov_b32 s29, -1
    s_barrier
    s_branch L_wo
    """)
    a(f"""
L_qpub:
    """)
    poll(a, f"ds_read_b32 v4, v{vMS} offset:{M_MODE - MISC}", "v_cmp_eq_u32 vcc, 0, v4", sleep=4)
    a("v_cmp_eq_u32 vcc, 1, v4\ns_cbranch_vccnz L_sel1")
    glb_stores()
    a(f"""
    s_lshl2_add_u32 s24, s12, s62
    s_mov_b64 exec, 1
    s_waitcnt vmcnt(0)
    buffer_store_dword v{v1c}, v{vZ}, {RW}, s24 offen offset:32 sc1
    s_mov_b64 exec, -1
    s_branch L_sel1
L_helper:
    s_cmp_lg_u32 s12, 1
    s_cbranch_scc1 L_helper2
    v_lshlrev_b32 v3, 10, v1
    s_lshl_b32 s24, s{sJ}, 7
    s_add_u32 s24, s24, {WS_FG1}
    """)
    poll(a, f"ds_read_b32 v4, v{vMS} offset:{M_FULL - MISC}", "v_cmp_eq_u32 vcc, 0, v4", sleep=8)
    a("s_mov_b32 exec_hi, 0")
    poll(a, f"buffer_load_dword v4, v3, {RW}, s24 offen offset:16 sc1", "v_cmp_eq_u32 vcc, 0, v4", sleep=8)
    a(f"""
    v_cmp_ne_u32 vcc, s{sREG}, v4
    s_mov_b32 exec_hi, -1
    s_cmp_eq_u32 vcc_lo, 0
    s_cselect_b32 s24, 1, 2
    v_mov_b32 v4, s24
    ds_write_b32 v{vMS}, v4 offset:{M_MODE - MISC}
L_helper2:
    s_mul_i32 s29, s12, {o.get('ps', 0)}
    s_add_u32 s29, s29, {o.get('pl', 6)}
    """)
    poll(a, f"ds_read_b32 v4, v{vMS} offset:{M_FULL - MISC}", "v_cmp_gt_u32 vcc, s29, v4", sleep=16)
    a("s_branch L_sel")
    a(f"""
L_rg:
    s_sub_u32 s26, s{sM}, 28
    s_lshl2_add_u32 s26, s{sJ}, s26
    s_lshl2_add_u32 s27, s26, s12
    s_lshl_b32 s28, s27, 4
    v_lshrrev_b32 v3, 3, v1
    v_add_u32 v4, s28, v3              ; row
    v_mul_u32_u24 v5, 1152, v4
    v_and_b32 v6, 7, v1
    v_lshlrev_b32 v6, 4, v6
    v_add_u32 v5, v5, v6
    v_add_u32 v7, 9216, v5
    """)
    for i in range(9): a(f"global_load_dwordx4 {vr(16+4*i,4)}, v5, s[{pX}:{pX+1}] offset:{128*i}")
    for i in range(9): a(f"global_load_dwordx4 {vr(88+4*i,4)}, v6, s[{pWR}:{pWR+1}] offset:{128*i}")
    for i in range(9): a(f"global_load_dwordx4 {vr(124+4*i,4)}, v6, s[{pGW}:{pGW+1}] offset:{128*i}")
    for i in range(9): a(f"global_load_dwordx4 {vr(52+4*i,4)}, v7, s[{pX}:{pX+1}] offset:{128*i}")
    a(f"""
    v_mov_b32 v8, 0
    v_mov_b32 v9, 0
    v_mov_b32 v10, 0
    v_mov_b32 v11, 0
    s_waitcnt vmcnt(36)
    s_barrier                          ; BL
    s_and_b32 s29, s27, 15
    s_cmp_lg_u32 s29, 0
    s_cbranch_scc1 L_nosig
    s_lshl_b32 s29, s{sJ}, 5
    v_mov_b32 v12, 1
    s_mov_b64 exec, 1
    buffer_store_dword v12, v8, {RD}, s29 offen sc1
    s_mov_b64 exec, -1
L_nosig:
    s_waitcnt vmcnt(0)
    """)
    for i in range(36):
        a(f"v_dot2c_f32_bf16 v8, v{16+i}, v{88+i}")
        a(f"v_dot2c_f32_bf16 v9, v{52+i}, v{88+i}")
        a(f"v_dot2c_f32_bf16 v10, v{16+i}, v{124+i}")
        a(f"v_dot2c_f32_bf16 v11, v{52+i}, v{124+i}")
    a("s_nop 2")
    for mode in ("quad_perm:[1,0,3,2]", "quad_perm:[2,3,0,1]", "row_half_mirror"):
        for v in (8, 9, 10, 11):
            a(f"v_add_f32_dpp v{v}, v{v}, v{v} {mode} row_mask:0xf bank_mask:0xf")
    for v in (10, 11):
        rne_bf16(a, v); sigmoid(a, v); rne_bf16(a, v)
    a(f"""
    v_ashrrev_i32 v12, 31, v8
    v_or_b32 v12, 0x80000000, v12
    v_xor_b32 v8, v8, v12
    v_and_b32 v8, 0xfffff800, v8
    v_sub_u32 v12, 2047, v4
    v_or_b32 v8, v8, v12
    v_ashrrev_i32 v12, 31, v9
    v_or_b32 v12, 0x80000000, v12
    v_xor_b32 v9, v9, v12
    v_and_b32 v9, 0xfffff800, v9
    v_sub_u32 v12, 2039, v4
    v_or_b32 v9, v9, v12
    v_lshlrev_b32 v13, 2, v4
    s_mov_b32 s29, {WS_G}
    buffer_store_dword v10, v13, {RW}, s29 offen sc1
    buffer_store_dword v11, v13, {RW}, s29 offen offset:32 sc1
    v_max_u32 v14, v8, v9
    v_min_u32 v15, v8, v9
    s_nop 1
    v_mov_b32_dpp v8, v14 row_ror:8 row_mask:0xf bank_mask:0xf
    v_mov_b32_dpp v9, v15 row_ror:8 row_mask:0xf bank_mask:0xf
    v_min_u32 v12, v8, v14
    v_max_u32 v14, v8, v14
    v_max3_u32 v15, v12, v9, v15
    """)
    for sw in ("v_permlane16_swap_b32", "v_permlane32_swap_b32"):
        a(f"""
        v_mov_b32 v8, v14
        v_mov_b32 v9, v15
        s_nop 1
        {sw} v8, v14
        {sw} v9, v15
        s_nop 1
        v_min_u32 v12, v8, v14
        v_max_u32 v14, v8, v14
        v_max3_u32 v15, v12, v9, v15
        """)
    regwait(a, 3, 4, sleep=16)
    a(f"""
    s_lshl_b32 s29, s27, 3
    s_add_u32 s29, s29, {WS_KEY}
    v_mov_b32 v5, 0
    v_mov_b32 v6, s{sREG}
    s_mov_b64 exec, 1
    buffer_store_dwordx2 v[14:15], v5, {RW}, s29 offen sc1
    s_mov_b64 exec, -1
    s_and_b32 s27, s27, 15
    s_cmp_lg_u32 s27, 0
    s_cbranch_scc1 L_tag
    v_lshlrev_b32 v3, 4, v1
    s_mov_b32 s29, {WS_KEY}
    """)
    poll(a, f"buffer_load_dwordx4 v[8:11], v3, {RW}, s29 offen sc1",
         "v_min_u32 v12, v8, v9\nv_min3_u32 v12, v12, v10, v11\nv_cmp_eq_u32 vcc, 0, v12", sleep=2)
    top2(a, 8, 12, 24)
    a(f"""
    s_lshl_b32 s29, s{sJ}, 7
    s_add_u32 s29, s29, {WS_SEL}
    v_mov_b32 v8, s24
    v_mov_b32 v9, s25
    s_mov_b64 exec, 1
    buffer_store_dwordx2 v[8:9], v5, {RW}, s29 offen sc1
    s_mov_b64 exec, -1
    s_branch L_svc_kv
    """)
    a("L_codeend:")
    if o.get("mstamp"):
        a.L = [l for l in a.L if not any(l.strip() == f"; STAMP {i}" for i in (1, 2, 4, 7, 8, 9, 10))]
        a.L = [l.replace("MSTAMP", "STAMP") for l in a.L]
    hdr = HEADER + f"; @launch grid=(256,1,1) block=(768,1,1) lds={LDS_BYTES}\n"
    return hdr + a.text() + '.section .rodata,"a"\n' + descriptor(NAME, 168, sgpr=64)

if __name__ == "__main__":
    o = dict((k.split("=")[0], int(k.split("=")[1]) if "=" in k else 1) for k in sys.argv[2:])
    open(sys.argv[1], "w").write(gen(o))
```

```python
import re, sys
SB = 64
NS = 16
def st(i):
    return f"""    s_memrealtime s[96:97]
    s_memtime s[98:99]
    s_waitcnt lgkmcnt(0)
    s_mov_b32 s{SB+2*i}, s96
    s_mov_b32 s{SB+2*i+1}, s98"""
def add_stamps(asm, only=None):
    out = []; ki = -1
    names = re.findall(r"^\.globl (\w+_kernel)", asm, re.M)
    for line in asm.split("\n"):
        t = line.strip()
        if t.endswith(":") and t[:-1] in names:
            ki = names.index(t[:-1])
            out.append(line)
            out.append(f"""    s_memrealtime s[96:97]
    s_memtime s[98:99]
    s_load_dwordx2 s[100:101], s[0:1], 88
    v_readfirstlane_b32 s63, v0""")
            for i in range(2, 32, 2): out.append(f"    s_mov_b64 s[{SB+i}:{SB+i+1}], 0")
            out.append(f"""    s_lshr_b32 s63, s63, 6
    s_lshl4_add_u32 s63, s2, s63
    s_lshl_b32 s63, s63, 7
    s_waitcnt lgkmcnt(0)
    s_mov_b32 s{SB}, s96
    s_mov_b32 s{SB+1}, s98""")
            continue
        m = re.match(r"; STAMP (\d+)", t)
        if m:
            i = int(m.group(1))
            if only is None or i in only: out.append(st(i))
            continue
        if t == "s_endpgm":
            s = "    s_waitcnt vmcnt(0) lgkmcnt(0)\n" + st(NS - 1) + f"""
    s_mov_b64 exec, 1
    s_add_u32 s63, s63, {0x8000000 + ki*0x100000}
    v_mov_b32 v4, s63
"""
            for q in range(8):
                s += f"""    v_mov_b32 v0, s{SB+4*q}
    v_mov_b32 v1, s{SB+4*q+1}
    v_mov_b32 v2, s{SB+4*q+2}
    v_mov_b32 v3, s{SB+4*q+3}
    global_store_dwordx4 v4, v[0:3], s[100:101] offset:{16*q}
    s_nop 1
"""
            out.append(s)
        out.append(line)
    txt = "\n".join(out)
    txt = re.sub(r"\.amdhsa_next_free_sgpr \d+", ".amdhsa_next_free_sgpr 102", txt)
    return txt, names
```

```python
import sys, math
from gen_common import *

NAME = "gated_mix__mha_block__moe_arch_mod__prompt_kernel"
XB = 2359296; WB = 1990656; WOB = 663552; WGB = 5308416
QSCALE = (18 ** -0.5) * math.log2(math.e)
LOG2E = math.log2(math.e)
JS = 884736; HS = 27648
WS_GLB = 0; WS_LOC = 0x700000
WS_OG = 0xE00000; WS_OL = 0x1040000
O_REM = 0x200000
WS_FG1 = 0x1280000
WS_FL1 = 0x1288000
WS_FL2 = 0x1289000
WS_SEL = 0x128B000
WS_DONE = 0x128B400
WS_Y = 0x128C000
WS_KEY = 0x1295000
WS_CLR = WS_FG1
WS_G = 0x1298000
WS_END = 0x129A000
KV0 = 9216; SLOT = 18432; L_QS = KV0 + 7 * SLOT; MISC = 156672
M_CNT = 0; M_DONE = 4; M_BAD = 8; M_MODE = 12; M_SEL = 16; M_C0 = 24; M_GO = 28; M_PROG = 64; M_FULL = 96
M_P = 256; M_H = 2304; M_Y = 2816; M_CB7 = 3584; M_G = 6144
L_CB = KV0 + 5 * SLOT; L_WO = KV0; L_A0 = KV0 + 6 * SLOT; L_A1 = KV0 + 7 * SLOT; AS = 288
LDS_BYTES = 163840
SPIN = 1 << 14
pX, pW, pWO, pWR, pWG, pWU, pWD, pGW, pOUT = 32, 34, 36, 40, 42, 44, 46, 48, 50
sWAVE, sJ, sM, sMODE, sTAG = 3, 4, 5, 6, 7
RA = "s[8:11]"; RW = "s[16:19]"; RD = "s[20:23]"

def mf32(d, a, b, c=None):
    cs = vr(d, 16) if c is None else ("0" if c == 0 else vr(c, 16))
    return f"v_mfma_f32_32x32x16_bf16 {vr(d,16)}, {vr(a,4)}, {vr(b,4)}, {cs}"
def mf16(d, a, b, c=None):
    cs = vr(d, 4) if c is None else ("0" if c == 0 else vr(c, 4))
    return f"v_mfma_f32_16x16x32_bf16 {vr(d,4)}, {vr(a,4)}, {vr(b,4)}, {cs}"
def rne_bf16(a, v):
    a(f"v_cvt_pk_bf16_f32 v{v}, v{v}, v{v}")
    a(f"v_and_b32 v{v}, 0xffff0000, v{v}")
def sigmoid(a, v):
    a(f"v_mul_f32 v{v}, {f32bits(-LOG2E)}, v{v}\nv_exp_f32 v{v}, v{v}\ns_nop 0\nv_add_f32 v{v}, 1.0, v{v}\nv_rcp_f32 v{v}, v{v}\ns_nop 0")
_uid = [0]
def uid(p):
    _uid[0] += 1
    return f"L_{p}{_uid[0]}"
def poll(a, load, check, sleep=0, preloaded=False, spin=SPIN, extra=None, wait=None):
    l = uid("poll"); e = uid("ok"); c = uid("chk")
    a(f"s_movk_i32 s30, {spin}")
    if preloaded: a(f"s_branch {c}")
    a(f"{l}:")
    a(load)
    if preloaded: a(f"{c}:")
    a(wait or ("s_waitcnt lgkmcnt(0)" if load.startswith("ds_") else "s_waitcnt vmcnt(0)"))
    a(check)
    a(f"s_cbranch_vccz {e}")
    if extra: a(extra)
    if sleep: a(f"s_sleep {sleep}")
    a(f"s_sub_u32 s30, s30, 1\ns_cmp_lg_u32 s30, 0\ns_cbranch_scc1 {l}")
    a(f"{e}:")
def regaddr(a, t0): a(f"v_and_b32 v{t0}, 7, v1\nv_lshlrev_b32 v{t0}, 5, v{t0}")
def regload(t0, t1): return f"buffer_load_dword v{t1}, v{t0}, {RD}, 0 offen sc1"
def regwait(a, t0, t1, preloaded=False, sleep=0):
    if not preloaded: regaddr(a, t0)
    poll(a, regload(t0, t1), f"v_cmp_eq_u32 vcc, 0, v{t1}", preloaded=preloaded, sleep=sleep)
def wave_max_u32(a, v, t, sdst):
    for mode in ("quad_perm:[1,0,3,2]", "quad_perm:[2,3,0,1]", "row_half_mirror", "row_mirror"):
        a("s_nop 1")
        a(f"v_max_u32_dpp v{v}, v{v}, v{v} {mode} row_mask:0xf bank_mask:0xf")
    for sw in ("v_permlane16_swap_b32", "v_permlane32_swap_b32"):
        a(f"v_mov_b32 v{t}, v{v}\ns_nop 1\n{sw} v{t}, v{v}\ns_nop 1\nv_max_u32 v{v}, v{t}, v{v}")
    a("s_nop 0")
    a(f"v_readfirstlane_b32 s{sdst}, v{v}")
def top2(a, K, T, so):
    a(f"v_min_u32 v{T}, v{K}, v{K+2}\nv_max_u32 v{K}, v{K}, v{K+2}\nv_max3_u32 v{K+1}, v{T}, v{K+1}, v{K+3}\nv_mov_b32 v{K+2}, v{K}")
    wave_max_u32(a, K + 2, T, so)
    a(f"v_cmp_eq_u32 vcc, v{K+2}, v{K}\ns_nop 1\nv_cndmask_b32 v{K+2}, v{K}, v{K+1}, vcc")
    wave_max_u32(a, K + 2, T, so + 1)
def one_lane(a, x, n=1): a(f"s_mov_b64 exec, {(1 << n) - 1}\n{x}\ns_mov_b64 exec, -1")

aK, aKR, aV, vINC, IDX, vXO, vG, vM, vONE, XD = 2, 3, 4, 5, 6, 7, 8, 10, 11, 12
QM, QR, KR, KM, V, O, S = 16, 24, 26, 28, 32, 40, [72, 104]
cW16, cW8, cR16, cR8, oM, oR, aWm, aWr, aFl, aOm, aOr, aPw, aAr, aG, vKEY, vZ, vPW, vPR, vF = range(140, 159)
OMG = 160; T0 = 162
OF = 16; ACC = 52; XBR = 72; W = [80, 100, 120]
prog_rd = f"ds_read_b32 v{vF}, v{vPR} offset:{M_PROG}"

def final_addr(a, t):
    a(f"""
    v_mul_u32_u24 v{t}, 7282, v0
    v_lshrrev_b32 v{t}, 16, v{t}       ; row
    v_mul_u32_u24 v{t+1}, 9, v{t}
    v_sub_u32 v{t+1}, v0, v{t+1}       ; piece
    s_and_b32 s24, s{sM}, 3
    s_lshl2_add_u32 s24, s{sJ}, s24
    s_lshl_b32 s24, s24, 6
    s_lshr_b32 s25, s{sM}, 2
    s_mul_i32 s25, s25, 144
    v_lshl_add_u32 v{aG}, v{t}, 2, v{vM}
    v_add_u32 v{t}, s24, v{t}
    v_sub_u32 v{vKEY}, 2047, v{t}
    v_mul_u32_u24 v{vXO}, 1152, v{t}
    v_lshl_add_u32 v{vXO}, v{t+1}, 4, v{vXO}
    v_add_u32 v{vXO}, s25, v{vXO}
    v_lshlrev_b32 v{aAr}, 5, v0
    v_add_u32 v{aAr}, {L_A0}, v{aAr}
    """)
final_rd = f"ds_read_b32 v{vG}, v{aG} offset:{M_G}\nds_read_b64 {vr(T0,2)}, v{vM} offset:{M_SEL}"
def final_pre(a):
    for i in range(4):
        a(f"v_lshlrev_b32 v{XBR+2*i}, 16, v{XD+i}\nv_and_b32 v{XBR+2*i+1}, 0xffff0000, v{XD+i}")
    a(f"v_sub_f32 v{OMG}, 1.0, v{vG}")
    rne_bf16(a, OMG)
    a(f"""
    v_and_b32 v{T0}, 0x7ff, v{T0}
    v_and_b32 v{T0+1}, 0x7ff, v{T0+1}
    v_cmp_eq_u32 s[26:27], v{T0}, v{vKEY}
    v_cmp_eq_u32 s[28:29], v{T0+1}, v{vKEY}
    """)
    for i in range(0, 8, 2): a(f"v_pk_mul_f32 {vr(XBR+i,2)}, {vr(XBR+i,2)}, {vr(OMG,2)} op_sel_hi:[1,0]")
    a(f"s_or_b64 s[26:27], s[26:27], s[28:29]\ns_mov_b32 s8, s{pOUT}\ns_mov_b32 s9, s{pOUT+1}")

def gen(o={}):
    _uid[0] = 0
    a = Asm()
    a('.amdgcn_target "amdgcn-amd-amdhsa--gfx950"\n.text')
    kernel_begin(a, NAME)
    TS = 104; LD = 132
    a(f"""
    s_load_dwordx16 s[32:47], s[0:1], 0
    s_load_dwordx2 s[8:9], s[0:1], 0
    s_load_dwordx2 s[16:17], s[0:1], 88
    s_load_dwordx2 s[20:21], s[0:1], 80
    s_load_dwordx4 s[48:51], s[0:1], 64
    v_lshrrev_b32 v2, 6, v0
    v_and_b32 v1, 63, v0
    s_cmp_ge_u32 s2, 256
    s_cbranch_scc1 L_end
    v_readfirstlane_b32 s{sWAVE}, v2
    s_and_b32 s{sJ}, s2, 7
    s_lshr_b32 s{sM}, s2, 3
    s_mov_b32 s10, {XB}
    s_mov_b32 s11, 0x00020000
    s_mov_b32 s18, {WS_END}
    s_mov_b32 s19, 0x00020000
    s_movk_i32 s22, 256
    s_mov_b32 s23, 0x00020000
    s_cmp_eq_u32 s{sM}, 28
    s_cbranch_scc1 L_clear
L_cleared:
    s_cmp_ge_u32 s{sWAVE}, 8
    s_cbranch_scc1 L_service
    v_lshrrev_b32 v13, 4, v1
    s_lshl_b32 s59, s{sWAVE}, 12
    s_cmp_ge_u32 s{sWAVE}, 4
    s_cbranch_scc1 L_ldw
    s_and_b32 s26, s{sM}, 1
    s_lshl1_add_u32 s26, s{sJ}, s26
    s_lshl2_add_u32 s26, s26, s{sWAVE}
    s_lshl_b32 s26, s26, 5
    v_lshrrev_b32 v3, 3, v1
    v_add_u32 v3, s26, v3
    v_mul_u32_u24 v3, 1152, v3
    v_and_b32 v12, 7, v1
    v_xor_b32 v12, v12, v13
    v_lshl_add_u32 v{LD}, v12, 4, v3
    v_xor_b32 v{LD+1}, 64, v{LD}
    v_add_u32 v{LD+1}, 8192, v{LD+1}
    v_add_u32 v{LD+2}, 16384, v{LD}
    v_add_u32 v{LD+3}, 16384, v{LD+1}
    s_movk_i32 s58, 128
    s_waitcnt lgkmcnt(0)
    s_branch L_ldgo
L_ldw:
    s_lshl_b32 s26, s{sWAVE}, 4
    s_sub_u32 s26, s26, 64
    v_add_u32 v3, s26, v13
    v_mul_u32_u24 v3, 3456, v3
    v_and_b32 v12, 15, v1
    v_lshlrev_b32 v14, 2, v13
    v_xor_b32 v12, v12, v14
    v_lshl_add_u32 v3, v12, 4, v3
    s_lshr_b32 s26, s{sM}, 1
    s_cmp_lt_u32 s26, 9
    s_cselect_b32 s27, 7, 8
    s_cselect_b32 s28, 128, 0
    s_lshl_b32 s26, s26, s27
    v_and_b32 v12, 8, v12
    v_mad_u32_u24 v3, v12, s28, v3
    v_add_u32 v{LD}, s26, v3
    v_add_u32 v{LD+1}, 12800, v{LD}
    v_add_u32 v{LD+2}, 25600, v{LD}
    v_add_u32 v{LD+3}, 38400, v{LD}
    s_mov_b32 s58, 221184
    s_mov_b32 s10, {WB}
    s_waitcnt lgkmcnt(0)
    s_mov_b32 s8, s{pW}
    s_mov_b32 s9, s{pW+1}
L_ldgo:
    ; STAMP 7
    s_mul_i32 s57, s{sJ}, s58
    s_mul_i32 s56, s58, 9
    s_cmp_ge_u32 s{sM}, 28
    s_cbranch_scc1 L_ld_done
    """)
    def ld_chunk():
        a("s_mov_b32 m0, s59\ns_add_u32 s59, s59, 32768")
        for u in range(4):
            a(f"buffer_load_dwordx4 v{LD+u}, {RA}, s57 offen offset:{u*1024} lds")
        a("s_and_b32 s59, s59, 0x1ffff\ns_add_u32 s57, s57, s58\ns_cmp_eq_u32 s57, s56\ns_cselect_b32 s57, 0, s57")
    P0 = o.get("p0", 3)
    for c in range(P0):
        a(f"s_setprio {3 - c}")
        ld_chunk()
    a("s_setprio 0")
    n0 = 6
    if P0 == 2:
        a("s_waitcnt vmcnt(4)\ns_barrier"); ld_chunk(); ld_chunk(); n0 = 5
    a(f"s_mov_b32 s60, {n0}\nL_ldloop:\ns_waitcnt vmcnt(8)\ns_barrier")
    ld_chunk()
    a(f"""
    s_sub_u32 s60, s60, 1
    s_cmp_lg_u32 s60, 0
    s_cbranch_scc1 L_ldloop
L_ld_done:
    s_mul_i32 s15, s{sJ}, {JS}
    s_mul_i32 s24, s{sM}, {HS}
    s_add_u32 s15, s15, s24
    s_add_u32 s15, s15, {WS_LOC}
    s_mul_i32 s24, s{sWAVE}, {27*128}
    s_add_u32 s24, s24, s15
    v_min_u32 v{TS+7}, 26, v1
    v_lshlrev_b32 v{TS+7}, 7, v{TS+7}
    buffer_load_dword v{TS+7}, v{TS+7}, {RW}, {"0" if o.get("nopre") else "s24"} offen sc1
    """)
    def chunk_bar(n, stamp=None):
        l = uid("nb")
        a(f"s_waitcnt vmcnt({n})\ns_cmp_ge_u32 s{sM}, 28\ns_cbranch_scc1 {l}\ns_barrier\n{l}:")
        if stamp: a(f"; STAMP {stamp}")
    hh, r_, c8, g1, G_ = TS + 16, TS + 17, TS + 18, TS + 19, TS + 20
    a(f"""
    s_getreg_b32 s24, hwreg(HW_REG_XCC_ID)
    s_and_b32 s24, s24, 15
    s_add_u32 s{sTAG}, {"s2" if o.get("slow") else "s24"}, 1
    s_lshr_b32 s12, s{sWAVE}, 2        ; kh
    s_and_b32 s13, s{sWAVE}, 3         ; qg
    s_mul_i32 s24, s12, 9216
    s_add_u32 s24, s24, {KV0}
    v_lshrrev_b32 v{hh}, 5, v1
    v_bfe_u32 v{r_}, v1, 2, 2
    v_and_b32 v{c8}, 3, v1
    v_lshlrev_b32 v{c8}, 3, v{c8}
    v_bfe_u32 v{g1}, v1, 4, 1
    v_lshrrev_b32 v{G_}, 4, v1
    v_lshl_add_u32 v{TS+4}, v{hh}, 3, v{r_}
    v_lshl_or_b32 v{TS+4}, v{TS+4}, 5, v{c8}       ; (8hh+r)*32 + 8c
    v_mul_u32_u24 v{TS+5}, 1152, v{g1}
    v_add3_u32 v{aK}, v{TS+5}, v{TS+4}, s24
    v_and_b32 v{TS+1}, 1, v{r_}
    v_lshl_or_b32 v{TS+1}, v{TS+1}, 5, v{c8}
    v_add_u32 v{TS+1}, 512, v{TS+1}                ; (16+(r&1))*32 + 8c
    v_mul_u32_u24 v{TS+5}, 1152, v{G_}
    v_add3_u32 v{aKR}, v{TS+5}, v{TS+1}, s24
    s_mul_i32 s25, s13, 2304
    s_add_u32 s25, s25, {L_QS}
    s_xor_b32 s26, s12, 1
    s_lshl_b32 s27, s26, 1
    v_xor_b32 v{TS+6}, s27, v{G_}
    v_mul_u32_u24 v{TS+5}, 576, v{TS+6}
    v_add3_u32 v{TS+10}, v{TS+5}, v{TS+1}, s25     ; q rem
    v_mul_u32_u24 v{TS+5}, 576, v{g1}
    v_add3_u32 v{TS+5}, v{TS+5}, v{TS+4}, s25
    s_mul_i32 s26, s26, 1152
    s_mul_i32 s27, s12, 1152
    v_add_u32 v{TS+8}, s26, v{TS+5}                ; q main a=0
    v_add_u32 v{TS+9}, s27, v{TS+5}                ; q main a=1
    v_and_b32 v{TS+1}, 31, v1
    v_lshlrev_b32 v{TS+2}, 4, v{hh}
    v_lshl_or_b32 v{TS+3}, v{TS+1}, 5, v{TS+2}
    v_xor_b32 v{TS+2}, 16, v{TS+2}
    v_cmp_gt_u32 vcc, 16, v{TS+1}
    v_lshl_add_u32 v{TS+4}, v{TS+1}, 3, v{TS+2}
    v_add_u32 v{TS+4}, 384, v{TS+4}
    s_add_u32 s24, s24, 576
    v_cndmask_b32 v{TS+3}, v{TS+4}, v{TS+3}, vcc
    v_add_u32 v{TS+3}, s24, v{TS+3}
    s_mov_b32 vcc_lo, 0x0011ffff
    s_mov_b32 vcc_hi, 0x0011ffff
    v_mov_b32 v{TS+4}, {SLOT}
    v_mov_b32 v{IDX}, 0xdddddddd
    v_cndmask_b32 v{aV}, v{TS+2}, v{TS+3}, vcc
    v_cndmask_b32 v{vINC}, 0, v{TS+4}, vcc
    v_lshl_or_b32 v{oR}, v{TS+1}, 1, v{hh}
    v_lshlrev_b32 v{oR}, 1, v{oR}
    v_lshlrev_b32 v{oM}, 4, v1
    """)
    chunk_bar(9, 8)
    a(f"""
    s_mul_i32 s24, s{sM}, 18
    s_add_u32 s25, s24, 17
    s_lshr_b32 s24, s24, 6
    s_lshr_b32 s25, s25, 6
    s_sub_u32 s25, s25, s24
    v_and_b32 v{TS+1}, s25, v1
    v_add_u32 v{TS+21}, s24, v{TS+1}
    v_bfe_u32 v{TS+22}, v1, 1, 2
    v_min_u32 v{TS+22}, 2, v{TS+22}                ; matrix
    v_mad_u32_u24 v{TS+23}, v{TS+22}, 9, v{TS+21}  ; col64
    v_bfe_u32 v{TS+24}, v1, 3, 2
    v_lshlrev_b32 v{TS+3}, 7, v{TS+24}
    v_lshl_or_b32 v{TS+3}, v{TS+23}, 2, v{TS+3}
    s_lshl_b32 s24, s{sJ}, 9
    s_add_u32 s24, s24, {WS_FL1}
    v_add_u32 v{TS+11}, s24, v{TS+3}
    v_mov_b32 v{vM}, {MISC}
    v_mov_b32 v{vONE}, 1
    v_mov_b32 v{vZ}, 0
    s_lshl_b32 s24, s{sWAVE}, 2
    s_add_u32 s24, s24, {MISC + M_PROG}
    v_min_u32 v{vPW}, 1, v1
    v_lshl_add_u32 v{vPW}, v{vPW}, 13, s24
    v_min_u32 v{vPR}, 8, v1
    v_lshl_add_u32 v{vPR}, v{vPR}, 2, v{vM}
    s_mul_i32 s24, s{sWAVE}, 2560
    s_add_u32 s24, s24, {L_CB}
    s_cmp_eq_u32 s{sWAVE}, 7
    s_cselect_b32 s24, {MISC + M_CB7}, s24
    v_add_u32 v{cW16}, s24, v{oM}
    v_lshl_add_u32 v{cW8}, v1, 3, s24
    s_xor_b32 s25, s{sWAVE}, 4
    s_mul_i32 s25, s25, 2560
    s_add_u32 s25, s25, {L_CB}
    s_cmp_eq_u32 s{sWAVE}, 3
    s_cselect_b32 s25, {MISC + M_CB7}, s25
    v_add_u32 v{cR16}, s25, v{oM}
    v_lshl_add_u32 v{cR8}, v1, 3, s25
    """)
    final_addr(a, TS + 1)
    chunk_bar(5)
    a(f"""
    v_mul_u32_u24 v{TS+1}, 18, v{hh}
    v_lshl_add_u32 v{TS+1}, v{g1}, 2, v{TS+1}
    v_add_u32 v{TS+1}, v{TS+1}, v{r_}
    v_mul_u32_u24 v{TS+1}, 160, v{TS+1}
    s_mul_i32 s24, s12, {288*160}
    s_add_u32 s24, s24, {L_WO}
    v_add3_u32 v{aWm}, v{TS+1}, v{c8}, s24
    v_lshrrev_b32 v{TS+1}, 1, v{r_}
    v_lshl_add_u32 v{TS+1}, v{G_}, 2, v{TS+1}
    v_mul_u32_u24 v{TS+1}, 18, v{TS+1}
    v_and_b32 v{TS+2}, 1, v{r_}
    v_add3_u32 v{TS+1}, v{TS+1}, v{TS+2}, 16
    v_mul_u32_u24 v{TS+1}, 160, v{TS+1}
    v_add3_u32 v{aWr}, v{TS+1}, v{c8}, s24
    v_and_b32 v{TS+1}, 15, v1
    v_lshlrev_b32 v{aFl}, 2, v{TS+1}
    s_and_b32 s24, s13, 1
    s_lshl_b32 s24, s24, 4
    v_add_u32 v{TS+2}, s24, v{TS+1}
    v_lshlrev_b32 v{TS+3}, 9, v{G_}
    v_lshl_add_u32 v{aOr}, v{TS+2}, 2, v{TS+3}
    v_lshl_add_u32 v{aOm}, v{TS+2}, 4, v{TS+3}
    s_lshl_b32 s24, s13, 4
    v_add_u32 v{TS+1}, s24, v{TS+1}
    v_mul_u32_u24 v{TS+1}, {AS}, v{TS+1}
    s_mul_i32 s24, s12, {L_A1 - L_A0}
    s_add_u32 s24, s24, {L_A0}
    v_lshlrev_b32 v{TS+2}, 4, v{G_}
    v_add3_u32 v{aPw}, v{TS+1}, v{TS+2}, s24
    s_lshl2_add_u32 s24, s{sJ}, s13
    s_lshl1_add_u32 s24, s24, s12
    s_lshl_b32 s24, s24, 5
    s_add_u32 s24, s24, s{sM}
    s_lshl_b32 s52, s24, 10
    s_add_u32 s52, s52, {WS_OL}
    s_lshl_b32 s53, s24, 7
    s_add_u32 s53, s53, {WS_OL + O_REM}
    s_lshl_b32 s54, s24, 2
    s_add_u32 s54, s54, {WS_FL2}
    s_and_b32 s24, s{sM}, 3
    s_lshl2_add_u32 s24, s{sJ}, s24
    s_lshr_b32 s25, s13, 1
    s_lshl1_add_u32 s24, s24, s25
    s_lshl1_add_u32 s24, s24, s12
    s_lshl_b32 s24, s24, 4
    s_lshl_b32 s55, s24, 10
    s_add_u32 s55, s55, {WS_OL}
    s_lshl_b32 s56, s24, 7
    s_add_u32 s56, s56, {WS_OL + O_REM}
    s_lshl_b32 s57, s24, 2
    s_add_u32 s57, s57, {WS_FL2}
    """)
    regaddr(a, TS + 14)
    chunk_bar(1, 9)
    a(f"""
    {regload(TS + 14, TS + 15)}
    s_mov_b32 s8, s{pX}
    s_mov_b32 s9, s{pX+1}
    s_mov_b32 s10, {XB}
    v_lshrrev_b32 v{TS+1}, 3, v1
    v_mul_u32_u24 v{TS+1}, 1152, v{TS+1}
    v_and_b32 v{TS+2}, 7, v1
    v_lshl_add_u32 v{TS+1}, v{TS+2}, 2, v{TS+1}
    v_mov_b32 v{TS+3}, 0x3f803f80
    s_barrier
    ds_write_b32 v{TS+1}, v{TS+3}
    buffer_load_dwordx4 {vr(XD,4)}, v{vXO}, {RA}, 0 offen
    """)
    for i in range(0, 32, 2): a(f"v_pk_mov_b32 {vr(O+i,2)}, 0, 0") if False else a(f"v_mov_b64 {vr(O+i,2)}, 0")
    a(f"""
    v_lshlrev_b32 v{TS+13}, 4, v0
    s_lshl_b32 s25, s{sWAVE}, 10
    s_add_u32 s26, s25, {L_QS - 18432 + 16384}
    s_add_u32 s25, s25, {KV0}
    s_add_u32 s27, s25, 16384
    s_cmp_lt_u32 s{sWAVE}, 2
    s_cselect_b32 s27, s27, s26
    s_mov_b32 s14, 0
    s_mov_b32 s61, 0
    """)
    regwait(a, TS + 14, TS + 15, preloaded=True, sleep=o.get('s0', 32))
    a("s_mov_b32 exec_hi, 0\n; STAMP 1")
    poll(a, f"buffer_load_dword v{TS+2}, v{TS+11}, {RW}, 0 offen sc1\nds_read_b32 v{TS+3}, v{vM} offset:{M_MODE}",
         f"v_cmp_ne_u32 vcc, s{sTAG}, v{TS+2}",
         extra=f"s_waitcnt lgkmcnt(0)\nv_cmp_eq_u32 vcc, 2, v{TS+3}\ns_cbranch_vccnz L_general1", sleep=o.get("s1", 2))
    a(f"""
L_stage1:
    ; STAMP 2
    s_mov_b32 exec_hi, -1
    s_mov_b32 m0, s25
    s_add_u32 s24, s15, 8192
    buffer_load_dwordx4 v{TS+13}, {RW}, s15 offen sc1 lds
    s_add_u32 m0, s25, 8192
    s_add_u32 s28, s15, 16384
    buffer_load_dwordx4 v{TS+13}, {RW}, s24 offen sc1 lds
    s_mov_b32 m0, s27
    s_cmp_ge_u32 s{sWAVE}, 3
    buffer_load_dwordx4 v{TS+13}, {RW}, s28 offen sc1 lds
    s_cbranch_scc1 L_no4
    s_add_u32 m0, s26, 8192
    s_add_u32 s28, s15, 24576
    buffer_load_dwordx4 v{TS+13}, {RW}, s28 offen sc1 lds
L_no4:
    s_mov_b64 exec, 1
    s_setprio 2
    s_waitcnt vmcnt(0)
    ; STAMP 14
    ds_add_u32 v{vM}, v{vONE} offset:{M_C0}
    s_mov_b64 exec, -1
    """)
    def toff(t): return t * 2304 if t < 4 else SLOT + (t - 4) * 2304
    def kreads(off): return [f"ds_read_b64_tr_b16 {vr(KM+2*m,2)}, v{aK} offset:{off + m*128}" for m in range(2)]
    def krread(off): return f"ds_read_b64_tr_b16 {vr(KR,2)}, v{aKR} offset:{off}"
    def vread(g, off): return f"ds_read_b128 {vr(V+4*g,4)}, v{aV} offset:{off + g*1152}"
    def m2b(Y, ab, c=None): return f"v_mfma_f32_32x32x4_2b_bf16 {vr(Y,32)}, {vr(KR,2)}, {vr(QR,2)}, {vr(Y,32)} cbsz:1 abid:{ab}"
    def smf(p, i): return f"v_smfmac_f32_32x32x32_bf16 {vr(O+16*(i>>1),16)}, {vr(V+4*(i&1),4)}, {vr(S[p]+8*i,8)}, v{IDX}"
    def exps(p, lo, hi): return [f"v_exp_f32 v{S[p]+i}, v{S[p]+i}" for i in range(lo, hi)]
    first = [f"ds_read_b32 v{T0}, v{vM} offset:{M_C0}"] + kreads(0)
    first += [f"ds_read_b64_tr_b16 {vr(QM+4*t+2*m,2)}, v{TS+8+t} offset:{m*128}" for t in range(2) for m in range(2)]
    first += [f"ds_read_b64_tr_b16 {vr(QR,2)}, v{TS+10}", krread(0)]
    poll(a, "\n".join(first), f"v_cmp_ne_u32 vcc, 8, v{T0}", wait="s_waitcnt lgkmcnt(2)")
    a(mf32(S[0], KM, QM, 0)); a(mf32(S[0] + 16, KM, QM + 4, 0))
    for x in kreads(toff(1)): a(x)
    a(vread(0, 0)); a(vread(1, 0))
    a(f"s_waitcnt lgkmcnt(4)\nv_mov_b32 v{QR+1}, 0\ns_nop 3")
    a(m2b(S[0], 0))
    a("s_setprio 0\ns_nop 15\ns_nop 2")
    a("; STAMP 3")
    a(".p2align 6\nL_att:")
    PP = o.get("pp", 2)
    prog_ck = f"v_cmp_ge_u32 vcc, s14, v{vF}"
    for u in range(4):
        p = u & 1; q = 1 - p
        seq = exps(p, 0, PP) + ["s_setprio 1"] + exps(p, PP, 32)
        seq += ["s_setprio 2", "s_waitcnt lgkmcnt(0)", mf32(S[q], KM, QM, 0)]
        if u == 2: seq += [prog_ck]
        if u == 3: seq += [f"ds_add_u32 v{vPW}, v{vONE}", f"v_add_u32 v{aK}, {SLOT}, v{aK}"]
        seq += [mf32(S[q] + 16, KM, QM + 4, 0)]
        if u == 2: seq += ["s_cbranch_vccnz L_att_wait", "L_att_back:"]
        seq += kreads(toff(u + 2) if u < 3 else toff(1))
        seq += ["s_nop 2", smf(p, 0), "s_nop 3", m2b(S[q], (u + 1) & 1)]
        if u % 2 == 0: seq += [krread(toff(u + 2)), "s_nop 9"]
        if u == 1: seq += ["s_nop 10"]
        if u == 3: seq += [f"v_add_u32 v{aKR}, {SLOT}, v{aKR}", f"v_add_u32 v{aV}, v{vINC}, v{aV}", "s_nop 8"]
        seq += [smf(p, 2), vread(0, toff(u + 1) if u < 3 else 0), "s_nop 1", smf(p, 1)]
        seq += ["s_add_u32 s14, s14, 1", "s_cmp_lt_u32 s14, 8"] if u == 3 else ([prog_rd, "s_nop 0"] if u == 1 else ["s_nop 1"])
        seq += [smf(p, 3), vread(1, toff(u + 1) if u < 3 else 0), "s_setprio 0"]
        for x in seq: a(x)
    a("s_cbranch_scc1 L_att")
    LO = (127 - 40) << 23
    a(f"""
    ; STAMP 4
    s_nop 5
L_combine:
    ds_write_b128 v{cW16}, {vr(O,4)}
    ds_write_b128 v{cW16}, {vr(O+4,4)} offset:1024
    ds_write_b64 v{cW8}, {vr(O+8,2)} offset:2048
    v_subrev_u32 v{T0}, {LO}, v{O+9}
    v_subrev_u32 v{T0+1}, {LO}, v{O+25}
    v_max_u32 v{T0}, v{T0}, v{T0+1}
    v_cmp_lt_u32 vcc, {80 << 23}, v{T0}
    s_cbranch_vccnz L_lbad
L_lok:
    s_waitcnt lgkmcnt(0)
    s_barrier                          ; BE
    ; STAMP 10
    ds_read_b64 {vr(T0+2,2)}, v{vM} offset:{M_BAD}
    ds_read_b64 {vr(O+8,2)}, v{cR8} offset:2048
    ds_read_b128 {vr(O,4)}, v{cR16}
    ds_read_b128 {vr(O+4,4)}, v{cR16} offset:1024
    {final_rd}
    s_waitcnt lgkmcnt(4)
    v_add_f32 v{O+9}, v{O+9}, v{O+25}
    v_cmp_lt_u32 vcc, s61, v{T0+2}
    v_rcp_f32 v{O+10}, v{O+9}
    s_cbranch_vccnz L_fallback
    v_cmp_ne_u32 vcc, 1, v{T0+3}
    v_add_f32 v{O+8}, v{O+8}, v{O+24}
    s_waitcnt lgkmcnt(2)
    """)
    for i in range(0, 8, 2): a(f"v_pk_add_f32 {vr(O+i,2)}, {vr(O+i,2)}, {vr(O+16+i,2)}")
    for i in range(0, 10, 2): a(f"v_pk_mul_f32 {vr(O+i,2)}, {vr(O+i,2)}, {vr(O+10,2)} op_sel_hi:[1,0]")
    for i in range(5): a(f"v_cvt_pk_bf16_f32 v{O+i}, v{O+2*i}, v{O+2*i+1}")
    def wreads(s):
        r = []
        for n in range(5):
            for m in range(2):
                reg, off = (aWm, (36 * s + 8 * m) * 160 + 32 * n) if s < 8 else (aWr, 36 * m * 160 + 32 * n)
                r.append(f"ds_read_b64_tr_b16 {vr(W[s%3]+4*n+2*m,2)}, v{reg} offset:{off}")
        return r
    a(f"""
    s_cbranch_vccnz L_ostore_g
    buffer_store_dwordx4 {vr(O,4)}, v{oM}, {RW}, s52 offen
    buffer_store_short v{O+4}, v{oR}, {RW}, s53 offen
L_ostored:
    s_waitcnt lgkmcnt(0)
    """)
    for x in wreads(0): a(x)
    final_pre(a)
    for x in wreads(1): a(x)
    a(f"""
    s_mov_b64 exec, 1
    s_waitcnt vmcnt(0)
    s_cbranch_vccnz L_oflag_g
    buffer_store_dword v{vONE}, v{vZ}, {RW}, s54 offen
L_oflagged:
    ; STAMP 11
    s_mov_b64 exec, -1
    """)
    fl = f"buffer_load_dword v{T0}, v{aFl}, {RW}, s57 offen sc1"
    a(fl)
    for x in wreads(2): a(x)
    poll(a, fl, f"v_cmp_ne_u32 vcc, 1, v{T0}", preloaded=True)
    a("; STAMP 5")
    for st in range(8):
        a(f"buffer_load_dwordx4 {vr(OF+4*st,4)}, v{aOm}, {RW}, s55 offen offset:{(st%2)*2048} sc1")
        if st in (1, 3, 5): a("s_add_u32 s55, s55, 4096")
    for i in range(4):
        a(f"buffer_load_dword v{OF+32+i}, v{aOr}, {RW}, s56 offen offset:{i*128} sc1")
    for st in range(9):
        lg = 0 if st in (0, 8) else (10 if st == 7 else (14 if st >= 3 else 15))
        a(f"s_waitcnt vmcnt({11 - st if st < 8 else 0}) lgkmcnt({lg})")
        r = wreads(st + 3) if st < 6 else []
        for n in range(5):
            a(mf16(ACC + 4 * n, W[st % 3] + 4 * n, OF + 4 * st, 0 if st == 0 else None))
            for x in r[2*n:2*n+2]: a(x)
    a("; STAMP 12\ns_nop 3")
    for n in range(5):
        if n == 4: a("s_mov_b32 exec_hi, 0")
        a(f"ds_write_b128 v{aPw}, {vr(ACC+4*n,4)} offset:{64*n}")
    a(f"""
    s_mov_b32 exec_hi, -1
L_final:
    s_cmp_lg_u64 s[26:27], 0
    s_waitcnt lgkmcnt(0)
    s_barrier                          ; BA
    ; STAMP 6
    ds_read_b128 v[24:27], v{aAr}
    ds_read_b128 v[32:35], v{aAr} offset:{L_A1 - L_A0}
    ds_read_b128 v[28:31], v{aAr} offset:16
    ds_read_b128 v[36:39], v{aAr} offset:{L_A1 - L_A0 + 16}
    s_cbranch_scc1 L_routed
L_mix:
    """)
    for hf in range(2):
        a(f"s_waitcnt lgkmcnt({2 - 2*hf})")
        for i in (4*hf, 4*hf+2): a(f"v_pk_add_f32 {vr(24+i,2)}, {vr(24+i,2)}, {vr(32+i,2)}")
        for i in (4*hf, 4*hf+2): a(f"v_pk_fma_f32 {vr(24+i,2)}, {vr(24+i,2)}, {vr(vG,2)}, {vr(XBR+i,2)} op_sel_hi:[1,0,1]")
        for i in (2*hf, 2*hf+1): a(f"v_cvt_pk_bf16_f32 v{16+i}, v{24+2*i}, v{25+2*i}")
    a(f"""
    buffer_store_dwordx4 v[16:19], v{vXO}, {RA}, 0 offen
L_end:
    s_endpgm
    """)
    a(f"""
L_clear:
    s_mul_i32 s24, s{sJ}, 12288
    s_add_u32 s24, s24, {WS_CLR}
    v_lshlrev_b32 v3, 4, v0
    v_mov_b64 v[4:5], 0
    v_mov_b64 v[6:7], 0
    v_mov_b32 v8, 1
    s_waitcnt lgkmcnt(0)
    buffer_store_dwordx4 v[4:7], v3, {RW}, s24 offen sc1
    s_lshl_b32 s24, s{sJ}, 5
    s_cmp_lg_u32 s{sWAVE}, 0
    s_waitcnt vmcnt(0)
    s_barrier
    s_cbranch_scc1 L_cleared
    s_mov_b64 exec, 1
    buffer_store_dword v8, v4, {RD}, s24 offen sc1
    s_mov_b64 exec, -1
    s_branch L_cleared
L_general1:
    v_cmp_gt_u32 vcc, 2, v{TS+22}
    v_lshl_add_u32 v{TS+5}, v{TS+21}, 1, v{TS+22}
    s_sub_u32 s15, s15, {WS_LOC - WS_GLB}
    v_cndmask_b32 v{TS+1}, v{TS+23}, v{TS+5}, vcc
    v_and_b32 v{TS+3}, 30, v{TS+1}
    v_lshrrev_b32 v{TS+4}, 1, v{TS+24}
    v_or_b32 v{TS+3}, v{TS+3}, v{TS+4}             ; member
    v_lshlrev_b32 v{TS+3}, 10, v{TS+3}
    v_and_b32 v{TS+2}, 1, v{TS+24}
    v_and_b32 v{TS+1}, 1, v{TS+1}
    v_xor_b32 v{TS+1}, 1, v{TS+1}
    v_lshl_or_b32 v{TS+1}, v{TS+2}, 1, v{TS+1}
    v_lshl_or_b32 v{TS+3}, v{TS+1}, 2, v{TS+3}
    v_min_u32 v{TS+1}, 1, v{TS+22}
    v_lshl_add_u32 v{TS+3}, v{TS+1}, 4, v{TS+3}
    s_lshl_b32 s24, s{sJ}, 7
    s_add_u32 s24, s24, {WS_FG1 + 32}
    """)
    poll(a, f"buffer_load_dword v{TS+2}, v{TS+3}, {RW}, s24 offen sc1", f"v_cmp_ne_u32 vcc, 1, v{TS+2}", sleep=4)
    a("s_branch L_stage1\nL_att_wait:")
    poll(a, prog_rd, prog_ck, sleep=1)
    a(f"""
    ; STAMP 13
    s_branch L_att_back
L_lbad:
    ds_write_b32 v{vM}, v{IDX} offset:{M_BAD}
    s_branch L_lok
L_ostore_g:
    s_sub_u32 s52, s52, {WS_OL - WS_OG}
    s_sub_u32 s53, s53, {WS_OL - WS_OG}
    s_sub_u32 s55, s55, {WS_OL - WS_OG}
    s_sub_u32 s56, s56, {WS_OL - WS_OG}
    buffer_store_dwordx4 {vr(O,4)}, v{oM}, {RW}, s52 offen sc1
    buffer_store_short v{O+4}, v{oR}, {RW}, s53 offen sc1
    s_branch L_ostored
L_oflag_g:
    buffer_store_dword v{vONE}, v{vZ}, {RW}, s54 offen sc1
    s_branch L_oflagged
L_routed:
    v_sub_u32 v20, v{aG}, v{vM}
    v_mul_u32_u24 v20, 72, v20
    v_lshlrev_b32 v21, 5, v0
    v_sub_u32 v20, v21, v20            ; piece * 32
    v_add_u32 v21, {MISC + M_Y + 320}, v20
    v_add_u32 v20, {MISC + M_Y}, v20
    v_cndmask_b32 v20, v20, v21, s[28:29]
    ds_read_b128 v[40:43], v20
    ds_read_b128 v[44:47], v20 offset:16
    s_mov_b64 exec, s[26:27]
    """)
    for i in range(4):
        a(f"v_lshlrev_b32 v{XBR+2*i}, 16, v{XD+i}\nv_and_b32 v{XBR+2*i+1}, 0xffff0000, v{XD+i}")
    a("s_waitcnt lgkmcnt(0)")
    for i in range(8):
        a(f"v_add_f32 v{XBR+i}, v{XBR+i}, v{40+i}")
        rne_bf16(a, XBR + i)
        a(f"v_mul_f32 v{XBR+i}, v{XBR+i}, v{OMG}")
        rne_bf16(a, XBR + i)
    a("s_mov_b64 exec, -1\ns_branch L_mix")
    M0r, M1r = T0 + 4, T0 + 5
    a(f"""
L_fallback:
    s_waitcnt lgkmcnt(0)
    s_barrier
    s_barrier                          ; K/V reloaded
    s_mul_i32 s24, s12, 9216
    s_add_u32 s24, s24, {8 * SLOT}
    v_subrev_u32 v{aK}, s24, v{aK}
    v_subrev_u32 v{aKR}, s24, v{aKR}
    v_lshlrev_b32 v{T0}, 3, v{vINC}
    v_sub_u32 v{aV}, v{aV}, v{T0}
    v_mov_b32 v{M0r}, 0xff800000
    v_mov_b32 v{M1r}, 0xff800000
    s_mov_b32 s14, 0
L_fb_max:
    """)
    for t in range(2):
        for x in kreads(t * 2304): a(x)
        if t == 0: a(krread(0))
        a("s_waitcnt lgkmcnt(0)")
        a(mf32(S[0], KM, QM, 0)); a(mf32(S[0] + 16, KM, QM + 4, 0))
        a("s_nop 9"); a(m2b(S[0], t)); a("s_nop 15\ns_nop 3")
        for i in range(0, 16, 2):
            a(f"v_max3_f32 v{M0r}, v{S[0]+i}, v{S[0]+i+1}, v{M0r}")
            a(f"v_max3_f32 v{M1r}, v{S[0]+16+i}, v{S[0]+17+i}, v{M1r}")
    a(f"""
    v_add_u32 v{aK}, 4608, v{aK}
    v_add_u32 v{aKR}, 4608, v{aKR}
    s_add_u32 s14, s14, 1
    s_cmp_lt_u32 s14, 32
    s_cbranch_scc1 L_fb_max
    v_mov_b32 v{T0}, v{M0r}
    v_mov_b32 v{T0+1}, v{M1r}
    s_mul_i32 s24, s12, 9216
    s_sub_u32 s24, {8 * SLOT}, s24
    v_permlane32_swap_b32 v{T0}, v{M0r}
    v_permlane32_swap_b32 v{T0+1}, v{M1r}
    v_subrev_u32 v{aK}, s24, v{aK}
    v_subrev_u32 v{aKR}, s24, v{aKR}
    v_max_f32 v{M0r}, v{T0}, v{M0r}
    v_max_f32 v{M1r}, v{T0+1}, v{M1r}
    """)
    for i in range(0, 32, 2): a(f"v_mov_b64 {vr(O+i,2)}, 0")
    a("s_mov_b32 s14, 0\nL_fb_pv:")
    for t in range(4):
        for x in kreads(t * 2304): a(x)
        if t % 2 == 0: a(krread(t * 2304))
        a(vread(0, t * 2304)); a(vread(1, t * 2304))
        a("s_waitcnt lgkmcnt(0)")
        a(mf32(S[0], KM, QM, 0)); a(mf32(S[0] + 16, KM, QM + 4, 0))
        a("s_nop 9"); a(m2b(S[0], t & 1)); a("s_nop 15\ns_nop 3")
        for i in range(32):
            a(f"v_sub_f32 v{S[0]+i}, v{S[0]+i}, v{M0r + (i >> 4)}")
        for x in exps(0, 0, 32): a(x)
        a("s_nop 1")
        for i in range(4): a(smf(0, i))
    a(f"""
    v_add_u32 v{aK}, {SLOT}, v{aK}
    v_add_u32 v{aKR}, {SLOT}, v{aKR}
    v_add_u32 v{aV}, v{vINC}, v{aV}
    s_add_u32 s14, s14, 1
    s_cmp_lt_u32 s14, 8
    s_cbranch_scc1 L_fb_pv
    s_mov_b32 s61, -1
    s_nop 7
    s_barrier
    s_branch L_combine
    """)
    ACC1 = 64; FR = 32; RG = "s[52:55]"
    a(f"""
L_service:
    s_setprio 3
    s_getreg_b32 s24, hwreg(HW_REG_XCC_ID)
    s_and_b32 s24, s24, 15
    s_add_u32 s{sTAG}, {"s2" if o.get("slow") else "s24"}, 1
    s_sub_u32 s12, s{sWAVE}, 8         ; sw
    s_lshr_b32 s13, s12, 1             ; wm
    s_andn2_b32 s14, 1, s12
    s_lshl_b32 s62, s2, 7
    s_lshl2_add_u32 s62, s12, s62
    s_add_u32 s62, s62, {WS_FG1}
    s_mov_b32 s59, 3
    s_mov_b32 s54, 0
    s_mov_b32 s55, 0x00020000
    v_mov_b64 v[28:29], 0
    s_cmp_lg_u32 s12, 0
    s_waitcnt lgkmcnt(0)
    s_mov_b32 s52, s16
    s_mov_b32 s53, s17
    s_cbranch_scc1 L_noinit
    v_lshlrev_b32 v8, 2, v1
    v_lshrrev_b32 v9, 3, v1
    v_cmp_eq_u32 vcc, 2, v9
    v_add_u32 v8, {MISC}, v8
    s_nop 0
    v_cndmask_b32 v9, 0, v9, vcc
    ds_write_b32 v8, v9
L_noinit:
    s_cmp_ge_u32 s{sM}, 28
    s_cbranch_scc1 L_rg
    v_and_b32 v3, 19, v1
    v_bfe_u32 v12, v1, 2, 1
    v_lshl_or_b32 v3, v12, 3, v3
    v_bfe_u32 v12, v1, 3, 1
    v_lshl_or_b32 v3, v12, 2, v3
    v_bfe_u32 v12, v3, 1, 3
    v_lshrrev_b32 v13, 5, v1           ; hh
    v_xor_b32 v12, v12, v13
    v_lshlrev_b32 v12, 4, v12
    v_lshl_or_b32 v12, v3, 7, v12
    s_lshl_b32 s24, s13, 13
    v_add_u32 v16, s24, v12
    v_xor_b32 v17, 32, v16
    v_xor_b32 v18, 64, v16
    v_xor_b32 v19, 96, v16
    v_bfe_u32 v3, v1, 2, 2
    v_lshl_add_u32 v12, v13, 3, v3
    v_lshlrev_b32 v12, 8, v12
    s_lshl_b32 s24, s14, 1
    v_xor_b32 v14, s24, v3
    v_lshl_or_b32 v12, v14, 6, v12
    v_bfe_u32 v14, v1, 4, 1
    v_lshl_or_b32 v12, v14, 5, v12
    v_and_b32 v14, 3, v1
    v_lshl_or_b32 v12, v14, 3, v12
    v_add_u32 v20, 16384, v12
    v_xor_b32 v21, 64, v20
    s_and_b32 s24, s{sM}, 30
    s_add_u32 s24, s24, s14
    s_lshr_b32 s25, s{sM}, 1
    s_mul_i32 s26, s14, 9
    s_add_u32 s25, s25, s26
    s_cmp_lt_u32 s{sM}, 18
    s_cselect_b32 s24, s25, s24        ; col64
    s_cmp_ge_u32 s24, 9
    s_cselect_b32 s59, 1, 0
    s_cmp_ge_u32 s24, 18
    s_addc_u32 s59, s59, 0             ; matrix 0 q, 1 k, 2 v
    s_mul_i32 s26, s59, 9
    s_sub_u32 s26, s24, s26
    s_lshl_b32 s26, s26, 6
    s_lshr_b32 s27, s59, 1             ; is v
    s_mov_b32 s28, {HS}
    """)
    for nt in range(2):
        a(f"""
        v_and_b32 v3, 31, v1
        v_add3_u32 v3, v3, s26, {32*nt}
        v_mul_u32_u24 v12, 3641, v3
        v_lshrrev_b32 v12, 16, v12         ; head
        v_mul_u32_u24 v14, 18, v12
        v_sub_u32 v3, v3, v14              ; d
        v_lshrrev_b32 v14, 4, v3
        v_and_b32 v14, s27, v14
        v_xor_b32 v14, v14, v13
        v_lshlrev_b32 v14, 4, v14
        v_lshl_or_b32 v3, v3, 5, v14
        v_mad_u32_u24 v{28+nt}, v12, s28, v3
        """)
    GO = [56, 57, 58, 60]
    a(f"""
    s_mul_i32 s27, s27, 576
    s_and_b32 s25, s{sM}, 1
    s_lshl1_add_u32 s25, s25, s13
    s_mul_i32 s28, s25, 2304
    s_add_u32 s27, s27, s28
    s_mul_i32 s28, s{sJ}, {JS}
    s_add_u32 s27, s27, s28
    s_lshl2_add_u32 s25, s{sJ}, s25
    s_lshl_b32 s25, s25, 7
    s_lshl2_add_u32 s61, s24, s25
    s_add_u32 s61, s61, {WS_FL1}
    s_movk_i32 s25, 1152
    s_movk_i32 s26, 9216
    s_cmp_eq_u32 s59, 0
    s_cselect_b32 s28, 18432, 0
    s_cselect_b32 s26, s25, s26
    s_cselect_b32 s25, 576, s25
    s_cselect_b32 s54, 0, s18
    s_add_u32 s56, s27, s28
    s_add_u32 s57, s56, s25
    s_add_u32 s58, s56, s26
    s_add_u32 s60, s58, s25
    s_cmp_eq_u32 s59, 0
    s_cselect_b32 s26, {f32bits(QSCALE)}, 1.0
    s_mov_b32 s27, s26
    s_cmp_eq_u32 s24, 27
    s_cselect_b32 s59, 3, s59
    s_cselect_b32 s54, 0, s54
    s_cselect_b32 s18, 0, s18
    s_mov_b32 s24, 0
    s_mov_b32 s25, 0
    """)
    for i in range(0, 64, 2): a(f"v_mov_b64 {vr(ACC1+i,2)}, 0")
    for i in range(0, 16, 2): a(f"v_mov_b64 {vr(FR+16+i,2)}, 0")
    for i in range(0, 6, 2): a(f"v_mov_b64 {vr(22+i,2)}, {vr(16+i,2)}")
    a(f"v_add_u32 v30, {WS_LOC}, v28\nv_add_u32 v31, {WS_LOC}, v29")
    FS = [FR, FR + 16, 128, 144]
    def reads(kk, st):
        A = FS[st]; B = A + 8
        r = [f"ds_read_b128 {vr(A+4*mt,4)}, v{22+kk} offset:{4096*mt}" for mt in range(2)]
        b = [f"ds_read_b64_tr_b16 {vr(B+4*nt+2*m,2)}, v{26+nt} offset:{(16*kk+4*m)*256}" for nt in range(2) for m in range(2)]
        return [r[0]] + b + [r[1]]
    def mfmas(st):
        A = FS[st]; B = A + 8
        return [mf32(ACC1 + 16 * (2 * mt + nt), A + 4 * mt, B + 4 * nt) for mt in range(2) for nt in range(2)]
    regaddr(a, 3)
    a("; STAMP 1")
    a(".p2align 4\nL_gemm:")
    for kk in range(4):
        r = reads(kk, kk & 1); m = mfmas((kk + 1) & 1)
        a("s_waitcnt lgkmcnt(3)")
        a(m[0])
        if kk == 0:
            a("s_waitcnt lgkmcnt(0)\ns_barrier")
            if o.get("gstamp"): a("s_cmp_lg_u32 s24, 0\ns_cbranch_scc1 L_gs1\n; STAMP 7\nL_gs1:")
            a(m[1]); a(r[0]); a(r[1]); a(r[2]); a(m[2]); a(r[3]); a(r[4]); a(r[5]); a(m[3])
            a("s_add_u32 s25, s25, 32768\ns_and_b32 s25, s25, 0x1ffff\ns_add_u32 s24, s24, 1")
        else:
            a(r[0]); a(r[1]); a("s_waitcnt lgkmcnt(3)"); a(m[1]); a(r[2]); a(r[3]); a("s_waitcnt lgkmcnt(4)"); a(m[2]); a(r[4]); a(r[5]); a(m[3])
        if kk == 2:
            for i in range(3): a(f"v_add_u32 v{22+i}, s25, v{16+i}")
            a("s_cmp_lt_u32 s24, 8")
        if kk == 3:
            for i in range(3, 6): a(f"v_add_u32 v{22+i}, s25, v{16+i}")
    a("s_cbranch_scc1 L_gemm")
    order = [0, 2, 3, 1]
    m = mfmas(1)
    a(regload(3, 4))
    a("s_waitcnt lgkmcnt(3)"); a(m[0]); a("s_waitcnt lgkmcnt(0)\ns_barrier\n; STAMP 8")
    rr = [reads(kk, order[kk]) for kk in range(4)]
    for kk in range(4):
        for x in rr[kk][:3]: a(x)
        if kk < 3: a(m[kk + 1])
    def tile_mf(t): return [mfmas(order[kk])[t] for kk in range(4)]
    def glb_store(mt, hf, nt): return f"buffer_store_dwordx4 {vr(ACC1+16*(2*mt+nt)+4*hf,4)}, v{28+nt}, {RG}, s{GO[2*mt+hf]} offen sc1"
    def tile_out(t):
        mt, nt = t >> 1, t & 1; D = ACC1 + 16 * t
        h = []
        for hf in range(2):
            h += [f"v_pk_mul_f32 {vr(D+8*hf+r,2)}, {vr(D+8*hf+r,2)}, s[26:27]" for r in range(0, 8, 2)]
            h += [f"v_cvt_pk_bf16_f32 v{D+4*hf+r}, v{D+8*hf+2*r}, v{D+8*hf+2*r+1}" for r in range(4)]
            h += [glb_store(mt, hf, nt) if t < o.get("early", 0) else "s_nop 0"]
            h += [f"buffer_store_dwordx4 {vr(D+4*hf,4)}, v{30+nt}, {RW}, s{GO[2*mt+hf]} offen"]
        return h
    t0 = tile_mf(0)
    for kk in range(4):
        a(f"s_waitcnt lgkmcnt({9 - kk})"); a(t0[kk]); a(rr[kk][3]); a(rr[kk][4])
    t1 = tile_mf(1); o0 = tile_out(0)
    a("s_waitcnt lgkmcnt(6)"); a(t1[0])
    for kk in range(4): a(rr[kk][5])
    a("s_waitcnt lgkmcnt(8)"); a(t1[1])
    a("s_nop 1")
    for x in o0[:4]: a(x)
    a("s_waitcnt lgkmcnt(6)"); a(t1[2])
    for x in o0[4:10]: a(x)
    a("s_waitcnt lgkmcnt(0)\ns_barrier                          ; BL"); a(t1[3])
    pend = o0[10:]
    for t in range(2, 4):
        mm = tile_mf(t); oo = tile_out(t - 1)
        for x in pend[:5]: a(x)
        a(mm[0])
        for x in pend[5:]: a(x)
        a(mm[1])
        for x in oo[:5]: a(x)
        a(mm[2])
        for x in oo[5:10]: a(x)
        a(mm[3])
        pend = oo[10:]
    for x in pend: a(x)
    a(f"; STAMP 2\nv_mov_b32 v6, s{sTAG}\nv_mov_b32 v5, 0")
    for x in tile_out(3):
        if x != "s_nop 0": a(x)
    a(f"v_mov_b32 v{vONE}, 1\n; STAMP 9")
    regwait(a, 3, 4, preloaded=True)
    a(f"""
    s_mov_b32 s18, {WS_END}
    s_mov_b64 exec, 1
    buffer_store_dword v6, v5, {RW}, s61 offen
    s_mov_b64 exec, -1
    ; STAMP 10
    """)
    if o.get("alate"):
        a(f"v_mov_b32 v{vM}, {MISC}")
        poll(a, f"ds_read_b32 v4, v{vM} offset:{M_C0}", f"v_cmp_gt_u32 vcc, 1, v4", sleep=1, spin=128)
    for nt in range(o.get("early", 0), 2):
        for hf in range(2): a(glb_store(0, hf, nt))
    a("L_svc:")
    vL16, sZ = 2, 5
    a(f"""
    s_and_b32 s15, s{sM}, 3
    s_lshl2_add_u32 s15, s{sJ}, s15
    s_lshl_b32 s15, s15, 6
    s_mov_b32 s61, 0
    v_mov_b32 v{vM}, {MISC}
    v_mov_b32 v{vONE}, 1
    v_lshlrev_b32 v{vL16}, 4, v1
    s_cmp_lg_u32 s12, 0
    s_cbranch_scc1 L_helper
    """)
    def late_stores():
        for hf in range(2):
            for nt in range(2): a(glb_store(1, hf, nt))
    def qpub():
        l = uid("qok")
        a(f"s_cmp_lg_u32 s59, 0\ns_cbranch_scc1 {l}")
        poll(a, f"ds_read_b32 v4, v{vM} offset:{M_MODE}", "v_cmp_eq_u32 vcc, 0, v4", sleep=4)
        a(f"v_cmp_eq_u32 vcc, 1, v4\ns_cbranch_vccnz {l}\ns_mov_b32 s54, {WS_END}")
        for mt in range(2):
            for hf in range(2):
                for nt in range(2): a(glb_store(mt, hf, nt))
        a("s_waitcnt vmcnt(0)")
        one_lane(a, f"buffer_store_dword v{vONE}, v{sZ}, {RW}, s62 offen offset:32 sc1")
        a(f"{l}:")
    def selwait():
        a(f"s_lshl_b32 s24, s{sJ}, 7\ns_add_u32 s24, s24, {WS_SEL}")
        poll(a, f"buffer_load_dwordx2 v[12:13], v{sZ}, {RW}, s24 offen sc1", "v_min_u32 v4, v12, v13\nv_cmp_eq_u32 vcc, 0, v4", sleep=4)
    def level(n=1): one_lane(a, f"ds_add_u32 v{vM}, v{vONE} offset:{M_FULL}", n)
    def flagA():
        a("s_waitcnt vmcnt(0)")
        if o.get("flate"): poll(a, f"ds_read_b32 v4, v{vM} offset:{M_C0}", f"v_cmp_gt_u32 vcc, 1, v4", sleep=1, spin=128)
        one_lane(a, f"buffer_store_dword v{vONE}, v{sZ}, {RW}, s62 offen sc1")
        a("; STAMP 3")
    def go(): one_lane(a, f"ds_add_u32 v{vM}, v{vONE} offset:{M_GO}")
    flagB = f"buffer_store_dword v{vONE}, v{sZ}, {RW}, s62 offen offset:48 sc1"
    final_addr(a, 3)
    a(f"v_and_b32 v{vPR}, 7, v1\nv_lshl_add_u32 v{vPR}, v{vPR}, 2, v{vM}")
    for i in range(5):
        a(f"""
        v_add_u32 v3, {64*i}, v1
        v_mul_u32_u24 v4, 6554, v3
        v_lshrrev_b32 v4, 16, v4
        v_mul_u32_u24 v9, 10, v4
        v_sub_u32 v3, v3, v9
        v_min_u32 v3, 8, v3
        v_mul_u32_u24 v4, 1152, v4
        v_lshl_add_u32 v{16+i}, v3, 4, v4
        """)
        if 0 < i < 4: a(f"v_subrev_u32 v{16+i}, {1024*i}, v{16+i}")
    a(f"""
    v_lshrrev_b32 v3, 3, v1
    v_and_b32 v4, 7, v1
    v_lshlrev_b32 v4, 7, v4
    v_lshl_or_b32 v21, v3, 15, v4
    v_lshlrev_b32 v22, 12, v3
    v_lshl_add_u32 v23, v1, 2, v{vM}
    s_mul_i32 s24, s{sM}, 18
    v_and_b32 v3, 1, v1
    v_mad_u32_u24 v3, v3, 17, s24
    v_lshrrev_b32 v3, 6, v3
    v_bfe_u32 v4, v1, 1, 1
    v_lshrrev_b32 v3, v4, v3
    v_mad_u32_u24 v3, v4, 9, v3        ; ct
    v_bfe_u32 v4, v1, 2, 1
    v_lshl_or_b32 v3, v3, 1, v4        ; member
    v_lshrrev_b32 v4, 3, v1
    v_add3_u32 v4, v4, s{sJ}, 1
    v_and_b32 v4, 7, v4
    v_lshl_or_b32 v3, v3, 3, v4        ; workgroup
    v_lshlrev_b32 v3, 7, v3
    s_mov_b32 s28, {WS_FG1}
    s_mul_i32 s25, s{sM}, {HS}
    s_mov_b32 s26, 1
    s_mov_b32 s27, {KV0 + SLOT}
    """)
    flagA()
    if not o.get("noc0"): poll(a, f"ds_read_b32 v4, v{vM} offset:{M_C0}", f"v_cmp_gt_u32 vcc, {o.get('c0n', 8)}, v4", sleep=1, spin=128)
    def gl(off): return f"buffer_load_dwordx4 v[12:15], v3, {RW}, s28 offen offset:{off} sc1"
    gc = "v_bitop3_b32 v12, v12, v13, v14 bitop3:0x80\nv_and_b32 v12, v12, v15\nv_cmp_ne_u32 vcc, 1, v12"
    def halves(n): a(f"s_movk_i32 s29, {n}\ns_call_b64 s[0:1], L_halves")
    def need(off, lanes, pre):
        poll(a, gl(off) + "\ns_waitcnt vmcnt(0)\nv_bitop3_b32 v24, v12, v13, v14 bitop3:0x80\nv_and_b32 v24, v24, v15",
             f"v_cmp_ne_u32 vcc, 1, v24\ns_lshl_b64 vcc, vcc, {64 - lanes}", sleep=2, preloaded=pre, wait="s_nop 0",
             extra=None if not pre else f"s_waitcnt vmcnt(0)\nv_mov_b32 v4, s13\nds_max_u32 v{vM}, v4 offset:{M_FULL}")
    def setlevel(x): a(f"v_mov_b32 v4, {x}\nds_max_u32 v{vM}, v4 offset:{M_FULL}")
    fold = "v_bitop3_b32 v24, v12, v13, v14 bitop3:0x80\nv_and_b32 v24, v24, v15"
    a(gl(0)); go(); late_stores()
    a("s_waitcnt vmcnt(4)\ns_mov_b32 s13, 0"); a(fold); need(0, 16, True)
    a("; STAMP 4")
    halves(2)
    a("s_waitcnt vmcnt(18)"); one_lane(a, flagB)
    if o.get("ser", 1):
        a("s_mov_b64 exec, 1\ns_waitcnt vmcnt(1)"); setlevel(1); a("s_mov_b64 exec, -1\n; STAMP 5")
    a("s_mov_b32 s13, 1"); need(0, 32, True)
    halves(2)
    if not o.get("ser", 1):
        a("s_mov_b64 exec, 1\ns_waitcnt vmcnt(19)"); setlevel(1); a("s_mov_b64 exec, -1\n; STAMP 5")
    a("s_mov_b32 s13, 2"); need(0, 64, True)
    halves(2)
    a(gl(48))
    a("s_mov_b64 exec, 1\ns_waitcnt vmcnt(19)"); setlevel(2)
    a("s_waitcnt vmcnt(1)"); setlevel(3)
    a("s_mov_b64 exec, -1\ns_waitcnt vmcnt(0)"); a(fold); need(48, 64, True)
    LEAD = o.get("lead", 4)
    if LEAD < 4:
        a(f"s_mov_b32 s13, {4 + 2 - LEAD}\nL_kvloop:")
        poll(a, prog_rd, f"v_cmp_gt_u32 vcc, s13, v{vF}", sleep=8)
        halves(2)
        a("s_waitcnt vmcnt(0)"); level()
        a(f"s_add_u32 s13, s13, 1\ns_cmp_lt_u32 s13, {8 + 2 - LEAD}\ns_cbranch_scc1 L_kvloop")
        level()
    else:
        halves(4); a("s_waitcnt vmcnt(18)"); level()
        halves(2); a("s_waitcnt vmcnt(18)"); level()
        poll(a, prog_rd, f"v_cmp_gt_u32 vcc, 3, v{vF}", sleep=4)
        halves(2); a("s_waitcnt vmcnt(18)"); level()
        a("s_waitcnt vmcnt(0)"); level(2)
    a("; STAMP 11")
    selwait()
    a(f"""
    ds_write_b64 v{vM}, v[12:13] offset:{M_SEL}
    s_lshl_b32 s24, s15, 2
    s_add_u32 s24, s24, {WS_G - MISC}
    buffer_load_dword v4, v23, {RW}, s24 offen sc1
    s_waitcnt vmcnt(0) lgkmcnt(0)
    ds_write_b32 v23, v4 offset:{M_G}
    buffer_load_dwordx4 {vr(XD,4)}, v{vXO}, {RA}, 0 offen
    """)
    poll(a, prog_rd, f"v_cmp_gt_u32 vcc, 7, v{vF}", sleep=16)
    a(f"""
L_wo:
    s_mov_b32 s52, s{pWO}
    s_mov_b32 s53, s{pWO+1}
    s_mov_b32 s54, {WOB}
    s_lshr_b32 s24, s{sM}, 2
    s_mul_i32 s24, s24, 144
    s_mov_b32 s25, {L_WO}
L_wo_loop:
    s_mov_b32 m0, s25
    s_nop 0
    """)
    for i in range(4): a(f"buffer_load_dwordx4 v{16+i}, {RG}, s24 offen offset:{1024*i} lds")
    a(f"""
    s_add_u32 m0, s25, 4096
    s_add_u32 s25, s25, 5120
    buffer_load_dwordx4 v20, {RG}, s24 offen lds
    s_add_u32 s24, s24, {32*1152}
    s_cmp_lt_u32 s25, {L_WO + 92160}
    s_waitcnt vmcnt(50)
    s_cbranch_scc1 L_wo_loop
    s_lshl_b32 s24, s{sJ}, 8
    s_add_u32 s24, s24, s{sM}
    s_lshl_b32 s25, s24, 10
    s_add_u32 s25, s25, {WS_OL}
    s_lshl_b32 s24, s24, 7
    s_add_u32 s24, s24, {WS_OL + O_REM}
    {"" if o.get("nopre") else f"buffer_load_dword v31, v21, {RW}, s25 offen sc1"}
    {"" if o.get("nopre") else f"buffer_load_dword v31, v22, {RW}, s24 offen sc1"}
    s_waitcnt vmcnt(0) lgkmcnt(0)
    ; STAMP 14
    s_barrier                          ; BE
    ds_read_b32 v4, v{vM} offset:{M_BAD}
    {final_rd}
    s_waitcnt lgkmcnt(0)
    v_cmp_lt_u32 vcc, s61, v4
    s_cbranch_vccnz L_w8_fb
    """)
    final_pre(a)
    a(f"""
    s_branch L_final
L_w8_fb:
    s_barrier
    s_mul_i32 s25, s{sM}, {HS}
    s_mov_b32 s26, 0
    s_mov_b32 s27, {KV0}
    """)
    halves(8)
    a("s_waitcnt vmcnt(0)\ns_mov_b32 s26, 0")
    halves(8)
    a(f"""
    s_waitcnt vmcnt(0)
    s_barrier
    s_mov_b32 s61, -1
    s_barrier
    s_branch L_wo
L_halves:
    s_add_u32 s24, s26, s{sJ}
    s_and_b32 s24, s24, 7
    s_mul_i32 s24, s24, {JS}
    s_mov_b32 m0, s27
    s_add_u32 s24, s24, s25
    """)
    for g in range(3):
        for u in range(4 if g < 2 else 1):
            a(f"buffer_load_dwordx4 v{vL16}, {RW}, s24 offen offset:{1024*u} sc1 lds")
        if g < 2: a(f"s_add_u32 m0, s27, {4096*(g+1)}\ns_add_u32 s24, s24, 4096")
    a(f"""
    s_add_u32 s27, s27, 9216
    s_add_u32 s26, s26, 1
    s_cmp_eq_u32 s26, 8
    s_cselect_b32 s26, 1, s26
    s_cselect_b32 s24, 9216, 0
    s_add_u32 s25, s25, s24
    s_sub_u32 s29, s29, 1
    s_cmp_lg_u32 s29, 0
    s_waitcnt vmcnt(54)
    s_cbranch_scc1 L_halves
    s_setpc_b64 s[0:1]
    """)
    aGU, aXF, aWR, aTG, aTD, aDN, aP, aHW, aHR, aY, vTK, aPW = 7, 8, 9, 22, 14, 15, 16, 17, 18, 19, 20, 21
    GA = 24; UA = 72; XF = 120; TR = 144; AC = 152
    a(f"""
L_helper:
    s_sub_u32 s13, s12, 1              ; third
    s_and_b32 s14, s12, 1
    v_lshrrev_b32 v3, 2, v1
    v_mul_u32_u24 v3, 9216, v3
    v_and_b32 v4, 3, v1
    v_lshl_add_u32 v{aGU}, v4, 4, v3
    v_lshlrev_b32 v4, 3, v4            ; 8c
    v_bfe_u32 v24, v1, 2, 2            ; r
    v_lshrrev_b32 v25, 4, v1           ; kg
    s_mul_i32 s24, s12, 2304
    s_add_u32 s24, s24, 32
    v_add_u32 v{aWR}, s24, v{vL16}
    v_and_b32 v3, 1, v25
    v_lshl_add_u32 v3, v3, 3, v24
    v_lshl_or_b32 v3, v3, 6, v4
    v_lshrrev_b32 v12, 5, v1
    v_mul_u32_u24 v13, 1152, v12
    v_add3_u32 v{aTG}, v3, v13, s24
    v_lshl_add_u32 v3, v25, 3, v24
    v_lshl_or_b32 v3, v3, 5, v4
    v_add_u32 v{aTD}, s24, v3
    v_lshrrev_b32 v3, 1, v1
    v_mul_u32_u24 v3, 1152, v3
    v_and_b32 v4, 1, v1
    v_lshl_add_u32 v{aDN}, v4, 4, v3
    v_lshl_add_u32 v{aP}, v1, 2, v{vM}
    s_lshl_b32 s25, s12, 7
    s_add_u32 s25, s25, {MISC + M_H}
    v_and_b32 v3, 15, v1
    v_lshl_or_b32 v4, v12, 4, v3
    v_and_b32 v24, 16, v1
    v_lshl_add_u32 v4, v24, 1, v4
    v_lshl_add_u32 v{aHW}, v4, 1, s25
    v_and_b32 v4, 4, v1
    v_add_u32 v4, v4, v25
    v_lshl_add_u32 v{aHR}, v4, 4, s25
    v_mul_u32_u24 v4, 2304, v25
    v_lshl_add_u32 v{aY}, v3, 2, v4
    s_mul_i32 s25, s13, 384
    v_lshl_add_u32 v{aXF}, v25, 4, s25
    v_bfe_i32 v{vTK}, v1, 2, 1
    s_lshl_b32 s25, s13, 9
    v_add_u32 v{aPW}, s25, v{aP}
    v_lshlrev_b32 v3, 10, v1
    """)
    flagA()
    a(f"""
    s_cmp_lg_u32 s12, 1
    s_cbranch_scc1 L_notag
    s_mov_b64 exec, 1
    buffer_store_dword v6, v{sZ}, {RW}, s62 offen offset:12 sc1
    s_mov_b64 exec, -1
L_notag:
    """)
    poll(a, f"ds_read_b32 v4, v{vM} offset:{M_GO}", "v_cmp_eq_u32 vcc, 0, v4", sleep=1)
    late_stores()
    a(f"""
    s_cmp_lg_u32 s12, 1
    s_mov_b64 exec, 1
    s_waitcnt vmcnt(0)
    {flagB}
    s_mov_b64 exec, -1
    s_cbranch_scc1 L_helper2
    s_lshl_b32 s24, s{sJ}, 7
    s_add_u32 s24, s24, {WS_FG1}
    s_mov_b32 exec_hi, 0
    """)
    poll(a, f"buffer_load_dword v4, v3, {RW}, s24 offen offset:16 sc1", "v_cmp_eq_u32 vcc, 0, v4", sleep=8)
    a(f"""
    v_cmp_ne_u32 vcc, s{sTAG}, v4
    s_mov_b32 exec_hi, -1
    s_cmp_eq_u32 vcc_lo, 0
    s_cselect_b32 s24, 1, 2
    v_mov_b32 v4, s24
    ds_write_b32 v{vM}, v4 offset:{M_MODE}
L_helper2:
    """)
    qpub()
    selwait()
    PL = o.get("pl", 3); PS = o.get("ps", 1)
    def lvlwait(n):
        a("s_setprio 3")
        a(f"s_sub_u32 s28, 3, s12\ns_mul_i32 s28, s28, {o.get('pw', 0)}\ns_add_u32 s28, s28, {n}")
        poll(a, f"ds_read_b32 v4, v{vM} offset:{M_FULL}", f"v_cmp_gt_u32 vcc, s28, v4", sleep=8)
        a("s_setprio 0")
    a(f"""
L_sel2:
    ; STAMP 12
    v_readfirstlane_b32 s56, v12
    v_readfirstlane_b32 s57, v13
    s_mul_i32 s60, s{sJ}, 18
    s_add_u32 s60, s60, s{sM}
    s_and_b32 s58, s56, 0x7ff
    s_sub_u32 s58, 2047, s58           ; idx0
    s_and_b32 s59, s57, 0x7ff
    s_sub_u32 s59, 2047, s59           ; idx1
    s_cmp_ge_u32 s{sM}, {0 if o.get("nomoe") else 18}
    s_cbranch_scc1 L_moedone
    s_mul_i32 s25, s58, 1152
    s_mul_i32 s26, s59, 1152
    s_sub_u32 s26, s26, s25
    v_and_b32 v{vTK}, s26, v{vTK}
    v_add3_u32 v{aXF}, v{aXF}, v{vTK}, s25
    """)
    lvlwait(PL)
    for i in range(6):
        a(f"buffer_load_dwordx4 {vr(XF+4*i,4)}, v{aXF}, {RA}, 0 offen offset:{64*i}")
    a(f"s_mov_b32 s10, {WGB}\ns_mul_i32 s26, s13, {192*9216}\ns_lshl_b32 s24, s60, 6\ns_add_u32 s26, s26, s24")
    def gu_loads(base, ptr):
        a(f"s_mov_b32 s8, s{ptr}\ns_mov_b32 s9, s{ptr+1}\ns_mov_b32 s25, s26")
        for i in range(12):
            a(f"buffer_load_dwordx4 {vr(base+4*i,4)}, v{aGU}, {RA}, s25 offen\ns_add_u32 s25, s25, {16*9216}")
    gu_loads(GA, pWG)
    lvlwait(PL + PS)
    gu_loads(UA, pWU)
    a(f"s_mov_b32 s8, s{pWD}\ns_mov_b32 s9, s{pWD+1}")
    def mm2(x0, x1): a(f"s_waitcnt lgkmcnt(0)\ns_setprio 3\n{x0}\n{x1}\ns_setprio 0")
    for mat, base in enumerate((GA, UA)):
        a("s_waitcnt vmcnt(12)")
        if mat == 0: a("; MSTAMP 2")
        for st in range(6):
            a(f"ds_write_b128 v{aWR}, {vr(base+8*st,4)}")
            a(f"ds_write_b128 v{aWR}, {vr(base+8*st+4,4)} offset:1152")
            for n in range(2):
                for m in range(2):
                    a(f"ds_read_b64_tr_b16 {vr(TR+4*n+2*m,2)}, v{aTG} offset:{256*m+32*n}")
            mm2(*[mf16(AC + 8 * mat + 4 * n, XF + 4 * st, TR + 4 * n, 0 if st == 0 else None) for n in range(2)])
        if mat == 0:
            lvlwait(PL + 2 * PS)
            a("; MSTAMP 1\ns_mul_i32 s25, s60, 36864\ns_mul_i32 s26, s13, 384\ns_add_u32 s25, s25, s26")
            for n in range(12):
                a(f"buffer_load_dwordx4 {vr(GA+4*n,4)}, v{aDN}, {RA}, s25 offen offset:{32*n}")
    a(f"""
    ; MSTAMP 7
    s_mov_b32 exec_hi, 0
    ds_write_b32 v{aPW}, v{AC} offset:{M_P}
    s_not_b64 exec, exec
    ds_write_b32 v{aPW}, v{AC+4} offset:{M_P}
    s_nop 3
    ds_write_b32 v{aPW}, v{AC+12} offset:{M_P + 256}
    s_not_b64 exec, exec
    ds_write_b32 v{aPW}, v{AC+8} offset:{M_P + 256}
    s_mov_b64 exec, 1
    ds_add_u32 v{vM}, v{vONE} offset:{M_CNT}
    s_mov_b64 exec, -1
    s_setprio 3
    """)
    poll(a, f"ds_read_b32 v4, v{vM} offset:{M_CNT}", "v_cmp_ne_u32 vcc, 3, v4", sleep=4)
    a("; MSTAMP 9")
    for w in range(6): a(f"ds_read_b32 v{XF+w}, v{aP} offset:{M_P + 256*w}")
    a(f"""
    s_waitcnt lgkmcnt(0)
    v_pk_add_f32 {vr(XF,2)}, {vr(XF,2)}, {vr(XF+2,2)}
    v_pk_add_f32 {vr(XF,2)}, {vr(XF,2)}, {vr(XF+4,2)}
    v_cvt_pk_bf16_f32 v{XF+1}, v{XF}, v{XF+1}
    v_lshlrev_b32 v{XF}, 16, v{XF+1}
    v_mul_f32 v{XF+2}, {f32bits(-LOG2E)}, v{XF}
    v_exp_f32 v{XF+2}, v{XF+2}
    v_and_b32 v{XF+1}, 0xffff0000, v{XF+1}
    v_add_f32 v{XF+2}, 1.0, v{XF+2}
    v_rcp_f32 v{XF+2}, v{XF+2}
    s_and_b32 s25, s60, 7
    v_mul_f32 v{XF}, v{XF}, v{XF+2}
    """)
    rne_bf16(a, XF)
    a(f"""
    v_mul_f32 v{XF}, v{XF}, v{XF+1}
    v_cvt_pk_bf16_f32 v{XF}, v{XF}, v{XF}
    s_setprio 0
    ds_write_b16 v{aHW}, v{XF}
    ds_read_b128 {vr(XF+4,4)}, v{aHR}
    s_waitcnt vmcnt(0)
    """)
    for st in range(6):
        for n in range(2): a(f"ds_write_b128 v{aWR}, {vr(GA+8*st+4*n,4)} offset:{1152*n}")
        for n in range(2):
            for m in range(2):
                a(f"ds_read_b64_tr_b16 {vr(TR+4*n+2*m,2)}, v{aTD} offset:{1152*n+128*m}")
        mm2(*[mf16(UA + 8 * st + 4 * n, XF + 4, TR + 4 * n, 0) for n in range(2)])
    a(f"""
    s_mul_i32 s25, s25, 4608
    s_mul_i32 s26, s13, 768
    s_add_u32 s25, s25, s26
    s_add_u32 s25, s25, {WS_Y}
    ; MSTAMP 10
    s_mov_b32 exec_hi, 0
    """)
    for n in range(12):
        a(f"buffer_atomic_add_f32 v{UA+4*n}, v{aY}, {RW}, s25 offen offset:{64*n} sc1")
    a(f"""
    s_mov_b64 exec, 1
    s_setprio 3
    s_waitcnt vmcnt(0)
    ds_add_rtn_u32 v4, v{vM}, v{vONE} offset:{M_DONE}
    s_lshl_b32 s25, s{sJ}, 7
    s_add_u32 s25, s25, {WS_DONE}
    s_waitcnt lgkmcnt(0)
    v_cmp_eq_u32 vcc, 2, v4
    s_cbranch_vccz L_notlast
    buffer_atomic_add v{vONE}, v{sZ}, {RW}, s25 offen sc1
L_notlast:
    s_mov_b64 exec, -1
L_moedone:
    ; STAMP 13
    s_cmp_eq_u32 s12, 2
    s_cselect_b32 s26, s58, s59
    s_cselect_b32 s27, s56, s57
    s_andn2_b32 s26, s26, 63
    s_cmp_eq_u32 s15, s26
    s_cselect_b32 s28, 1, 0
    s_cmp_eq_u32 s12, 1
    s_cselect_b32 s28, 0, s28
    {"s_mov_b32 s28, 0" if o.get("nomoe") else ""}
    v_lshrrev_b32 v3, 3, v1
    v_lshlrev_b32 v3, 7, v3
    s_mov_b32 s29, {WS_DONE}
    s_cmp_eq_u32 s28, 0
    s_cbranch_scc1 L_h_wait
    """)
    ydone = f"buffer_load_dword v4, v3, {RW}, s29 offen sc1"
    poll(a, f"ds_read_b32 v12, v{vM} offset:{M_PROG}\ns_waitcnt lgkmcnt(0)\nv_cmp_lt_u32 vcc, 8, v12\ns_cbranch_vccnz L_h_wait\n" + ydone,
         "v_cmp_ne_u32 vcc, 18, v4", sleep=16, wait="s_waitcnt vmcnt(0)")
    a(f"""
    s_call_b64 s[0:1], L_yprep
L_h_wait:
    s_waitcnt vmcnt(0) lgkmcnt(0)
    ; STAMP 14
    s_barrier                          ; BE
    ds_read_b32 v4, v{vM} offset:{M_BAD}
    s_waitcnt lgkmcnt(0)
    v_cmp_lt_u32 vcc, s61, v4
    s_cbranch_vccnz L_h_fb
    s_cmp_eq_u32 s28, 0
    s_cbranch_scc1 L_h_end
    """)
    poll(a, ydone, "v_cmp_ne_u32 vcc, 18, v4", sleep=2)
    a(f"""
    s_call_b64 s[0:1], L_yprep
    s_waitcnt lgkmcnt(0)
L_h_end:
    s_endpgm
L_h_fb:
    s_barrier
    s_barrier
    s_mov_b32 s61, -1
    s_barrier
    s_branch L_h_wait
L_yprep:
    ; MSTAMP 4
    s_mov_b32 s28, 0
    v_min_u32 v3, 35, v1
    v_lshlrev_b32 v3, 3, v3
    s_lshr_b32 s24, s{sM}, 2
    s_mul_i32 s24, s24, 288
    s_mul_i32 s25, s14, 2304
    s_add_u32 s24, s24, s25
    s_add_u32 s24, s24, {WS_Y}
    """)
    for rp in range(8):
        a(f"buffer_load_dwordx2 {vr(32+2*rp,2)}, v3, {RW}, s24 offen sc1\ns_add_u32 s24, s24, 4608")
    a(f"""
    s_and_b32 s27, s27, 0xfffff800
    s_xor_b32 s24, s27, 0x80000000
    s_not_b32 s25, s27
    s_bitcmp1_b32 s27, 31
    s_cselect_b32 s27, s24, s25
    v_mov_b32 v14, s27
    """)
    rne_bf16(a, 14); sigmoid(a, 14); rne_bf16(a, 14)
    a(f"s_mul_i32 s24, s14, 320\ns_add_u32 s24, s24, {MISC + M_Y}\nv_add_u32 v3, s24, v3\ns_waitcnt vmcnt(0)")
    for rp in range(1, 8): a(f"v_pk_add_f32 v[32:33], v[32:33], {vr(32+2*rp,2)}")
    for i in range(2):
        rne_bf16(a, 32 + i); a(f"v_mul_f32 v{32+i}, v{32+i}, v14"); rne_bf16(a, 32 + i)
    a("ds_write_b64 v3, v[32:33]\ns_setpc_b64 s[0:1]")
    a(f"""
L_rg:
    s_sub_u32 s26, s{sM}, 28
    s_lshl2_add_u32 s26, s{sJ}, s26
    s_lshl2_add_u32 s27, s26, s12
    s_lshl_b32 s28, s27, 4
    v_lshrrev_b32 v3, 3, v1
    v_add_u32 v4, s28, v3              ; row
    v_mul_u32_u24 v5, 1152, v4
    v_and_b32 v6, 7, v1
    v_lshlrev_b32 v6, 4, v6
    v_add_u32 v5, v5, v6
    v_add_u32 v7, 9216, v5
    """)
    for i in range(9): a(f"global_load_dwordx4 {vr(16+4*i,4)}, v5, s[{pX}:{pX+1}] offset:{128*i}")
    for i in range(9): a(f"global_load_dwordx4 {vr(88+4*i,4)}, v6, s[{pWR}:{pWR+1}] offset:{128*i}")
    for i in range(9): a(f"global_load_dwordx4 {vr(124+4*i,4)}, v6, s[{pGW}:{pGW+1}] offset:{128*i}")
    for i in range(9): a(f"global_load_dwordx4 {vr(52+4*i,4)}, v7, s[{pX}:{pX+1}] offset:{128*i}")
    a(f"""
    s_waitcnt lgkmcnt(0)
    v_mov_b64 v[8:9], 0
    v_mov_b64 v[10:11], 0
    s_barrier                          ; BL
    s_waitcnt vmcnt(0)
    """)
    for i in range(36):
        a(f"v_dot2c_f32_bf16 v8, v{16+i}, v{88+i}")
        a(f"v_dot2c_f32_bf16 v9, v{52+i}, v{88+i}")
        a(f"v_dot2c_f32_bf16 v10, v{16+i}, v{124+i}")
        a(f"v_dot2c_f32_bf16 v11, v{52+i}, v{124+i}")
    a("s_nop 2")
    for mode in ("quad_perm:[1,0,3,2]", "quad_perm:[2,3,0,1]", "row_half_mirror"):
        for v in (8, 9, 10, 11):
            a(f"v_add_f32_dpp v{v}, v{v}, v{v} {mode} row_mask:0xf bank_mask:0xf")
    a("v_and_b32 v12, 1, v1\nv_cmp_eq_u32 vcc, 0, v12\nv_lshlrev_b32 v13, 2, v4\nv_lshl_add_u32 v13, v12, 5, v13\nv_cndmask_b32 v10, v11, v10, vcc")
    rne_bf16(a, 10); sigmoid(a, 10); rne_bf16(a, 10)
    a(f"""
    s_mov_b32 s29, {WS_G}
    buffer_store_dword v10, v13, {RW}, s29 offen sc1
    v_ashrrev_i32 v12, 31, v8
    v_or_b32 v12, 0x80000000, v12
    v_xor_b32 v8, v8, v12
    v_and_b32 v8, 0xfffff800, v8
    v_sub_u32 v12, 2047, v4
    v_or_b32 v8, v8, v12
    v_ashrrev_i32 v12, 31, v9
    v_or_b32 v12, 0x80000000, v12
    v_xor_b32 v9, v9, v12
    v_and_b32 v9, 0xfffff800, v9
    v_sub_u32 v12, 2039, v4
    v_or_b32 v9, v9, v12
    v_max_u32 v14, v8, v9
    v_min_u32 v15, v8, v9
    s_nop 1
    v_mov_b32_dpp v8, v14 row_ror:8 row_mask:0xf bank_mask:0xf
    v_mov_b32_dpp v9, v15 row_ror:8 row_mask:0xf bank_mask:0xf
    v_min_u32 v12, v8, v14
    v_max_u32 v14, v8, v14
    v_max3_u32 v15, v12, v9, v15
    """)
    for sw in ("v_permlane16_swap_b32", "v_permlane32_swap_b32"):
        a(f"""
        v_mov_b32 v8, v14
        v_mov_b32 v9, v15
        s_nop 1
        {sw} v8, v14
        {sw} v9, v15
        s_nop 1
        v_min_u32 v12, v8, v14
        v_max_u32 v14, v8, v14
        v_max3_u32 v15, v12, v9, v15
        """)
    regwait(a, 3, 4, sleep=8)
    a(f"""
    s_lshl_b32 s29, s27, 6
    s_add_u32 s29, s29, {WS_KEY}
    v_mov_b32 v5, 0
    v_mov_b32 v6, s{sTAG}
    v_lshlrev_b32 v3, 3, v1
    v_mov_b64 v[28:29], 0
    s_mov_b64 exec, 0xff
    buffer_store_dwordx2 v[14:15], v3, {RW}, s29 offen sc1
    s_mov_b64 exec, -1
    s_and_b32 s27, s27, 15
    s_cmp_lg_u32 s27, 4
    s_cbranch_scc1 L_svc
    v_lshlrev_b32 v3, 7, v1
    s_mov_b32 s29, {WS_KEY}
    """)
    poll(a, f"buffer_load_dwordx2 v[8:9], v3, {RW}, s29 offen sc1\nbuffer_load_dwordx2 v[10:11], v3, {RW}, s29 offen offset:64 sc1",
         "v_min_u32 v12, v8, v9\nv_min3_u32 v12, v12, v10, v11\nv_cmp_eq_u32 vcc, 0, v12", sleep=8)
    top2(a, 8, 12, 24)
    a(f"""
    s_lshl_b32 s29, s{sJ}, 7
    s_add_u32 s29, s29, {WS_SEL}
    v_mov_b32 v8, s24
    v_mov_b32 v9, s25
    v_lshlrev_b32 v3, 3, v1
    s_mov_b64 exec, 0xff
    buffer_store_dwordx2 v[8:9], v3, {RW}, s29 offen sc1
    s_mov_b64 exec, -1
    s_branch L_svc
    """)
    if o.get("mstamp"):
        a.L = [l for l in a.L if not any(l.strip() == f"; STAMP {i}" for i in (1, 2, 4, 7, 8, 9, 10))]
        a.L = [l.replace("MSTAMP", "STAMP") for l in a.L]
    hdr = HEADER + f"; @launch grid=(256,1,1) block=(768,1,1) lds={LDS_BYTES}\n"
    return hdr + a.text() + '.section .rodata,"a"\n' + descriptor(NAME, 168, sgpr=64)

if __name__ == "__main__":
    o = dict((k.split("=")[0], int(k.split("=")[1]) if "=" in k else 1) for k in sys.argv[2:])
    open(sys.argv[1], "w").write(gen(o))
```

```python
import re, sys
from gen_common import *
def make(asm, stampno, cls, red):
    out = []
    name = re.findall(r"^\.globl (\w+_kernel)", asm, re.M)[0]
    mark = "    s_memrealtime s[96:97]\n    s_waitcnt lgkmcnt(0)\n    s_mov_b32 s94, s96"
    for line in asm.split("\n"):
        t = line.strip()
        if t.startswith("; @launch grid"):
            line = line.replace("; @launch grid", f"; @launch kernel={name} grid") + "\n; @launch kernel=kz_kernel grid=(1,1,1) block=(64,1,1) lds=0"
        if t.startswith('.section .rodata'):
            out.append(f""".globl kz_kernel
.p2align 8
.type kz_kernel,@function
kz_kernel:
    s_cmp_lg_u32 s2, 0
    s_cbranch_scc1 kz_end
    s_load_dwordx2 s[4:5], s[0:1], 80
    s_waitcnt lgkmcnt(0)
    v_mov_b32 v1, 0
    global_load_dword v2, v1, s[4:5] offset:-264 sc1
    global_load_dword v3, v1, s[4:5] offset:-272 sc1
    s_waitcnt vmcnt(0)
    v_readfirstlane_b32 s6, v2
    v_readfirstlane_b32 s13, v3
    {"s_not_b32 s6, s6" if red == "min" else ""}
    s_not_b32 s13, s13
    s_sub_u32 s14, s6, s13
    s_min_u32 s14, s14, 5000
    s_mul_i32 s14, s14, 20
    s_add_u32 s14, s14, 10000
    s_mov_b32 s6, s13
    s_mov_b32 s12, 100000
kz_loop:
    s_memrealtime s[8:9]
    s_waitcnt lgkmcnt(0)
    s_sub_u32 s7, s8, s6
    s_cmp_ge_u32 s7, s14
    s_cbranch_scc1 kz_end
    s_sub_u32 s12, s12, 1
    s_cmp_lg_u32 s12, 0
    s_cbranch_scc1 kz_loop
kz_end:
    s_endpgm""")
            out.append(line)
            out.append(descriptor("kz_kernel", 8))
            continue
        if t == name + ":":
            out.append(line)
            out.append("    s_memrealtime s[92:93]\n    s_mov_b32 s94, 0\n    s_load_dwordx2 s[98:99], s[0:1], 80\n    v_readfirstlane_b32 s95, v0")
            if stampno == 0: out.append(mark)
            continue
        if t == f"; STAMP {stampno}":
            out.append(mark); continue
        if t == "s_endpgm":
            if stampno == 15: out.append("    s_waitcnt vmcnt(0)\n" + mark)
            out.append(f"""    s_waitcnt lgkmcnt(0)
    s_cmp_ge_u32 s2, 256
    s_cbranch_scc1 9f
    s_cmp_eq_u32 s94, 0
    s_cbranch_scc1 9f
    s_cmp_{"lt" if cls == "s" else "ge"}_u32 s95, 512
    s_cbranch_scc1 9f
    s_and_b32 s95, s95, 0xc0
    s_cmp_lg_u32 s95, 0
    s_cbranch_scc1 9f
    {"s_not_b32 s94, s94" if red == "min" else ""}
    s_mov_b64 exec, 1
    v_mov_b32 v0, 0
    v_mov_b32 v1, s94
    global_atomic_umax v0, v1, s[98:99] offset:248 sc1
    s_not_b32 s92, s92
    v_mov_b32 v2, s92
    global_atomic_umax v0, v2, s[98:99] offset:240 sc1
9:""")
        out.append(line)
    txt = "\n".join(out)
    return txt.replace("next_free_sgpr 64", "next_free_sgpr 102")
if __name__ == "__main__":
    asm = open(sys.argv[1]).read()
    from asmrun import assemble
    from cdna_launch import address_register_problem, launch_list_of, launch_list_kernel_names
    for i, spec in enumerate(sys.argv[2:]):
        p = spec.split(":")
        t = make(asm, int(p[0]), p[1], p[2])
        open(f"hp{i}.s", "w").write(t)
        co = assemble(t, "x", 12, lists=True)
        print(f"hp{i}.s", spec, address_register_problem(co, None, launch_list_kernel_names(launch_list_of(t, True))))
```

```python
import sys, math
from gen_common import *

NAME = "gated_mix__mha_block__moe_arch_mod__prompt_kernel"
XB = 2359296; WB = 1990656; WOB = 663552; WGB = 5308416
QSCALE = (18 ** -0.5) * math.log2(math.e)
JS = 884736; HS = 27648
WS_GLB = 0; WS_LOC = 0x700000
WS_OG = 0xE00000; WS_OL = 0x1040000
O_REM = 0x200000
WS_FG1 = 0x1280000
WS_FL1 = 0x1288000
WS_FL2 = 0x1289000
WS_KEY = 0x128B000
WS_SEL = 0x128B400
WS_Y = 0x128C000
WS_CLR = WS_FG1
WS_G = 0x1298000
WS_END = 0x129A000
KV0 = 9216; SLOT = 18432; L_QS = KV0 + 7 * SLOT; MISC = 156672
M_CNT = MISC; M_DONE = MISC + 4; M_BAD = MISC + 8; M_SEL = MISC + 16
M_MODE = MISC + 12; M_C0 = MISC + 24; M_PROG = MISC + 64; M_FULL = MISC + 96; M_G = MISC + 6144
M_P = MISC + 256; M_H = MISC + 2304; M_Y = MISC + 2816; M_CB7 = MISC + 3584
L_CB = KV0 + 5 * SLOT; L_WO = KV0; L_A0 = KV0 + 6 * SLOT; L_A1 = KV0 + 7 * SLOT; AS = 288
LDS_BYTES = 163840
SPIN = 1 << 14
pX, pW, pWO, pWR, pWG, pWU, pWD, pGW, pOUT, pDBG, pWS = 32, 34, 36, 40, 42, 44, 46, 48, 50, 52, 54
sWAVE, sJ, sM, sMODE, sREG = 3, 4, 5, 6, 7
RW = "s[16:19]"
RD = "s[20:23]"

def mf32(d, a, b, c=None):
    cs = vr(d, 16) if c is None else ("0" if c == 0 else vr(c, 16))
    return f"v_mfma_f32_32x32x16_bf16 {vr(d,16)}, {vr(a,4)}, {vr(b,4)}, {cs}"
def mf16(d, a, b, c=None):
    cs = vr(d, 4) if c is None else ("0" if c == 0 else vr(c, 4))
    return f"v_mfma_f32_16x16x32_bf16 {vr(d,4)}, {vr(a,4)}, {vr(b,4)}, {cs}"
def rne_bf16(a, v):
    a(f"v_cvt_pk_bf16_f32 v{v}, v{v}, v{v}")
    a(f"v_and_b32 v{v}, 0xffff0000, v{v}")
def sigmoid(a, v):
    a(f"v_mul_f32 v{v}, {f32bits(-math.log2(math.e))}, v{v}")
    a(f"v_exp_f32 v{v}, v{v}")
    a("s_nop 0")
    a(f"v_add_f32 v{v}, 1.0, v{v}")
    a(f"v_rcp_f32 v{v}, v{v}")
    a("s_nop 0")
_uid = [0]
def uid(p):
    _uid[0] += 1
    return f"L_{p}{_uid[0]}"
def poll(a, load, check, sleep=0, preloaded=False, spin=SPIN, extra=None):
    l = uid("poll"); e = uid("ok"); c = uid("chk")
    a(f"s_mov_b32 s30, {spin}")
    if preloaded: a(f"s_branch {c}")
    a(f"{l}:")
    a(load)
    if preloaded: a(f"{c}:")
    a("s_waitcnt lgkmcnt(0)" if load.startswith("ds_") else "s_waitcnt vmcnt(0)")
    a(check)
    a(f"s_cbranch_vccz {e}")
    if extra: a(extra)
    if sleep: a(f"s_sleep {sleep}")
    a(f"s_sub_u32 s30, s30, 1\ns_cmp_lg_u32 s30, 0\ns_cbranch_scc1 {l}")
    a(f"{e}:")
def regaddr(a, t0): a(f"v_and_b32 v{t0}, 7, v1\nv_lshlrev_b32 v{t0}, 5, v{t0}")
def regload(t0, t1): return f"buffer_load_dword v{t1}, v{t0}, {RD}, 0 offen sc1"
def regwait(a, t0, t1, preloaded=False, sleep=0):
    if not preloaded: regaddr(a, t0)
    poll(a, regload(t0, t1), f"v_cmp_eq_u32 vcc, 0, v{t1}", preloaded=preloaded, sleep=sleep)
def wave_max_u32(a, v, t, sdst):
    for mode in ("quad_perm:[1,0,3,2]", "quad_perm:[2,3,0,1]", "row_half_mirror", "row_mirror"):
        a("s_nop 1")
        a(f"v_max_u32_dpp v{v}, v{v}, v{v} {mode} row_mask:0xf bank_mask:0xf")
    for sw in ("v_permlane16_swap_b32", "v_permlane32_swap_b32"):
        a(f"v_mov_b32 v{t}, v{v}\ns_nop 1\n{sw} v{t}, v{v}\ns_nop 1\nv_max_u32 v{v}, v{t}, v{v}")
    a("s_nop 0")
    a(f"v_readfirstlane_b32 s{sdst}, v{v}")
def top2(a, K, T, so):
    a(f"""
    v_min_u32 v{T}, v{K}, v{K+2}
    v_max_u32 v{K}, v{K}, v{K+2}
    v_max3_u32 v{K+1}, v{T}, v{K+1}, v{K+3}
    v_mov_b32 v{K+2}, v{K}
    """)
    wave_max_u32(a, K + 2, T, so)
    a(f"v_cmp_eq_u32 vcc, v{K+2}, v{K}\ns_nop 1\nv_cndmask_b32 v{K+2}, v{K}, v{K+1}, vcc")
    wave_max_u32(a, K + 2, T, so + 1)

aK, aKR, aV, vINC, IDX, vXO, vROW, vG, XD = 2, 3, 4, 5, 6, 7, 8, 9, 12
QM, QR, KR, KM, V, O, S = 16, 24, 26, 28, 32, 40, [72, 104]
T0 = 136
vM, vONE, vPW, vPR, vF = 10, 11, 164, 165, 166
def lds_add(a, off, addr, one):
    a(f"s_mov_b64 exec, 1\nds_add_u32 v{addr}, v{one} offset:{off - MISC}\ns_mov_b64 exec, -1")
def lds_wait(a, off, n, addr, t, sleep=1):
    poll(a, f"ds_read_b32 v{t}, v{addr} offset:{off - MISC}", f"v_cmp_ne_u32 vcc, {n}, v{t}", sleep=sleep)

def final_addr(a):
    a(f"""
    v_mul_u32_u24 v{vROW}, 7282, v0
    v_lshrrev_b32 v{vROW}, 16, v{vROW}
    v_mul_u32_u24 v10, 9, v{vROW}
    v_sub_u32 v10, v0, v10
    s_and_b32 s24, s{sM}, 3
    s_lshl2_add_u32 s24, s{sJ}, s24
    s_lshl_b32 s24, s24, 6
    s_lshr_b32 s25, s{sM}, 2
    s_mul_i32 s25, s25, 144
    v_add_u32 v11, s24, v{vROW}
    v_mul_u32_u24 v{vXO}, 1152, v11
    v_lshl_add_u32 v{vXO}, v10, 4, v{vXO}
    v_add_u32 v{vXO}, s25, v{vXO}
    v_lshl_or_b32 v{vROW}, v10, 8, v{vROW}
    """)
def final_loads(a):
    a(f"buffer_load_dwordx4 {vr(XD,4)}, v{vXO}, s[8:11], 0 offen")

def gen(o={}):
    a = Asm()
    a('.amdgcn_target "amdgcn-amd-amdhsa--gfx950"\n.text')
    kernel_begin(a, NAME)
    a(f"""
    s_cmp_ge_u32 s2, 256
    s_cbranch_scc1 L_end
    s_load_dwordx16 s[32:47], s[0:1], 0
    s_load_dwordx4 s[48:51], s[0:1], 64
    s_load_dwordx2 s[20:21], s[0:1], 80
    s_load_dwordx2 s[16:17], s[0:1], 88
    s_load_dwordx2 s[8:9], s[0:1], 0
    v_lshrrev_b32 v2, 6, v0
    v_and_b32 v1, 63, v0
    s_and_b32 s{sJ}, s2, 7
    v_readfirstlane_b32 s{sWAVE}, v2
    s_lshr_b32 s{sM}, s2, 3
    s_getreg_b32 s24, hwreg(HW_REG_XCC_ID)
    s_and_b32 s24, s24, 15
    s_add_u32 s{sREG}, {"s2" if o.get("slow") else "s24"}, 1
    s_mov_b32 s18, {WS_END}
    s_mov_b32 s19, 0x00020000
    s_mov_b32 s22, 256
    s_mov_b32 s23, 0x00020000
    s_mov_b32 s10, {XB}
    s_mov_b32 s11, 0x00020000
    s_cmp_eq_u32 s{sM}, 28
    s_cbranch_scc1 L_clear
L_cleared:
    s_cmp_ge_u32 s{sWAVE}, 8
    s_cbranch_scc1 L_service
    """)
    LD = T0 + 16
    a(f"""
    s_and_b32 s26, s{sM}, 1
    s_mul_i32 s57, s26, {o.get("rp", 0)}
    s_mul_i32 s28, s{sJ}, {o.get("rj", 1)}
    s_add_u32 s57, s57, s28
    s_lshr_b32 s28, s{sM}, 1
    s_mul_i32 s28, s28, {o.get("rc", 0)}
    s_add_u32 s57, s57, s28
    s_mul_i32 s28, s57, 57
    s_lshr_b32 s28, s28, 9
    s_mul_i32 s28, s28, 9
    s_sub_u32 s57, s57, s28
    v_lshrrev_b32 v13, 4, v1
    s_lshl_b32 s59, s{sWAVE}, 12
    s_cmp_ge_u32 s{sWAVE}, 4
    s_cbranch_scc1 L_ldw
    s_lshl1_add_u32 s26, s{sJ}, s26    ; rb
    s_lshl2_add_u32 s26, s26, s{sWAVE}
    s_lshl_b32 s26, s26, 5
    v_lshrrev_b32 v3, 3, v1
    v_add_u32 v3, s26, v3
    v_mul_u32_u24 v3, 1152, v3
    v_and_b32 v12, 7, v1
    v_xor_b32 v12, v12, v13
    v_lshl_add_u32 v{LD}, v12, 4, v3
    v_xor_b32 v{LD+1}, 64, v{LD}
    v_add_u32 v{LD+1}, 8192, v{LD+1}
    v_add_u32 v{LD+2}, 16384, v{LD}
    v_add_u32 v{LD+3}, 16384, v{LD+1}
    s_movk_i32 s58, 128
    s_waitcnt lgkmcnt(0)
    s_branch L_ldgo
L_ldw:
    s_lshl_b32 s26, s{sWAVE}, 4
    s_sub_u32 s26, s26, 64
    v_add_u32 v3, s26, v13
    v_mul_u32_u24 v3, 3456, v3
    v_and_b32 v12, 15, v1
    v_lshlrev_b32 v14, 2, v13
    v_xor_b32 v12, v12, v14
    v_lshl_add_u32 v3, v12, 4, v3
    s_lshr_b32 s26, s{sM}, 1
    s_cmp_lt_u32 s26, 9
    s_cselect_b32 s27, 7, 8
    s_cselect_b32 s28, 128, 0
    s_lshl_b32 s26, s26, s27
    v_and_b32 v12, 8, v12
    v_mad_u32_u24 v3, v12, s28, v3
    v_add_u32 v{LD}, s26, v3
    v_add_u32 v{LD+1}, 12800, v{LD}
    v_add_u32 v{LD+2}, 25600, v{LD}
    v_add_u32 v{LD+3}, 38400, v{LD}
    s_mov_b32 s58, 221184
    s_mov_b32 s10, {WB}
    s_waitcnt lgkmcnt(0)
    s_mov_b32 s8, s{pW}
    s_mov_b32 s9, s{pW+1}
L_ldgo:
    ; STAMP 7
    s_mul_i32 s57, s57, s58            ; soffset
    s_mul_i32 s56, s58, 9              ; wrap
    s_mov_b32 s60, 0
    s_cmp_ge_u32 s{sM}, 28
    s_cbranch_scc1 L_spare_ld
L_ldprime:
    """)
    def ld_chunk():
        a("s_mov_b32 m0, s59\ns_add_u32 s59, s59, 32768")
        for u in range(4):
            a(f"buffer_load_dwordx4 v{LD+u}, s[8:11], s57 offen offset:{u*1024} lds")
        a("""
        s_and_b32 s59, s59, 0x1ffff
        s_add_u32 s57, s57, s58
        s_cmp_eq_u32 s57, s56
        s_cselect_b32 s57, 0, s57
        s_add_u32 s60, s60, 1
        """)
    P0 = 3
    for c in range(P0):
        a(f"s_setprio {3 - c}")
        ld_chunk()
    a(f"""
    s_setprio 0
L_ldloop:
    s_waitcnt vmcnt(8)
    s_barrier
    """)
    ld_chunk()
    a(f"""
    s_cmp_lt_u32 s60, 9
    s_cbranch_scc1 L_ldloop
L_spare_ld:
    s_mul_i32 s15, s{sJ}, {JS}
    s_mul_i32 s24, s{sM}, {HS}
    s_add_u32 s15, s15, s24
    s_add_u32 s15, s15, {WS_LOC}
    s_mul_i32 s61, s{sWAVE}, {27*128}
    s_add_u32 s61, s61, s15
    v_min_u32 v{T0+7}, 26, v1
    v_lshlrev_b32 v{T0+7}, 7, v{T0+7}
    buffer_load_dword v{T0+7}, v{T0+7}, {RW}, {"0" if o.get("nopre") else "s61"} offen sc1
    """)
    def chunk_bar(n, stamp=None):
        l = uid("nb")
        a(f"s_waitcnt vmcnt({n})\ns_cmp_ge_u32 s{sM}, 28\ns_cbranch_scc1 {l}\ns_barrier\n{l}:")
        if stamp: a(f"; STAMP {stamp}")
    final_addr(a)
    a(f"""
    s_lshr_b32 s12, s{sWAVE}, 2        ; kh
    s_and_b32 s13, s{sWAVE}, 3         ; qg
    s_mul_i32 s24, s12, 9216
    s_add_u32 s24, s24, {KV0}
    v_lshrrev_b32 v{T0}, 5, v1         ; hh
    v_bfe_u32 v{T0+1}, v1, 2, 2        ; r
    v_and_b32 v{T0+2}, 3, v1
    v_lshlrev_b32 v{T0+2}, 3, v{T0+2}  ; 8c
    v_bfe_u32 v{T0+3}, v1, 4, 1        ; G&1
    v_lshl_add_u32 v{T0+4}, v{T0}, 3, v{T0+1}
    v_lshl_or_b32 v{T0+4}, v{T0+4}, 5, v{T0+2}     ; (8hh+r)*32 + 8c
    v_mul_u32_u24 v{T0+5}, 1152, v{T0+3}
    v_add3_u32 v{aK}, v{T0+5}, v{T0+4}, s24
    v_and_b32 v{T0+1}, 1, v{T0+1}
    v_lshl_or_b32 v{T0+1}, v{T0+1}, 5, v{T0+2}
    v_add_u32 v{T0+1}, 512, v{T0+1}                ; (16+(r&1))*32 + 8c
    v_lshrrev_b32 v{T0+6}, 4, v1                   ; G
    v_mul_u32_u24 v{T0+5}, 1152, v{T0+6}
    v_add3_u32 v{aKR}, v{T0+5}, v{T0+1}, s24
    s_mul_i32 s25, s13, 2304
    s_add_u32 s25, s25, {L_QS}
    s_xor_b32 s26, s12, 1
    s_lshl_b32 s27, s26, 1
    v_xor_b32 v{T0+6}, s27, v{T0+6}
    v_mul_u32_u24 v{T0+5}, 576, v{T0+6}
    v_add3_u32 v{T0+10}, v{T0+5}, v{T0+1}, s25     ; q rem
    v_mul_u32_u24 v{T0+5}, 576, v{T0+3}
    v_add3_u32 v{T0+5}, v{T0+5}, v{T0+4}, s25
    s_mul_i32 s26, s26, 1152
    s_mul_i32 s27, s12, 1152
    v_add_u32 v{T0+8}, s26, v{T0+5}                ; q main a=0
    v_add_u32 v{T0+9}, s27, v{T0+5}                ; q main a=1
    """)
    chunk_bar(9, 8)
    a(f"""
    v_and_b32 v{T0+1}, 31, v1
    v_lshlrev_b32 v{T0+2}, 4, v{T0}
    v_lshl_or_b32 v{T0+3}, v{T0+1}, 5, v{T0+2}
    v_xor_b32 v{T0+2}, 16, v{T0+2}
    v_lshl_add_u32 v{T0+4}, v{T0+1}, 3, v{T0+2}
    v_add_u32 v{T0+4}, 384, v{T0+4}
    v_cmp_gt_u32 vcc, 16, v{T0+1}
    s_add_u32 s24, s24, 576
    s_nop 0
    v_cndmask_b32 v{T0+3}, v{T0+4}, v{T0+3}, vcc
    v_add_u32 v{T0+3}, s24, v{T0+3}
    s_mov_b32 vcc_lo, 0x0011ffff
    s_mov_b32 vcc_hi, 0x0011ffff
    v_mov_b32 v{T0+4}, {SLOT}
    v_mov_b32 v{IDX}, 0xdddddddd
    v_cndmask_b32 v{aV}, v{T0+2}, v{T0+3}, vcc
    v_cndmask_b32 v{vINC}, 0, v{T0+4}, vcc
    s_mul_i32 s24, s{sM}, 18
    s_add_u32 s25, s24, 17
    s_lshr_b32 s24, s24, 6
    s_lshr_b32 s25, s25, 6
    s_sub_u32 s25, s25, s24
    v_and_b32 v{T0+1}, s25, v1
    v_add_u32 v{T0+5}, s24, v{T0+1}
    v_bfe_u32 v{T0+6}, v1, 1, 2
    v_min_u32 v{T0+6}, 2, v{T0+6}                  ; matrix
    v_mad_u32_u24 v{T0+1}, v{T0+6}, 9, v{T0+5}     ; col64
    v_bfe_u32 v{T0+2}, v1, 3, 2                    ; b
    v_lshlrev_b32 v{T0+3}, 7, v{T0+2}
    v_lshl_or_b32 v{T0+3}, v{T0+1}, 2, v{T0+3}
    v_cmp_gt_u32 vcc, 2, v{T0+6}
    s_lshl_b32 s24, s{sJ}, 9
    s_add_u32 s24, s24, {WS_FL1}
    v_add_u32 v{T0+11}, s24, v{T0+3}
    v_lshl_add_u32 v{T0+5}, v{T0+5}, 1, v{T0+6}
    v_cndmask_b32 v{T0+1}, v{T0+1}, v{T0+5}, vcc
    v_and_b32 v{T0+3}, 30, v{T0+1}
    v_lshrrev_b32 v{T0+4}, 1, v{T0+2}
    v_or_b32 v{T0+3}, v{T0+3}, v{T0+4}             ; m'
    v_lshlrev_b32 v{T0+3}, 10, v{T0+3}
    v_and_b32 v{T0+2}, 1, v{T0+2}
    v_and_b32 v{T0+1}, 1, v{T0+1}
    v_lshl_or_b32 v{T0+1}, v{T0+2}, 1, v{T0+1}
    v_lshl_or_b32 v{T0+3}, v{T0+1}, 2, v{T0+3}
    s_lshl_b32 s24, s{sJ}, 7
    s_add_u32 s24, s24, {WS_FG1 + 32}
    v_min_u32 v{T0+1}, 1, v{T0+6}
    v_lshlrev_b32 v{T0+1}, 5, v{T0+1}
    v_sub_u32 v{T0+3}, v{T0+3}, v{T0+1}
    v_add_u32 v{T0+12}, s24, v{T0+3}
    """)
    chunk_bar(5)
    for i in range(32): a(f"v_mov_b32 v{O+i}, 0")
    regaddr(a, T0 + 14)
    a(f"""
    v_mov_b32 v{vM}, {MISC}
    v_mov_b32 v{vONE}, 1
    s_lshl_b32 s24, s{sWAVE}, 2
    s_add_u32 s24, s24, {M_PROG}
    v_min_u32 v{vPW}, 1, v1
    v_lshl_add_u32 v{vPW}, v{vPW}, 13, s24
    v_min_u32 v{vPR}, 8, v1
    v_lshl_add_u32 v{vPR}, v{vPR}, 2, v{vM}
    v_lshrrev_b32 v{T0+1}, 3, v1
    v_mul_u32_u24 v{T0+1}, 1152, v{T0+1}
    v_and_b32 v{T0+2}, 7, v1
    v_lshl_add_u32 v{T0+1}, v{T0+2}, 2, v{T0+1}
    v_mov_b32 v{T0+3}, 0x3f803f80
    """)
    chunk_bar(1, 9)
    a(f"""
    {regload(T0 + 14, T0 + 15)}
    s_mov_b32 s8, s{pX}
    s_mov_b32 s9, s{pX+1}
    s_mov_b32 s10, {XB}
    s_barrier
    ds_write_b32 v{T0+1}, v{T0+3}
    """)
    regwait(a, T0 + 14, T0 + 15, preloaded=True, sleep=o.get('s0', 32))
    a(f"""
    v_lshlrev_b32 v{T0+13}, 4, v0
    s_lshl_b32 s25, s{sWAVE}, 10
    s_add_u32 s26, s25, {L_QS - 18432 + 16384}
    s_add_u32 s25, s25, {KV0}
    s_add_u32 s27, s25, 16384
    s_cmp_lt_u32 s{sWAVE}, 2
    s_cselect_b32 s27, s27, s26
    s_mov_b32 exec_hi, 0
    ; STAMP 1
    """)
    poll(a, f"buffer_load_dword v{T0+2}, v{T0+11}, {RW}, 0 offen sc1\nds_read_b32 v{T0+3}, v{vM} offset:{M_MODE - MISC}",
         f"v_cmp_ne_u32 vcc, s{sREG}, v{T0+2}",
         extra=f"s_waitcnt lgkmcnt(0)\nv_cmp_eq_u32 vcc, 2, v{T0+3}\ns_cbranch_vccnz L_general1", sleep=o.get("s1", 2))
    a(f"""
L_stage1:
    ; STAMP 2
    s_mov_b32 exec_hi, -1
    s_mov_b32 m0, s25
    s_add_u32 s24, s15, 8192
    buffer_load_dwordx4 v{T0+13}, {RW}, s15 offen sc1 lds
    s_add_u32 m0, s25, 8192
    s_add_u32 s28, s15, 16384
    buffer_load_dwordx4 v{T0+13}, {RW}, s24 offen sc1 lds
    s_mov_b32 m0, s27
    s_cmp_ge_u32 s{sWAVE}, 3
    buffer_load_dwordx4 v{T0+13}, {RW}, s28 offen sc1 lds
    s_cbranch_scc1 L_no4
    s_add_u32 m0, s26, 8192
    s_add_u32 s28, s15, 24576
    buffer_load_dwordx4 v{T0+13}, {RW}, s28 offen sc1 lds
L_no4:
    s_waitcnt vmcnt(0)
    ; STAMP 14
    """)
    lds_add(a, M_C0, vM, vONE)
    final_loads(a)
    lds_wait(a, M_C0, 8, vM, T0, sleep=0)
    def toff(t): return t * 2304 if t < 4 else SLOT + (t - 4) * 2304
    def kreads(off): return [f"ds_read_b64_tr_b16 {vr(KM+2*m,2)}, v{aK} offset:{off + m*128}" for m in range(2)]
    def krread(off): return f"ds_read_b64_tr_b16 {vr(KR,2)}, v{aKR} offset:{off}"
    def vread(g, off): return f"ds_read_b128 {vr(V+4*g,4)}, v{aV} offset:{off + g*1152}"
    def m2b(Y, ab): return f"v_mfma_f32_32x32x4_2b_bf16 {vr(Y,32)}, {vr(KR,2)}, {vr(QR,2)}, {vr(Y,32)} cbsz:1 abid:{ab}"
    def smf(p, i): return f"v_smfmac_f32_32x32x32_bf16 {vr(O+16*(i>>1),16)}, {vr(V+4*(i&1),4)}, {vr(S[p]+8*i,8)}, v{IDX}"
    def exps(p, lo, hi): return [f"v_exp_f32 v{S[p]+i}, v{S[p]+i}" for i in range(lo, hi)]
    for x in kreads(0): a(x)
    for t in range(2):
        for m in range(2):
            a(f"ds_read_b64_tr_b16 {vr(QM+4*t+2*m,2)}, v{T0+8+t} offset:{m*128}")
    a(f"ds_read_b64_tr_b16 {vr(QR,2)}, v{T0+10}")
    a(krread(0))
    a("s_setprio 2\ns_mov_b32 s14, 0\ns_waitcnt lgkmcnt(2)")
    a(mf32(S[0], KM, QM, 0)); a(mf32(S[0] + 16, KM, QM + 4, 0))
    for x in kreads(toff(1)): a(x)
    a(vread(0, 0))
    PP = o.get("pp", 2)
    a(vread(1, 0))
    a(f"s_waitcnt lgkmcnt(4)\nv_mov_b32 v{QR+1}, 0\ns_nop 4")
    a(m2b(S[0], 0))
    a("s_setprio 0\ns_nop 15\ns_nop 2")
    a("; STAMP 3")
    a(".p2align 6\nL_att:")
    prog_rd = f"ds_read_b32 v{vF}, v{vPR} offset:{M_PROG - MISC}"
    prog_ck = f"v_cmp_ge_u32 vcc, s14, v{vF}"
    for u in range(4):
        p = u & 1; q = 1 - p
        seq = exps(p, 0, PP) + ["s_setprio 1"] + exps(p, PP, 32)
        seq += ["s_setprio 2", "s_waitcnt lgkmcnt(0)", mf32(S[q], KM, QM, 0)]
        if u == 2: seq += [prog_ck]
        if u == 3: seq += [f"ds_add_u32 v{vPW}, v{vONE}", f"v_add_u32 v{aK}, {SLOT}, v{aK}"]
        seq += [mf32(S[q] + 16, KM, QM + 4, 0)]
        if u == 2: seq += ["s_cbranch_vccnz L_att_wait", "L_att_back:"]
        seq += kreads(toff(u + 2) if u < 3 else toff(1))
        seq += ["s_nop 2", smf(p, 0), "s_nop 3", m2b(S[q], (u + 1) & 1)]
        if u % 2 == 0: seq += [krread(toff(u + 2)), "s_nop 9"]
        if u == 1: seq += [prog_rd, "s_nop 9"]
        if u == 3: seq += [f"v_add_u32 v{aKR}, {SLOT}, v{aKR}", f"v_add_u32 v{aV}, v{vINC}, v{aV}", "s_nop 8"]
        seq += [smf(p, 2), vread(0, toff(u + 1) if u < 3 else 0), "s_nop 1", smf(p, 1)]
        seq += ["s_add_u32 s14, s14, 1", "s_cmp_lt_u32 s14, 8"] if u == 3 else ["s_nop 1"]
        seq += [smf(p, 3), vread(1, toff(u + 1) if u < 3 else 0), "s_setprio 0"]
        for x in seq: a(x)
    a("s_cbranch_scc1 L_att")
    a("; STAMP 4")
    a(f"""
    s_mov_b32 s29, 0
L_combine:
    s_mul_i32 s24, s{sWAVE}, 2560
    s_add_u32 s24, s24, {L_CB}
    s_cmp_eq_u32 s{sWAVE}, 7
    s_cselect_b32 s24, {M_CB7}, s24
    v_lshl_add_u32 v{T0}, v1, 4, s24
    v_lshl_add_u32 v{T0+1}, v1, 3, s24
    s_xor_b32 s25, s{sWAVE}, 4
    s_mul_i32 s25, s25, 2560
    s_add_u32 s25, s25, {L_CB}
    s_cmp_eq_u32 s{sWAVE}, 3
    s_cselect_b32 s25, {M_CB7}, s25
    v_lshl_add_u32 v{T0+2}, v1, 4, s25
    v_lshl_add_u32 v{T0+3}, v1, 3, s25
    ds_write_b128 v{T0}, {vr(O,4)}
    ds_write_b128 v{T0}, {vr(O+4,4)} offset:1024
    ds_write_b64 v{T0+1}, {vr(O+8,2)} offset:2048
    v_mov_b32 v{T0+4}, {M_BAD}
    v_subrev_u32 v{T0+5}, {(127-40) << 23}, v{O+9}
    v_subrev_u32 v{T0+6}, {(127-40) << 23}, v{O+25}
    v_max_u32 v{T0+5}, v{T0+5}, v{T0+6}
    v_cmp_lt_u32 vcc, {80 << 23}, v{T0+5}
    s_cbranch_vccz L_lok
    ds_write_b32 v{T0+4}, v{IDX}
L_lok:
    s_waitcnt lgkmcnt(0)
    s_barrier                          ; BE
    ; STAMP 10
    ds_read_b64 {vr(T0+4,2)}, v{T0+4}
    ds_read_b64 {vr(O+8,2)}, v{T0+3} offset:2048
    ds_read_b128 {vr(O,4)}, v{T0+2}
    ds_read_b128 {vr(O+4,4)}, v{T0+2} offset:1024
    s_lshl2_add_u32 s24, s{sJ}, s13
    s_lshl1_add_u32 s24, s24, s12
    s_lshl_b32 s24, s24, 5
    s_add_u32 s24, s24, s{sM}          ; tile*32 + h
    s_lshl_b32 s25, s24, 10
    s_lshl_b32 s26, s24, 7
    s_add_u32 s26, s26, {O_REM}
    s_lshl_b32 s27, s24, 2
    s_add_u32 s27, s27, {WS_FL2}
    v_lshlrev_b32 v{T0}, 4, v1
    v_and_b32 v{T0+1}, 31, v1
    v_lshrrev_b32 v{T0+6}, 5, v1
    v_lshl_or_b32 v{T0+1}, v{T0+1}, 1, v{T0+6}
    v_lshlrev_b32 v{T0+1}, 1, v{T0+1}
    s_waitcnt lgkmcnt(2)
    v_readfirstlane_b32 s{sMODE}, v{T0+5}
    v_cmp_lt_u32 vcc, s29, v{T0+4}
    v_add_f32 v{O+9}, v{O+9}, v{O+25}
    s_cbranch_vccnz L_fallback
    s_and_b32 s28, s{sMODE}, 1
    s_mul_i32 s28, s28, {WS_OL - WS_OG}
    s_add_u32 s28, s28, {WS_OG}
    s_add_u32 s25, s25, s28
    s_add_u32 s26, s26, s28
    v_rcp_f32 v{O+10}, v{O+9}
    v_add_f32 v{O+8}, v{O+8}, v{O+24}
    s_waitcnt lgkmcnt(0)
    """)
    for i in range(0, 8, 2): a(f"v_pk_add_f32 {vr(O+i,2)}, {vr(O+i,2)}, {vr(O+16+i,2)}")
    a(f"v_mul_f32 v{O+8}, v{O+8}, v{O+10}")
    for i in range(0, 8, 2): a(f"v_pk_mul_f32 {vr(O+i,2)}, {vr(O+i,2)}, {vr(O+10,2)} op_sel_hi:[1,0]")
    for i in range(4): a(f"v_cvt_pk_bf16_f32 v{O+i}, v{O+2*i}, v{O+2*i+1}")
    a(f"""
    v_cvt_pk_bf16_f32 v{O+4}, v{O+8}, v{O+8}
    v_mov_b32 v{T0+6}, 1
    v_mov_b32 v{T0+7}, 0
    s_cmp_eq_u32 s{sMODE}, 1
    s_cbranch_scc0 L_ostore_g
    buffer_store_dwordx4 {vr(O,4)}, v{T0}, {RW}, s25 offen
    buffer_store_short v{O+4}, v{T0+1}, {RW}, s26 offen
    s_mov_b64 exec, 1
    s_waitcnt vmcnt(0)
    buffer_store_dword v{T0+6}, v{T0+7}, {RW}, s27 offen
L_ostored:
    ; STAMP 11
    s_mov_b64 exec, -1
    """)
    OF = 32; ACC = 68; W = [88, 108, 128, 148]
    a(f"""
    v_lshrrev_b32 v18, 4, v1           ; kg
    v_bfe_u32 v22, v1, 2, 2            ; r
    v_and_b32 v23, 3, v1
    v_lshlrev_b32 v23, 3, v23          ; 8c
    v_lshrrev_b32 v24, 5, v1
    v_mul_u32_u24 v24, 18, v24
    v_bfe_u32 v25, v1, 4, 1
    v_lshl_add_u32 v24, v25, 2, v24
    v_add_u32 v24, v24, v22
    v_mul_u32_u24 v24, 160, v24
    s_mul_i32 s24, s12, {288*160}
    s_add_u32 s24, s24, {L_WO}
    v_add3_u32 v26, v24, v23, s24
    """)
    def wreads(s):
        r = []
        for n in range(5):
            for m in range(2):
                reg, off = (26, (36 * s + 8 * m) * 160 + 32 * n) if s < 8 else (27, 36 * m * 160 + 32 * n)
                r.append(f"ds_read_b64_tr_b16 {vr(W[s&3]+4*n+2*m,2)}, v{reg} offset:{off}")
        return r
    for x in wreads(0): a(x)
    a(f"""
    v_lshrrev_b32 v24, 1, v22
    v_lshl_add_u32 v24, v18, 2, v24
    v_mul_u32_u24 v24, 18, v24
    v_and_b32 v25, 1, v22
    v_add3_u32 v24, v24, v25, 16
    v_mul_u32_u24 v24, 160, v24
    v_add3_u32 v27, v24, v23, s24
    s_and_b32 s24, s{sM}, 3
    s_lshl2_add_u32 s24, s{sJ}, s24
    s_lshr_b32 s25, s13, 1
    s_lshl1_add_u32 s24, s24, s25
    s_lshl1_add_u32 s24, s24, s12
    s_lshl_b32 s24, s24, 4
    s_lshl_b32 s25, s24, 10
    s_add_u32 s25, s25, s28
    s_lshl_b32 s26, s24, 7
    s_add_u32 s26, s26, s28
    s_add_u32 s26, s26, {O_REM}
    s_lshl_b32 s27, s24, 2
    s_add_u32 s27, s27, {WS_FL2}
    v_and_b32 v16, 15, v1              ; t
    v_lshlrev_b32 v17, 2, v16
    buffer_load_dword v22, v17, {RW}, s27 offen sc1
    s_and_b32 s24, s13, 1
    s_lshl_b32 s24, s24, 4
    v_add_u32 v19, s24, v16
    v_lshlrev_b32 v20, 9, v18
    v_lshl_add_u32 v21, v19, 2, v20
    v_lshl_add_u32 v20, v19, 4, v20
    s_lshl_b32 s24, s13, 4
    v_add_u32 v24, s24, v16
    v_mul_u32_u24 v24, {AS}, v24
    s_mul_i32 s24, s12, {L_A1 - L_A0}
    s_add_u32 s24, s24, {L_A0}
    v_lshlrev_b32 v25, 4, v18
    v_add3_u32 v28, v24, v25, s24
    """)
    for st in (1, 2, 3):
        for x in wreads(st): a(x)
    poll(a, f"buffer_load_dword v22, v17, {RW}, s27 offen sc1", "v_cmp_ne_u32 vcc, 1, v22", preloaded=True)
    a("; STAMP 5")
    for st in range(8):
        a(f"buffer_load_dwordx4 {vr(OF+4*st,4)}, v20, {RW}, s25 offen offset:{(st%2)*2048} sc1")
        if st % 2: a("s_add_u32 s25, s25, 4096")
    for i in range(4):
        a(f"buffer_load_dword v{OF+32+i}, v21, {RW}, s26 offen offset:{i*128} sc1")
    for st in range(9):
        lg = 0 if st in (0, 8) else (10 if st == 7 else (14 if st >= 4 else 15))
        if o.get("lg4") and st > 0: lg = min(lg, 4)
        a(f"s_waitcnt vmcnt({11 - st if st < 8 else 0}) lgkmcnt({lg})")
        r = wreads(st + 4) if st < 5 else []
        for n in range(5):
            a(mf16(ACC + 4 * n, W[st & 3] + 4 * n, OF + 4 * st, 0 if st == 0 else None))
            if o.get("lag"):
                if n > 0:
                    for x in r[2*n-2:2*n]: a(x)
                if n == 4:
                    a("s_nop 3")
                    for x in r[8:10]: a(x)
            else:
                for x in r[2*n:2*n+2]: a(x)
    a("; STAMP 12")
    a("s_nop 4")
    for n in range(5):
        if n == 4: a("s_mov_b32 exec_hi, 0")
        a(f"ds_write_b128 v28, {vr(ACC+4*n,4)} offset:{64*n}")
        if n < 3: a("s_nop 0")
    a("s_mov_b32 exec_hi, -1")
    a(f"""
L_final:
    v_and_b32 v16, 0xff, v{vROW}
    v_lshrrev_b32 v17, 8, v{vROW}
    v_mul_u32_u24 v18, {AS}, v16
    v_lshl_add_u32 v18, v17, 5, v18
    v_add_u32 v18, {L_A0}, v18
    v_mov_b32 v20, {M_SEL}
    v_lshl_add_u32 v19, v16, 2, v20
    s_and_b32 s24, s{sM}, 3
    s_lshl2_add_u32 s24, s{sJ}, s24
    s_lshl_b32 s24, s24, 6
    s_mov_b32 s8, s{pOUT}
    s_mov_b32 s9, s{pOUT+1}
    s_waitcnt lgkmcnt(0)
    s_barrier                          ; BA
    ; STAMP 6
    ds_read_b32 v{vG}, v19 offset:{M_G - M_SEL}
    ds_read_b64 v[20:21], v20
    ds_read_b128 v[24:27], v18
    ds_read_b128 v[32:35], v18 offset:{L_A1 - L_A0}
    ds_read_b128 v[28:31], v18 offset:16
    ds_read_b128 v[36:39], v18 offset:{L_A1 - L_A0 + 16}
    """)
    for i in range(4):
        a(f"v_lshlrev_b32 v{40+2*i}, 16, v{XD+i}\nv_and_b32 v{41+2*i}, 0xffff0000, v{XD+i}")
    a(f"""
    v_add_u32 v16, s24, v16
    v_sub_u32 v16, 2047, v16
    s_waitcnt lgkmcnt(4)
    v_sub_f32 v10, 1.0, v{vG}
    """)
    rne_bf16(a, 10)
    a(f"""
    v_and_b32 v20, 0x7ff, v20
    v_and_b32 v21, 0x7ff, v21
    v_cmp_eq_u32 s[26:27], v20, v16
    v_cmp_eq_u32 vcc, v21, v16
    s_or_b64 s[26:27], s[26:27], vcc
    s_cbranch_scc1 L_routed
L_mix:
    v_mov_b32 v8, v{vG}
    s_waitcnt lgkmcnt(0)
    """)
    for i in range(0, 8, 2): a(f"v_pk_add_f32 {vr(24+i,2)}, {vr(24+i,2)}, {vr(32+i,2)}")
    for i in range(0, 8, 2): a(f"v_pk_mul_f32 {vr(40+i,2)}, {vr(40+i,2)}, v[10:11] op_sel_hi:[1,0]")
    for i in range(4): a(f"v_cvt_pk_bf16_f32 v{32+i}, v{24+2*i}, v{25+2*i}")
    for i in range(4): a(f"v_cvt_pk_bf16_f32 v{36+i}, v{40+2*i}, v{41+2*i}")
    for i in range(4): a(f"v_lshlrev_b32 v{24+2*i}, 16, v{32+i}\nv_and_b32 v{25+2*i}, 0xffff0000, v{32+i}")
    for i in range(0, 8, 2): a(f"v_pk_mul_f32 {vr(24+i,2)}, {vr(24+i,2)}, v[8:9]")
    for i in range(4): a(f"v_lshlrev_b32 v{40+2*i}, 16, v{36+i}\nv_and_b32 v{41+2*i}, 0xffff0000, v{36+i}")
    for i in range(4): a(f"v_cvt_pk_bf16_f32 v{32+i}, v{24+2*i}, v{25+2*i}")
    for i in range(4): a(f"v_lshlrev_b32 v{24+2*i}, 16, v{32+i}\nv_and_b32 v{25+2*i}, 0xffff0000, v{32+i}")
    for i in range(0, 8, 2): a(f"v_pk_add_f32 {vr(24+i,2)}, {vr(24+i,2)}, {vr(40+i,2)}")
    for i in range(4): a(f"v_cvt_pk_bf16_f32 v{32+i}, v{24+2*i}, v{25+2*i}")
    a(f"""
    buffer_store_dwordx4 v[32:35], v{vXO}, s[8:11], 0 offen
L_end:
    s_endpgm
    """)
    a(f"""
L_clear:
    s_mul_i32 s24, s{sJ}, 12288
    s_add_u32 s24, s24, {WS_CLR}
    v_lshlrev_b32 v3, 4, v0
    v_mov_b32 v4, 0
    v_mov_b32 v5, 0
    v_mov_b32 v6, 0
    v_mov_b32 v7, 0
    s_waitcnt lgkmcnt(0)
    buffer_store_dwordx4 v[4:7], v3, {RW}, s24 offen sc1
    s_nop 0
    s_branch L_cleared
L_general1:
    s_sub_u32 s15, s15, {WS_LOC - WS_GLB}
    """)
    poll(a, f"buffer_load_dword v{T0+2}, v{T0+12}, {RW}, 0 offen sc1", f"v_cmp_ne_u32 vcc, 1, v{T0+2}", sleep=4)
    a(f"""
    s_branch L_stage1
L_att_wait:
    """)
    poll(a, prog_rd, prog_ck, sleep=1)
    a(f"""
    ; STAMP 13
    s_branch L_att_back
L_ostore_g:
    buffer_store_dwordx4 {vr(O,4)}, v{T0}, {RW}, s25 offen sc1
    buffer_store_short v{O+4}, v{T0+1}, {RW}, s26 offen sc1
    s_mov_b64 exec, 1
    s_waitcnt vmcnt(0)
    buffer_store_dword v{T0+6}, v{T0+7}, {RW}, s27 offen sc1
    s_branch L_ostored
L_routed:
    v_lshlrev_b32 v17, 5, v17
    v_add_u32 v22, {M_Y + 320}, v17
    v_add_u32 v17, {M_Y}, v17
    v_cndmask_b32 v17, v17, v22, vcc
    ds_read_b128 v[48:51], v17
    ds_read_b128 v[52:55], v17 offset:16
    s_mov_b64 exec, s[26:27]
    s_waitcnt lgkmcnt(0)
    """)
    for i in range(8):
        a(f"v_add_f32 v{40+i}, v{40+i}, v{48+i}")
        rne_bf16(a, 40 + i)
    a("s_mov_b64 exec, -1\ns_branch L_mix")
    M0r, M1r = T0 + 8, T0 + 9
    def slow_qk():
        for x in kreads(0): a(x)
        a(krread(0))
    a(f"""
L_fallback:
    s_waitcnt lgkmcnt(0)
    s_barrier
    s_barrier                          ; K/V reloaded
    s_mul_i32 s24, s12, 9216
    s_add_u32 s24, s24, {8 * SLOT}
    v_subrev_u32 v{aK}, s24, v{aK}
    v_subrev_u32 v{aKR}, s24, v{aKR}
    v_lshlrev_b32 v{T0}, 3, v{vINC}
    v_sub_u32 v{aV}, v{aV}, v{T0}
    v_mov_b32 v{M0r}, 0xff800000
    v_mov_b32 v{M1r}, 0xff800000
    s_mov_b32 s14, 0
L_fb_max:
    """)
    for t in range(2):
        for x in kreads(t * 2304): a(x)
        if t == 0: a(krread(0))
        a("s_waitcnt lgkmcnt(0)")
        a(mf32(S[0], KM, QM, 0)); a(mf32(S[0] + 16, KM, QM + 4, 0))
        a("s_nop 9"); a(m2b(S[0], t)); a("s_nop 15\ns_nop 3")
        for i in range(0, 16, 2):
            a(f"v_max3_f32 v{M0r}, v{S[0]+i}, v{S[0]+i+1}, v{M0r}")
            a(f"v_max3_f32 v{M1r}, v{S[0]+16+i}, v{S[0]+17+i}, v{M1r}")
    a(f"""
    v_add_u32 v{aK}, 4608, v{aK}
    v_add_u32 v{aKR}, 4608, v{aKR}
    s_add_u32 s14, s14, 1
    s_cmp_lt_u32 s14, 32
    s_cbranch_scc1 L_fb_max
    v_mov_b32 v{T0}, v{M0r}
    v_mov_b32 v{T0+1}, v{M1r}
    s_mul_i32 s24, s12, 9216
    s_sub_u32 s24, {8 * SLOT}, s24
    v_permlane32_swap_b32 v{T0}, v{M0r}
    v_permlane32_swap_b32 v{T0+1}, v{M1r}
    v_subrev_u32 v{aK}, s24, v{aK}
    v_subrev_u32 v{aKR}, s24, v{aKR}
    v_max_f32 v{M0r}, v{T0}, v{M0r}
    v_max_f32 v{M1r}, v{T0+1}, v{M1r}
    """)
    for i in range(32): a(f"v_mov_b32 v{O+i}, 0")
    a("s_mov_b32 s14, 0\nL_fb_pv:")
    for t in range(4):
        for x in kreads(t * 2304): a(x)
        if t % 2 == 0: a(krread(t * 2304))
        a(vread(0, t * 2304)); a(vread(1, t * 2304))
        a("s_waitcnt lgkmcnt(0)")
        a(mf32(S[0], KM, QM, 0)); a(mf32(S[0] + 16, KM, QM + 4, 0))
        a("s_nop 9"); a(m2b(S[0], t & 1)); a("s_nop 15\ns_nop 3")
        for i in range(32):
            a(f"v_sub_f32 v{S[0]+i}, v{S[0]+i}, v{M0r + (i >> 4)}")
        for x in exps(0, 0, 32): a(x)
        a("s_nop 1")
        for i in range(4): a(smf(0, i))
    a(f"""
    v_add_u32 v{aK}, {SLOT}, v{aK}
    v_add_u32 v{aKR}, {SLOT}, v{aKR}
    v_add_u32 v{aV}, v{vINC}, v{aV}
    s_add_u32 s14, s14, 1
    s_cmp_lt_u32 s14, 8
    s_cbranch_scc1 L_fb_pv
    s_mov_b32 s29, -1
    s_nop 7
    s_barrier
    s_branch L_combine
    """)
    ACC1 = 64; FR = 32
    a(f"""
L_service:
    s_setprio 3
    s_sub_u32 s12, s{sWAVE}, 8         ; sw
    s_lshr_b32 s13, s12, 1             ; wm
    s_and_b32 s14, s12, 1              ; wn
    s_lshl_b32 s62, s2, 7
    s_add_u32 s62, s62, {WS_FG1}
    s_mov_b32 s59, 3
    v_mov_b32 v28, 0
    v_mov_b32 v29, 0
    s_cmp_lg_u32 s12, 0
    s_waitcnt lgkmcnt(0)
    s_cbranch_scc1 L_noclear
    v_lshlrev_b32 v8, 2, v1
    v_add_u32 v8, {MISC}, v8
    v_lshrrev_b32 v9, 3, v1
    v_cmp_eq_u32 vcc, 2, v9
    s_nop 1
    v_cndmask_b32 v9, 0, v9, vcc
    ds_write_b32 v8, v9
    s_waitcnt lgkmcnt(0)
L_noclear:
    """)
    if o.get("cpf"):
        a(f"""
        s_getpc_b64 s[24:25]
L_pc:
        s_sub_u32 s24, s24, L_pc - {NAME}
        s_subb_u32 s25, s25, 0
        s_lshl_b32 s26, s12, 6
        v_add_u32 v3, s26, v1
        v_min_u32 v3, (L_codeend - {NAME} - 4) / 128, v3
        v_lshlrev_b32 v3, 7, v3
        global_load_dword v31, v3, s[24:25]
        """)
    a(f"""
    s_cmp_ge_u32 s{sM}, 28
    s_cbranch_scc1 L_rg
    v_and_b32 v3, 19, v1
    v_bfe_u32 v12, v1, 2, 1
    v_lshl_or_b32 v3, v12, 3, v3
    v_bfe_u32 v12, v1, 3, 1
    v_lshl_or_b32 v3, v12, 2, v3
    v_bfe_u32 v12, v3, 1, 3
    v_lshrrev_b32 v13, 5, v1           ; hh
    v_xor_b32 v12, v12, v13
    v_lshlrev_b32 v12, 4, v12
    v_lshl_or_b32 v12, v3, 7, v12
    s_lshl_b32 s24, s13, 13
    v_add_u32 v16, s24, v12
    v_xor_b32 v17, 32, v16
    v_xor_b32 v18, 64, v16
    v_xor_b32 v19, 96, v16
    v_bfe_u32 v3, v1, 2, 2
    v_lshl_add_u32 v12, v13, 3, v3
    v_lshlrev_b32 v12, 8, v12
    s_lshl_b32 s24, s14, 1
    v_xor_b32 v14, s24, v3
    v_lshl_or_b32 v12, v14, 6, v12
    v_bfe_u32 v14, v1, 4, 1
    v_lshl_or_b32 v12, v14, 5, v12
    v_and_b32 v14, 3, v1
    v_lshl_or_b32 v12, v14, 3, v12
    v_add_u32 v20, 16384, v12
    v_xor_b32 v21, 64, v20
    s_and_b32 s24, s{sM}, 30
    s_add_u32 s24, s24, s14
    s_lshr_b32 s25, s{sM}, 1
    s_mul_i32 s26, s14, 9
    s_add_u32 s25, s25, s26
    s_cmp_lt_u32 s{sM}, 18
    s_cselect_b32 s24, s25, s24        ; col64
    s_cmp_ge_u32 s24, 9
    s_cselect_b32 s25, 1, 0
    s_cmp_ge_u32 s24, 18
    s_addc_u32 s25, s25, 0             ; matrix 0 q, 1 k, 2 v
    s_mul_i32 s26, s25, 9
    s_sub_u32 s26, s24, s26
    s_lshl_b32 s26, s26, 6
    s_lshr_b32 s27, s25, 1             ; is v
    s_mov_b32 s28, {HS}
    """)
    for nt in range(2):
        a(f"""
        v_and_b32 v3, 31, v1
        v_add3_u32 v3, v3, s26, {32*nt}
        v_mul_u32_u24 v12, 3641, v3
        v_lshrrev_b32 v12, 16, v12         ; head
        v_mul_u32_u24 v14, 18, v12
        v_sub_u32 v3, v3, v14              ; d
        v_lshrrev_b32 v14, 4, v3
        v_and_b32 v14, s27, v14
        v_xor_b32 v14, v14, v13
        v_lshlrev_b32 v14, 4, v14
        v_lshl_or_b32 v3, v3, 5, v14
        v_mad_u32_u24 v{28+nt}, v12, s28, v3
        """)
    a(f"""
    s_movk_i32 s56, 1152
    s_cmp_eq_u32 s25, 0
    s_cselect_b32 s56, 576, s56
    s_cselect_b32 s57, 18432, 0
    s_mul_i32 s27, s27, 576
    s_add_u32 s57, s57, s27
    s_and_b32 s27, s{sM}, 1
    s_lshl1_add_u32 s27, s27, s13
    s_mul_i32 s28, s27, s56
    s_lshl2_add_u32 s57, s28, s57
    s_mul_i32 s28, s{sJ}, {JS}
    s_add_u32 s57, s57, s28
    s_lshl2_add_u32 s27, s{sJ}, s27
    s_lshl_b32 s27, s27, 7
    s_lshl2_add_u32 s58, s24, s27
    s_add_u32 s58, s58, {WS_FL1}
    s_mov_b32 s59, s25
    s_cmp_eq_u32 s24, 27
    s_cselect_b32 s59, 3, s59
    """)
    for i in range(64): a(f"v_mov_b32 v{ACC1+i}, 0")
    for i in range(16): a(f"v_mov_b32 v{FR+16+i}, 0")
    a(f"s_mov_b32 s24, 0\ns_mov_b32 s25, 0\ns_cmp_eq_u32 s59, 0\ns_cselect_b32 s26, {f32bits(QSCALE)}, 1.0\ns_mov_b32 s27, s26")
    a(f"s_add_u32 s28, s57, {WS_LOC}\ns_cmp_eq_u32 s59, 3\ns_cselect_b32 s18, 0, s18")
    FS = [FR, FR + 16, 128, 144]
    def reads(kk, st):
        A = FS[st]; B = A + 8
        r = [f"ds_read_b128 {vr(A+4*mt,4)}, v{22+kk} offset:{4096*mt}" for mt in range(2)]
        b = [f"ds_read_b64_tr_b16 {vr(B+4*nt+2*m,2)}, v{26+nt} offset:{(16*kk+4*m)*256}" for nt in range(2) for m in range(2)]
        return [r[0]] + b + [r[1]]
    def mfmas(st):
        A = FS[st]; B = A + 8
        return [mf32(ACC1 + 16 * (2 * mt + nt), A + 4 * mt, B + 4 * nt) for mt in range(2) for nt in range(2)]
    for i in range(6): a(f"v_mov_b32 v{22+i}, v{16+i}")
    regaddr(a, 3)
    a("; STAMP 1")
    a(".p2align 4\nL_gemm:")
    for kk in range(4):
        r = reads(kk, kk & 1); m = mfmas((kk + 1) & 1)
        a("s_waitcnt lgkmcnt(3)")
        a(m[0])
        if kk == 0:
            a("s_waitcnt lgkmcnt(0)\ns_barrier")
            if o.get("gstamp"): a("s_cmp_lg_u32 s24, 0\ns_cbranch_scc1 L_gs1\n; STAMP 7\nL_gs1:")
            a(m[1]); a(r[0]); a(r[1]); a(r[2]); a(m[2]); a(r[3]); a(r[4]); a(r[5]); a(m[3])
            a("s_add_u32 s25, s25, 32768\ns_and_b32 s25, s25, 0x1ffff\ns_add_u32 s24, s24, 1")
        else:
            a(r[0]); a(r[1]); a("s_waitcnt lgkmcnt(3)"); a(m[1]); a(r[2]); a(r[3]); a("s_waitcnt lgkmcnt(4)"); a(m[2]); a(r[4]); a(r[5]); a(m[3])
        if kk == 2:
            for i in range(3): a(f"v_add_u32 v{22+i}, s25, v{16+i}")
            a("s_cmp_lt_u32 s24, 8")
        if kk == 3:
            for i in range(3, 6): a(f"v_add_u32 v{22+i}, s25, v{16+i}")
    a("s_cbranch_scc1 L_gemm")
    order = [0, 2, 3, 1]
    m = mfmas(1)
    a(regload(3, 4))
    a("s_waitcnt lgkmcnt(3)"); a(m[0]); a("s_waitcnt lgkmcnt(0)\ns_barrier\n; STAMP 8")
    rr = [reads(kk, order[kk]) for kk in range(4)]
    for x in rr[0][:3]: a(x)
    a(m[1])
    for x in rr[1][:3]: a(x)
    a(m[2])
    for x in rr[2][:3]: a(x)
    a(m[3])
    for x in rr[3][:3]: a(x)
    def tile_mf(t): return [mfmas(order[kk])[t] for kk in range(4)]
    def tile_out(t):
        mt, nt = t >> 1, t & 1; D = ACC1 + 16 * t
        o_ = []
        for hf in range(2):
            h = [f"v_pk_mul_f32 {vr(D+8*hf+r,2)}, {vr(D+8*hf+r,2)}, s[26:27]" for r in range(0, 8, 2)]
            h += [f"v_cvt_pk_bf16_f32 v{D+4*hf+r}, v{D+8*hf+2*r}, v{D+8*hf+2*r+1}" for r in range(4)]
            h += [f"s_mul_i32 s24, s56, {2*mt+hf}", "s_add_u32 s24, s24, s28",
                  f"buffer_store_dwordx4 {vr(D+4*hf,4)}, v{28+nt}, {RW}, s24 offen"]
            o_.append(h)
        return o_
    t0 = tile_mf(0)
    for kk in range(4):
        a("s_waitcnt lgkmcnt(9)" if kk == 0 else f"s_waitcnt lgkmcnt({9 - kk})"); a(t0[kk]); a(rr[kk][3]); a(rr[kk][4])
    t1 = tile_mf(1); o0 = tile_out(0); o0 = o0[0] + o0[1]
    a("s_waitcnt lgkmcnt(6)"); a(t1[0])
    for kk in range(4): a(rr[kk][5])
    a("s_waitcnt lgkmcnt(8)"); a(t1[1])
    a("s_nop 1")
    for x in o0[:4]: a(x)
    a("s_waitcnt lgkmcnt(6)"); a(t1[2])
    for x in o0[4:11]: a(x)
    a("s_waitcnt lgkmcnt(0)\ns_barrier                          ; BL"); a(t1[3])
    pend = o0[11:]
    for t in range(2, 4):
        mm = tile_mf(t); oo = tile_out(t - 1); oo = oo[0] + oo[1]
        for x in pend[:5]: a(x)
        a(mm[0])
        for x in pend[5:]: a(x)
        a(mm[1])
        for x in oo[:5]: a(x)
        a(mm[2])
        for x in oo[5:11]: a(x)
        a(mm[3])
        pend = oo[11:]
    for x in pend: a(x)
    a("; STAMP 2\ns_nop 0")
    for h in tile_out(3):
        for x in h: a(x)
    a(f"""
    v_mov_b32 v6, s{sREG}
    v_mov_b32 v5, 0
    ; STAMP 9
    """)
    regwait(a, 3, 4, preloaded=True)
    a(f"""
    s_mov_b32 s18, {WS_END}
    s_mov_b64 exec, 1
    buffer_store_dword v6, v5, {RW}, s58 offen
    s_mov_b64 exec, -1
    ; STAMP 10
    s_sub_u32 s24, s59, 1
    s_cmp_ge_u32 s24, 2
    s_cbranch_scc1 L_stored
    """)
    def glb_stores():
        for mt in range(2):
            for hf in range(2):
                for nt in range(2):
                    a(f"buffer_store_dwordx4 {vr(ACC1+16*(2*mt+nt)+4*hf,4)}, v{28+nt}, {RW}, s57 offen sc1")
                a("s_add_u32 s57, s57, s56")
    glb_stores()
    a(f"""
L_stored:
    v_mov_b32 v4, 1
    s_lshl2_add_u32 s24, s12, s62
    s_mov_b64 exec, 1
    s_waitcnt vmcnt(0)
    buffer_store_dword v4, v5, {RW}, s24 offen sc1
    s_mov_b64 exec, -1
L_tag:
    s_cmp_lg_u32 s12, 1
    s_cbranch_scc1 L_svc_kv
    s_mov_b64 exec, 1
    buffer_store_dword v6, v5, {RW}, s62 offen offset:16 sc1
    s_mov_b64 exec, -1
L_svc_kv:
    ; STAMP 3
    """)
    vL16, vZ, vMS, v1c = 2, 5, 6, 11
    a(f"""
    s_and_b32 s15, s{sM}, 3
    s_lshl2_add_u32 s15, s{sJ}, s15
    s_lshl_b32 s15, s15, 6
    s_mov_b32 s29, 0
    v_mov_b32 v{vMS}, {MISC}
    v_mov_b32 v{vZ}, 0
    v_lshlrev_b32 v{vL16}, 4, v1
    s_cmp_lg_u32 s12, 0
    s_cbranch_scc1 L_helper
    """)
    final_addr(a)
    a(f"""
    v_mov_b32 v{v1c}, 1
    v_and_b32 v{vPR}, 7, v1
    v_lshl_add_u32 v{vPR}, v{vPR}, 2, v{vMS}
    """)
    for i in range(5):
        a(f"""
        v_add_u32 v3, {64*i}, v1
        v_mul_u32_u24 v4, 6554, v3
        v_lshrrev_b32 v4, 16, v4
        v_mul_u32_u24 v9, 10, v4
        v_sub_u32 v3, v3, v9
        v_min_u32 v3, 8, v3
        v_mul_u32_u24 v4, 1152, v4
        v_lshl_add_u32 v{16+i}, v3, 4, v4
        """)
        if 0 < i < 4: a(f"v_subrev_u32 v{16+i}, {1024*i}, v{16+i}")
    a(f"""
    v_lshrrev_b32 v3, 3, v1
    v_and_b32 v4, 7, v1
    v_lshlrev_b32 v4, 7, v4
    v_lshl_or_b32 v21, v3, 15, v4
    v_lshlrev_b32 v22, 12, v3
    v_lshl_add_u32 v23, v1, 2, v{vMS}
    s_mul_i32 s24, s{sM}, 18
    v_and_b32 v3, 1, v1
    v_mad_u32_u24 v3, v3, 17, s24
    v_lshrrev_b32 v3, 6, v3
    v_bfe_u32 v4, v1, 1, 1
    v_lshrrev_b32 v3, v4, v3
    v_mad_u32_u24 v3, v4, 9, v3        ; ct
    v_bfe_u32 v4, v1, 2, 1
    v_lshl_or_b32 v3, v3, 1, v4        ; m'
    v_lshrrev_b32 v4, 3, v1
    v_add3_u32 v4, v4, s{sJ}, 1
    v_and_b32 v4, 7, v4
    v_lshl_or_b32 v3, v3, 3, v4        ; wg
    v_lshlrev_b32 v3, 7, v3
    s_mov_b32 s28, {WS_FG1}
    s_mul_i32 s52, s{sM}, {HS}
    s_add_u32 s53, s{sJ}, 1
    s_mov_b32 s55, {KV0 + SLOT}
    """)
    if not o.get("noc0"): poll(a, f"ds_read_b32 v4, v{vMS} offset:{M_C0 - MISC}", "v_cmp_ne_u32 vcc, 8, v4", sleep=2, spin=64)
    a("s_mov_b64 exec, 0xff")
    gl = f"buffer_load_dwordx4 v[12:15], v3, {RW}, s28 offen sc1"
    gc = "v_bitop3_b32 v12, v12, v13, v14 bitop3:0x80\nv_and_b32 v12, v12, v15\nv_cmp_ne_u32 vcc, 1, v12"
    poll(a, gl, gc, sleep=2)
    a("s_mov_b64 exec, -1\n; STAMP 4")
    def kvslot():
        a(f"""
        s_and_b32 s53, s53, 7
        s_mul_i32 s24, s53, {JS}
        s_add_u32 s24, s24, s52
        s_add_u32 s53, s53, 1
        """)
        for g in range(5):
            a(f"s_mov_b32 m0, s55\ns_add_u32 s55, s55, {4096 if g < 4 else 2048}")
            for u in range(4 if g < 4 else 2):
                a(f"buffer_load_dwordx4 v{vL16}, {RW}, s24 offen offset:{1024*u} sc1 lds")
            if g < 4: a("s_add_u32 s24, s24, 4096")
    lvl_add = f"ds_add_u32 v{vMS}, v{v1c} offset:{M_FULL - MISC}"
    def level(n=1):
        a("s_mov_b64 exec, " + str((1 << n) - 1) + f"\n{lvl_add}\ns_mov_b64 exec, -1")
    def qpub():
        l = uid("qok")
        a(f"s_cmp_lg_u32 s59, 0\ns_cbranch_scc1 {l}")
        poll(a, f"ds_read_b32 v4, v{vMS} offset:{M_MODE - MISC}", "v_cmp_eq_u32 vcc, 0, v4", sleep=4)
        a(f"v_cmp_eq_u32 vcc, 1, v4\ns_cbranch_vccnz {l}")
        glb_stores()
        a(f"""
        s_lshl2_add_u32 s24, s12, s62
        s_mov_b64 exec, 1
        s_waitcnt vmcnt(0)
        buffer_store_dword v{v1c}, v{vZ}, {RW}, s24 offen offset:32 sc1
        s_mov_b64 exec, -1
{l}:
        """)
    def selwait():
        a(f"s_lshl_b32 s24, s{sJ}, 7\ns_add_u32 s24, s24, {WS_SEL}")
        poll(a, f"buffer_load_dwordx2 v[12:13], v{vZ}, {RW}, s24 offen sc1", "v_min_u32 v4, v12, v13\nv_cmp_eq_u32 vcc, 0, v4", sleep=4)
    a("s_mov_b32 s54, 1\nL_kvloop:")
    kvslot()
    a(f"""
    s_cmp_lg_u32 s54, 1
    s_cbranch_scc1 L_kvnext
    {gl}
    s_waitcnt vmcnt(1)
    """)
    level()
    a("; STAMP 5")
    poll(a, gl, gc, sleep=4, preloaded=True)
    a(f"""
    s_mov_b32 s54, 2
    s_branch L_kvloop
L_kvnext:
    s_add_u32 s54, s54, 1
    s_cmp_eq_u32 s54, 3
    s_cbranch_scc1 L_kvloop
    s_waitcnt vmcnt(18)
    """)
    level()
    a(f"""
    s_cmp_lt_u32 s54, 7
    s_cbranch_scc1 L_kvloop
    s_cmp_eq_u32 s54, 8
    s_cbranch_scc1 L_kvdone
    """)
    qpub()
    poll(a, prog_rd, f"v_cmp_gt_u32 vcc, 3, v{vF}", sleep=4)
    a("s_branch L_kvloop\nL_kvdone:\ns_waitcnt vmcnt(0)")
    level(2)
    a("; STAMP 11")
    selwait()
    a(f"""
    ds_write_b64 v{vMS}, v[12:13] offset:{M_SEL - MISC}
    s_lshl_b32 s24, s15, 2
    s_add_u32 s24, s24, {WS_G - MISC}
    buffer_load_dword v4, v23, {RW}, s24 offen sc1
    s_waitcnt vmcnt(0) lgkmcnt(0)
    ds_write_b32 v23, v4 offset:{M_G - MISC}
    buffer_load_dwordx4 {vr(XD,4)}, v{vXO}, s[8:11], 0 offen
    """)
    poll(a, prog_rd, f"v_cmp_gt_u32 vcc, 7, v{vF}", sleep=16)
    a(f"""
L_wo:
    s_mov_b32 s24, s{pWO}
    s_mov_b32 s25, s{pWO+1}
    s_mov_b32 s26, {WOB}
    s_mov_b32 s27, 0x00020000
    s_lshr_b32 s52, s{sM}, 2
    s_mul_i32 s52, s52, 144
    s_mov_b32 s53, {L_WO}
L_wo_loop:
    s_mov_b32 m0, s53
    s_nop 0
    """)
    for i in range(4): a(f"buffer_load_dwordx4 v{16+i}, s[24:27], s52 offen offset:{1024*i} lds")
    a(f"""
    s_add_u32 m0, s53, 4096
    s_add_u32 s53, s53, 5120
    buffer_load_dwordx4 v20, s[24:27], s52 offen lds
    s_add_u32 s52, s52, {32*1152}
    s_cmp_lt_u32 s53, {L_WO + 92160}
    s_waitcnt vmcnt(50)
    s_cbranch_scc1 L_wo_loop
    s_lshl_b32 s24, s{sJ}, 8
    s_add_u32 s24, s24, s{sM}
    s_lshl_b32 s25, s24, 10
    s_add_u32 s25, s25, {WS_OL}
    s_lshl_b32 s24, s24, 7
    s_add_u32 s24, s24, {WS_OL + O_REM}
    {"" if o.get("nopre") else f"buffer_load_dword v31, v21, {RW}, s25 offen sc1"}
    {"" if o.get("nopre") else f"buffer_load_dword v31, v22, {RW}, s24 offen sc1"}
    s_branch L_svc_wait
    """)
    aGU, aXF, aWR, aTG, aTD, aDN, aP, aHW, aHR, aY, vTK = 7, 8, 9, 10, 14, 15, 16, 17, 18, 19, 20
    G_ = 24; U_ = 72; XF = 120; TR = 144; AC = 152
    a(f"""
L_helper:
    s_sub_u32 s13, s12, 1              ; third
    v_mov_b32 v{v1c}, 1
    s_mul_i32 s60, s{sJ}, 18
    s_add_u32 s60, s60, s{sM}
    v_lshrrev_b32 v3, 2, v1
    v_mul_u32_u24 v3, 9216, v3
    v_and_b32 v4, 3, v1
    v_lshl_add_u32 v{aGU}, v4, 4, v3
    v_lshlrev_b32 v4, 3, v4            ; 8c
    v_bfe_u32 v21, v1, 2, 2            ; r
    v_lshrrev_b32 v22, 4, v1           ; kg
    s_mul_i32 s61, s12, 2304
    s_add_u32 s61, s61, 32
    v_add_u32 v{aWR}, s61, v{vL16}
    v_and_b32 v3, 1, v22
    v_lshl_add_u32 v3, v3, 3, v21
    v_lshl_or_b32 v3, v3, 6, v4
    v_lshrrev_b32 v12, 5, v1
    v_mul_u32_u24 v13, 1152, v12
    v_add3_u32 v{aTG}, v3, v13, s61
    v_lshl_add_u32 v3, v22, 3, v21
    v_lshl_or_b32 v3, v3, 5, v4
    v_add_u32 v{aTD}, s61, v3
    v_lshrrev_b32 v3, 1, v1
    v_mul_u32_u24 v3, 1152, v3
    v_and_b32 v4, 1, v1
    v_lshl_add_u32 v{aDN}, v4, 4, v3
    v_lshl_add_u32 v{aP}, v1, 2, v{vMS}
    s_lshl_b32 s25, s12, 7
    s_add_u32 s25, s25, {M_H}
    v_and_b32 v3, 15, v1
    v_lshl_or_b32 v4, v12, 4, v3
    v_and_b32 v21, 16, v1
    v_lshl_add_u32 v4, v21, 1, v4
    v_lshl_add_u32 v{aHW}, v4, 1, s25
    v_and_b32 v4, 4, v1
    v_add_u32 v4, v4, v22
    v_lshl_add_u32 v{aHR}, v4, 4, s25
    v_mul_u32_u24 v4, 2304, v22
    v_lshl_add_u32 v{aY}, v3, 2, v4
    s_mul_i32 s25, s13, 384
    v_lshl_add_u32 v{aXF}, v22, 4, s25
    v_bfe_i32 v{vTK}, v1, 2, 1
    s_lshl_b32 s25, s13, 9
    v_add_u32 v21, s25, v{aP}
    v_lshlrev_b32 v3, 10, v1
    s_cmp_lg_u32 s12, 1
    s_cbranch_scc1 L_helper2
    s_lshl_b32 s24, s{sJ}, 7
    s_add_u32 s24, s24, {WS_FG1}
    """)
    poll(a, f"ds_read_b32 v4, v{vMS} offset:{M_FULL - MISC}", "v_cmp_eq_u32 vcc, 0, v4", sleep=8)
    a("s_mov_b32 exec_hi, 0")
    poll(a, f"buffer_load_dword v4, v3, {RW}, s24 offen offset:16 sc1", "v_cmp_eq_u32 vcc, 0, v4", sleep=8)
    a(f"""
    v_cmp_ne_u32 vcc, s{sREG}, v4
    s_mov_b32 exec_hi, -1
    s_cmp_eq_u32 vcc_lo, 0
    s_cselect_b32 s24, 1, 2
    v_mov_b32 v4, s24
    ds_write_b32 v{vMS}, v4 offset:{M_MODE - MISC}
L_helper2:
    s_mul_i32 s28, s12, {o.get('ps', 1)}
    s_add_u32 s28, s28, {o.get('pl', 0)}
    """)
    poll(a, f"ds_read_b32 v4, v{vMS} offset:{M_FULL - MISC}", "v_cmp_gt_u32 vcc, s28, v4", sleep=16)
    qpub()
    selwait()
    a(f"""
L_sel2:
    ; STAMP 12
    v_readfirstlane_b32 s56, v12
    v_readfirstlane_b32 s57, v13
    s_and_b32 s58, s56, 0x7ff
    s_sub_u32 s58, 2047, s58           ; idx0
    s_and_b32 s59, s57, 0x7ff
    s_sub_u32 s59, 2047, s59           ; idx1
    s_cmp_ge_u32 s{sM}, 18
    s_cbranch_scc1 L_svc_wait
    s_mul_i32 s25, s58, 1152
    s_mul_i32 s26, s59, 1152
    s_sub_u32 s26, s26, s25
    v_and_b32 v{vTK}, s26, v{vTK}
    v_add3_u32 v{aXF}, v{aXF}, v{vTK}, s25
    s_setprio 0
    """)
    for i in range(6):
        a(f"buffer_load_dwordx4 {vr(XF+4*i,4)}, v{aXF}, s[8:11], 0 offen offset:{64*i}")
    a(f"""
    s_mov_b32 s10, {WGB}
    s_mul_i32 s26, s13, {192*9216}
    s_lshl_b32 s24, s60, 6
    s_add_u32 s26, s26, s24
    """)
    for base, ptr in ((G_, pWG), (U_, pWU)):
        a(f"s_mov_b32 s8, s{ptr}\ns_mov_b32 s9, s{ptr+1}\ns_mov_b32 s25, s26")
        for i in range(12):
            a(f"buffer_load_dwordx4 {vr(base+4*i,4)}, v{aGU}, s[8:11], s25 offen\ns_add_u32 s25, s25, {16*9216}")
    a(f"s_mov_b32 s8, s{pWD}\ns_mov_b32 s9, s{pWD+1}")
    def mm2(x0, x1):
        a(f"s_waitcnt lgkmcnt(0)\ns_setprio 3\n{x0}\n{x1}\ns_setprio 0")
        if o.get("dsl"): a(f"s_sleep {o['dsl']}")
    for mat, base in enumerate((G_, U_)):
        a("s_waitcnt vmcnt(12)")
        if mat == 0: a("; MSTAMP 2")
        for st in range(6):
            a(f"ds_write_b128 v{aWR}, {vr(base+8*st,4)}")
            a(f"ds_write_b128 v{aWR}, {vr(base+8*st+4,4)} offset:1152")
            for n in range(2):
                for m in range(2):
                    a(f"ds_read_b64_tr_b16 {vr(TR+4*n+2*m,2)}, v{aTG} offset:{256*m+32*n}")
            mm2(*[mf16(AC + 8 * mat + 4 * n, XF + 4 * st, TR + 4 * n, 0 if st == 0 else None) for n in range(2)])
        if mat == 0:
            a("s_mul_i32 s25, s60, 36864\ns_mul_i32 s26, s13, 384\ns_add_u32 s25, s25, s26")
            for n in range(12):
                a(f"buffer_load_dwordx4 {vr(G_+4*n,4)}, v{aDN}, s[8:11], s25 offen offset:{32*n}")
    a(f"""
    ; MSTAMP 7
    s_mov_b32 exec_hi, 0
    ds_write_b32 v21, v{AC} offset:{M_P - MISC}
    s_not_b64 exec, exec
    ds_write_b32 v21, v{AC+4} offset:{M_P - MISC}
    s_nop 3
    ds_write_b32 v21, v{AC+12} offset:{M_P - MISC + 256}
    s_not_b64 exec, exec
    ds_write_b32 v21, v{AC+8} offset:{M_P - MISC + 256}
    s_mov_b64 exec, 1
    ds_add_u32 v{vMS}, v{v1c}
    s_mov_b64 exec, -1
    s_setprio 3
    """)
    poll(a, f"ds_read_b32 v4, v{vMS}", "v_cmp_ne_u32 vcc, 3, v4", sleep=4)
    a("; MSTAMP 9")
    for w in range(6): a(f"ds_read_b32 v{XF+w}, v{aP} offset:{M_P - MISC + 256*w}")
    a(f"""
    s_waitcnt lgkmcnt(0)
    v_pk_add_f32 {vr(XF,2)}, {vr(XF,2)}, {vr(XF+2,2)}
    v_pk_add_f32 {vr(XF,2)}, {vr(XF,2)}, {vr(XF+4,2)}
    v_cvt_pk_bf16_f32 v{XF+1}, v{XF}, v{XF+1}
    v_lshlrev_b32 v{XF}, 16, v{XF+1}
    v_mul_f32 v{XF+2}, {f32bits(-math.log2(math.e))}, v{XF}
    v_exp_f32 v{XF+2}, v{XF+2}
    v_and_b32 v{XF+1}, 0xffff0000, v{XF+1}
    v_add_f32 v{XF+2}, 1.0, v{XF+2}
    v_rcp_f32 v{XF+2}, v{XF+2}
    s_and_b32 s25, s60, 7
    v_mul_f32 v{XF}, v{XF}, v{XF+2}
    """)
    rne_bf16(a, XF)
    a(f"""
    v_mul_f32 v{XF}, v{XF}, v{XF+1}
    v_cvt_pk_bf16_f32 v{XF}, v{XF}, v{XF}
    s_setprio 0
    ds_write_b16 v{aHW}, v{XF}
    ds_read_b128 {vr(XF+4,4)}, v{aHR}
    s_waitcnt vmcnt(0)
    """)
    for st in range(6):
        for n in range(2): a(f"ds_write_b128 v{aWR}, {vr(G_+8*st+4*n,4)} offset:{1152*n}")
        for n in range(2):
            for m in range(2):
                a(f"ds_read_b64_tr_b16 {vr(TR+4*n+2*m,2)}, v{aTD} offset:{1152*n+128*m}")
        mm2(*[mf16(U_ + 8 * st + 4 * n, XF + 4, TR + 4 * n, 0) for n in range(2)])
    a(f"""
    s_mul_i32 s25, s25, 4608
    s_mul_i32 s26, s13, 768
    s_add_u32 s25, s25, s26
    s_add_u32 s25, s25, {WS_Y}
    ; MSTAMP 10
    s_mov_b32 exec_hi, 0
    """)
    for n in range(12):
        a(f"buffer_atomic_add_f32 v{U_+4*n}, v{aY}, {RW}, s25 offen offset:{64*n} sc1")
    a(f"""
    s_mov_b64 exec, 1
    s_setprio 3
    s_waitcnt vmcnt(0)
    ds_add_rtn_u32 v4, v{vMS}, v{v1c} offset:4
    s_lshr_b32 s25, s{sJ}, 2
    s_lshl_b32 s25, s25, 7
    s_add_u32 s25, s25, 16
    s_waitcnt lgkmcnt(0)
    v_cmp_eq_u32 vcc, 2, v4
    s_cbranch_vccz L_notlast
    buffer_atomic_add v{v1c}, v{vZ}, {RD}, s25 offen sc1
L_notlast:
    s_mov_b64 exec, -1
L_moedone:
    ; STAMP 13
L_svc_wait:
    s_waitcnt vmcnt(0) lgkmcnt(0)
    ; STAMP 14
    s_barrier                          ; BE
    ds_read_b32 v4, v{vMS} offset:{M_BAD - MISC}
    s_waitcnt lgkmcnt(0)
    v_cmp_lt_u32 vcc, s29, v4
    s_cbranch_vccnz L_svc_fb
    s_cmp_eq_u32 s12, 0
    s_cbranch_scc1 L_final
    s_cmp_eq_u32 s12, 1
    s_cbranch_scc1 L_svc_end
    s_cmp_eq_u32 s12, 2
    s_cselect_b32 s26, s58, s59
    s_cselect_b32 s27, s56, s57
    s_andn2_b32 s26, s26, 63
    s_cmp_lg_u32 s15, s26
    s_cbranch_scc1 L_svc_end
    v_and_b32 v3, 1, v1
    v_lshlrev_b32 v3, 7, v3
    """)
    poll(a, f"buffer_load_dword v4, v3, {RD}, 0 offen offset:16 sc1", "v_cmp_ne_u32 vcc, 72, v4", sleep=2)
    a(f"""
    ; MSTAMP 4
    v_min_u32 v3, 35, v1
    v_lshlrev_b32 v3, 3, v3
    s_lshr_b32 s24, s{sM}, 2
    s_mul_i32 s24, s24, 288
    s_mul_i32 s25, s14, 2304
    s_add_u32 s24, s24, s25
    s_add_u32 s24, s24, {WS_Y}
    """)
    for rp in range(8):
        a(f"buffer_load_dwordx2 {vr(32+2*rp,2)}, v3, {RW}, s24 offen sc1\ns_add_u32 s24, s24, 4608")
    a(f"""
    s_and_b32 s27, s27, 0xfffff800
    s_xor_b32 s24, s27, 0x80000000
    s_not_b32 s25, s27
    s_bitcmp1_b32 s27, 31
    s_cselect_b32 s27, s24, s25
    v_mov_b32 v10, s27
    """)
    rne_bf16(a, 10); sigmoid(a, 10); rne_bf16(a, 10)
    a(f"s_mul_i32 s24, s14, 320\ns_add_u32 s24, s24, {M_Y}\nv_add_u32 v3, s24, v3\ns_waitcnt vmcnt(0)")
    for rp in range(1, 8): a(f"v_pk_add_f32 v[32:33], v[32:33], {vr(32+2*rp,2)}")
    for i in range(2):
        rne_bf16(a, 32 + i); a(f"v_mul_f32 v{32+i}, v{32+i}, v10"); rne_bf16(a, 32 + i)
    a(f"""
    ds_write_b64 v3, v[32:33]
    s_waitcnt lgkmcnt(0)
L_svc_end:
    s_endpgm
L_svc_fb:
    s_barrier
    s_mul_i32 s52, s{sM}, {HS}
    s_lshl1_add_u32 s53, s12, s{sJ}
    s_mul_i32 s55, s12, {2 * SLOT}
    s_add_u32 s55, s55, {KV0}
    s_mov_b32 s54, 0
L_fb_kv:
    """)
    kvslot()
    a("""
    s_add_u32 s54, s54, 1
    s_cmp_lt_u32 s54, 2
    s_cbranch_scc1 L_fb_kv
    s_waitcnt vmcnt(0)
    s_barrier
    s_mov_b32 s29, -1
    s_barrier
    s_cmp_lg_u32 s12, 0
    s_cbranch_scc1 L_svc_wait
    s_branch L_wo
    """)
    a(f"""
L_rg:
    s_sub_u32 s26, s{sM}, 28
    s_lshl2_add_u32 s26, s{sJ}, s26
    s_lshl2_add_u32 s27, s26, s12
    s_lshl_b32 s28, s27, 4
    v_lshrrev_b32 v3, 3, v1
    v_add_u32 v4, s28, v3              ; row
    v_mul_u32_u24 v5, 1152, v4
    v_and_b32 v6, 7, v1
    v_lshlrev_b32 v6, 4, v6
    v_add_u32 v5, v5, v6
    v_add_u32 v7, 9216, v5
    """)
    for i in range(9): a(f"global_load_dwordx4 {vr(16+4*i,4)}, v5, s[{pX}:{pX+1}] offset:{128*i}")
    for i in range(9): a(f"global_load_dwordx4 {vr(88+4*i,4)}, v6, s[{pWR}:{pWR+1}] offset:{128*i}")
    for i in range(9): a(f"global_load_dwordx4 {vr(124+4*i,4)}, v6, s[{pGW}:{pGW+1}] offset:{128*i}")
    for i in range(9): a(f"global_load_dwordx4 {vr(52+4*i,4)}, v7, s[{pX}:{pX+1}] offset:{128*i}")
    a(f"""
    v_mov_b32 v8, 0
    v_mov_b32 v9, 0
    v_mov_b32 v10, 0
    v_mov_b32 v11, 0
    s_waitcnt vmcnt(36)
    s_barrier                          ; BL
    s_and_b32 s29, s27, 15
    s_cmp_lg_u32 s29, 0
    s_cbranch_scc1 L_nosig
    s_lshl_b32 s29, s{sJ}, 5
    v_mov_b32 v12, 1
    s_mov_b64 exec, 1
    buffer_store_dword v12, v8, {RD}, s29 offen sc1
    s_mov_b64 exec, -1
L_nosig:
    s_waitcnt vmcnt(0)
    """)
    for i in range(36):
        a(f"v_dot2c_f32_bf16 v8, v{16+i}, v{88+i}")
        a(f"v_dot2c_f32_bf16 v9, v{52+i}, v{88+i}")
        a(f"v_dot2c_f32_bf16 v10, v{16+i}, v{124+i}")
        a(f"v_dot2c_f32_bf16 v11, v{52+i}, v{124+i}")
    a("s_nop 2")
    for mode in ("quad_perm:[1,0,3,2]", "quad_perm:[2,3,0,1]", "row_half_mirror"):
        for v in (8, 9, 10, 11):
            a(f"v_add_f32_dpp v{v}, v{v}, v{v} {mode} row_mask:0xf bank_mask:0xf")
    for v in (10, 11):
        rne_bf16(a, v); sigmoid(a, v); rne_bf16(a, v)
    a(f"""
    v_ashrrev_i32 v12, 31, v8
    v_or_b32 v12, 0x80000000, v12
    v_xor_b32 v8, v8, v12
    v_and_b32 v8, 0xfffff800, v8
    v_sub_u32 v12, 2047, v4
    v_or_b32 v8, v8, v12
    v_ashrrev_i32 v12, 31, v9
    v_or_b32 v12, 0x80000000, v12
    v_xor_b32 v9, v9, v12
    v_and_b32 v9, 0xfffff800, v9
    v_sub_u32 v12, 2039, v4
    v_or_b32 v9, v9, v12
    v_lshlrev_b32 v13, 2, v4
    s_mov_b32 s29, {WS_G}
    buffer_store_dword v10, v13, {RW}, s29 offen sc1
    buffer_store_dword v11, v13, {RW}, s29 offen offset:32 sc1
    v_max_u32 v14, v8, v9
    v_min_u32 v15, v8, v9
    s_nop 1
    v_mov_b32_dpp v8, v14 row_ror:8 row_mask:0xf bank_mask:0xf
    v_mov_b32_dpp v9, v15 row_ror:8 row_mask:0xf bank_mask:0xf
    v_min_u32 v12, v8, v14
    v_max_u32 v14, v8, v14
    v_max3_u32 v15, v12, v9, v15
    """)
    for sw in ("v_permlane16_swap_b32", "v_permlane32_swap_b32"):
        a(f"""
        v_mov_b32 v8, v14
        v_mov_b32 v9, v15
        s_nop 1
        {sw} v8, v14
        {sw} v9, v15
        s_nop 1
        v_min_u32 v12, v8, v14
        v_max_u32 v14, v8, v14
        v_max3_u32 v15, v12, v9, v15
        """)
    regwait(a, 3, 4, sleep=16)
    a(f"""
    s_lshl_b32 s29, s27, 3
    s_add_u32 s29, s29, {WS_KEY}
    v_mov_b32 v5, 0
    v_mov_b32 v6, s{sREG}
    s_mov_b64 exec, 1
    buffer_store_dwordx2 v[14:15], v5, {RW}, s29 offen sc1
    s_mov_b64 exec, -1
    s_and_b32 s27, s27, 15
    s_cmp_lg_u32 s27, 0
    s_cbranch_scc1 L_tag
    v_lshlrev_b32 v3, 4, v1
    s_mov_b32 s29, {WS_KEY}
    """)
    poll(a, f"buffer_load_dwordx4 v[8:11], v3, {RW}, s29 offen sc1",
         "v_min_u32 v12, v8, v9\nv_min3_u32 v12, v12, v10, v11\nv_cmp_eq_u32 vcc, 0, v12", sleep=2)
    top2(a, 8, 12, 24)
    a(f"""
    s_lshl_b32 s29, s{sJ}, 7
    s_add_u32 s29, s29, {WS_SEL}
    v_mov_b32 v8, s24
    v_mov_b32 v9, s25
    s_mov_b64 exec, 1
    buffer_store_dwordx2 v[8:9], v5, {RW}, s29 offen sc1
    s_mov_b64 exec, -1
    s_branch L_svc_kv
    """)
    a("L_codeend:")
    if o.get("nomf") or o.get("nods") or o.get("nold") or o.get("mprio") is not None or o.get("noat"):
        i0 = [i for i, l in enumerate(a.L) if l.startswith("L_sel2:")][0]; i1 = [i for i, l in enumerate(a.L) if l.startswith("L_moedone:")][0]
        mid = a.L[i0:i1]
        if o.get("nomf"): mid = [l for l in mid if "v_mfma" not in l]
        if o.get("nods"): mid = [l for l in mid if "ds_write_b128" not in l and "_tr_" not in l]
        if o.get("nold"): mid = [l for l in mid if "buffer_load" not in l]; mid = [l.replace("vmcnt(27)", "vmcnt(0)") for l in mid]
        if o.get("noat"): mid = [l for l in mid if "atomic_add_f32" not in l]
        if o.get("mprio") is not None: mid = mid[:1] + [f"    s_setprio {o['mprio']}"] + mid[1:]
        a.L = a.L[:i0] + mid + a.L[i1:]
    if o.get("mstamp"):
        a.L = [l for l in a.L if not any(l.strip() == f"; STAMP {i}" for i in (1, 2, 4, 7, 8, 9, 10))]
        a.L = [l.replace("MSTAMP", "STAMP") for l in a.L]
    hdr = HEADER + f"; @launch grid=(256,1,1) block=(768,1,1) lds={LDS_BYTES}\n"
    return hdr + a.text() + '.section .rodata,"a"\n' + descriptor(NAME, 168, sgpr=64)

if __name__ == "__main__":
    o = dict((k.split("=")[0], int(k.split("=")[1]) if "=" in k else 1) for k in sys.argv[2:])
    open(sys.argv[1], "w").write(gen(o))
```

```python
import sys, math
from gen_common import *

NAME = "gated_mix__mha_block__moe_arch_mod__prompt_kernel"
XB = 2359296; WB = 1990656; WOB = 663552; WGB = 5308416
QSCALE = (18 ** -0.5) * math.log2(math.e)
LOG2E = math.log2(math.e)
JS = 884736; HS = 27648
WS_GLB = 0; WS_LOC = 0x700000
WS_O = 0xE00000
O_REM = 0x200000
WS_FG1 = 0x1280000
WS_FL1 = 0x1288000
WS_SEL = 0x128B000
WS_DONE = 0x128B400
WS_Y = 0x128C000
WS_KEY = 0x1295000
WS_CLR = WS_FG1
WS_G = 0x1298000
WS_END = 0x129A000
KV0 = 9216; SLOT = 18432; L_QS = KV0 + 7 * SLOT; MISC = 156672
M_CNT = 0; M_DONE = 4; M_BAD = 8; M_MODE = 12; M_SEL = 16; M_C0 = 24; M_GO = 28; M_BLK = 36; M_PROG = 64; M_FULL = 96; M_MK = 100; M_PF = 128
M_P = 256; M_H = 2304; M_Y = 2816; M_CB7 = 3584; M_G = 6144
L_CB = KV0 + 5 * SLOT; L_WO = KV0; L_A0 = KV0 + 6 * SLOT; L_A1 = KV0 + 7 * SLOT; AS = 288
LDS_BYTES = 163840
SPIN = 1 << 14
pX, pW, pWO, pWR, pWG, pWU, pWD, pGW, pOUT = 32, 34, 36, 40, 42, 44, 46, 48, 50
sWAVE, sJ, sM, sJO, sTAG = 3, 4, 5, 6, 7
sJB, sH = 38, 39
RS = 35840
RA = "s[8:11]"; RW = "s[16:19]"; RD = "s[20:23]"

def mf32(d, a, b, c=None):
    cs = vr(d, 16) if c is None else ("0" if c == 0 else vr(c, 16))
    return f"v_mfma_f32_32x32x16_bf16 {vr(d,16)}, {vr(a,4)}, {vr(b,4)}, {cs}"
def mf16(d, a, b, c=None):
    cs = vr(d, 4) if c is None else ("0" if c == 0 else vr(c, 4))
    return f"v_mfma_f32_16x16x32_bf16 {vr(d,4)}, {vr(a,4)}, {vr(b,4)}, {cs}"
def rne_bf16(a, v):
    a(f"v_cvt_pk_bf16_f32 v{v}, v{v}, v{v}")
    a(f"v_and_b32 v{v}, 0xffff0000, v{v}")
def sigmoid(a, v):
    a(f"v_mul_f32 v{v}, {f32bits(-LOG2E)}, v{v}\nv_exp_f32 v{v}, v{v}\ns_nop 0\nv_add_f32 v{v}, 1.0, v{v}\nv_rcp_f32 v{v}, v{v}\ns_nop 0")
_uid = [0]
def uid(p):
    _uid[0] += 1
    return f"L_{p}{_uid[0]}"
def poll(a, load, check, sleep=0, preloaded=False, spin=SPIN, extra=None, wait=None):
    l = uid("poll"); e = uid("ok"); c = uid("chk")
    a(f"s_movk_i32 s30, {spin}")
    if preloaded: a(f"s_branch {c}")
    a(f"{l}:")
    a(load)
    if preloaded: a(f"{c}:")
    a(wait or ("s_waitcnt lgkmcnt(0)" if load.startswith("ds_") else "s_waitcnt vmcnt(0)"))
    a(check)
    a(f"s_cbranch_vccz {e}")
    if extra: a(extra)
    if sleep: a(f"s_sleep {sleep}")
    a(f"s_sub_u32 s30, s30, 1\ns_cmp_lg_u32 s30, 0\ns_cbranch_scc1 {l}")
    a(f"{e}:")
def regaddr(a, t0): a(f"v_and_b32 v{t0}, 7, v1\nv_lshlrev_b32 v{t0}, 5, v{t0}")
def regload(t0, t1): return f"buffer_load_dword v{t1}, v{t0}, {RD}, 0 offen sc1"
def regwait(a, t0, t1, preloaded=False, sleep=0):
    if not preloaded: regaddr(a, t0)
    poll(a, regload(t0, t1), f"v_cmp_eq_u32 vcc, 0, v{t1}", preloaded=preloaded, sleep=sleep)
def wave_max_u32(a, v, t, sdst):
    for mode in ("quad_perm:[1,0,3,2]", "quad_perm:[2,3,0,1]", "row_half_mirror", "row_mirror"):
        a("s_nop 1")
        a(f"v_max_u32_dpp v{v}, v{v}, v{v} {mode} row_mask:0xf bank_mask:0xf")
    for sw in ("v_permlane16_swap_b32", "v_permlane32_swap_b32"):
        a(f"v_mov_b32 v{t}, v{v}\ns_nop 1\n{sw} v{t}, v{v}\ns_nop 1\nv_max_u32 v{v}, v{t}, v{v}")
    a("s_nop 0")
    a(f"v_readfirstlane_b32 s{sdst}, v{v}")
def top2(a, K, T, so):
    a(f"v_min_u32 v{T}, v{K}, v{K+2}\nv_max_u32 v{K}, v{K}, v{K+2}\nv_max3_u32 v{K+1}, v{T}, v{K+1}, v{K+3}\nv_mov_b32 v{K+2}, v{K}")
    wave_max_u32(a, K + 2, T, so)
    a(f"v_cmp_eq_u32 vcc, v{K+2}, v{K}\ns_nop 1\nv_cndmask_b32 v{K+2}, v{K}, v{K+1}, vcc")
    wave_max_u32(a, K + 2, T, so + 1)
def one_lane(a, x, n=1): a(f"s_mov_b64 exec, {(1 << n) - 1}\n{x}\ns_mov_b64 exec, -1")

aK, aKR, aV, vINC, IDX, vXO, vG, vM, vONE, XD = 2, 3, 4, 5, 6, 7, 8, 10, 11, 12
QM, QR, KR, KM, V, O, S = 16, 24, 26, 28, 32, 40, [72, 104]
cW16, cW8, cR16, cR8, oM, oR, aWm, aWr, aFl, aOm, aOr, aPw, aAr, aG, vKEY, vZ, vPW, vPR, vF = range(140, 159)
OMG = 160; T0 = 162
OF = 16; ACC = 52; XBR = 72; W = [80, 100, 120]
prog_rd = f"ds_read_b32 v{vF}, v{vPR} offset:{M_PROG}"

def final_addr(a, t):
    a(f"""
    v_mul_u32_u24 v{t}, 7282, v0
    v_lshrrev_b32 v{t}, 16, v{t}       ; row
    v_mul_u32_u24 v{t+1}, 9, v{t}
    v_sub_u32 v{t+1}, v0, v{t+1}       ; piece
    s_and_b32 s24, s{sM}, 3
    s_lshl2_add_u32 s24, s{sJO}, s24
    s_lshl_b32 s24, s24, 6
    s_lshr_b32 s25, s{sM}, 2
    s_mul_i32 s25, s25, 144
    v_lshl_add_u32 v{aG}, v{t}, 2, v{vM}
    v_add_u32 v{t}, s24, v{t}
    v_sub_u32 v{vKEY}, 2047, v{t}
    v_mul_u32_u24 v{vXO}, 1152, v{t}
    v_lshl_add_u32 v{vXO}, v{t+1}, 4, v{vXO}
    v_add_u32 v{vXO}, s25, v{vXO}
    v_lshlrev_b32 v{aAr}, 5, v0
    v_add_u32 v{aAr}, {L_A0}, v{aAr}
    """)
final_rd = f"ds_read_b32 v{vG}, v{aG} offset:{M_G}\nds_read_b64 {vr(T0,2)}, v{vM} offset:{M_SEL}"
def final_pre(a):
    for i in range(4):
        a(f"v_lshlrev_b32 v{XBR+2*i}, 16, v{XD+i}\nv_and_b32 v{XBR+2*i+1}, 0xffff0000, v{XD+i}")
    a(f"v_sub_f32 v{OMG}, 1.0, v{vG}")
    rne_bf16(a, OMG)
    a(f"""
    v_and_b32 v{T0}, 0x7ff, v{T0}
    v_and_b32 v{T0+1}, 0x7ff, v{T0+1}
    v_cmp_eq_u32 s[26:27], v{T0}, v{vKEY}
    v_cmp_eq_u32 s[28:29], v{T0+1}, v{vKEY}
    """)
    for i in range(0, 8, 2): a(f"v_pk_mul_f32 {vr(XBR+i,2)}, {vr(XBR+i,2)}, {vr(OMG,2)} op_sel_hi:[1,0]")
    a(f"s_or_b64 s[26:27], s[26:27], s[28:29]\ns_mov_b32 s8, s{pOUT}\ns_mov_b32 s9, s{pOUT+1}")

def roles(a, o):
    a(f"""
    s_getreg_b32 s24, hwreg(HW_REG_XCC_ID)
    s_and_b32 s24, s24, 15
    s_add_u32 s{sTAG}, {"s2" if o.get("slow") else "s24"}, 1
    s_and_b32 s24, s{sJ}, 1
    s_lshr_b32 s25, s{sJ}, 1
    s_lshl2_add_u32 s{sJO}, s24, s25
    s_lshr_b32 s{sJB}, s{sM}, 3
    s_lshl2_add_u32 s{sJB}, s24, s{sJB}
    s_and_b32 s{sH}, s{sM}, 7
    s_lshl3_add_u32 s{sH}, s25, s{sH}
    """)

def code_pf(a, vt, vd, tid):
    l = uid("pc")
    a(f"""
    s_getpc_b64 s[24:25]
{l}:
    s_sub_u32 s24, s24, {l} - {NAME}
    s_subb_u32 s25, s25, 0
    v_min_u32 v{vt}, (L_codeend - {NAME} - 4) / 128, v{tid}
    v_lshlrev_b32 v{vt}, 7, v{vt}
    global_load_dword v{vd}, v{vt}, s[24:25]
    """)

def gen(o={}):
    _uid[0] = 0
    a = Asm()
    a('.amdgcn_target "amdgcn-amd-amdhsa--gfx950"\n.text')
    kernel_begin(a, NAME)
    TS = 104; LD = 130
    a(f"""
    s_load_dwordx2 s[8:9], s[0:1], 0
    s_load_dwordx2 s[12:13], s[0:1], 8
    s_load_dwordx16 s[32:47], s[0:1], 0
    s_load_dwordx2 s[16:17], s[0:1], 88
    s_load_dwordx2 s[20:21], s[0:1], 80
    s_load_dwordx4 s[48:51], s[0:1], 64
    v_lshrrev_b32 v2, 6, v0
    v_and_b32 v1, 63, v0
    s_cmp_ge_u32 s2, 256
    s_cbranch_scc1 L_end
    v_readfirstlane_b32 s{sWAVE}, v2
    s_and_b32 s{sJ}, s2, 7
    s_lshr_b32 s{sM}, s2, 3
    s_mov_b32 s10, {XB}
    s_mov_b32 s11, 0x00020000
    s_mov_b32 s14, {WB}
    s_mov_b32 s15, s11
    s_mov_b32 s18, {WS_END}
    s_mov_b32 s19, s11
    s_movk_i32 s22, 256
    s_mov_b32 s23, s11
    s_cmp_eq_u32 s{sM}, 24
    s_cbranch_scc1 L_clear
L_cleared:
    s_cmp_lt_u32 s{sWAVE}, 8
    s_cbranch_scc1 L_loader
    """)
    if o.get("cpf", 1):
        a(f"s_cmp_lt_u32 s{sM}, {o.get('cpm', 28)}\ns_cbranch_scc1 L_service\nv_and_b32 v3, 0xff, v0")
        code_pf(a, 3, 165, 3)
    a(f"""
    s_branch L_service
L_loader:
    s_cmp_ge_u32 s{sM}, 24
    s_cbranch_scc1 L_ld_none
    s_setprio 3
    s_lshr_b32 s28, s{sM}, 3
    s_mul_i32 s29, s28, 3
    s_add_u32 s29, s29, s{sM}
    {"" if o.get("wr", 1) else "s_mov_b32 s29, 0"}
    s_add_u32 s29, s29, s{sWAVE}
    s_and_b32 s29, s29, 7
    s_and_b32 s26, s{sM}, 7
    s_and_b32 s27, s{sJ}, 1
    s_lshl3_add_u32 s26, s27, s26
    s_lshl3_add_u32 s26, s26, s29
    s_mul_i32 s26, s26, {16*1152}
    s_lshl_b32 s27, s29, 2
    v_lshrrev_b32 v3, 3, v1
    v_mul_u32_u24 v3, 1152, v3
    v_bfe_u32 v12, v1, 4, 1
    v_bitop3_b32 v12, v12, v1, s27 bitop3:0x96
    v_and_b32 v12, 7, v12
    v_lshlrev_b32 v12, 4, v12
    v_add3_u32 v{LD}, v12, v3, s26
    s_movk_i32 s27, 8192
    v_xad_u32 v{LD+1}, v{LD}, 32, s27
    s_mul_i32 s26, s29, {8*12}
    s_lshl2_add_u32 s26, s28, s26
    s_lshr_b32 s27, s{sJ}, 1
    s_add_u32 s26, s26, s27
    s_mul_i32 s26, s26, 288
    v_mul_u32_u24 v3, 57, v1
    v_lshrrev_b32 v3, 10, v3
    v_mul_u32_u24 v3, {3456 - 288}, v3
    v_lshlrev_b32 v12, 4, v1
    v_add3_u32 v{LD+2}, v12, v3, s26
    s_movk_i32 s27, {3*3456 - 864}
    v_add_u32 v{LD+3}, s27, v{LD+2}
    v_add_u32 v{LD+4}, s27, v{LD+3}
    s_lshl_b32 s59, s29, 11
    s_mul_i32 s61, s29, {2432 - 2048}
    s_addk_i32 s61, 16384
    s_mov_b32 s56, s{sJ}
    s_mov_b32 s60, 0
    s_waitcnt lgkmcnt(0)
    ; STAMP 7
L_ldloop:
    s_mov_b32 m0, s59
    s_lshl_b32 s57, s56, 7
    buffer_load_dwordx4 v{LD}, {RA}, s57 offen lds
    buffer_load_dwordx4 v{LD+1}, {RA}, s57 offen offset:1024 lds
    s_add_u32 m0, s59, s61
    s_mul_i32 s57, s57, 1728
    s_mov_b32 exec_hi, 0x3fffff
    buffer_load_dwordx4 v{LD+2}, s[12:15], s57 offen lds
    buffer_load_dwordx4 v{LD+3}, s[12:15], s57 offen offset:864 lds
    s_mov_b32 exec_hi, 15
    buffer_load_dwordx4 v{LD+4}, s[12:15], s57 offen offset:1728 lds
    s_mov_b32 exec_hi, -1
    s_setprio 1
    s_add_u32 s59, s59, {RS}
    s_cmp_ge_u32 s59, {4*RS}
    s_cselect_b32 s58, {4*RS}, 0
    s_sub_u32 s59, s59, s58
    s_add_u32 s56, s56, 1
    {"s_and_b32 s56, s56, 1" if o.get("same") else ""}
    s_cmp_eq_u32 s56, 9
    s_cselect_b32 s56, 0, s56
    s_add_u32 s60, s60, 1
    """)
    LA = o.get("la", 2)
    if LA == 3:
        a("""
        s_bitcmp1_b32 10, s60
        s_cbranch_scc1 L_ldloop
        s_cmp_eq_u32 s60, 9
        s_cbranch_scc1 L_ld_done
        s_waitcnt vmcnt(10)
        s_cmp_lg_u32 s60, 2
        s_cbranch_scc1 L_ldbar
        s_waitcnt vmcnt(5)
L_ldbar:
        s_barrier
        s_branch L_ldloop
        """)
    else:
        a("""
        s_cmp_eq_u32 s60, 1
        s_cbranch_scc1 L_ldloop
        s_cmp_eq_u32 s60, 9
        s_cbranch_scc1 L_ld_done
        s_waitcnt vmcnt(5)
        s_barrier
        s_branch L_ldloop
        """)
    SP = o.get("sp", 0)
    a(f"""
L_clear:
    s_mul_i32 s24, s{sJ}, 12288
    s_add_u32 s24, s24, {WS_CLR}
    v_lshlrev_b32 v3, 4, v0
    v_mov_b64 v[4:5], 0
    v_mov_b64 v[6:7], 0
    v_mov_b32 v8, 1
    s_waitcnt lgkmcnt(0)
    buffer_store_dwordx4 v[4:7], v3, {RW}, s24 offen sc1
    s_lshl_b32 s24, s{sJ}, 5
    s_cmp_lg_u32 s{sWAVE}, 0
    s_waitcnt vmcnt(0)
    s_barrier
    s_cbranch_scc1 L_cleared
    s_mov_b64 exec, 1
    buffer_store_dword v8, v4, {RD}, s24 offen sc1
    s_mov_b64 exec, -1
    s_branch L_cleared
L_ld_none:
    s_and_b32 s26, s{sM}, 7
    s_add_u32 s56, s{sJ}, s{sWAVE}
    s_add_u32 s56, s56, {o.get("pf", 2)}
    s_mul_i32 s27, s56, 57
    s_lshr_b32 s27, s27, 9
    s_mul_i32 s27, s27, 9
    s_sub_u32 s56, s56, s27
    s_lshl3_add_u32 s58, s56, s26
    s_mul_i32 s58, s58, {8*3456}
    s_lshr_b32 s27, s{sJ}, 1
    s_lshl_b32 s27, s27, 8
    s_add_u32 s58, s58, s27
    s_lshl_b32 s56, s56, 7
    s_and_b32 s27, s{sJ}, 1
    s_lshl3_add_u32 s26, s27, s26
    s_mul_i32 s26, s26, {128*1152}
    s_add_u32 s56, s56, s26
    s_add_u32 s57, s56, {64*1152}
    v_mul_u32_u24 v3, 1152, v1
    v_min_u32 v4, 35, v1
    v_mul_u32_u24 v5, 21846, v4
    v_lshrrev_b32 v5, 16, v5
    v_mul_u32_u24 v5, 6, v5
    v_add_lshl_u32 v4, v4, v5, 7
    s_add_u32 s59, s58, {4*3456}
    s_cmp_gt_u32 s{sWAVE}, {8 - o.get("pf", 2)}
    s_waitcnt lgkmcnt(0)
    s_cbranch_scc1 L_ld_done
    {f"buffer_load_dword v{LD}, v3, {RA}, s56 offen" if o.get("pfx", 1) else ""}
    {f"buffer_load_dword v{LD}, v3, {RA}, s57 offen" if o.get("pfx", 1) else ""}
    buffer_load_dword v{LD}, v4, s[12:15], s58 offen
    buffer_load_dword v{LD}, v4, s[12:15], s59 offen
    {"s_waitcnt vmcnt(0)" if o.get("pfwait", 0) else ""}
L_ld_done:
    s_setprio 0
    """)
    roles(a, o)
    a(f"""
    s_mul_i32 s15, s{sJB}, {JS}
    s_mul_i32 s24, s{sH}, {HS}
    s_add_u32 s15, s15, s24
    s_add_u32 s15, s15, {WS_LOC}
    """)
    if not SP:
        a(f"""
        s_mul_i32 s24, s{sWAVE}, {27*128}
        s_add_u32 s24, s24, s15
        v_min_u32 v{TS+7}, 26, v1
        v_lshlrev_b32 v{TS+7}, 7, v{TS+7}
        buffer_load_dword v{TS+7}, v{TS+7}, {RW}, {"0" if o.get("nopre") else "s24"} offen sc1
        """)
    else:
        a(f"""
        s_cmp_lt_u32 s{sM}, 24
        s_cbranch_scc1 L_nopre
        s_lshr_b32 s24, s{sWAVE}, 1
        s_mul_i32 s24, s24, {JS}
        s_sub_u32 s24, s15, s24
        s_and_b32 s25, s{sWAVE}, 1
        s_mul_i32 s25, s25, {108*128}
        s_add_u32 s24, s24, s25
        s_add_u32 s25, s24, {54*128}
        v_min_u32 v{TS+7}, 53, v1
        v_lshlrev_b32 v{TS+7}, 7, v{TS+7}
        {"s_waitcnt vmcnt(0)" if SP == 2 else ""}
        buffer_load_dword v{LD}, v{TS+7}, {RW}, s24 offen sc1
        buffer_load_dword v{LD}, v{TS+7}, {RW}, s25 offen sc1
L_nopre:
        """)
    def chunk_bar(n, stamp=None):
        l = uid("nb")
        a(f"s_cmp_ge_u32 s{sM}, 24\ns_cbranch_scc1 {l}\ns_waitcnt vmcnt({n})\ns_barrier\n{l}:")
        if stamp: a(f"; STAMP {stamp}")
    if LA == 3: chunk_bar(10 if SP else 11)
    chunk_bar(5 if SP else 6, 8)
    regaddr(a, TS + 14)
    chunk_bar(0 if SP else 1, 9)
    a(f"""
    {regload(TS + 14, TS + 15)}
    v_lshrrev_b32 v{TS+1}, 3, v1
    v_mul_u32_u24 v{TS+1}, 1152, v{TS+1}
    v_and_b32 v{TS+2}, 7, v1
    v_lshl_add_u32 v{TS+25}, v{TS+2}, 2, v{TS+1}
    v_mov_b32 v{TS+24}, 0x3f803f80
    v_mov_b32 v{vM}, {MISC}
    """)
    final_addr(a, TS + 1)
    for i in range(0, 32, 2): a(f"v_mov_b64 {vr(O+i,2)}, 0")
    a(f"""
    s_barrier
    ds_write_b32 v{TS+25}, v{TS+24}
    buffer_load_dwordx4 {vr(XD,4)}, v{vXO}, {RA}, 0 offen
    """)
    hh, r_, c8, g1, G_ = TS + 16, TS + 17, TS + 18, TS + 19, TS + 20
    a(f"""
    s_lshr_b32 s12, s{sWAVE}, 2        ; kh
    s_and_b32 s13, s{sWAVE}, 3         ; qg
    s_mul_i32 s24, s12, 9216
    s_add_u32 s24, s24, {KV0}
    v_lshrrev_b32 v{hh}, 5, v1
    v_bfe_u32 v{r_}, v1, 2, 2
    v_and_b32 v{c8}, 3, v1
    v_lshlrev_b32 v{c8}, 3, v{c8}
    v_bfe_u32 v{g1}, v1, 4, 1
    v_lshrrev_b32 v{G_}, 4, v1
    v_lshl_add_u32 v{TS+4}, v{hh}, 3, v{r_}
    v_lshl_or_b32 v{TS+4}, v{TS+4}, 5, v{c8}       ; (8hh+r)*32 + 8c
    v_mul_u32_u24 v{TS+5}, 1152, v{g1}
    v_add3_u32 v{aK}, v{TS+5}, v{TS+4}, s24
    v_and_b32 v{TS+1}, 1, v{r_}
    v_lshl_or_b32 v{TS+1}, v{TS+1}, 5, v{c8}
    v_add_u32 v{TS+1}, 512, v{TS+1}                ; (16+(r&1))*32 + 8c
    v_mul_u32_u24 v{TS+5}, 1152, v{G_}
    v_add3_u32 v{aKR}, v{TS+5}, v{TS+1}, s24
    s_mul_i32 s25, s13, 2304
    s_add_u32 s25, s25, {L_QS}
    s_xor_b32 s26, s12, 1
    s_lshl_b32 s27, s26, 1
    v_xor_b32 v{TS+6}, s27, v{G_}
    v_mul_u32_u24 v{TS+5}, 576, v{TS+6}
    v_add3_u32 v{TS+10}, v{TS+5}, v{TS+1}, s25     ; q rem
    v_mul_u32_u24 v{TS+5}, 576, v{g1}
    v_add3_u32 v{TS+5}, v{TS+5}, v{TS+4}, s25
    s_mul_i32 s26, s26, 1152
    s_mul_i32 s27, s12, 1152
    v_add_u32 v{TS+8}, s26, v{TS+5}                ; q main a=0
    v_add_u32 v{TS+9}, s27, v{TS+5}                ; q main a=1
    v_and_b32 v{TS+1}, 31, v1
    v_lshlrev_b32 v{TS+2}, 4, v{hh}
    v_lshl_or_b32 v{TS+3}, v{TS+1}, 5, v{TS+2}
    v_xor_b32 v{TS+2}, 16, v{TS+2}
    v_cmp_gt_u32 vcc, 16, v{TS+1}
    v_lshl_add_u32 v{TS+4}, v{TS+1}, 3, v{TS+2}
    v_add_u32 v{TS+4}, 384, v{TS+4}
    s_add_u32 s24, s24, 576
    v_cndmask_b32 v{TS+3}, v{TS+4}, v{TS+3}, vcc
    v_add_u32 v{TS+3}, s24, v{TS+3}
    s_mov_b32 vcc_lo, 0x0011ffff
    s_mov_b32 vcc_hi, 0x0011ffff
    v_mov_b32 v{TS+4}, {SLOT}
    v_mov_b32 v{IDX}, 0xdddddddd
    v_cndmask_b32 v{aV}, v{TS+2}, v{TS+3}, vcc
    v_cndmask_b32 v{vINC}, 0, v{TS+4}, vcc
    v_lshlrev_b32 v{oR}, 2, v{TS+1}
    v_lshlrev_b32 v{oM}, 4, v1
    """)
    a(f"""
    v_lshrrev_b32 v{TS+22}, 3, v1
    v_min_u32 v{TS+22}, 2, v{TS+22}
    v_and_b32 v{TS+1}, 7, v1
    v_lshl_or_b32 v{TS+22}, v{TS+22}, 5, v{TS+1}
    s_and_b32 s24, s{sM}, 24
    v_add_u32 v{TS+22}, s24, v{TS+22}
    s_lshl_b32 s24, s{sJ}, 9
    s_add_u32 s24, s24, {WS_FL1}
    v_lshl_add_u32 v{TS+11}, v{TS+22}, 2, s24
    v_mov_b32 v{vONE}, 1
    v_mov_b32 v{vZ}, 0
    s_lshl_b32 s24, s{sWAVE}, 2
    s_add_u32 s24, s24, {MISC + M_PROG}
    v_min_u32 v{vPW}, 1, v1
    v_lshl_add_u32 v{vPW}, v{vPW}, 13, s24
    v_min_u32 v{vPR}, 9, v1
    v_lshl_add_u32 v{vPR}, v{vPR}, 2, v{vM}
    s_mul_i32 s24, s{sWAVE}, 2560
    s_add_u32 s24, s24, {L_CB}
    s_cmp_eq_u32 s{sWAVE}, 7
    s_cselect_b32 s24, {MISC + M_CB7}, s24
    v_add_u32 v{cW16}, s24, v{oM}
    v_lshl_add_u32 v{cW8}, v1, 3, s24
    s_xor_b32 s25, s{sWAVE}, 4
    s_mul_i32 s25, s25, 2560
    s_add_u32 s25, s25, {L_CB}
    s_cmp_eq_u32 s{sWAVE}, 3
    s_cselect_b32 s25, {MISC + M_CB7}, s25
    v_add_u32 v{cR16}, s25, v{oM}
    v_lshl_add_u32 v{cR8}, v1, 3, s25
    """)
    a(f"""
    v_mul_u32_u24 v{TS+1}, 18, v{hh}
    v_lshl_add_u32 v{TS+1}, v{g1}, 2, v{TS+1}
    v_add_u32 v{TS+1}, v{TS+1}, v{r_}
    v_mul_u32_u24 v{TS+1}, 160, v{TS+1}
    s_mul_i32 s24, s12, {288*160}
    s_add_u32 s24, s24, {L_WO}
    v_add3_u32 v{aWm}, v{TS+1}, v{c8}, s24
    v_lshrrev_b32 v{TS+1}, 1, v{r_}
    v_lshl_add_u32 v{TS+1}, v{G_}, 2, v{TS+1}
    v_mul_u32_u24 v{TS+1}, 18, v{TS+1}
    v_and_b32 v{TS+2}, 1, v{r_}
    v_add3_u32 v{TS+1}, v{TS+1}, v{TS+2}, 16
    v_mul_u32_u24 v{TS+1}, 160, v{TS+1}
    v_add3_u32 v{aWr}, v{TS+1}, v{c8}, s24
    v_and_b32 v{TS+1}, 15, v1
    s_and_b32 s24, s13, 1
    s_lshl_b32 s24, s24, 4
    v_add_u32 v{TS+2}, s24, v{TS+1}
    v_lshlrev_b32 v{TS+3}, 9, v{G_}
    v_lshl_add_u32 v{aOr}, v{TS+2}, 2, v{TS+3}
    v_lshl_add_u32 v{aOm}, v{TS+2}, 4, v{TS+3}
    s_lshl_b32 s24, s13, 4
    v_add_u32 v{TS+1}, s24, v{TS+1}
    v_mul_u32_u24 v{TS+1}, {AS}, v{TS+1}
    s_mul_i32 s24, s12, {L_A1 - L_A0}
    s_add_u32 s24, s24, {L_A0}
    v_lshlrev_b32 v{TS+2}, 4, v{G_}
    v_add3_u32 v{aPw}, v{TS+1}, v{TS+2}, s24
    s_lshl2_add_u32 s24, s{sJB}, s13
    s_lshl1_add_u32 s24, s24, s12
    s_lshl_b32 s24, s24, 5
    s_add_u32 s24, s24, s{sH}
    s_lshl_b32 s52, s24, 10
    s_add_u32 s52, s52, {WS_O}
    s_lshl_b32 s53, s24, 7
    s_add_u32 s53, s53, {WS_O + O_REM}
    s_and_b32 s24, s{sM}, 3
    s_lshl2_add_u32 s24, s{sJO}, s24
    s_lshr_b32 s25, s13, 1
    s_lshl1_add_u32 s24, s24, s25
    s_lshl1_add_u32 s24, s24, s12
    s_lshl_b32 s24, s24, 4
    s_lshl_b32 s55, s24, 10
    s_add_u32 s55, s55, {WS_O}
    s_lshl_b32 s56, s24, 7
    s_add_u32 s56, s56, {WS_O + O_REM}
    s_add_u32 s57, s55, 4096
    s_add_u32 s58, s55, 8192
    s_add_u32 s59, s55, 12288
    s_xor_b32 s24, s{sWAVE}, 4
    s_lshl_b32 s24, s24, 2
    s_add_u32 s24, s24, {MISC + M_PF}
    v_mov_b32 v{aFl}, s24
    """)
    a(f"""
    v_lshlrev_b32 v{TS+13}, 4, v0
    s_lshl_b32 s25, s{sWAVE}, 10
    s_add_u32 s26, s25, {L_QS - 18432 + 16384}
    s_add_u32 s25, s25, {KV0}
    s_add_u32 s27, s25, 16384
    s_cmp_lt_u32 s{sWAVE}, 2
    s_cselect_b32 s27, s27, s26
    s_mov_b32 s14, 0
    s_mov_b32 s60, 1
    s_mov_b32 s61, 0
    """)
    regwait(a, TS + 14, TS + 15, preloaded=True, sleep=o.get('s0', 32))
    a("s_mov_b32 exec_hi, 0\n; STAMP 1")
    poll(a, f"buffer_load_dword v{TS+2}, v{TS+11}, {RW}, 0 offen sc1\nds_read_b32 v{TS+3}, v{vM} offset:{M_MODE}",
         f"v_cmp_ne_u32 vcc, s{sTAG}, v{TS+2}",
         extra=f"s_waitcnt lgkmcnt(0)\nv_cmp_eq_u32 vcc, 2, v{TS+3}\ns_cbranch_vccnz L_general1", sleep=o.get("s1", 2))
    a(f"""
L_stage1:
    ; STAMP 2
    s_mov_b32 exec_hi, -1
    s_mov_b32 m0, s25
    s_add_u32 s24, s15, 8192
    buffer_load_dwordx4 v{TS+13}, {RW}, s15 offen sc1 lds
    s_add_u32 m0, s25, 8192
    s_add_u32 s28, s15, 16384
    buffer_load_dwordx4 v{TS+13}, {RW}, s24 offen sc1 lds
    s_mov_b32 m0, s27
    s_cmp_ge_u32 s{sWAVE}, 3
    buffer_load_dwordx4 v{TS+13}, {RW}, s28 offen sc1 lds
    s_cbranch_scc1 L_no4
    s_add_u32 m0, s26, 8192
    s_add_u32 s28, s15, 24576
    buffer_load_dwordx4 v{TS+13}, {RW}, s28 offen sc1 lds
L_no4:
    s_mov_b64 exec, 1
    s_setprio 2
    s_waitcnt vmcnt(0)
    ; STAMP 14
    ds_add_u32 v{vM}, v{vONE} offset:{M_C0}
    s_mov_b64 exec, -1
    """)
    def toff(t): return t * 2304 if t < 4 else SLOT + (t - 4) * 2304
    def kreads(off): return [f"ds_read_b64_tr_b16 {vr(KM+2*m,2)}, v{aK} offset:{off + m*128}" for m in range(2)]
    def krread(off): return f"ds_read_b64_tr_b16 {vr(KR,2)}, v{aKR} offset:{off}"
    def vread(g, off): return f"ds_read_b128 {vr(V+4*g,4)}, v{aV} offset:{off + g*1152}"
    def m2b(Y, ab, c=None): return f"v_mfma_f32_32x32x4_2b_bf16 {vr(Y,32)}, {vr(KR,2)}, {vr(QR,2)}, {vr(Y,32)} cbsz:1 abid:{ab}"
    def smf(p, i): return f"v_smfmac_f32_32x32x32_bf16 {vr(O+16*(i>>1),16)}, {vr(V+4*(i&1),4)}, {vr(S[p]+8*i,8)}, v{IDX}"
    def exps(p, lo, hi): return [f"v_exp_f32 v{S[p]+i}, v{S[p]+i}" for i in range(lo, hi)]
    first = [f"ds_read_b32 v{T0}, v{vM} offset:{M_C0}"] + kreads(0)
    first += [f"ds_read_b64_tr_b16 {vr(QM+4*t+2*m,2)}, v{TS+8+t} offset:{m*128}" for t in range(2) for m in range(2)]
    first += [f"ds_read_b64_tr_b16 {vr(QR,2)}, v{TS+10}", krread(0)]
    poll(a, "\n".join(first), f"v_cmp_ne_u32 vcc, 8, v{T0}", wait="s_waitcnt lgkmcnt(2)")
    a(mf32(S[0], KM, QM, 0)); a(mf32(S[0] + 16, KM, QM + 4, 0))
    for x in kreads(toff(1)): a(x)
    a(vread(0, 0)); a(vread(1, 0))
    a(f"s_waitcnt lgkmcnt(4)\nv_mov_b32 v{QR+1}, 0\ns_nop 3")
    a(m2b(S[0], 0))
    a("s_setprio 0\ns_nop 15\ns_nop 2")
    a("; STAMP 3")
    a(".p2align 6\nL_att:")
    PP = o.get("pp", 2)
    prog_ck = f"v_cmp_ge_u32 vcc, s14, v{vF}"
    for u in range(4):
        p = u & 1; q = 1 - p
        seq = exps(p, 0, PP) + ["s_setprio 1"] + exps(p, PP, 32)
        seq += ["s_setprio 2", "s_waitcnt lgkmcnt(0)", mf32(S[q], KM, QM, 0)]
        if u == 2: seq += [prog_ck]
        if u == 3: seq += [f"ds_add_u32 v{vPW}, v{vONE}", f"v_add_u32 v{aK}, {SLOT}, v{aK}"]
        seq += [mf32(S[q] + 16, KM, QM + 4, 0)]
        if u == 2: seq += ["s_cbranch_vccnz L_att_wait", "L_att_back:"]
        seq += kreads(toff(u + 2) if u < 3 else toff(1))
        seq += ["s_nop 2", smf(p, 0), "s_nop 3", m2b(S[q], (u + 1) & 1)]
        if u % 2 == 0: seq += [krread(toff(u + 2)), "s_nop 9"]
        if u == 1: seq += ["s_nop 10"]
        if u == 3: seq += [f"v_add_u32 v{aKR}, {SLOT}, v{aKR}", f"v_add_u32 v{aV}, v{vINC}, v{aV}", "s_nop 8"]
        seq += [smf(p, 2), vread(0, toff(u + 1) if u < 3 else 0), "s_nop 1", smf(p, 1)]
        seq += [["s_nop 1"], [prog_rd, "s_nop 0"], ["s_cmp_eq_u32 s14, 7", "s_nop 0"], ["s_add_u32 s14, s14, 1", "s_nop 0"]][u]
        seq += [smf(p, 3), vread(1, toff(u + 1) if u < 3 else 0), "s_setprio 0"]
        if u == 2: seq += ["s_cbranch_scc1 L_tail"]
        for x in seq: a(x)
    a("s_branch L_att\nL_tail:")
    PB = S[0]
    def hi(x): return ["s_setprio 3", x, "s_setprio 1"]
    send = [f"ds_write_b128 v{cW16}, {vr(O,4)}", f"ds_write_b128 v{cW16}, {vr(O+4,4)} offset:1024", f"ds_write_b64 v{cW8}, {vr(O+8,2)} offset:2048",
            f"ds_add_u32 v{vPW}, v{vONE} offset:{M_PF - M_PROG}"]
    recv = [f"ds_read_b32 v{T0}, v{aFl}", f"ds_read_b64 {vr(PB+8,2)}, v{cR8} offset:2048", f"ds_read_b128 {vr(PB,4)}, v{cR16}", f"ds_read_b128 {vr(PB+4,4)}, v{cR16} offset:1024"]
    seq = exps(1, 0, PP) + ["s_setprio 1"] + exps(1, PP, 10) + ["s_waitcnt lgkmcnt(0)"] + hi(smf(1, 0)) + exps(1, 10, 18) + hi(smf(1, 1))
    seq += exps(1, 18, 26) + hi(smf(1, 2)) + send + recv + exps(1, 26, 32) + ["s_setprio 2", "s_nop 0", smf(1, 3), "; STAMP 4", "L_combine:"]
    for x in seq: a(x)
    poll(a, "\n".join(recv), f"v_cmp_ne_u32 vcc, s60, v{T0}", preloaded=True)
    LO = (127 - 40) << 23
    a(f"""
    s_cmp_eq_u32 s60, 1
    s_nop 5
    v_add_f32 v{O+9}, v{PB+9}, v{O+25}
    v_rcp_f32 v{O+10}, v{O+9}
    v_add_f32 v{O+8}, v{PB+8}, v{O+24}
    v_subrev_u32 v{T0}, {LO}, v{O+9}
    v_mul_f32 v{O+8}, v{O+8}, v{O+10}
    v_mov_b32 v{O+9}, v{O+8}
    v_cmp_lt_u32 vcc, {80 << 23}, v{T0}
    """)
    for i in range(0, 8, 2): a(f"v_pk_add_f32 {vr(O+i,2)}, {vr(PB+i,2)}, {vr(O+16+i,2)}")
    a(f"v_permlane32_swap_b32 v{O+8}, v{O+9}")
    for i in range(0, 8, 2): a(f"v_pk_mul_f32 {vr(O+i,2)}, {vr(O+i,2)}, {vr(O+10,2)} op_sel_hi:[1,0]")
    for i in range(5): a(f"v_cvt_pk_bf16_f32 v{O+16+i}, v{O+2*i}, v{O+2*i+1}")
    def wreads(s):
        r = []
        for n in range(5):
            for m in range(2):
                reg, off = (aWm, (36 * (s - 1) + 8 * m) * 160 + 32 * n) if s > 0 else (aWr, 36 * m * 160 + 32 * n)
                r.append(f"ds_read_b64_tr_b16 {vr(W[s%3]+4*n+2*m,2)}, v{reg} offset:{off}")
        return r
    a(f"""
    s_cbranch_vccnz L_lbad
L_lok:
    buffer_store_dwordx4 {vr(O+16,4)}, v{oM}, {RW}, s52 offen sc1
    buffer_store_dword v{O+20}, v{oR}, {RW}, s53 offen sc1
L_nostore:
    ; STAMP 11
    s_setprio 0
    s_barrier                          ; BE
    ; STAMP 10
    ds_read_b32 v{T0+2}, v{vM} offset:{M_BAD}
    {final_rd}
    """)
    for x in wreads(0): a(x)
    a(f"s_waitcnt lgkmcnt(10)\nv_cmp_lt_u32 vcc, s61, v{T0+2}\ns_movk_i32 s54, 1024\ns_cbranch_vccnz L_fallback")
    final_pre(a)
    for st in (1, 2):
        for x in wreads(st): a(x)
    a("s_barrier\n; STAMP 5\nL_oproj:")
    for i in range(4): a(f"buffer_load_dword v{OF+32+i}, v{aOr}, {RW}, s56 offen offset:{i*128} sc1")
    for st in range(8):
        a(f"buffer_load_dwordx4 {vr(OF+4*st,4)}, v{aOm}, {RW}, s{[55,57,58,59][st//2]} offen offset:{(st%2)*2048} sc1")
    a(f"v_mov_b32 v{T0}, 0")
    for i in range(9):
        st = (i + 8) % 9
        lg = 0 if i in (0, 8) else (10 if i == 7 else (14 if i >= 3 else 15))
        a(f"s_waitcnt vmcnt({min(8 - i, 8)}) lgkmcnt({lg})")
        r = wreads(i + 3) if i < 6 else []
        for n in range(5):
            a(mf16(ACC + 4 * n, W[i % 3] + 4 * n, OF + 4 * st, 0 if i == 0 else None))
            for x in r[2*n:2*n+2]: a(x)
            if n < 2: a(f"v_max3_u32 v{T0}, v{OF+4*st+2*n}, v{OF+4*st+2*n+1}, v{T0}")
            if i == 8 and n == 2: a(f"v_cmp_eq_u32 vcc, -1, v{T0}")
    a("s_cbranch_vccnz L_oredo\nL_odone:")
    a("; STAMP 12\ns_nop 2")
    for n in range(5):
        if n == 4: a("s_mov_b32 exec_hi, 0")
        a(f"ds_write_b128 v{aPw}, {vr(ACC+4*n,4)} offset:{64*n}")
    a(f"""
    s_mov_b32 exec_hi, -1
L_final:
    s_cmp_lg_u64 s[26:27], 0
    s_waitcnt lgkmcnt(0)
    s_barrier                          ; BA
    ; STAMP 6
    ds_read_b128 v[24:27], v{aAr}
    ds_read_b128 v[32:35], v{aAr} offset:{L_A1 - L_A0}
    ds_read_b128 v[28:31], v{aAr} offset:16
    ds_read_b128 v[36:39], v{aAr} offset:{L_A1 - L_A0 + 16}
    s_cbranch_scc1 L_routed
L_mix:
    """)
    for hf in range(2):
        a(f"s_waitcnt lgkmcnt({2 - 2*hf})")
        for i in (4*hf, 4*hf+2): a(f"v_pk_add_f32 {vr(24+i,2)}, {vr(24+i,2)}, {vr(32+i,2)}")
        for i in (4*hf, 4*hf+2): a(f"v_pk_fma_f32 {vr(24+i,2)}, {vr(24+i,2)}, {vr(vG,2)}, {vr(XBR+i,2)} op_sel_hi:[1,0,1]")
        for i in (2*hf, 2*hf+1): a(f"v_cvt_pk_bf16_f32 v{16+i}, v{24+2*i}, v{25+2*i}")
    a(f"""
    buffer_store_dwordx4 v[16:19], v{vXO}, {RA}, 0 offen {('', 'sc1', 'nt', 'sc0 sc1')[o.get('of', 0)]}
L_end:
    s_endpgm
    """)
    a(f"""
L_general1:
    v_lshrrev_b32 v{TS+3}, 2, v{TS+22}
    v_lshlrev_b32 v{TS+3}, 10, v{TS+3}
    v_and_b32 v{TS+1}, 3, v1
    v_lshl_or_b32 v{TS+3}, v{TS+1}, 2, v{TS+3}
    s_lshl_b32 s24, s{sJ}, 7
    s_add_u32 s24, s24, {WS_FG1}
    """)
    poll(a, f"buffer_load_dword v{TS+2}, v{TS+3}, {RW}, s24 offen sc1\nbuffer_load_dword v{TS+1}, v{TS+11}, {RW}, 0 offen sc1",
         f"v_cmp_ne_u32 vcc, 1, v{TS+2}", sleep=4, extra=f"v_cmp_ne_u32 vcc, s{sTAG}, v{TS+1}\ns_cbranch_vccz L_stage1")
    a(f"s_sub_u32 s15, s15, {WS_LOC - WS_GLB}\ns_branch L_stage1\nL_att_wait:")
    poll(a, prog_rd, prog_ck, sleep=1)
    a(f"""
    ; STAMP 13
    s_branch L_att_back
L_lbad:
    s_cbranch_scc0 L_lok
    ds_write_b32 v{vM}, v{IDX} offset:{M_BAD}
    s_waitcnt lgkmcnt(0)
    s_branch L_nostore
L_oredo:
    s_sub_u32 s54, s54, 1
    s_cmp_eq_u32 s54, 0
    s_cbranch_scc1 L_odone
    """)
    for st in range(3):
        for x in wreads(st): a(x)
    a(f"""
    s_branch L_oproj
L_routed:
    v_sub_u32 v20, v{aG}, v{vM}
    v_mul_u32_u24 v20, 72, v20
    v_lshlrev_b32 v21, 5, v0
    v_sub_u32 v20, v21, v20            ; piece * 32
    v_add_u32 v21, {MISC + M_Y + 320}, v20
    v_add_u32 v20, {MISC + M_Y}, v20
    v_cndmask_b32 v20, v20, v21, s[28:29]
    ds_read_b128 v[40:43], v20
    ds_read_b128 v[44:47], v20 offset:16
    s_mov_b64 exec, s[26:27]
    """)
    for i in range(4):
        a(f"v_lshlrev_b32 v{XBR+2*i}, 16, v{XD+i}\nv_and_b32 v{XBR+2*i+1}, 0xffff0000, v{XD+i}")
    a("s_waitcnt lgkmcnt(0)")
    for i in range(8):
        a(f"v_add_f32 v{XBR+i}, v{XBR+i}, v{40+i}")
        rne_bf16(a, XBR + i)
        a(f"v_mul_f32 v{XBR+i}, v{XBR+i}, v{OMG}")
        rne_bf16(a, XBR + i)
    a("s_mov_b64 exec, -1\ns_branch L_mix")
    M0r, M1r = T0 + 4, T0 + 5
    a(f"""
L_fallback:
    s_waitcnt lgkmcnt(0)
    s_barrier
    s_barrier                          ; K/V reloaded
    s_mul_i32 s24, s12, 9216
    s_add_u32 s24, s24, {7 * SLOT}
    v_subrev_u32 v{aK}, s24, v{aK}
    v_subrev_u32 v{aKR}, s24, v{aKR}
    v_mul_u32_u24 v{T0}, 7, v{vINC}
    v_sub_u32 v{aV}, v{aV}, v{T0}
    v_mov_b32 v{M0r}, 0xff800000
    v_mov_b32 v{M1r}, 0xff800000
    s_mov_b32 s14, 0
L_fb_max:
    """)
    for t in range(2):
        for x in kreads(t * 2304): a(x)
        if t == 0: a(krread(0))
        a("s_waitcnt lgkmcnt(0)")
        a(mf32(S[0], KM, QM, 0)); a(mf32(S[0] + 16, KM, QM + 4, 0))
        a("s_nop 9"); a(m2b(S[0], t)); a("s_nop 15\ns_nop 3")
        for i in range(0, 16, 2):
            a(f"v_max3_f32 v{M0r}, v{S[0]+i}, v{S[0]+i+1}, v{M0r}")
            a(f"v_max3_f32 v{M1r}, v{S[0]+16+i}, v{S[0]+17+i}, v{M1r}")
    a(f"""
    v_add_u32 v{aK}, 4608, v{aK}
    v_add_u32 v{aKR}, 4608, v{aKR}
    s_add_u32 s14, s14, 1
    s_cmp_lt_u32 s14, 32
    s_cbranch_scc1 L_fb_max
    v_mov_b32 v{T0}, v{M0r}
    v_mov_b32 v{T0+1}, v{M1r}
    s_mul_i32 s24, s12, 9216
    s_sub_u32 s24, {8 * SLOT}, s24
    v_permlane32_swap_b32 v{T0}, v{M0r}
    v_permlane32_swap_b32 v{T0+1}, v{M1r}
    v_subrev_u32 v{aK}, s24, v{aK}
    v_subrev_u32 v{aKR}, s24, v{aKR}
    v_max_f32 v{M0r}, v{T0}, v{M0r}
    v_max_f32 v{M1r}, v{T0+1}, v{M1r}
    """)
    for i in range(0, 32, 2): a(f"v_mov_b64 {vr(O+i,2)}, 0")
    a("s_mov_b32 s14, 0\nL_fb_pv:")
    for t in range(4):
        for x in kreads(t * 2304): a(x)
        if t % 2 == 0: a(krread(t * 2304))
        a(vread(0, t * 2304)); a(vread(1, t * 2304))
        a("s_waitcnt lgkmcnt(0)")
        a(mf32(S[0], KM, QM, 0)); a(mf32(S[0] + 16, KM, QM + 4, 0))
        a("s_nop 9"); a(m2b(S[0], t & 1)); a("s_nop 15\ns_nop 3")
        for i in range(32):
            a(f"v_sub_f32 v{S[0]+i}, v{S[0]+i}, v{M0r + (i >> 4)}")
        for x in exps(0, 0, 32): a(x)
        a("s_nop 1")
        for i in range(4): a(smf(0, i))
    a(f"""
    v_add_u32 v{aK}, {SLOT}, v{aK}
    v_add_u32 v{aKR}, {SLOT}, v{aKR}
    v_add_u32 v{aV}, v{vINC}, v{aV}
    s_add_u32 s14, s14, 1
    s_cmp_lt_u32 s14, 8
    s_cbranch_scc1 L_fb_pv
    s_mov_b32 s61, -1
    s_nop 7
    s_mov_b32 s60, 2
    s_barrier
    """)
    for x in send + recv: a(x)
    a("s_branch L_combine")
    RG = "s[52:55]"
    SA = [23, 24, 25, 26, 27]; AF = [28, 44, 60]; BF = 76; ACC1 = 96
    a(f"""
L_service:
    s_waitcnt lgkmcnt(0)
    s_sub_u32 s12, s{sWAVE}, 8         ; sw
    s_lshl_b32 s62, s2, 7
    s_lshl2_add_u32 s62, s12, s62
    s_add_u32 s62, s62, {WS_FG1}
    s_lshr_b32 s13, s12, 1             ; wm
    s_and_b32 s14, s12, 1              ; wn
    s_lshr_b32 s59, s{sM}, 3
    s_mov_b32 s54, {WOB}
    s_mov_b32 s55, 0x00020000
    s_cmp_lg_u32 s12, 0
    s_cbranch_scc1 L_noinit
    v_lshlrev_b32 v8, 2, v1
    v_lshrrev_b32 v9, 3, v1
    v_cmp_eq_u32 vcc, 2, v9
    v_add_u32 v8, {MISC}, v8
    s_nop 0
    v_cndmask_b32 v9, 0, v9, vcc
    v_writelane_b32 v9, 7, {M_MK // 4}
    ds_write_b32 v8, v9
    s_waitcnt lgkmcnt(0)
L_noinit:
    s_mov_b32 s52, s{pWO}
    s_mov_b32 s53, s{pWO+1}
    """)
    roles(a, o)
    a(f"""
    s_cmp_eq_u32 s59, 2
    s_cselect_b32 s27, 1, 0            ; is v
    s_movk_i32 s25, 1152
    s_cmp_eq_u32 s59, 0
    s_cselect_b32 s25, 576, s25
    s_cselect_b32 s26, 18432, 0
    s_mov_b32 s28, {HS}
    v_and_b32 v15, 15, v1
    v_bfe_u32 v13, v1, 4, 1
    v_lshrrev_b32 v16, 5, v1
    v_mul_u32_u24 v16, s25, v16
    s_lshl_b32 s24, s14, 6
    """)
    for nt in range(5):
        a(f"""
        {f"v_add3_u32 v3, v15, s24, {16*nt}" if nt < 4 else "v_add_u32 v3, 0x80, v15"}
        v_mul_u32_u24 v12, 3641, v3
        v_lshrrev_b32 v12, 16, v12         ; head
        v_mul_u32_u24 v14, 18, v12
        v_sub_u32 v3, v3, v14              ; d
        v_lshrrev_b32 v14, 4, v3
        v_bitop3_b32 v14, v14, s27, v13 bitop3:0x6a
        v_lshl_add_u32 v14, v14, 4, v16
        v_lshl_add_u32 v3, v3, 5, v14
        v_mad_u32_u24 v{SA[nt]}, v12, s28, v3
        """)
    a(f"""
    s_lshl_b32 s24, s{sJ}, 5
    s_add_u32 s24, s24, s{sM}
    s_lshl2_add_u32 s24, s24, s12
    s_lshl_b32 s24, s24, 2
    s_add_u32 s61, s24, {WS_FL1}
    s_cmp_ge_u32 s{sM}, 24
    s_cbranch_scc1 L_rg
    s_mul_i32 s27, s27, 576
    s_add_u32 s56, s26, s27
    s_and_b32 s24, s{sH}, 24
    s_mul_i32 s24, s24, {HS}
    s_add_u32 s56, s56, s24
    s_bfe_u32 s24, s{sM}, 0x20001
    s_and_b32 s26, s{sJB}, 4
    s_add_u32 s24, s24, s26
    s_mul_i32 s24, s24, {JS}
    s_add_u32 s56, s56, s24
    s_and_b32 s24, s{sM}, 1
    s_lshl2_add_u32 s24, s24, s12
    s_xor_b32 s26, s24, 1              ; p=1
    s_mul_i32 s24, s24, s25
    s_mul_i32 s26, s26, s25
    s_lshl1_add_u32 s57, s26, s56
    s_lshl1_add_u32 s56, s24, s56
    s_add_u32 s58, s56, {WS_LOC}
    s_add_u32 s60, s57, {WS_LOC}
    s_cmp_eq_u32 s59, 0
    s_cselect_b32 s26, {f32bits(QSCALE)}, 1.0
    s_mov_b32 s27, s26
    v_bfe_u32 v3, v1, 2, 2
    v_and_b32 v12, 3, v1
    v_lshl_or_b32 v14, v3, 3, v12
    v_bfe_u32 v15, v1, 1, 3            ; swizzle
    v_lshrrev_b32 v16, 4, v1           ; kg
    v_xor_b32 v15, v15, v16
    v_lshlrev_b32 v15, 4, v15
    v_lshl_or_b32 v14, v14, 7, v15
    s_lshl_b32 s24, s12, 12
    v_add_u32 v6, s24, v14
    v_xor_b32 v7, 0x1000, v6
    v_xor_b32 v8, 64, v6
    v_xor_b32 v9, 64, v7
    v_mul_u32_u24 v13, 288, v3
    v_mul_u32_u24 v14, 2432, v16
    v_lshl_add_u32 v13, v12, 3, v13
    v_add_u32 v13, v13, v14
    v_add_u32 v11, {16384 + 256}, v13
    s_lshl_b32 s24, s14, 7
    s_add_u32 s24, s24, 16384
    v_add_u32 v10, s24, v13
    v_mov_b64 v[16:17], v[6:7]
    v_mov_b64 v[18:19], v[8:9]
    v_mov_b64 v[20:21], v[10:11]
    s_mov_b32 s24, 0
    s_mov_b32 s25, 0
    """)
    for i in range(AF[1], AF[1] + 16, 2): a(f"v_mov_b64 {vr(i,2)}, 0")
    for i in range(BF, 168, 2): a(f"v_mov_b64 {vr(i,2)}, 0")
    def ard(kk, st): return [(f"A{st}{p}", f"ds_read_b128 {vr(AF[st]+8*p+4*e,4)}, v{16+2*kk+p} offset:{512*e}") for p in range(2) for e in range(2)]
    def brd(kk, n, buf): return [(f"B{buf}", f"ds_read_b64_tr_b16 {vr(BF+4*buf+2*m,2)}, v{20 + (n == 4)} offset:{4*2432*kk+4*288*m+32*(n&3)}") for m in range(2)]
    def acc(n, p): return ACC1 + 16 * n + 8 * p
    def mm(n, st, buf):
        return [((f"A{st}{p}", f"B{buf}"), mf16(acc(n, p) + 4 * e, AF[st] + 8 * p + 4 * e, BF + 4 * buf)) for p in range(1 if n == 4 else 2) for e in range(2)]
    class Q:
        def __init__(s, pend): s.pend = list(pend)
        def rd(s, x): a(x[1]); s.pend.append(x[0])
        def need(s, tags):
            last = max([i for i, t in enumerate(s.pend) if t in tags], default=-1)
            if last >= 0:
                n = min(len(s.pend) - 1 - last, 14)
                a(f"s_waitcnt lgkmcnt({n})"); s.pend = s.pend[len(s.pend) - n:] if n else []
        def drain(s): a("s_waitcnt lgkmcnt(0)"); s.pend = []
    def run(q, groups, reads, fill={}, per=1):
        i = 0; reads = list(reads)
        for g in groups:
            for tags, ins in g:
                q.need(tags); a(ins)
                for x in fill.get(i, []):
                    if x == "BAR": q.drain()
                    else: a(x)
                k = 0
                while reads and reads[0][0] <= i and k < per: q.rd(reads.pop(0)[1]); k += 1
                i += 1
        return [r[1] for r in reads]
    order = [4, 0, 1, 2, 3]; last = {4: 1, 0: 5, 1: 9, 2: 13, 3: 17}
    def step_reads(A, items, start):
        r = [(start, x) for x in items[0][1]] + [(start, x) for x in A]
        for buf, it in items[1:]: r += [(last[buf], x) for x in it]
        return r
    NB = o.get("nb", 3)
    regaddr(a, 3)
    a("s_setprio 3\n; STAMP 1")
    a(".p2align 4\nL_gemm:")
    steady = [x[0] for _, x in step_reads(ard(1, 1), [(n, brd(1, n, n)) for n in order], 1)]
    q = Q(steady)
    gs = ["s_cmp_lg_u32 s24, 1\ns_cbranch_scc1 L_gs1\n; STAMP 7\nL_gs1:"] if o.get("gstamp") else []
    left = run(q, [mm(n, 1, n) for n in order], step_reads(ard(0, 0), [(n, brd(0, n, n)) for n in order], NB),
               {NB: ["BAR", "s_barrier"] + gs, 0: [f"s_add_u32 s25, s25, {RS}"], 1: [f"s_cmp_eq_u32 s25, {4*RS}", "s_cselect_b32 s25, 0, s25"], 2: ["s_add_u32 s24, s24, 1"]})
    left = run(q, [mm(n, 0, n) for n in order], [(0, x) for x in left] + step_reads(ard(1, 1), [(n, brd(1, n, n)) for n in order], 1),
               {11: ["v_add_u32 v16, s25, v6"], 12: ["v_add_u32 v17, s25, v7", "s_cmp_lt_u32 s24, 8"], 15: ["v_add_u32 v18, s25, v8", "v_add_u32 v21, s25, v11"], 16: ["v_add_u32 v19, s25, v9"]})
    for x in left: q.rd(x)
    a("v_add_u32 v20, s25, v10\ns_cbranch_scc1 L_gemm")
    seq = [(n, kk) for n in (0, 1, 2, 3, 4) for kk in range(2)]
    bufs = [order[i % 5] for i in range(10)]
    a(regload(3, 4))
    q = Q(steady)
    r = step_reads(ard(0, 0), [(bufs[i], brd(seq[i][1], seq[i][0], bufs[i])) for i in range(5)], NB)
    r = r[:8] + [(NB, x) for x in ard(1, 2)] + r[8:]
    left = run(q, [mm(n, 1, n) for n in order], r, {NB: ["BAR", "s_barrier", "; STAMP 8"]}, per=2)
    def glb_store(n, p): return f"buffer_store_dwordx4 {vr(acc(n,p),4)}, v{SA[n]}, {RW}, s{56+p} offen sc1"
    def tile_out(n, p):
        D = acc(n, p)
        h = [f"v_pk_mul_f32 {vr(D+r,2)}, {vr(D+r,2)}, s[26:27]" for r in range(0, 8, 2)]
        if o.get("mul", 1) == 1: h = [f"v_mul_f32 v{D+r}, s26, v{D+r}\nv_mul_f32 v{D+r+1}, s26, v{D+r+1}" for r in range(0, 8, 2)]
        if o.get("mul") == 2: h = ["s_nop 0"] * 4
        h += [f"v_cvt_pk_bf16_f32 v{D+r}, v{D+2*r}, v{D+2*r+1}" for r in range(4)]
        return h + [f"buffer_store_dwordx4 {vr(D,4)}, v{SA[n]}, {RW}, s{58+2*p} offen"]
    fill = {}
    for n in range(4):
        for p in range(2):
            t = tile_out(n, p); i0 = 8 * n + 10 + 4 * p
            for k in range(4): fill.setdefault(i0 + k, []).extend(t[2*k:2*k+2] + ([t[8]] if k == 3 else []))
    fill.setdefault(8, []).append("s_nop 1"); fill.setdefault(9, []).append("s_nop 1")
    fill.setdefault(24, []).extend(["BAR", "s_barrier                          ; BL"])
    left = run(q, [mm(n, 2 * kk, bufs[i]) for i, (n, kk) in enumerate(seq)],
               [(0, x) for x in left] + [(4 * i + 3, x) for i in range(5) for x in brd(seq[i+5][1], seq[i+5][0], bufs[i])], fill)
    assert not left
    a("; STAMP 2")
    for i in range(36, 44):
        for x in fill.get(i, []): a(x)
    for x in tile_out(4, 0): a(x)
    a(f"v_mov_b32 v6, s{sTAG}\nv_mov_b32 v5, 0\n; STAMP 9")
    regwait(a, 3, 4, preloaded=True)
    a("L_svc:")
    one_lane(a, f"buffer_store_dword v6, v5, {RW}, s61 offen")
    a("; STAMP 10\ns_setprio 3")
    vL16, sZ = 2, 5
    a(f"""
    s_and_b32 s15, s{sM}, 3
    s_lshl2_add_u32 s15, s{sJO}, s15
    s_lshl_b32 s15, s15, 6
    s_mov_b32 s61, 0
    v_mov_b32 v{vM}, {MISC}
    v_mov_b32 v{vONE}, 1
    v_lshlrev_b32 v{vL16}, 4, v1
    s_cmp_lg_u32 s12, 0
    s_cbranch_scc1 L_helper
    """)
    def publish(): a("s_call_b64 s[0:1], L_publish")
    def qpub():
        l = uid("qok")
        a(f"s_cmp_eq_u32 s59, 3\ns_cbranch_scc1 {l}")
        poll(a, f"ds_read_b32 v4, v{vM} offset:{M_MODE}", "v_cmp_eq_u32 vcc, 0, v4", sleep=4)
        a(f"v_cmp_eq_u32 vcc, 1, v4\ns_cbranch_vccnz {l}"); publish(); a(f"{l}:")
    def selwait():
        a(f"s_lshl_b32 s24, s{sJ}, 7\ns_add_u32 s24, s24, {WS_SEL}")
        poll(a, f"buffer_load_dwordx2 v[12:13], v{sZ}, {RW}, s24 offen sc1", "v_min_u32 v4, v12, v13\nv_cmp_eq_u32 vcc, 0, v4", sleep=4)
    def level(n=1): one_lane(a, f"ds_add_u32 v{vM}, v{vONE} offset:{M_FULL}", n)
    def go(): one_lane(a, f"ds_add_u32 v{vM}, v{vONE} offset:{M_GO}")
    def slots(n): a(f"s_movk_i32 s29, {n}\ns_call_b64 s[0:1], L_slots")
    for i in range(5):
        a(f"""
        v_add_u32 v3, {64*i}, v1
        v_mul_u32_u24 v4, 6554, v3
        v_lshrrev_b32 v4, 16, v4
        v_mul_u32_u24 v9, 10, v4
        v_sub_u32 v3, v3, v9
        v_min_u32 v3, 8, v3
        v_mul_u32_u24 v4, 1152, v4
        v_lshl_add_u32 v{16+i}, v3, 4, v4
        """)
        if 0 < i < 4: a(f"v_subrev_u32 v{16+i}, {1024*i}, v{16+i}")
    a(f"""
    v_lshlrev_b32 v21, 3, v1
    v_lshrrev_b32 v3, 2, v1
    v_lshlrev_b32 v3, 10, v3
    v_and_b32 v4, 3, v1
    v_lshl_or_b32 v22, v4, 2, v3
    v_max_u32 v4, 1, v4
    v_bfe_u32 v3, v1, 2, 2
    v_lshlrev_b32 v3, 13, v3
    v_lshl_or_b32 v9, v4, 2, v3
    s_lshl_b32 s28, s{sJ}, 9
    s_add_u32 s28, s28, {WS_FL1}
    s_mul_i32 s13, s{sH}, {HS}
    s_add_u32 s25, s13, {WS_LOC}
    s_mov_b32 s26, 1
    s_mov_b32 s27, {KV0 + SLOT}
    ; STAMP 3
    """)
    poll(a, f"ds_read_b32 v4, v{vM} offset:{M_C0}", f"v_cmp_gt_u32 vcc, {o.get('c0n', 1)}, v4", sleep=1, spin=128)
    loc = f"buffer_load_dwordx2 v[12:13], v21, {RW}, s28 offen sc1"
    locc = f"v_xor_b32 v12, s{sTAG}, v12\nv_xor_b32 v13, s{sTAG}, v13\nv_or_b32 v12, v12, v13\nv_cmp_ne_u32 vcc, 0, v12"
    poll(a, loc, locc, sleep=2, spin=48)
    a(f"s_cbranch_vccnz L_general2\nds_write_b32 v{vM}, v{vONE} offset:{M_MODE}\nL_stage2:\n; STAMP 4")
    slots(3); go()
    a("s_waitcnt vmcnt(36)"); level(); a("; STAMP 5")
    a("s_waitcnt vmcnt(0)"); level(2); a("; STAMP 12")
    def blockwait(x):
        a(f"s_and_b32 s28, s{sM}, 7\ns_lshl_b32 s28, s28, 3\ns_xor_b32 s24, s{sJ}, {x}\ns_add_u32 s28, s28, s24\ns_lshl_b32 s28, s28, 7\ns_add_u32 s28, s28, {WS_FG1 + 32}")
        a("s_mov_b64 exec, 0xffff")
        poll(a, f"buffer_load_dword v4, v9, {RW}, s28 offen sc1", "v_cmp_ne_u32 vcc, 1, v4", sleep=4)
        a("s_mov_b64 exec, -1\ns_mov_b32 s25, s13")
    blockwait(1)
    a("; STAMP 13")
    slots(3)
    final_addr(a, 3)
    a(f"v_and_b32 v{vPR}, 7, v1\nv_lshl_add_u32 v{vPR}, v{vPR}, 2, v{vM}\ns_mov_b32 s25, s13")
    poll(a, prog_rd, f"v_cmp_gt_u32 vcc, 3, v{vF}", sleep=4)
    slots(1)
    a(f"buffer_load_dwordx4 {vr(XD,4)}, v{vXO}, {RA}, 0 offen")
    go(); level()
    a(f"v_lshlrev_b32 v3, 7, v1\ns_mov_b32 s28, {WS_FG1 + 64*128}\ns_waitcnt vmcnt(0)"); level(4)
    a("; STAMP 11")
    poll(a, f"ds_read_b32 v4, v{vM} offset:{M_BLK}", "v_cmp_ne_u32 vcc, 3, v4", sleep=16)
    poll(a, prog_rd, f"v_cmp_gt_u32 vcc, 7, v{vF}", sleep=16)
    poll(a, f"buffer_load_dwordx4 v[24:27], v3, {RW}, s28 offen offset:16 sc1", "v_bitop3_b32 v4, v25, v26, v27 bitop3:0x80\nv_cmp_ne_u32 vcc, 1, v4", sleep=8)
    one_lane(a, f"ds_add_u32 v{vM}, v{vONE} offset:{M_MK}")
    if o.get("cpf", 1):
        a(f"s_cmp_lg_u32 s{sM}, 20\ns_cbranch_scc1 L_wo")
        code_pf(a, 3, 35, 1)
    a(f"""
L_wo:
    s_lshr_b32 s24, s{sM}, 2
    s_mul_i32 s24, s24, 144
    s_mov_b32 s25, {L_WO}
L_wo_loop:
    s_mov_b32 m0, s25
    s_nop 0
    """)
    for i in range(4): a(f"buffer_load_dwordx4 v{16+i}, {RG}, s24 offen offset:{1024*i} lds")
    a(f"""
    s_add_u32 m0, s25, 4096
    s_add_u32 s25, s25, 5120
    buffer_load_dwordx4 v20, {RG}, s24 offen lds
    s_add_u32 s24, s24, {32*1152}
    s_cmp_lt_u32 s25, {L_WO + 92160}
    s_waitcnt vmcnt(50)
    s_cbranch_scc1 L_wo_loop
    s_waitcnt vmcnt(0) lgkmcnt(0)
    ; STAMP 14
    s_barrier                          ; BE
    ds_read_b32 v4, v{vM} offset:{M_BAD}
    {final_rd}
    s_waitcnt lgkmcnt(0)
    v_cmp_lt_u32 vcc, s61, v4
    s_cbranch_vccnz L_w8_fb
    """)
    final_pre(a)
    a(f"v_lshlrev_b32 v3, 7, v1\ns_lshl_b32 s24, s15, 7\ns_add_u32 s24, s24, {WS_O + O_REM}")
    if o.get("pp2", 0):
        a(f"buffer_load_dword v4, v3, {RW}, s24 offen sc1\ns_sleep {o.get('s2', 4)}")
        poll(a, f"buffer_load_dword v5, v3, {RW}, s24 offen sc1", "v_cmp_eq_u32 vcc, -1, v4", wait="s_waitcnt vmcnt(1)",
             extra=f"buffer_load_dword v4, v3, {RW}, s24 offen sc1\ns_waitcnt vmcnt(1)\nv_cmp_eq_u32 vcc, -1, v5\ns_cbranch_vccz L_seen")
    else:
        poll(a, f"buffer_load_dword v4, v3, {RW}, s24 offen sc1", "v_cmp_eq_u32 vcc, -1, v4")
    a(f"""
L_seen:
    s_barrier                          ; BP
    s_branch L_final
L_w8_fb:
    s_barrier
    """)
    blockwait(0)
    a(f"s_mov_b32 s26, 0\ns_mov_b32 s27, {KV0}")
    slots(8)
    a(f"""
    s_waitcnt vmcnt(0)
    s_barrier
    s_mov_b32 s61, -1
    s_barrier
    s_branch L_wo
L_general2:
    v_mov_b32 v4, 2
    ds_write_b32 v{vM}, v4 offset:{M_MODE}
    """)
    qpub()
    a(f"s_lshl_b32 s29, s{sJ}, 7\ns_add_u32 s29, s29, {WS_FG1 + 8192}")
    poll(a, loc + f"\nbuffer_load_dword v4, v22, {RW}, s29 offen sc1", locc + "\ns_lshr_b64 vcc, vcc, 16\ns_lshl_b64 vcc, vcc, 32", sleep=4,
         extra="v_cmp_ne_u32 vcc, 1, v4\ns_cbranch_vccz L_general3")
    a(f"""
    s_branch L_stage2
L_general3:
    s_mov_b32 s25, s13
    s_branch L_stage2
L_publish:
    """)
    for n in range(5):
        for p in range(1 if n == 4 else 2): a(glb_store(n, p))
    a("s_mov_b32 s59, 3\ns_waitcnt vmcnt(0)")
    one_lane(a, f"buffer_store_dword v{vONE}, v{sZ}, {RW}, s62 offen sc1")
    a(f"""
    s_setpc_b64 s[0:1]
L_slots:
    s_xor_b32 s24, s26, s{sJB}
    s_mul_i32 s24, s24, {JS}
    s_mov_b32 m0, s27
    s_add_u32 s24, s24, s25
    """)
    for g in range(5):
        for u in range(4 if g < 4 else 2):
            a(f"buffer_load_dwordx4 v{vL16}, {RW}, s24 offen offset:{1024*u} sc1 lds")
        if g < 4: a(f"s_add_u32 m0, s27, {4096*(g+1)}\ns_add_u32 s24, s24, 4096")
    a(f"""
    s_add_u32 s27, s27, {SLOT}
    s_add_u32 s26, s26, 1
    s_sub_u32 s29, s29, 1
    s_cmp_lg_u32 s29, 0
    s_waitcnt vmcnt(45)
    s_cbranch_scc1 L_slots
    s_setpc_b64 s[0:1]
    """)
    aGU, aXF, aWR, aTG, aTD, aDN, aP, aHW, aHR, aY, vTK, aPW = 7, 8, 9, 22, 14, 15, 16, 17, 18, 19, 20, 21
    GA = 28; UA = 76; XF = 124; TR = 148; AC = [156, 160, 164, 24]
    a(f"""
L_helper:
    s_sub_u32 s13, s12, 1              ; third
    s_and_b32 s14, s12, 1
    v_lshrrev_b32 v3, 2, v1
    v_mul_u32_u24 v3, 9216, v3
    v_and_b32 v4, 3, v1
    v_lshl_add_u32 v{aGU}, v4, 4, v3
    v_lshlrev_b32 v4, 3, v4            ; 8c
    v_bfe_u32 v28, v1, 2, 2            ; r
    v_lshrrev_b32 v29, 4, v1           ; kg
    s_mul_i32 s24, s12, 2304
    s_add_u32 s24, s24, 32
    v_add_u32 v{aWR}, s24, v{vL16}
    v_and_b32 v3, 1, v29
    v_lshl_add_u32 v3, v3, 3, v28
    v_lshl_or_b32 v3, v3, 6, v4
    v_lshrrev_b32 v12, 5, v1
    v_mul_u32_u24 v13, 1152, v12
    v_add3_u32 v{aTG}, v3, v13, s24
    v_lshl_add_u32 v3, v29, 3, v28
    v_lshl_or_b32 v3, v3, 5, v4
    v_add_u32 v{aTD}, s24, v3
    v_lshrrev_b32 v3, 1, v1
    v_mul_u32_u24 v3, 1152, v3
    v_and_b32 v4, 1, v1
    v_lshl_add_u32 v{aDN}, v4, 4, v3
    v_lshl_add_u32 v{aP}, v1, 2, v{vM}
    s_lshl_b32 s25, s12, 7
    s_add_u32 s25, s25, {MISC + M_H}
    v_and_b32 v3, 15, v1
    v_lshl_or_b32 v4, v12, 4, v3
    v_and_b32 v28, 16, v1
    v_lshl_add_u32 v4, v28, 1, v4
    v_lshl_add_u32 v{aHW}, v4, 1, s25
    v_and_b32 v4, 4, v1
    v_add_u32 v4, v4, v29
    v_lshl_add_u32 v{aHR}, v4, 4, s25
    v_mul_u32_u24 v4, 2304, v29
    v_lshl_add_u32 v{aY}, v3, 2, v4
    s_mul_i32 s25, s13, 384
    v_lshl_add_u32 v{aXF}, v29, 4, s25
    v_bfe_i32 v{vTK}, v1, 2, 1
    s_lshl_b32 s25, s13, 9
    v_add_u32 v{aPW}, s25, v{aP}
    """)
    a("; STAMP 3")
    qpub()
    poll(a, f"ds_read_b64 v[12:13], v{vM} offset:{M_C0}", "v_min_u32 v13, 1, v13\nv_add_u32 v12, v12, v13\nv_cmp_ne_u32 vcc, 9, v12", sleep=2)
    a(f"""
    s_call_b64 s[0:1], L_block
    s_lshl2_add_u32 s24, s{sM}, s12
    s_cmp_eq_u32 s24, {25*4+3}
    s_cbranch_scc1 L_select
L_selected:
    s_add_u32 s24, s{sM}, 10
    s_and_b32 s24, s24, 31
    s_mul_i32 s29, s{sJ}, 18
    s_add_u32 s29, s29, s24
    s_cmp_lt_u32 s24, {0 if o.get("nomoe") else 18}
    s_cselect_b32 s54, {WGB}, 0
    s_mul_i32 s26, s13, {192*9216}
    s_lshl_b32 s24, s29, 6
    s_add_u32 s26, s26, s24
    """)
    def gowait(n):
        if n > 1: poll(a, f"ds_read_b32 v4, v{vM} offset:{M_GO}", f"v_cmp_gt_u32 vcc, {n}, v4", sleep=8)
    def gu_loads(base, ptr):
        l = uid("nogu")
        a(f"s_cmp_eq_u32 s54, 0\ns_cbranch_scc1 {l}\ns_setprio 0\ns_mov_b32 s52, s{ptr}\ns_mov_b32 s53, s{ptr+1}\ns_mov_b32 s25, s26")
        for i in range(12):
            a(f"buffer_load_dwordx4 {vr(base+4*i,4)}, v{aGU}, {RG}, s25 offen\ns_add_u32 s25, s25, {16*9216}")
        a(f"s_setprio 3\n{l}:")
    selwait()
    a(f"""
    s_cmp_lg_u32 s12, 1
    s_cbranch_scc1 L_nog
    ds_write_b64 v{vM}, v[12:13] offset:{M_SEL}
    s_lshl_b32 s24, s15, 2
    s_add_u32 s24, s24, {WS_G - MISC}
    buffer_load_dword v24, v{aP}, {RW}, s24 offen sc1
    s_waitcnt vmcnt(0)
    ds_write_b32 v{aP}, v24 offset:{M_G}
L_nog:
    """)
    gowait(o.get("gg", 2))
    a(f"""
    s_sub_u32 s24, s2, 64
    s_cmp_lt_u32 s24, 64
    s_cbranch_scc0 L_nomark
    s_lshl_b32 s25, s24, 15
    s_mul_i32 s27, s13, 12288
    s_add_u32 s25, s25, s27
    s_add_u32 s25, s25, {WS_O}
    s_add_u32 s27, s25, 8192
    s_lshl_b32 s24, s24, 12
    s_add_u32 s24, s24, {WS_O + O_REM}
    s_cmp_eq_u32 s13, 2
    s_cselect_b32 s27, s24, s27
    s_add_u32 s24, s25, 4096
    v_mov_b64 v[28:29], -1
    v_mov_b64 v[30:31], -1
    """)
    for r in (25, 24, 27):
        for u in range(4): a(f"buffer_store_dwordx4 v[28:31], v{vL16}, {RW}, s{r} offen offset:{1024*u} sc1")
    a("s_waitcnt vmcnt(0)")
    one_lane(a, f"buffer_store_dword v{vONE}, v{sZ}, {RW}, s62 offen offset:16 sc1")
    a("L_nomark:")
    if o.get("wb"):
        a(f"s_cmp_lg_u32 s{sM}, 21\ns_cbranch_scc1 L_nowb\ns_cmp_lg_u32 s12, 1\ns_cbranch_scc1 L_nowb")
        poll(a, f"ds_read_b32 v4, v{vM} offset:{M_FULL}", f"v_cmp_gt_u32 vcc, 8, v4", sleep=16)
        a("buffer_wbl2 sc1\nL_nowb:")
    a(f"""
L_sel2:
    ; STAMP 12
    v_readfirstlane_b32 s56, v12
    v_readfirstlane_b32 s57, v13
    s_mov_b32 s60, s29
    s_and_b32 s58, s56, 0x7ff
    s_sub_u32 s58, 2047, s58           ; idx0
    s_and_b32 s59, s57, 0x7ff
    s_sub_u32 s59, 2047, s59           ; idx1
    s_cmp_eq_u32 s54, 0
    s_cbranch_scc1 L_moedone
    s_mul_i32 s25, s58, 1152
    s_mul_i32 s24, s59, 1152
    s_sub_u32 s24, s24, s25
    v_and_b32 v{vTK}, s24, v{vTK}
    v_add3_u32 v{aXF}, v{aXF}, v{vTK}, s25
    """)
    for i in range(6):
        a(f"buffer_load_dwordx4 {vr(XF+4*i,4)}, v{aXF}, {RA}, 0 offen offset:{64*i}")
    gu_loads(GA, pWG)
    gu_loads(UA, pWU)
    a(f"s_setprio 0\ns_mov_b32 s52, s{pWD}\ns_mov_b32 s53, s{pWD+1}")
    def mm2(x0, x1): a(f"s_waitcnt lgkmcnt(0)\ns_setprio 3\n{x0}\n{x1}\ns_setprio 0")
    for mat, base in enumerate((GA, UA)):
        a("s_waitcnt vmcnt(12)")
        if mat == 0: a("; MSTAMP 2")
        for st in range(6):
            a(f"ds_write_b128 v{aWR}, {vr(base+8*st,4)}")
            a(f"ds_write_b128 v{aWR}, {vr(base+8*st+4,4)} offset:1152")
            for n in range(2):
                for m in range(2):
                    a(f"ds_read_b64_tr_b16 {vr(TR+4*n+2*m,2)}, v{aTG} offset:{256*m+32*n}")
            mm2(*[mf16(AC[2 * mat + n], XF + 4 * st, TR + 4 * n, 0 if st == 0 else None) for n in range(2)])
        if mat == 0:
            a("; MSTAMP 1\ns_mul_i32 s25, s60, 36864\ns_mul_i32 s26, s13, 384\ns_add_u32 s25, s25, s26")
            for n in range(12):
                a(f"buffer_load_dwordx4 {vr(GA+4*n,4)}, v{aDN}, {RG}, s25 offen offset:{32*n}")
    a(f"""
    ; MSTAMP 7
    s_mov_b32 exec_hi, 0
    ds_write_b32 v{aPW}, v{AC[0]} offset:{M_P}
    s_not_b64 exec, exec
    ds_write_b32 v{aPW}, v{AC[1]} offset:{M_P}
    s_nop 3
    ds_write_b32 v{aPW}, v{AC[3]} offset:{M_P + 256}
    s_not_b64 exec, exec
    ds_write_b32 v{aPW}, v{AC[2]} offset:{M_P + 256}
    s_mov_b64 exec, 1
    ds_add_u32 v{vM}, v{vONE} offset:{M_CNT}
    s_mov_b64 exec, -1
    s_setprio 3
    """)
    poll(a, f"ds_read_b32 v4, v{vM} offset:{M_CNT}", "v_cmp_ne_u32 vcc, 3, v4", sleep=4)
    a("; MSTAMP 9")
    for w in range(6): a(f"ds_read_b32 v{XF+w}, v{aP} offset:{M_P + 256*w}")
    a(f"""
    s_waitcnt lgkmcnt(0)
    v_pk_add_f32 {vr(XF,2)}, {vr(XF,2)}, {vr(XF+2,2)}
    v_pk_add_f32 {vr(XF,2)}, {vr(XF,2)}, {vr(XF+4,2)}
    v_cvt_pk_bf16_f32 v{XF+1}, v{XF}, v{XF+1}
    v_lshlrev_b32 v{XF}, 16, v{XF+1}
    v_mul_f32 v{XF+2}, {f32bits(-LOG2E)}, v{XF}
    v_exp_f32 v{XF+2}, v{XF+2}
    v_and_b32 v{XF+1}, 0xffff0000, v{XF+1}
    v_add_f32 v{XF+2}, 1.0, v{XF+2}
    v_rcp_f32 v{XF+2}, v{XF+2}
    s_and_b32 s25, s60, 7
    v_mul_f32 v{XF}, v{XF}, v{XF+2}
    """)
    rne_bf16(a, XF)
    a(f"""
    v_mul_f32 v{XF}, v{XF}, v{XF+1}
    v_cvt_pk_bf16_f32 v{XF}, v{XF}, v{XF}
    s_setprio 0
    ds_write_b16 v{aHW}, v{XF}
    ds_read_b128 {vr(XF+4,4)}, v{aHR}
    s_waitcnt vmcnt(0)
    """)
    for st in range(6):
        for n in range(2): a(f"ds_write_b128 v{aWR}, {vr(GA+8*st+4*n,4)} offset:{1152*n}")
        for n in range(2):
            for m in range(2):
                a(f"ds_read_b64_tr_b16 {vr(TR+4*n+2*m,2)}, v{aTD} offset:{1152*n+128*m}")
        mm2(*[mf16(UA + 8 * st + 4 * n, XF + 4, TR + 4 * n, 0) for n in range(2)])
    a(f"""
    s_mul_i32 s25, s25, 4608
    s_mul_i32 s26, s13, 768
    s_add_u32 s25, s25, s26
    s_add_u32 s25, s25, {WS_Y}
    ; MSTAMP 10
    s_mov_b32 exec_hi, 0
    """)
    for n in range(12):
        a(f"buffer_atomic_add_f32 v{UA+4*n}, v{aY}, {RW}, s25 offen offset:{64*n} sc1")
    a(f"""
    s_mov_b64 exec, 1
    s_setprio 3
    s_waitcnt vmcnt(0)
    ds_add_rtn_u32 v4, v{vM}, v{vONE} offset:{M_DONE}
    s_lshl_b32 s25, s{sJ}, 7
    s_add_u32 s25, s25, {WS_DONE}
    s_waitcnt lgkmcnt(0)
    v_cmp_eq_u32 vcc, 2, v4
    s_cbranch_vccz L_notlast
    buffer_atomic_add v{vONE}, v{sZ}, {RW}, s25 offen sc1
L_notlast:
    s_mov_b64 exec, -1
L_moedone:
    ; STAMP 13
    s_cmp_eq_u32 s12, 2
    s_cselect_b32 s26, s58, s59
    s_cselect_b32 s27, s56, s57
    s_andn2_b32 s26, s26, 63
    s_cmp_eq_u32 s15, s26
    s_cselect_b32 s28, 1, 0
    s_cmp_eq_u32 s12, 1
    s_cselect_b32 s28, 0, s28
    {"s_mov_b32 s28, 0" if o.get("nomoe") else ""}
    v_lshrrev_b32 v3, 3, v1
    v_lshlrev_b32 v3, 7, v3
    s_mov_b32 s29, {WS_DONE}
    s_cmp_eq_u32 s28, 0
    s_cbranch_scc1 L_h_wait
    """)
    ydone = f"buffer_load_dword v4, v3, {RW}, s29 offen sc1"
    poll(a, f"ds_read_b32 v12, v{vM} offset:{M_PROG}\ns_waitcnt lgkmcnt(0)\nv_cmp_lt_u32 vcc, 8, v12\ns_cbranch_vccnz L_h_wait\n" + ydone,
         "v_cmp_ne_u32 vcc, 18, v4", sleep=16, wait="s_waitcnt vmcnt(0)")
    a(f"""
    s_call_b64 s[0:1], L_yprep
L_h_wait:
    s_waitcnt vmcnt(0) lgkmcnt(0)
    ; STAMP 14
    s_barrier                          ; BE
    ds_read_b32 v4, v{vM} offset:{M_BAD}
    s_waitcnt lgkmcnt(0)
    v_cmp_lt_u32 vcc, s61, v4
    s_cbranch_vccnz L_h_fb
    s_cmp_eq_u32 s28, 0
    s_cbranch_scc1 L_h_end
    s_barrier                          ; BP
    """)
    poll(a, ydone, "v_cmp_ne_u32 vcc, 18, v4", sleep=2)
    a(f"""
    s_call_b64 s[0:1], L_yprep
    s_waitcnt lgkmcnt(0)
L_h_end:
    s_endpgm
L_h_fb:
    s_barrier
    s_barrier
    s_mov_b32 s61, -1
    s_barrier
    s_branch L_h_wait
L_block:
    s_mul_i32 s24, s13, 6144
    s_add_u32 s25, s24, {KV0}
    v_add_u32 v4, s25, v{vL16}
    s_setprio 0
    """)
    for i in range(6): a(f"ds_read_b128 {vr(32+4*i,4)}, v4 offset:{1024*i}")
    a(f"""
    s_setprio 3
    s_mul_i32 s25, s{sJB}, {JS}
    s_add_u32 s24, s24, s25
    s_mul_i32 s25, s{sH}, {HS}
    s_add_u32 s24, s24, s25
    s_add_u32 s25, s24, 4096
    s_waitcnt lgkmcnt(0)
    """)
    for i in range(6): a(f"buffer_store_dwordx4 {vr(32+4*i,4)}, v{vL16}, {RW}, s{24 + i//4} offen offset:{1024*(i%4)} sc1")
    a("s_waitcnt vmcnt(0)")
    one_lane(a, f"buffer_store_dword v{vONE}, v{sZ}, {RW}, s62 offen offset:32 sc1\nds_add_u32 v{vM}, v{vONE} offset:{M_BLK}")
    a(f"""
    s_setpc_b64 s[0:1]
L_yprep:
    ; MSTAMP 4
    s_mov_b32 s28, 0
    v_min_u32 v3, 35, v1
    v_lshlrev_b32 v3, 3, v3
    s_lshr_b32 s24, s{sM}, 2
    s_mul_i32 s24, s24, 288
    s_mul_i32 s25, s14, 2304
    s_add_u32 s24, s24, s25
    s_add_u32 s24, s24, {WS_Y}
    """)
    for rp in range(8):
        a(f"buffer_load_dwordx2 {vr(32+2*rp,2)}, v3, {RW}, s24 offen sc1\ns_add_u32 s24, s24, 4608")
    a(f"""
    s_and_b32 s27, s27, 0xfffff800
    s_xor_b32 s24, s27, 0x80000000
    s_not_b32 s25, s27
    s_bitcmp1_b32 s27, 31
    s_cselect_b32 s27, s24, s25
    v_mov_b32 v14, s27
    """)
    rne_bf16(a, 14); sigmoid(a, 14); rne_bf16(a, 14)
    a(f"s_mul_i32 s24, s14, 320\ns_add_u32 s24, s24, {MISC + M_Y}\nv_add_u32 v3, s24, v3\ns_waitcnt vmcnt(0)")
    for rp in range(1, 8): a(f"v_pk_add_f32 v[32:33], v[32:33], {vr(32+2*rp,2)}")
    for i in range(2):
        rne_bf16(a, 32 + i); a(f"v_mul_f32 v{32+i}, v{32+i}, v14"); rne_bf16(a, 32 + i)
    a("ds_write_b64 v3, v[32:33]\ns_setpc_b64 s[0:1]")
    a(f"""
L_idle:
    v_mov_b32 v5, 0
    v_mov_b32 v6, s{sTAG}
    s_barrier                          ; BL
    """)
    regwait(a, 3, 4, sleep=32)
    a(f"""
    s_branch L_svc
L_rg:
    s_cmp_lt_u32 s{sM}, 28
    s_cbranch_scc1 L_idle
    s_sub_u32 s26, s{sM}, 28
    s_lshl2_add_u32 s26, s{sJO}, s26
    s_lshl2_add_u32 s27, s26, s12
    s_lshl_b32 s28, s27, 4
    v_lshrrev_b32 v3, 3, v1
    v_add_u32 v4, s28, v3              ; row
    v_mul_u32_u24 v5, 1152, v4
    v_and_b32 v6, 7, v1
    v_lshlrev_b32 v6, 4, v6
    v_add_u32 v5, v5, v6
    v_add_u32 v7, 9216, v5
    """)
    if o.get("rgl", 1): a("s_barrier                          ; BL")
    for i in range(9): a(f"global_load_dwordx4 {vr(16+4*i,4)}, v5, s[{pX}:{pX+1}] offset:{128*i}")
    for i in range(9): a(f"global_load_dwordx4 {vr(88+4*i,4)}, v6, s[{pWR}:{pWR+1}] offset:{128*i}")
    for i in range(9): a(f"global_load_dwordx4 {vr(124+4*i,4)}, v6, s[{pGW}:{pGW+1}] offset:{128*i}")
    for i in range(9): a(f"global_load_dwordx4 {vr(52+4*i,4)}, v7, s[{pX}:{pX+1}] offset:{128*i}")
    a(f"""
    s_waitcnt lgkmcnt(0)
    v_mov_b64 v[8:9], 0
    v_mov_b64 v[10:11], 0
    {"" if o.get("rgl", 1) else "s_barrier                          ; BL"}
    s_waitcnt vmcnt(0)
    """)
    for i in range(36):
        a(f"v_dot2c_f32_bf16 v8, v{16+i}, v{88+i}")
        a(f"v_dot2c_f32_bf16 v9, v{52+i}, v{88+i}")
        a(f"v_dot2c_f32_bf16 v10, v{16+i}, v{124+i}")
        a(f"v_dot2c_f32_bf16 v11, v{52+i}, v{124+i}")
    a("s_nop 2")
    for mode in ("quad_perm:[1,0,3,2]", "quad_perm:[2,3,0,1]", "row_half_mirror"):
        for v in (8, 9, 10, 11):
            a(f"v_add_f32_dpp v{v}, v{v}, v{v} {mode} row_mask:0xf bank_mask:0xf")
    a("v_and_b32 v12, 1, v1\nv_cmp_eq_u32 vcc, 0, v12\nv_lshlrev_b32 v13, 2, v4\nv_lshl_add_u32 v13, v12, 5, v13\nv_cndmask_b32 v10, v11, v10, vcc")
    rne_bf16(a, 10); sigmoid(a, 10); rne_bf16(a, 10)
    a(f"""
    s_mov_b32 s29, {WS_G}
    buffer_store_dword v10, v13, {RW}, s29 offen sc1
    v_ashrrev_i32 v12, 31, v8
    v_or_b32 v12, 0x80000000, v12
    v_xor_b32 v8, v8, v12
    v_and_b32 v8, 0xfffff800, v8
    v_sub_u32 v12, 2047, v4
    v_or_b32 v8, v8, v12
    v_ashrrev_i32 v12, 31, v9
    v_or_b32 v12, 0x80000000, v12
    v_xor_b32 v9, v9, v12
    v_and_b32 v9, 0xfffff800, v9
    v_sub_u32 v12, 2039, v4
    v_or_b32 v9, v9, v12
    v_max_u32 v14, v8, v9
    v_min_u32 v15, v8, v9
    s_nop 1
    v_mov_b32_dpp v8, v14 row_ror:8 row_mask:0xf bank_mask:0xf
    v_mov_b32_dpp v9, v15 row_ror:8 row_mask:0xf bank_mask:0xf
    v_min_u32 v12, v8, v14
    v_max_u32 v14, v8, v14
    v_max3_u32 v15, v12, v9, v15
    """)
    for sw in ("v_permlane16_swap_b32", "v_permlane32_swap_b32"):
        a(f"""
        v_mov_b32 v8, v14
        v_mov_b32 v9, v15
        s_nop 1
        {sw} v8, v14
        {sw} v9, v15
        s_nop 1
        v_min_u32 v12, v8, v14
        v_max_u32 v14, v8, v14
        v_max3_u32 v15, v12, v9, v15
        """)
    regwait(a, 3, 4, sleep=8)
    a(f"""
    s_lshl_b32 s29, s27, 6
    s_add_u32 s29, s29, {WS_KEY}
    v_mov_b32 v5, 0
    v_mov_b32 v6, s{sTAG}
    v_lshlrev_b32 v3, 3, v1
    s_mov_b64 exec, 0xff
    buffer_store_dwordx2 v[14:15], v3, {RW}, s29 offen sc1
    s_mov_b64 exec, -1
    s_branch L_svc
L_select:
    v_lshlrev_b32 v3, 7, v1
    s_mov_b32 s29, {WS_KEY}
    """)
    poll(a, f"buffer_load_dwordx2 v[28:29], v3, {RW}, s29 offen sc1\nbuffer_load_dwordx2 v[30:31], v3, {RW}, s29 offen offset:64 sc1",
         "v_min_u32 v12, v28, v29\nv_min3_u32 v12, v12, v30, v31\nv_cmp_eq_u32 vcc, 0, v12", sleep=8)
    top2(a, 28, 12, 24)
    a(f"""
    s_lshl_b32 s29, s{sJ}, 7
    s_add_u32 s29, s29, {WS_SEL}
    v_mov_b32 v28, s24
    v_mov_b32 v29, s25
    v_lshlrev_b32 v3, 3, v1
    s_mov_b64 exec, 0xff
    buffer_store_dwordx2 v[28:29], v3, {RW}, s29 offen sc1
    s_mov_b64 exec, -1
    s_branch L_selected
    """)
    a("L_codeend:")
    if o.get("nogemm") or o.get("now") or o.get("nox"):
        i0 = a.L.index("L_gemm:"); i1 = [i for i, l in enumerate(a.L) if "s_cbranch_scc1 L_gemm" in l][0]
        if o.get("nogemm") == 1: a.L = a.L[:i0] + [l for l in a.L[i0:i1] if "v_mfma" not in l and "ds_read" not in l] + a.L[i1:]
        if o.get("nogemm") == 2: a.L = a.L[:i0] + [l for l in a.L[i0:i1] if "ds_read" not in l] + a.L[i1:]
        if o.get("now"): a.L = [l.replace(f"s_mov_b32 s10, {WB}", "s_mov_b32 s10, 0") for l in a.L]
        if o.get("nox"):
            i = [i for i, l in enumerate(a.L) if f"s_mov_b32 s10, {XB}" in l][0]; a.L[i] = "    s_mov_b32 s10, 0"
    if o.get("mstamp"):
        a.L = [l for l in a.L if not any(l.strip() == f"; STAMP {i}" for i in (1, 2, 4, 7, 8, 9, 10))]
        a.L = [l.replace("MSTAMP", "STAMP") for l in a.L]
    hdr = HEADER + f"; @launch grid=(256,1,1) block=(768,1,1) lds={LDS_BYTES}\n"
    return hdr + a.text() + '.section .rodata,"a"\n' + descriptor(NAME, 168, sgpr=64)

if __name__ == "__main__":
    o = dict((k.split("=")[0], int(k.split("=")[1]) if "=" in k else 1) for k in sys.argv[2:])
    open(sys.argv[1], "w").write(gen(o))
```

```python
import re, sys
SB = 64
NS = 16
def st(i):
    return f"""    s_memrealtime s[96:97]
    s_memtime s[98:99]
    s_waitcnt lgkmcnt(0)
    s_mov_b32 s{SB+2*i}, s96
    s_mov_b32 s{SB+2*i+1}, s98"""
def add_stamps(asm, only=None):
    out = []; ki = -1
    names = re.findall(r"^\.globl (\w+_kernel)", asm, re.M)
    for line in asm.split("\n"):
        t = line.strip()
        if t.endswith(":") and t[:-1] in names:
            ki = names.index(t[:-1])
            out.append(line)
            out.append(f"""    s_memrealtime s[96:97]
    s_memtime s[98:99]
    s_load_dwordx2 s[100:101], s[0:1], 88
    v_readfirstlane_b32 s63, v0""")
            for i in range(2, 32, 2):
                if only is None or i // 2 in only: out.append(f"    s_mov_b64 s[{SB+i}:{SB+i+1}], 0")
            out.append(f"""    s_lshr_b32 s63, s63, 6
    s_lshl4_add_u32 s63, s2, s63
    s_lshl_b32 s63, s63, 7
    s_waitcnt lgkmcnt(0)
    s_mov_b32 s{SB}, s96
    s_mov_b32 s{SB+1}, s98""")
            continue
        m = re.match(r"; STAMP (\d+)", t)
        if m:
            i = int(m.group(1))
            if only is None or i in only: out.append(st(i))
            continue
        if t == "s_endpgm":
            s = "    s_waitcnt vmcnt(0) lgkmcnt(0)\n" + st(NS - 1) + f"""
    s_mov_b64 exec, 1
    s_add_u32 s63, s63, {0x8000000 + ki*0x100000}
    v_mov_b32 v4, s63
"""
            for i in range(1, 15):
                if only is not None and i not in only: s += f"    s_mov_b64 s[{SB+2*i}:{SB+2*i+1}], 0\n"
            for q in range(8):
                s += f"""    v_mov_b32 v0, s{SB+4*q}
    v_mov_b32 v1, s{SB+4*q+1}
    v_mov_b32 v2, s{SB+4*q+2}
    v_mov_b32 v3, s{SB+4*q+3}
    global_store_dwordx4 v4, v[0:3], s[100:101] offset:{16*q}
    s_nop 1
"""
            out.append(s)
        out.append(line)
    txt = "\n".join(out)
    txt = re.sub(r"\.amdhsa_next_free_sgpr \d+", ".amdhsa_next_free_sgpr 102", txt)
    return txt, names
```

```python
import sys, math
from gen_common import *

NAME = "gated_mix__mha_block__moe_arch_mod__prompt_kernel"
XB = 2359296; WB = 1990656; WOB = 663552; WGB = 5308416
QSCALE = (18 ** -0.5) * math.log2(math.e)
LOG2E = math.log2(math.e)
JS = 884736; HS = 27648
WS_GLB = 0; WS_LOC = 0x700000
WS_O = 0xE00000
O_REM = 0x200000
WS_FG1 = 0x1280000
WS_FL1 = 0x1288000
WS_SEL = 0x128B000
WS_DONE = 0x128B400
WS_Y = 0x128C000
WS_KEY = 0x1295000
WS_CLR = WS_FG1
WS_G = 0x1298000
WS_END = 0x129A000
KV0 = 9216; SLOT = 18432; L_QS = KV0 + 7 * SLOT; MISC = 156672
M_CNT = 0; M_DONE = 4; M_BAD = 8; M_MODE = 12; M_SEL = 16; M_C0 = 24; M_GO = 28; M_ST1 = 32; M_BLK = 36; M_PROG = 64; M_FULL = 96; M_PF = 128
M_P = 256; M_H = 2304; M_Y = 2816; M_CB7 = 3584; M_G = 6144
L_CB = KV0 + 5 * SLOT; L_WO = KV0; L_A0 = KV0 + 6 * SLOT; L_A1 = KV0 + 7 * SLOT; AS = 288
LDS_BYTES = 163840
SPIN = 1 << 14
pX, pW, pWO, pWR, pWG, pWU, pWD, pGW, pOUT = 32, 34, 36, 40, 42, 44, 46, 48, 50
sWAVE, sJ, sM, sJO, sTAG = 3, 4, 5, 6, 7
sJB, sH = 38, 39
RS = 35840
RA = "s[8:11]"; RW = "s[16:19]"; RD = "s[20:23]"

def mf32(d, a, b, c=None):
    cs = vr(d, 16) if c is None else ("0" if c == 0 else vr(c, 16))
    return f"v_mfma_f32_32x32x16_bf16 {vr(d,16)}, {vr(a,4)}, {vr(b,4)}, {cs}"
def mf16(d, a, b, c=None):
    cs = vr(d, 4) if c is None else ("0" if c == 0 else vr(c, 4))
    return f"v_mfma_f32_16x16x32_bf16 {vr(d,4)}, {vr(a,4)}, {vr(b,4)}, {cs}"
def rne_bf16(a, v):
    a(f"v_cvt_pk_bf16_f32 v{v}, v{v}, v{v}")
    a(f"v_and_b32 v{v}, 0xffff0000, v{v}")
def sigmoid(a, v):
    a(f"v_mul_f32 v{v}, {f32bits(-LOG2E)}, v{v}\nv_exp_f32 v{v}, v{v}\ns_nop 0\nv_add_f32 v{v}, 1.0, v{v}\nv_rcp_f32 v{v}, v{v}\ns_nop 0")
_uid = [0]
def uid(p):
    _uid[0] += 1
    return f"L_{p}{_uid[0]}"
def poll(a, load, check, sleep=0, preloaded=False, spin=SPIN, extra=None, wait=None):
    l = uid("poll"); e = uid("ok"); c = uid("chk")
    a(f"s_movk_i32 s30, {spin}")
    if preloaded: a(f"s_branch {c}")
    a(f"{l}:")
    a(load)
    if preloaded: a(f"{c}:")
    a(wait or ("s_waitcnt lgkmcnt(0)" if load.startswith("ds_") else "s_waitcnt vmcnt(0)"))
    a(check)
    a(f"s_cbranch_vccz {e}")
    if extra: a(extra)
    if sleep: a(f"s_sleep {sleep}")
    a(f"s_sub_u32 s30, s30, 1\ns_cmp_lg_u32 s30, 0\ns_cbranch_scc1 {l}")
    a(f"{e}:")
def regaddr(a, t0): a(f"v_and_b32 v{t0}, 7, v1\nv_lshlrev_b32 v{t0}, 5, v{t0}")
def regload(t0, t1): return f"buffer_load_dword v{t1}, v{t0}, {RD}, 0 offen sc1"
def regwait(a, t0, t1, preloaded=False, sleep=0):
    if not preloaded: regaddr(a, t0)
    poll(a, regload(t0, t1), f"v_cmp_eq_u32 vcc, 0, v{t1}", preloaded=preloaded, sleep=sleep)
def wave_max_u32(a, v, t, sdst):
    for mode in ("quad_perm:[1,0,3,2]", "quad_perm:[2,3,0,1]", "row_half_mirror", "row_mirror"):
        a("s_nop 1")
        a(f"v_max_u32_dpp v{v}, v{v}, v{v} {mode} row_mask:0xf bank_mask:0xf")
    for sw in ("v_permlane16_swap_b32", "v_permlane32_swap_b32"):
        a(f"v_mov_b32 v{t}, v{v}\ns_nop 1\n{sw} v{t}, v{v}\ns_nop 1\nv_max_u32 v{v}, v{t}, v{v}")
    a("s_nop 0")
    a(f"v_readfirstlane_b32 s{sdst}, v{v}")
def top2(a, K, T, so):
    a(f"v_min_u32 v{T}, v{K}, v{K+2}\nv_max_u32 v{K}, v{K}, v{K+2}\nv_max3_u32 v{K+1}, v{T}, v{K+1}, v{K+3}\nv_mov_b32 v{K+2}, v{K}")
    wave_max_u32(a, K + 2, T, so)
    a(f"v_cmp_eq_u32 vcc, v{K+2}, v{K}\ns_nop 1\nv_cndmask_b32 v{K+2}, v{K}, v{K+1}, vcc")
    wave_max_u32(a, K + 2, T, so + 1)
def one_lane(a, x, n=1): a(f"s_mov_b64 exec, {(1 << n) - 1}\n{x}\ns_mov_b64 exec, -1")

aK, aKR, aV, vINC, IDX, vXO, vG, vM, vONE, XD = 2, 3, 4, 5, 6, 7, 8, 10, 11, 12
QM, QR, KR, KM, V, O, S = 16, 24, 26, 28, 32, 40, [72, 104]
cW16, cW8, cR16, cR8, oM, oR, aWm, aWr, aFl, aOm, aOr, aPw, aAr, aG, vKEY, vZ, vPW, vPR, vF = range(140, 159)
OMG = 160; T0 = 162
OF = 16; ACC = 52; XBR = 72; W = [80, 100, 120]
prog_rd = f"ds_read_b32 v{vF}, v{vPR} offset:{M_PROG}"

def final_addr(a, t):
    a(f"""
    v_mul_u32_u24 v{t}, 7282, v0
    v_lshrrev_b32 v{t}, 16, v{t}       ; row
    v_mul_u32_u24 v{t+1}, 9, v{t}
    v_sub_u32 v{t+1}, v0, v{t+1}       ; piece
    s_and_b32 s24, s{sM}, 3
    s_lshl2_add_u32 s24, s{sJO}, s24
    s_lshl_b32 s24, s24, 6
    s_lshr_b32 s25, s{sM}, 2
    s_mul_i32 s25, s25, 144
    v_lshl_add_u32 v{aG}, v{t}, 2, v{vM}
    v_add_u32 v{t}, s24, v{t}
    v_sub_u32 v{vKEY}, 2047, v{t}
    v_mul_u32_u24 v{vXO}, 1152, v{t}
    v_lshl_add_u32 v{vXO}, v{t+1}, 4, v{vXO}
    v_add_u32 v{vXO}, s25, v{vXO}
    v_lshlrev_b32 v{aAr}, 5, v0
    v_add_u32 v{aAr}, {L_A0}, v{aAr}
    """)
final_rd = f"ds_read_b32 v{vG}, v{aG} offset:{M_G}\nds_read_b64 {vr(T0,2)}, v{vM} offset:{M_SEL}"
def final_pre(a):
    for i in range(4):
        a(f"v_lshlrev_b32 v{XBR+2*i}, 16, v{XD+i}\nv_and_b32 v{XBR+2*i+1}, 0xffff0000, v{XD+i}")
    a(f"v_sub_f32 v{OMG}, 1.0, v{vG}")
    rne_bf16(a, OMG)
    a(f"""
    v_and_b32 v{T0}, 0x7ff, v{T0}
    v_and_b32 v{T0+1}, 0x7ff, v{T0+1}
    v_cmp_eq_u32 s[26:27], v{T0}, v{vKEY}
    v_cmp_eq_u32 s[28:29], v{T0+1}, v{vKEY}
    """)
    for i in range(0, 8, 2): a(f"v_pk_mul_f32 {vr(XBR+i,2)}, {vr(XBR+i,2)}, {vr(OMG,2)} op_sel_hi:[1,0]")
    a(f"s_or_b64 s[26:27], s[26:27], s[28:29]\ns_mov_b32 s8, s{pOUT}\ns_mov_b32 s9, s{pOUT+1}")

def roles(a, o):
    a(f"""
    s_getreg_b32 s24, hwreg(HW_REG_XCC_ID)
    s_and_b32 s24, s24, 15
    s_add_u32 s{sTAG}, {"s2" if o.get("slow") else "s24"}, 1
    s_and_b32 s24, s{sJ}, 1
    s_lshr_b32 s25, s{sJ}, 1
    s_lshl2_add_u32 s{sJO}, s24, s25
    s_lshr_b32 s{sJB}, s{sM}, 3
    s_lshl2_add_u32 s{sJB}, s24, s{sJB}
    s_and_b32 s{sH}, s{sM}, 7
    s_lshl3_add_u32 s{sH}, s25, s{sH}
    """)

def code_pf(a, vt, vd, tid):
    l = uid("pc")
    a(f"""
    s_getpc_b64 s[24:25]
{l}:
    s_sub_u32 s24, s24, {l} - {NAME}
    s_subb_u32 s25, s25, 0
    v_min_u32 v{vt}, (L_codeend - {NAME} - 4) / 128, v{tid}
    v_lshlrev_b32 v{vt}, 7, v{vt}
    global_load_dword v{vd}, v{vt}, s[24:25]
    """)

def gen(o={}):
    _uid[0] = 0
    a = Asm()
    a('.amdgcn_target "amdgcn-amd-amdhsa--gfx950"\n.text')
    kernel_begin(a, NAME)
    TS = 104; LD = 130
    a(f"""
    s_load_dwordx2 s[8:9], s[0:1], 0
    s_load_dwordx2 s[12:13], s[0:1], 8
    s_load_dwordx16 s[32:47], s[0:1], 0
    s_load_dwordx2 s[16:17], s[0:1], 88
    s_load_dwordx2 s[20:21], s[0:1], 80
    s_load_dwordx4 s[48:51], s[0:1], 64
    v_lshrrev_b32 v2, 6, v0
    v_and_b32 v1, 63, v0
    s_cmp_ge_u32 s2, 256
    s_cbranch_scc1 L_end
    v_readfirstlane_b32 s{sWAVE}, v2
    s_and_b32 s{sJ}, s2, 7
    s_lshr_b32 s{sM}, s2, 3
    s_mov_b32 s10, {XB}
    s_mov_b32 s11, 0x00020000
    s_mov_b32 s14, {WB}
    s_mov_b32 s15, s11
    s_mov_b32 s18, {WS_END}
    s_mov_b32 s19, s11
    s_movk_i32 s22, 256
    s_mov_b32 s23, s11
    {"" if o.get("cl", 0) else f"s_cmp_eq_u32 s{sM}, 24"}
    {"" if o.get("cl", 0) else "s_cbranch_scc1 L_clear"}
L_cleared:
    s_cmp_lt_u32 s{sWAVE}, 8
    s_cbranch_scc1 L_loader
    {f"s_lshl4_add_u32 s24, s{sM}, s{sWAVE}" if o.get("cl", 0) else ""}
    {f"s_cmp_eq_u32 s24, {24*16+11}" if o.get("cl", 0) else ""}
    {"s_cbranch_scc1 L_clear1" if o.get("cl", 0) else ""}
    """)
    if o.get("cpf", 1):
        a(f"s_cmp_lt_u32 s{sM}, {o.get('cpm', 28)}\ns_cbranch_scc1 L_service\nv_and_b32 v3, 0xff, v0")
        code_pf(a, 3, 165, 3)
    a(f"""
    s_branch L_service
L_loader:
    s_cmp_ge_u32 s{sM}, 24
    s_cbranch_scc1 L_ld_none
    s_setprio 3
    s_lshr_b32 s28, s{sM}, 3
    s_mul_i32 s29, s28, 3
    s_add_u32 s29, s29, s{sM}
    {"" if o.get("wr", 1) else "s_mov_b32 s29, 0"}
    s_add_u32 s29, s29, s{sWAVE}
    s_and_b32 s29, s29, 7
    s_and_b32 s26, s{sM}, 7
    s_and_b32 s27, s{sJ}, 1
    s_lshl3_add_u32 s26, s27, s26
    s_lshl3_add_u32 s26, s26, s29
    s_mul_i32 s26, s26, {16*1152}
    s_lshl_b32 s27, s29, 2
    v_lshrrev_b32 v3, 3, v1
    v_mul_u32_u24 v3, 1152, v3
    v_bfe_u32 v12, v1, 4, 1
    v_bitop3_b32 v12, v12, v1, s27 bitop3:0x96
    v_and_b32 v12, 7, v12
    v_lshlrev_b32 v12, 4, v12
    v_add3_u32 v{LD}, v12, v3, s26
    s_movk_i32 s27, 8192
    v_xad_u32 v{LD+1}, v{LD}, 32, s27
    s_mul_i32 s26, s29, {8*12}
    s_lshl2_add_u32 s26, s28, s26
    s_lshr_b32 s27, s{sJ}, 1
    s_add_u32 s26, s26, s27
    s_mul_i32 s26, s26, 288
    v_mul_u32_u24 v3, 57, v1
    v_lshrrev_b32 v3, 10, v3
    v_mul_u32_u24 v3, {3456 - 288}, v3
    v_lshlrev_b32 v12, 4, v1
    v_add3_u32 v{LD+2}, v12, v3, s26
    s_movk_i32 s27, {3*3456 - 864}
    v_add_u32 v{LD+3}, s27, v{LD+2}
    v_add_u32 v{LD+4}, s27, v{LD+3}
    s_lshl_b32 s59, s29, 11
    s_mul_i32 s61, s29, {2432 - 2048}
    s_addk_i32 s61, 16384
    s_mov_b32 s56, s{sJ}
    s_mov_b32 s60, 0
    s_waitcnt lgkmcnt(0)
    ; STAMP 7
L_ldloop:
    """)
    LA = o.get("la", 2); HF = o.get("hf", 0); H0 = o.get("h0", 1)
    xpart = f"""
    s_mov_b32 m0, s59
    s_lshl_b32 s57, s56, 7
    buffer_load_dwordx4 v{LD}, {RA}, s57 offen lds
    buffer_load_dwordx4 v{LD+1}, {RA}, s57 offen offset:1024 lds
    """
    wpart = f"""
    s_add_u32 m0, s59, s61
    s_mul_i32 s57, s56, 221184
    s_mov_b32 exec_hi, 0x3fffff
    buffer_load_dwordx4 v{LD+2}, s[12:15], s57 offen lds
    buffer_load_dwordx4 v{LD+3}, s[12:15], s57 offen offset:864 lds
    s_mov_b32 exec_hi, 15
    buffer_load_dwordx4 v{LD+4}, s[12:15], s57 offen offset:1728 lds
    s_mov_b32 exec_hi, -1
    """
    a(wpart if HF == 2 else xpart)
    if HF:
        a(f"s_cmp_lt_u32 s60, {H0}\ns_cbranch_scc1 L_ldmid\ns_waitcnt vmcnt({HF + 1})\ns_setprio 2\ns_barrier\nL_ldmid:")
    a(xpart if HF == 2 else wpart)
    a(f"""
    s_setprio 1
    s_add_u32 s59, s59, {RS}
    s_cmp_ge_u32 s59, {4*RS}
    s_cselect_b32 s58, {4*RS}, 0
    s_sub_u32 s59, s59, s58
    s_add_u32 s56, s56, 1
    {"s_and_b32 s56, s56, 1" if o.get("same") else ""}
    s_cmp_eq_u32 s56, 9
    s_cselect_b32 s56, 0, s56
    s_add_u32 s60, s60, 1
    """)
    if HF:
        a(f"""
        s_cmp_eq_u32 s60, 9
        s_cbranch_scc1 L_ld_done
        s_sub_u32 s58, s60, 2
        s_cmp_ge_u32 s58, {H0 - 1}
        s_cbranch_scc1 L_ldloop
        s_waitcnt vmcnt(5)
        s_barrier
        s_branch L_ldloop
        """)
    elif LA == 3:
        a("""
        s_bitcmp1_b32 10, s60
        s_cbranch_scc1 L_ldloop
        s_cmp_eq_u32 s60, 9
        s_cbranch_scc1 L_ld_done
        s_waitcnt vmcnt(10)
        s_cmp_lg_u32 s60, 2
        s_cbranch_scc1 L_ldbar
        s_waitcnt vmcnt(5)
L_ldbar:
        s_barrier
        s_branch L_ldloop
        """)
    else:
        a("""
        s_cmp_eq_u32 s60, 1
        s_cbranch_scc1 L_ldloop
        s_cmp_eq_u32 s60, 9
        s_cbranch_scc1 L_ld_done
        s_waitcnt vmcnt(5)
        s_barrier
        s_branch L_ldloop
        """)
    SP = o.get("sp", 0)
    a(f"""
L_clear:
    s_mul_i32 s24, s{sJ}, 12288
    s_add_u32 s24, s24, {WS_CLR}
    v_lshlrev_b32 v3, 4, v0
    v_mov_b64 v[4:5], 0
    v_mov_b64 v[6:7], 0
    v_mov_b32 v8, 1
    s_waitcnt lgkmcnt(0)
    buffer_store_dwordx4 v[4:7], v3, {RW}, s24 offen sc1
    s_lshl_b32 s24, s{sJ}, 5
    s_cmp_lg_u32 s{sWAVE}, 0
    s_waitcnt vmcnt(0)
    s_barrier
    s_cbranch_scc1 L_cleared
    s_mov_b64 exec, 1
    buffer_store_dword v8, v4, {RD}, s24 offen sc1
    s_mov_b64 exec, -1
    s_branch L_cleared
L_clear1:
    s_setprio 3
    s_mul_i32 s24, s{sJ}, 12288
    s_add_u32 s24, s24, {WS_CLR}
    v_lshlrev_b32 v3, 4, v1
    v_mov_b64 v[4:5], 0
    v_mov_b64 v[6:7], 0
    v_mov_b32 v8, 1
    s_add_u32 s25, s24, 12288
    s_waitcnt lgkmcnt(0)
L_clear2:
    buffer_store_dwordx4 v[4:7], v3, {RW}, s24 offen sc1
    buffer_store_dwordx4 v[4:7], v3, {RW}, s24 offen offset:1024 sc1
    buffer_store_dwordx4 v[4:7], v3, {RW}, s24 offen offset:2048 sc1
    buffer_store_dwordx4 v[4:7], v3, {RW}, s24 offen offset:3072 sc1
    s_add_u32 s24, s24, 4096
    s_cmp_lt_u32 s24, s25
    s_cbranch_scc1 L_clear2
    s_lshl_b32 s24, s{sJ}, 5
    s_mov_b64 exec, 1
    s_waitcnt vmcnt(0)
    buffer_store_dword v8, v4, {RD}, s24 offen sc1
    s_mov_b64 exec, -1
    s_branch L_service
L_ld_none:
    s_and_b32 s26, s{sM}, 7
    s_add_u32 s56, s{sJ}, s{sWAVE}
    s_add_u32 s56, s56, {o.get("pf", 2)}
    s_mul_i32 s27, s56, 57
    s_lshr_b32 s27, s27, 9
    s_mul_i32 s27, s27, 9
    s_sub_u32 s56, s56, s27
    s_lshl3_add_u32 s58, s56, s26
    s_mul_i32 s58, s58, {8*3456}
    s_lshr_b32 s27, s{sJ}, 1
    s_lshl_b32 s27, s27, 8
    s_add_u32 s58, s58, s27
    s_lshl_b32 s56, s56, 7
    s_and_b32 s27, s{sJ}, 1
    s_lshl3_add_u32 s26, s27, s26
    s_mul_i32 s26, s26, {128*1152}
    s_add_u32 s56, s56, s26
    s_add_u32 s57, s56, {64*1152}
    v_mul_u32_u24 v3, 1152, v1
    v_min_u32 v4, 35, v1
    v_mul_u32_u24 v5, 21846, v4
    v_lshrrev_b32 v5, 16, v5
    v_mul_u32_u24 v5, 6, v5
    v_add_lshl_u32 v4, v4, v5, 7
    s_add_u32 s59, s58, {4*3456}
    s_cmp_gt_u32 s{sWAVE}, {8 - o.get("pf", 2)}
    s_waitcnt lgkmcnt(0)
    s_cbranch_scc1 L_ld_done
    {f"buffer_load_dword v{LD}, v3, {RA}, s56 offen" if o.get("pfx", 1) else ""}
    {f"buffer_load_dword v{LD}, v3, {RA}, s57 offen" if o.get("pfx", 1) else ""}
    buffer_load_dword v{LD}, v4, s[12:15], s58 offen
    buffer_load_dword v{LD}, v4, s[12:15], s59 offen
    {"s_waitcnt vmcnt(0)" if o.get("pfwait", 0) else ""}
L_ld_done:
    s_setprio 0
    """)
    roles(a, o)
    a(f"""
    s_mul_i32 s15, s{sJB}, {JS}
    s_mul_i32 s24, s{sH}, {HS}
    s_add_u32 s15, s15, s24
    s_add_u32 s15, s15, {WS_LOC}
    """)
    if not SP:
        a(f"""
        s_mul_i32 s24, s{sWAVE}, {27*128}
        s_add_u32 s24, s24, s15
        v_min_u32 v{TS+7}, 26, v1
        v_lshlrev_b32 v{TS+7}, 7, v{TS+7}
        buffer_load_dword v{TS+7}, v{TS+7}, {RW}, {"0" if o.get("nopre") else "s24"} offen sc1
        """)
    else:
        a(f"""
        s_cmp_lt_u32 s{sM}, 24
        s_cbranch_scc1 L_nopre
        s_lshr_b32 s24, s{sWAVE}, 1
        s_mul_i32 s24, s24, {JS}
        s_sub_u32 s24, s15, s24
        s_and_b32 s25, s{sWAVE}, 1
        s_mul_i32 s25, s25, {108*128}
        s_add_u32 s24, s24, s25
        s_add_u32 s25, s24, {54*128}
        v_min_u32 v{TS+7}, 53, v1
        v_lshlrev_b32 v{TS+7}, 7, v{TS+7}
        {"s_waitcnt vmcnt(0)" if SP == 2 else ""}
        buffer_load_dword v{LD}, v{TS+7}, {RW}, s24 offen sc1
        buffer_load_dword v{LD}, v{TS+7}, {RW}, s25 offen sc1
L_nopre:
        """)
    def chunk_bar(n, stamp=None):
        l = uid("nb")
        a(f"s_cmp_ge_u32 s{sM}, 24\ns_cbranch_scc1 {l}\ns_waitcnt vmcnt({n})\ns_barrier\n{l}:")
        if stamp: a(f"; STAMP {stamp}")
    if LA == 3: chunk_bar(10 if SP else 11)
    if not HF: chunk_bar(5 if SP else 6, 8)
    regaddr(a, TS + 14)
    chunk_bar(0 if SP else 1, 9)
    a(f"""
    {regload(TS + 14, TS + 15)}
    {"s_barrier                          ; BL: projection ring is dead" if o.get("bl", 1) else ""}
    v_lshrrev_b32 v{TS+1}, 3, v1
    v_mul_u32_u24 v{TS+1}, 1152, v{TS+1}
    v_and_b32 v{TS+2}, 7, v1
    v_lshl_add_u32 v{TS+25}, v{TS+2}, 2, v{TS+1}
    v_mov_b32 v{TS+24}, 0x3f803f80
    v_mov_b32 v{vM}, {MISC}
    """)
    final_addr(a, TS + 1)
    for i in range(0, 32, 2): a(f"v_mov_b64 {vr(O+i,2)}, 0")
    a(f"""
    {"" if o.get("bl", 1) else "s_barrier"}
    ds_write_b32 v{TS+25}, v{TS+24}
    """)
    hh, r_, c8, g1, G_ = TS + 16, TS + 17, TS + 18, TS + 19, TS + 20
    a(f"""
    s_lshr_b32 s12, s{sWAVE}, 2        ; kh
    s_and_b32 s13, s{sWAVE}, 3         ; qg
    s_mul_i32 s24, s12, 9216
    s_add_u32 s24, s24, {KV0}
    v_lshrrev_b32 v{hh}, 5, v1
    v_bfe_u32 v{r_}, v1, 2, 2
    v_and_b32 v{c8}, 3, v1
    v_lshlrev_b32 v{c8}, 3, v{c8}
    v_bfe_u32 v{g1}, v1, 4, 1
    v_lshrrev_b32 v{G_}, 4, v1
    v_lshl_add_u32 v{TS+4}, v{hh}, 3, v{r_}
    v_lshl_or_b32 v{TS+4}, v{TS+4}, 5, v{c8}       ; (8hh+r)*32 + 8c
    v_mul_u32_u24 v{TS+5}, 1152, v{g1}
    v_add3_u32 v{aK}, v{TS+5}, v{TS+4}, s24
    v_and_b32 v{TS+1}, 1, v{r_}
    v_lshl_or_b32 v{TS+1}, v{TS+1}, 5, v{c8}
    v_add_u32 v{TS+1}, 512, v{TS+1}                ; (16+(r&1))*32 + 8c
    v_mul_u32_u24 v{TS+5}, 1152, v{G_}
    v_add3_u32 v{aKR}, v{TS+5}, v{TS+1}, s24
    s_mul_i32 s25, s13, 2304
    s_add_u32 s25, s25, {L_QS}
    v_mul_u32_u24 v{TS+5}, 576, v{G_}
    v_add3_u32 v{TS+10}, v{TS+5}, v{TS+1}, s25     ; q rem
    v_mul_u32_u24 v{TS+5}, 576, v{g1}
    v_add3_u32 v{TS+8}, v{TS+5}, v{TS+4}, s25      ; q main
    v_and_b32 v{TS+1}, 31, v1
    v_lshlrev_b32 v{TS+2}, 4, v{hh}
    v_lshl_or_b32 v{TS+3}, v{TS+1}, 5, v{TS+2}
    v_xor_b32 v{TS+2}, 16, v{TS+2}
    v_cmp_gt_u32 vcc, 16, v{TS+1}
    v_lshl_add_u32 v{TS+4}, v{TS+1}, 3, v{TS+2}
    v_add_u32 v{TS+4}, 384, v{TS+4}
    s_add_u32 s24, s24, 576
    v_cndmask_b32 v{TS+3}, v{TS+4}, v{TS+3}, vcc
    v_add_u32 v{TS+3}, s24, v{TS+3}
    s_mov_b32 vcc_lo, 0x0011ffff
    s_mov_b32 vcc_hi, 0x0011ffff
    v_mov_b32 v{TS+4}, {SLOT}
    v_mov_b32 v{IDX}, 0xdddddddd
    v_cndmask_b32 v{aV}, v{TS+2}, v{TS+3}, vcc
    v_cndmask_b32 v{vINC}, 0, v{TS+4}, vcc
    """)
    if o.get("vz", 1) == 2:
        a(f"v_mov_b32_dpp v{TS+4}, v{aV} row_shl:3 row_mask:0xf bank_mask:0xf\nv_mov_b32_dpp v{TS+5}, v{vINC} row_shl:3 row_mask:0xf bank_mask:0xf\ns_mov_b32 vcc_lo, 0x00020000\ns_mov_b32 vcc_hi, 0x00020000\ns_nop 1\nv_cndmask_b32 v{aV}, v{aV}, v{TS+4}, vcc\nv_cndmask_b32 v{vINC}, v{vINC}, v{TS+5}, vcc")
    if o.get("vz", 1):
        mk = ("0x0033ffff", "0x0007ffff", "0x0013ffff")[o.get("vz", 1) - 1]
        a(f"s_mov_b32 vcc_lo, {mk}\ns_mov_b32 vcc_hi, {mk}\nv_mov_b32 v{TS+4}, {LDS_BYTES + 4096}\ns_nop 0\nv_cndmask_b32 v{aV}, v{TS+4}, v{aV}, vcc")
    if o.get("kz"):
        a(f"s_mov_b32 vcc_lo, 0x00ff00ff\ns_mov_b32 vcc_hi, 0x00ff00ff\nv_mov_b32 v{TS+4}, {LDS_BYTES + 16384}\ns_nop 0\nv_cndmask_b32 v{aKR}, v{TS+4}, v{aKR}, vcc")
    a(f"""
    v_lshlrev_b32 v{oR}, 2, v{TS+1}
    v_lshlrev_b32 v{oM}, 4, v1
    """)
    a(f"""
    v_lshrrev_b32 v{TS+22}, 3, v1
    v_min_u32 v{TS+22}, 2, v{TS+22}
    v_and_b32 v{TS+1}, 7, v1
    v_lshl_or_b32 v{TS+22}, v{TS+22}, 5, v{TS+1}
    s_and_b32 s24, s{sM}, 24
    v_add_u32 v{TS+22}, s24, v{TS+22}
    s_lshl_b32 s24, s{sJ}, 9
    s_add_u32 s24, s24, {WS_FL1}
    v_lshl_add_u32 v{TS+11}, v{TS+22}, 2, s24
    v_mov_b32 v{vONE}, 1
    v_mov_b32 v{vZ}, 0
    s_lshl_b32 s24, s{sWAVE}, 2
    s_add_u32 s24, s24, {MISC + M_PROG}
    v_min_u32 v{vPW}, 1, v1
    v_lshl_add_u32 v{vPW}, v{vPW}, 13, s24
    v_min_u32 v{vPR}, 8, v1
    v_lshl_add_u32 v{vPR}, v{vPR}, 2, v{vM}
    s_mul_i32 s24, s13, 2560
    s_add_u32 s24, s24, {L_CB}
    v_add_u32 v{cW16}, s24, v{oM}
    v_lshl_add_u32 v{cW8}, v1, 3, s24
    s_add_u32 s25, s24, {4*2560}
    s_cmp_eq_u32 s13, 3
    s_cselect_b32 s25, {MISC + M_CB7}, s25
    v_add_u32 v{cR16}, s25, v{oM}
    v_lshl_add_u32 v{cR8}, v1, 3, s25
    """)
    a(f"""
    s_bfe_u32 s28, s{sWAVE}, 0x10001
    s_and_b32 s29, s{sWAVE}, 1
    s_lshl1_add_u32 s29, s12, s29
    v_mul_u32_u24 v{TS+1}, 18, v{hh}
    v_lshl_add_u32 v{TS+1}, v{g1}, 2, v{TS+1}
    v_add_u32 v{TS+1}, v{TS+1}, v{r_}
    v_mul_u32_u24 v{TS+1}, 160, v{TS+1}
    s_mul_i32 s24, s28, {288*160}
    s_add_u32 s24, s24, {L_WO}
    v_add3_u32 v{aWm}, v{TS+1}, v{c8}, s24
    v_lshrrev_b32 v{TS+1}, 1, v{r_}
    v_lshl_add_u32 v{TS+1}, v{G_}, 2, v{TS+1}
    v_mul_u32_u24 v{TS+1}, 18, v{TS+1}
    v_and_b32 v{TS+2}, 1, v{r_}
    v_add3_u32 v{TS+1}, v{TS+1}, v{TS+2}, 16
    v_mul_u32_u24 v{TS+1}, 160, v{TS+1}
    v_add3_u32 v{aWr}, v{TS+1}, v{c8}, s24
    v_and_b32 v{TS+1}, 15, v1
    s_and_b32 s24, s29, 1
    s_lshl_b32 s24, s24, 4
    v_add_u32 v{TS+2}, s24, v{TS+1}
    v_lshlrev_b32 v{TS+3}, 9, v{G_}
    v_lshl_add_u32 v{aOr}, v{TS+2}, 2, v{TS+3}
    v_lshl_add_u32 v{aOm}, v{TS+2}, 4, v{TS+3}
    s_lshl_b32 s24, s29, 4
    v_add_u32 v{TS+1}, s24, v{TS+1}
    v_mul_u32_u24 v{TS+1}, {AS}, v{TS+1}
    s_mul_i32 s24, s28, {L_A1 - L_A0}
    s_add_u32 s24, s24, {L_A0}
    v_lshlrev_b32 v{TS+2}, 4, v{G_}
    v_add3_u32 v{aPw}, v{TS+1}, v{TS+2}, s24
    s_lshl2_add_u32 s24, s{sJB}, s13
    s_lshl_b32 s24, s24, 6
    s_add_u32 s24, s24, s{sH}
    s_lshl_b32 s52, s24, 10
    s_add_u32 s52, s52, {WS_O}
    s_lshl_b32 s53, s24, 7
    s_add_u32 s53, s53, {WS_O + O_REM}
    s_and_b32 s24, s{sM}, 3
    s_lshl2_add_u32 s24, s{sJO}, s24
    s_lshr_b32 s25, s29, 1
    s_lshl1_add_u32 s24, s24, s25
    s_lshl1_add_u32 s24, s24, s28
    s_lshl_b32 s24, s24, 4
    s_lshl_b32 s55, s24, 10
    s_add_u32 s55, s55, {WS_O}
    s_lshl_b32 s56, s24, 7
    s_add_u32 s56, s56, {WS_O + O_REM}
    s_add_u32 s57, s55, 4096
    s_add_u32 s58, s55, 8192
    s_add_u32 s59, s55, 12288
    s_lshl_b32 s24, s13, 2
    s_add_u32 s24, s24, {MISC + M_PF}
    v_mov_b32 v{aFl}, s24
    """)
    a(f"""
    v_lshlrev_b32 v{TS+13}, 4, v0
    s_lshl_b32 s25, s{sWAVE}, 10
    s_add_u32 s26, s25, {L_QS - 18432 + 16384}
    s_add_u32 s25, s25, {KV0}
    s_add_u32 s27, s25, 16384
    s_cmp_lt_u32 s{sWAVE}, 2
    s_cselect_b32 s27, s27, s26
    s_mov_b32 s14, 0
    s_mov_b32 s61, 0
    """)
    ONE = o.get("one", 1)
    if ONE: a(f"s_cmp_lg_u32 s{sWAVE}, 0\ns_cbranch_scc1 L_follow")
    regwait(a, TS + 14, TS + 15, preloaded=True, sleep=o.get('s0', 32))
    a("s_mov_b32 exec_hi, 0\n; STAMP 1")
    poll(a, f"buffer_load_dword v{TS+2}, v{TS+11}, {RW}, 0 offen sc1\nds_read_b32 v{TS+3}, v{vM} offset:{M_MODE}",
         f"v_cmp_ne_u32 vcc, s{sTAG}, v{TS+2}",
         extra=f"s_waitcnt lgkmcnt(0)\nv_cmp_eq_u32 vcc, 2, v{TS+3}\ns_cbranch_vccnz L_general1", sleep=o.get("s1", 0))
    a(f"""
L_stage1:
    {f"v_mov_b32 v{TS+2}, s15" if ONE else ""}
    {f"ds_write_b32 v{vM}, v{TS+2} offset:{M_ST1}" if ONE else ""}
    s_mov_b32 exec_hi, -1
L_stage1b:
    ; STAMP 2
    s_mov_b32 m0, s25
    s_add_u32 s24, s15, 8192
    buffer_load_dwordx4 v{TS+13}, {RW}, s15 offen sc1 lds
    s_add_u32 m0, s25, 8192
    s_add_u32 s28, s15, 16384
    buffer_load_dwordx4 v{TS+13}, {RW}, s24 offen sc1 lds
    s_mov_b32 m0, s27
    s_cmp_ge_u32 s{sWAVE}, 3
    buffer_load_dwordx4 v{TS+13}, {RW}, s28 offen sc1 lds
    s_cbranch_scc1 L_no4
    s_add_u32 m0, s26, 8192
    s_add_u32 s28, s15, 24576
    buffer_load_dwordx4 v{TS+13}, {RW}, s28 offen sc1 lds
L_no4:
    s_mov_b64 exec, 1
    s_setprio 2
    s_waitcnt vmcnt(0)
    ; STAMP 14
    ds_add_u32 v{vM}, v{vONE} offset:{M_C0}
    s_mov_b64 exec, -1
    """)
    def toff(t): return t * 2304 if t < 4 else SLOT + (t - 4) * 2304
    def kreads(off): return [f"ds_read_b64_tr_b16 {vr(KM+2*m,2)}, v{aK} offset:{off + m*128}" for m in range(2)]
    def krread(off): return f"ds_read_b64_tr_b16 {vr(KR,2)}, v{aKR} offset:{off}"
    def vread(g, off): return f"ds_read_b128 {vr(V+4*g,4)}, v{aV} offset:{off + g*1152}"
    def m2b(Y, ab, c=None): return f"v_mfma_f32_32x32x4_2b_bf16 {vr(Y,32)}, {vr(KR,2)}, {vr(QR,2)}, {vr(Y,32)} cbsz:1 abid:{ab}"
    def smf(p, i): return f"v_smfmac_f32_32x32x32_bf16 {vr(O+16*(i>>1),16)}, {vr(V+4*(i&1),4)}, {vr(S[p]+8*i,8)}, v{IDX}"
    def exps(p, lo, hi): return [f"v_exp_f32 v{S[p]+i}, v{S[p]+i}" for i in range(lo, hi)]
    first = [f"ds_read_b32 v{T0}, v{vM} offset:{M_C0}"] + kreads(0)
    first += [f"ds_read_b64_tr_b16 {vr(QM+4*t+2*m,2)}, v{TS+8} offset:{t*1152+m*128}" for t in range(2) for m in range(2)]
    first += [f"ds_read_b64_tr_b16 {vr(QR,2)}, v{TS+10}", krread(0)]
    poll(a, "\n".join(first), f"v_cmp_ne_u32 vcc, 8, v{T0}", wait="s_waitcnt lgkmcnt(2)")
    a(mf32(S[0], KM, QM, 0)); a(mf32(S[0] + 16, KM, QM + 4, 0))
    for x in kreads(toff(1)): a(x)
    a(vread(0, 0)); a(vread(1, 0))
    a(f"s_waitcnt lgkmcnt(4)\nv_mov_b32 v{QR+1}, 0\ns_nop 3")
    a(m2b(S[0], 0))
    a("s_setprio 0\ns_nop 15\ns_nop 2")
    a("; STAMP 3")
    a(".p2align 6\nL_att:")
    PP = o.get("pp", 18)
    prog_ck = f"v_cmp_ge_u32 vcc, s14, v{vF}"
    for u in range(4):
        p = u & 1; q = 1 - p
        seq = exps(p, 0, PP) + ["s_setprio 1"] + exps(p, PP, 32)
        seq += ["s_setprio 2", "s_waitcnt lgkmcnt(0)"]
        if u == 3: seq += ["s_cbranch_scc1 L_last"]
        seq += [mf32(S[q], KM, QM, 0)]
        if u == 2: seq += [prog_ck]
        if u == 3: seq += [f"ds_add_u32 v{vPW}, v{vONE}", f"v_add_u32 v{aK}, {SLOT}, v{aK}"]
        seq += [mf32(S[q] + 16, KM, QM + 4, 0)]
        if u == 2: seq += ["s_cbranch_vccnz L_att_wait", "L_att_back:"]
        seq += kreads(toff(u + 2) if u < 3 else toff(1))
        MO = o.get("mo", 0)
        vo = toff(u + 1) if u < 3 else 0
        mid = [[krread(toff(u + 2))], ["s_nop 0"], [krread(toff(u + 2))], [f"v_add_u32 v{aKR}, {SLOT}, v{aKR}"]][u]
        misc = [["s_nop 1"], [prog_rd, "s_nop 0"], ["s_cmp_eq_u32 s14, 6", "s_nop 0"], ["s_add_u32 s14, s14, 1", "s_nop 0"]][u]
        adv = [f"v_add_u32 v{aV}, v{vINC}, v{aV}"] if u == 3 else ["s_nop 0"]
        mb = m2b(S[q], (u + 1) & 1)
        if MO == 0:
            seq += ["s_nop 2", smf(p, 0), "s_nop 3", mb] + mid + adv + ["s_nop 8", smf(p, 2), vread(0, vo), "s_nop 1", smf(p, 1)] + misc + [smf(p, 3), vread(1, vo)]
        if MO == 1:
            seq += ["s_nop 2", smf(p, 0), "s_nop 3", mb] + mid + adv + ["s_nop 8", smf(p, 1)] + misc + [smf(p, 2), vread(0, vo), "s_nop 1", smf(p, 3), vread(1, vo)]
        if MO == 2:
            seq += [smf(p, 0)] + misc + [smf(p, 1), "s_nop 3", mb] + mid + adv + ["s_nop 10", smf(p, 2), vread(0, vo), "s_nop 1", smf(p, 3), vread(1, vo)]
        if MO == 3:
            seq += adv + [smf(p, 0)] + misc + [smf(p, 2), vread(0, vo), "s_nop 1", mb] + mid + ["s_nop 11", smf(p, 1), "s_nop 2", smf(p, 3), vread(1, vo)]
        seq += ["s_setprio 0"]
        for x in seq: a(x)
    a("s_branch L_att\nL_last:")
    KM2, V2, QB = 136, 160, 8
    def kr2(reg, t): return [f"ds_read_b64_tr_b16 {vr(reg+2*m,2)}, v{aK} offset:{t*2304 + m*128}" for m in range(2)]
    def vr2(i, t0): return f"ds_read_b128 {vr((V, V+4, V2, V2+4)[i],4)}, v{aV} offset:{t0*2304 + i*1152}"
    def m2c(Y, qr): return f"v_mfma_f32_32x32x4_2b_bf16 {vr(Y,32)}, {vr(KR,2)}, {vr(qr,2)}, {vr(Y,32)}"
    def sm2(t, p, i): return f"v_smfmac_f32_32x32x32_bf16 {vr(O+16*t,16)}, {vr((V, V+4, V2, V2+4)[i],4)}, {vr(S[p]+8*i,8)}, v{IDX}"
    def eblock(p, lo=0, hi=32): return (exps(p, lo, PP) + ["s_setprio 1"] + exps(p, PP, hi)) if lo < PP <= hi else exps(p, lo, hi)
    seq = kr2(KM2, 0)
    seq = [x.replace(f"offset:{m*128}", f"offset:{toff(5) + m*128}") for m, x in enumerate(seq)]
    seq += [mf32(S[0], KM, QM, 0), f"ds_add_u32 v{vPW}, v{vONE}", f"v_add_u32 v{aK}, {SLOT}, v{aK}", f"v_add_u32 v{aV}, v{vINC}, v{aV}", f"v_mov_b32 v{QB}, v{QR}", f"v_mov_b32 v159, v{QR}"]
    seq += [smf(1, 0)] + kr2(KM, 2) + [f"v_mov_b32 v{QB+1}, 0", f"v_permlane32_swap_b32 v{QR}, v{QB}"]
    seq += [smf(1, 2), vr2(0, 0), vr2(2, 0), "s_waitcnt lgkmcnt(5)", mf32(S[0] + 16, KM2, QM, 0)] + kr2(KM2, 3) + [vr2(3, 0), "s_mov_b32 s14, 7"]
    seq += [smf(1, 1), f"v_add_u32 v{aKR}, {SLOT}, v{aKR}", "s_nop 3", m2c(S[0], QR), krread(4608), "s_nop 15", smf(1, 3), vr2(1, 0), "s_setprio 0"]
    def mblock(p, qt, ot, kn, vn, extra0=[], extra1=[], extra2=[]):
        q = 1 - p
        r = ["s_setprio 2", "s_waitcnt lgkmcnt(0)", mf32(S[q], KM, QM + 4 * qt, 0)] + extra0 + (kr2(KM, kn) if kn is not None else [])
        r += [mf32(S[q] + 16, KM2, QM + 4 * qt, 0)] + extra1 + (kr2(KM2, kn + 1) + ["s_nop 2"] if kn is not None else ["s_nop 4"])
        r += [sm2(ot, p, 0), vr2(0, vn), "s_nop 2", m2c(S[q], (QR, QB)[qt])] + ([krread(kn * 2304), "s_nop 9"] if kn is not None else ["s_nop 10"])
        r += [sm2(ot, p, 1), vr2(1, vn), "s_nop 0", sm2(ot, p, 2), vr2(2, vn), "s_nop 0", sm2(ot, p, 3), vr2(3, vn)] + extra2 + ["s_setprio 0"]
        return r
    def send(t):
        a16, a8 = ((cW16, cW8), (cR16, cR8))[t]; D = O + 16 * t
        return [f"ds_write_b128 v{a16}, {vr(D,4)}", f"ds_write_b128 v{a16}, {vr(D+4,4)} offset:1024", f"ds_write_b64 v{a8}, {vr(D+8,2)} offset:2048",
                f"ds_add_u32 v{vPW}, v{vONE} offset:{M_PF - M_PROG}"]
    def recv(t, P):
        a16, a8 = ((cW16, cW8), (cR16, cR8))[t]
        return [f"ds_read_b32 v{vF}, v{aFl}", f"ds_read_b64 {vr(P[2],2)}, v{a8} offset:2048", f"ds_read_b128 {vr(P[0],4)}, v{a16}", f"ds_read_b128 {vr(P[1],4)}, v{a16} offset:1024"]
    LO = (127 - 40) << 23
    def finish(t, P, expect, check, pad=0, inline=False):
        D = O + 16 * t; R = P[2]; l = uid("fin")
        if inline:
            a(f"s_waitcnt lgkmcnt(0)\nv_cmp_gt_u32 vcc, {expect}, v{vF}\ns_cbranch_vccnz L_retry{t}\nL_got{t}:")
        else:
            poll(a, "\n".join(recv(t, P)), f"v_cmp_gt_u32 vcc, {expect}, v{vF}", preloaded=True)
        if pad: a(f"s_nop {pad - 1}")
        a(f"""
        v_add_f32 v{D+9}, v{R+1}, v{D+9}
        v_add_f32 v{D+8}, v{R}, v{D+8}
        v_rcp_f32 v{R}, v{D+9}
        v_subrev_u32 v{vF}, {LO}, v{D+9}
        v_mul_f32 v{D+8}, v{D+8}, v{R}
        v_mov_b32 v{D+9}, v{D+8}
        v_cmp_lt_u32 vcc, {80 << 23}, v{vF}
        """)
        for i in range(0, 8, 2): a(f"v_pk_add_f32 {vr(D+i,2)}, {vr(P[i//4]+i%4,2)}, {vr(D+i,2)}")
        a(f"v_permlane32_swap_b32 v{D+8}, v{D+9}")
        for i in range(0, 8, 2): a(f"v_pk_mul_f32 {vr(D+i,2)}, {vr(D+i,2)}, {vr(R,2)} op_sel_hi:[1,0]")
        for i in range(5): a(f"v_cvt_pk_bf16_f32 v{D+i}, v{D+2*i}, v{D+2*i+1}")
        if check and not o.get('nochk'): a(f"s_cbranch_vccnz L_bad{t}")
        if t: a("s_add_u32 s24, s52, 32768\ns_add_u32 s25, s53, 4096")
        a(f"buffer_store_dwordx4 {vr(D,4)}, v{oM}, {RW}, s{(52, 24)[t]} offen sc1\nbuffer_store_dword v{D+4}, v{oR}, {RW}, s{(53, 25)[t]} offen sc1")
        if check: a(f"L_nostore{t}:")
    PA = (XD, O + 12, O + 10); PB = (S[0], S[0] + 4, S[0] + 8)
    seq += eblock(0) + mblock(0, 0, 0, 0, 2, extra2=[prog_rd])
    seq += eblock(1) + mblock(1, 1, 0, 2, 0, extra0=[prog_ck], extra1=["s_cbranch_vccnz L_att_wait2", "L_att_back2:"], extra2=["s_cmp_lg_u32 s12, 0"])
    seq += eblock(0, 0, 10) + ["s_cbranch_scc1 L_second"]
    seq += send(0) + eblock(0, 10) + mblock(0, 1, 1, None, 2)
    if o.get("si", 1):
        seq += eblock(1, 0, 26) + ["s_waitcnt lgkmcnt(0)", sm2(1, 1, 0)] + exps(1, 26, 29) + [sm2(1, 1, 1)] + exps(1, 29, 32) + ["s_setprio 2", sm2(1, 1, 2), sm2(1, 1, 3), "s_nop 11"] + send(1)
    else:
        seq += eblock(1) + ["s_setprio 2", "s_waitcnt lgkmcnt(0)"] + [sm2(1, 1, i) for i in range(4)] + ["s_nop 11"] + send(1)
    seq += ["; STAMP 4", "s_waitcnt lgkmcnt(0)", "s_branch L_stored", "L_second:"]
    FA = o.get("fa", 20)
    seq += recv(0, PA) + eblock(0, 10, FA)
    for x in seq: a(x)
    finish(0, PA, 1, True, inline=True)
    seq = ["; STAMP 13"] + eblock(0, FA, 32) + mblock(0, 1, 1, None, 2)
    seq += eblock(1, 0, 18) + ["s_waitcnt lgkmcnt(0)", sm2(1, 1, 0)] + exps(1, 18, 21) + [sm2(1, 1, 1)] + exps(1, 21, 28) + [sm2(1, 1, 2)] + exps(1, 28, 32)
    seq += recv(1, PB) + [sm2(1, 1, 3), "; STAMP 4"]
    for x in seq: a(x)
    finish(1, PB, 2, True, pad=9, inline=True)
    def wreads(s):
        r = []
        for n in range(5):
            for m in range(2):
                reg, off = (aWm, (36 * (s - 1) + 8 * m) * 160 + 32 * n) if s > 0 else (aWr, 36 * m * 160 + 32 * n)
                r.append(f"ds_read_b64_tr_b16 {vr(W[s%3]+4*n+2*m,2)}, v{reg} offset:{off}")
        return r
    a(f"""
L_stored:
    ; STAMP 11
    s_setprio 0
    buffer_load_dwordx4 {vr(XD,4)}, v{vXO}, {RA}, 0 offen
    s_barrier                          ; BE
    ; STAMP 10
    ds_read_b32 v{T0+2}, v{vM} offset:{M_BAD}
    {final_rd}
    s_movk_i32 s54, 1024
    s_waitcnt lgkmcnt(2)
    v_cmp_lt_u32 vcc, s61, v{T0+2}
    s_cbranch_vccnz L_fallback
L_oproj:
    """)
    rem = "\n".join(f"buffer_load_dword v{OF+32+i}, v{aOr}, {RW}, s56 offen offset:{i*128} sc1" for i in range(4))
    a(rem)
    for st in range(3):
        for x in wreads(st): a(x)
    TM = T0 + 3
    poll(a, rem, f"v_max3_u32 v{TM}, v{OF+32}, v{OF+33}, v{OF+34}\nv_max_u32 v{TM}, v{TM}, v{OF+35}\nv_cmp_eq_u32 vcc, -1, v{TM}", sleep=o.get("s2", 0), preloaded=True)
    a("; STAMP 5")
    for st in range(8):
        a(f"buffer_load_dwordx4 {vr(OF+4*st,4)}, v{aOm}, {RW}, s{[55,57,58,59][st//2]} offen offset:{(st%2)*2048} sc1")
    a("s_waitcnt lgkmcnt(0)")
    final_pre(a)
    if o.get("ostamp"): a("; STAMP 2")
    for i in range(9):
        st = (i + 8) % 9
        lg = 0 if i in (0, 8) else (10 if i == 7 else (14 if i >= 3 else 15))
        a(f"s_waitcnt vmcnt({min(8 - i, 8)}) lgkmcnt({lg})")
        if o.get("ostamp") and i in (0, 1, 5, 8): a(f"; STAMP {(7, 8, 9, 13)[(0, 1, 5, 8).index(i)]}")
        r = wreads(i + 3) if i < 6 else []
        for n in range(5):
            a(mf16(ACC + 4 * n, W[i % 3] + 4 * n, OF + 4 * st, 0 if i == 0 else None))
            for x in r[2*n:2*n+2]: a(x)
            if i > 0 and n < 2: a(f"v_max3_u32 v{TM}, v{OF+4*st+2*n}, v{OF+4*st+2*n+1}, v{TM}")
            if i == 8 and n == 2: a(f"v_cmp_eq_u32 vcc, -1, v{TM}")
    a("s_cbranch_vccnz L_oredo\nL_odone:")
    a("; STAMP 12\ns_nop 2")
    for n in range(5):
        if n == 4: a("s_mov_b32 exec_hi, 0")
        a(f"ds_write_b128 v{aPw}, {vr(ACC+4*n,4)} offset:{64*n}")
    a(f"""
    s_mov_b32 exec_hi, -1
L_final:
    s_cmp_lg_u64 s[26:27], 0
    s_waitcnt lgkmcnt(0)
    s_barrier                          ; BA
    ; STAMP 6
    ds_read_b128 v[24:27], v{aAr}
    ds_read_b128 v[32:35], v{aAr} offset:{L_A1 - L_A0}
    ds_read_b128 v[28:31], v{aAr} offset:16
    ds_read_b128 v[36:39], v{aAr} offset:{L_A1 - L_A0 + 16}
    s_cbranch_scc1 L_routed
L_mix:
    """)
    for hf in range(2):
        a(f"s_waitcnt lgkmcnt({2 - 2*hf})")
        for i in (4*hf, 4*hf+2): a(f"v_pk_add_f32 {vr(24+i,2)}, {vr(24+i,2)}, {vr(32+i,2)}")
        for i in (4*hf, 4*hf+2): a(f"v_pk_fma_f32 {vr(24+i,2)}, {vr(24+i,2)}, {vr(vG,2)}, {vr(XBR+i,2)} op_sel_hi:[1,0,1]")
        for i in (2*hf, 2*hf+1): a(f"v_cvt_pk_bf16_f32 v{16+i}, v{24+2*i}, v{25+2*i}")
    a(f"""
    buffer_store_dwordx4 v[16:19], v{vXO}, {RA}, 0 offen {('', 'sc1', 'nt', 'sc0 sc1')[o.get('of', 0)]}
L_end:
    s_endpgm
    """)
    a(f"""
L_follow:
    """)
    poll(a, f"ds_read_b32 v{TS+2}, v{vM} offset:{M_ST1}", f"v_cmp_eq_u32 vcc, -1, v{TS+2}", sleep=o.get("s3", 0), spin=32767)
    a(f"""
    v_readfirstlane_b32 s15, v{TS+2}
    s_nop 3
    s_branch L_stage1b
L_general1:
    v_lshrrev_b32 v{TS+3}, 2, v{TS+22}
    v_lshlrev_b32 v{TS+3}, 10, v{TS+3}
    v_and_b32 v{TS+1}, 3, v1
    v_lshl_or_b32 v{TS+3}, v{TS+1}, 2, v{TS+3}
    s_lshl_b32 s24, s{sJ}, 7
    s_add_u32 s24, s24, {WS_FG1}
    """)
    poll(a, f"buffer_load_dword v{TS+2}, v{TS+3}, {RW}, s24 offen sc1\nbuffer_load_dword v{TS+1}, v{TS+11}, {RW}, 0 offen sc1",
         f"v_cmp_ne_u32 vcc, 1, v{TS+2}", sleep=4, extra=f"v_cmp_ne_u32 vcc, s{sTAG}, v{TS+1}\ns_cbranch_vccz L_stage1")
    a(f"s_sub_u32 s15, s15, {WS_LOC - WS_GLB}\ns_branch L_stage1\nL_att_wait:")
    poll(a, prog_rd, prog_ck, sleep=1)
    a(f"""
    s_branch L_att_back
L_att_wait2:
    """)
    poll(a, prog_rd, prog_ck, sleep=1)
    a(f"""
    s_branch L_att_back2
    """)
    for t, P in ((0, PA), (1, PB)):
        a(f"L_retry{t}:")
        poll(a, "\n".join(recv(t, P)), f"v_cmp_gt_u32 vcc, {t + 1}, v{vF}")
        a(f"s_branch L_got{t}")
    a(f"""
L_bad0:
    ds_write_b32 v{vM}, v{IDX} offset:{M_BAD}
    s_branch L_nostore0
L_bad1:
    ds_write_b32 v{vM}, v{IDX} offset:{M_BAD}
    s_waitcnt lgkmcnt(0)
    s_branch L_nostore1
L_oredo:
    s_sub_u32 s54, s54, 1
    s_cmp_lg_u32 s54, 0
    s_cbranch_scc1 L_oproj
    s_branch L_odone
L_routed:
    v_sub_u32 v20, v{aG}, v{vM}
    v_mul_u32_u24 v20, 72, v20
    v_lshlrev_b32 v21, 5, v0
    v_sub_u32 v20, v21, v20            ; piece * 32
    v_add_u32 v21, {MISC + M_Y + 320}, v20
    v_add_u32 v20, {MISC + M_Y}, v20
    v_cndmask_b32 v20, v20, v21, s[28:29]
    ds_read_b128 v[40:43], v20
    ds_read_b128 v[44:47], v20 offset:16
    s_mov_b64 exec, s[26:27]
    """)
    for i in range(4):
        a(f"v_lshlrev_b32 v{XBR+2*i}, 16, v{XD+i}\nv_and_b32 v{XBR+2*i+1}, 0xffff0000, v{XD+i}")
    a("s_waitcnt lgkmcnt(0)")
    for i in range(8):
        a(f"v_add_f32 v{XBR+i}, v{XBR+i}, v{40+i}")
        rne_bf16(a, XBR + i)
        a(f"v_mul_f32 v{XBR+i}, v{XBR+i}, v{OMG}")
        rne_bf16(a, XBR + i)
    a("s_mov_b64 exec, -1\ns_branch L_mix")
    M0r, M1r = T0 + 4, T0 + 5
    a(f"""
L_fallback:
    s_waitcnt lgkmcnt(0)
    s_barrier
    s_barrier                          ; K/V reloaded
    s_mul_i32 s24, s12, 9216
    s_add_u32 s24, s24, {7 * SLOT}
    v_subrev_u32 v{aK}, s24, v{aK}
    v_subrev_u32 v{aKR}, s24, v{aKR}
    v_mul_u32_u24 v{T0}, 7, v{vINC}
    v_sub_u32 v{aV}, v{aV}, v{T0}
    s_mov_b32 exec_lo, 0
    v_mov_b32 v{QR}, v159
    s_mov_b32 exec_lo, -1
    v_mov_b32 v{M0r}, 0xff800000
    v_mov_b32 v{M1r}, 0xff800000
    s_mov_b32 s14, 0
L_fb_max:
    """)
    for t in range(2):
        for x in kreads(t * 2304): a(x)
        if t == 0: a(krread(0))
        a("s_waitcnt lgkmcnt(0)")
        a(mf32(S[0], KM, QM, 0)); a(mf32(S[0] + 16, KM, QM + 4, 0))
        a("s_nop 9"); a(m2b(S[0], t)); a("s_nop 15\ns_nop 3")
        for i in range(0, 16, 2):
            a(f"v_max3_f32 v{M0r}, v{S[0]+i}, v{S[0]+i+1}, v{M0r}")
            a(f"v_max3_f32 v{M1r}, v{S[0]+16+i}, v{S[0]+17+i}, v{M1r}")
    a(f"""
    v_add_u32 v{aK}, 4608, v{aK}
    v_add_u32 v{aKR}, 4608, v{aKR}
    s_add_u32 s14, s14, 1
    s_cmp_lt_u32 s14, 32
    s_cbranch_scc1 L_fb_max
    v_mov_b32 v{T0}, v{M0r}
    v_mov_b32 v{T0+1}, v{M1r}
    s_mul_i32 s24, s12, 9216
    s_sub_u32 s24, {8 * SLOT}, s24
    v_permlane32_swap_b32 v{T0}, v{M0r}
    v_permlane32_swap_b32 v{T0+1}, v{M1r}
    v_subrev_u32 v{aK}, s24, v{aK}
    v_subrev_u32 v{aKR}, s24, v{aKR}
    v_max_f32 v{M0r}, v{T0}, v{M0r}
    v_max_f32 v{M1r}, v{T0+1}, v{M1r}
    """)
    for i in range(0, 32, 2): a(f"v_mov_b64 {vr(O+i,2)}, 0")
    a("s_mov_b32 s14, 0\nL_fb_pv:")
    for t in range(4):
        for x in kreads(t * 2304): a(x)
        if t % 2 == 0: a(krread(t * 2304))
        a(vread(0, t * 2304)); a(vread(1, t * 2304))
        a("s_waitcnt lgkmcnt(0)")
        a(mf32(S[0], KM, QM, 0)); a(mf32(S[0] + 16, KM, QM + 4, 0))
        a("s_nop 9"); a(m2b(S[0], t & 1)); a("s_nop 15\ns_nop 3")
        for i in range(32):
            a(f"v_sub_f32 v{S[0]+i}, v{S[0]+i}, v{M0r + (i >> 4)}")
        for x in exps(0, 0, 32): a(x)
        a("s_nop 1")
        for i in range(4): a(smf(0, i))
    a(f"""
    v_add_u32 v{aK}, {SLOT}, v{aK}
    v_add_u32 v{aKR}, {SLOT}, v{aKR}
    v_add_u32 v{aV}, v{vINC}, v{aV}
    s_add_u32 s14, s14, 1
    s_cmp_lt_u32 s14, 8
    s_cbranch_scc1 L_fb_pv
    s_mov_b32 s61, -1
    s_nop 7
    s_cmp_lg_u32 s12, 0
    s_barrier
    s_cbranch_scc1 L_fb_second
    """)
    for x in send(0) + send(1): a(x)
    a("s_waitcnt lgkmcnt(0)\ns_branch L_stored\nL_fb_second:")
    for t in range(2):
        for x in recv(t, PB): a(x)
        finish(t, PB, 4, False)
    a("s_branch L_stored")
    RG = "s[52:55]"
    SA = [23, 24, 25, 26, 27]; AF = [28, 44, 60]; BF = 76; ACC1 = 96
    a(f"""
L_service:
    s_waitcnt lgkmcnt(0)
    s_sub_u32 s12, s{sWAVE}, 8         ; sw
    s_lshl_b32 s62, s2, 7
    s_lshl2_add_u32 s62, s12, s62
    s_add_u32 s62, s62, {WS_FG1}
    s_lshr_b32 s13, s12, 1             ; wm
    s_and_b32 s14, s12, 1              ; wn
    s_lshr_b32 s59, s{sM}, 3
    s_mov_b32 s54, {WOB}
    s_mov_b32 s55, 0x00020000
    s_cmp_lg_u32 s12, 0
    s_cbranch_scc1 L_noinit
    v_lshlrev_b32 v8, 2, v1
    v_lshrrev_b32 v9, 3, v1
    v_cmp_eq_u32 vcc, 2, v9
    v_add_u32 v8, {MISC}, v8
    s_nop 0
    v_cndmask_b32 v9, 0, v9, vcc
    v_writelane_b32 v9, -1, {M_ST1 // 4}
    ds_write_b32 v8, v9
    s_waitcnt lgkmcnt(0)
L_noinit:
    s_mov_b32 s52, s{pWO}
    s_mov_b32 s53, s{pWO+1}
    """)
    roles(a, o)
    a(f"""
    s_cmp_eq_u32 s59, 2
    s_cselect_b32 s27, 1, 0            ; is v
    s_movk_i32 s25, 1152
    s_cmp_eq_u32 s59, 0
    s_cselect_b32 s25, 576, s25
    s_cselect_b32 s26, 18432, 0
    s_mov_b32 s28, {HS}
    v_and_b32 v15, 15, v1
    v_bfe_u32 v13, v1, 4, 1
    v_lshrrev_b32 v16, 5, v1
    v_mul_u32_u24 v16, s25, v16
    s_lshl_b32 s24, s14, 6
    """)
    for nt in range(5):
        a(f"""
        {f"v_add3_u32 v3, v15, s24, {16*nt}" if nt < 4 else "v_add_u32 v3, 0x80, v15"}
        v_mul_u32_u24 v12, 3641, v3
        v_lshrrev_b32 v12, 16, v12         ; head
        v_mul_u32_u24 v14, 18, v12
        v_sub_u32 v3, v3, v14              ; d
        v_lshrrev_b32 v14, 4, v3
        v_bitop3_b32 v14, v14, s27, v13 bitop3:0x6a
        v_lshl_add_u32 v14, v14, 4, v16
        v_lshl_add_u32 v3, v3, 5, v14
        v_mad_u32_u24 v{SA[nt]}, v12, s28, v3
        """)
    a(f"""
    s_lshl_b32 s24, s{sJ}, 5
    s_add_u32 s24, s24, s{sM}
    s_lshl2_add_u32 s24, s24, s12
    s_lshl_b32 s24, s24, 2
    s_add_u32 s61, s24, {WS_FL1}
    s_cmp_ge_u32 s{sM}, 24
    s_cbranch_scc1 L_rg
    s_mul_i32 s27, s27, 576
    s_add_u32 s56, s26, s27
    s_and_b32 s24, s{sH}, 24
    s_mul_i32 s24, s24, {HS}
    s_add_u32 s56, s56, s24
    s_bfe_u32 s24, s{sM}, 0x20001
    s_and_b32 s26, s{sJB}, 4
    s_add_u32 s24, s24, s26
    s_mul_i32 s24, s24, {JS}
    s_add_u32 s56, s56, s24
    s_and_b32 s24, s{sM}, 1
    s_lshl2_add_u32 s24, s24, s12
    s_xor_b32 s26, s24, 1              ; p=1
    s_mul_i32 s24, s24, s25
    s_mul_i32 s26, s26, s25
    s_lshl1_add_u32 s57, s26, s56
    s_lshl1_add_u32 s56, s24, s56
    s_add_u32 s58, s56, {WS_LOC}
    s_add_u32 s60, s57, {WS_LOC}
    s_cmp_eq_u32 s59, 0
    s_cselect_b32 s26, {f32bits(QSCALE)}, 1.0
    s_mov_b32 s27, s26
    v_bfe_u32 v3, v1, 2, 2
    v_and_b32 v12, 3, v1
    v_lshl_or_b32 v14, v3, 3, v12
    v_bfe_u32 v15, v1, 1, 3            ; swizzle
    v_lshrrev_b32 v16, 4, v1           ; kg
    v_xor_b32 v15, v15, v16
    v_lshlrev_b32 v15, 4, v15
    v_lshl_or_b32 v14, v14, 7, v15
    s_lshl_b32 s24, s12, 12
    v_add_u32 v6, s24, v14
    v_xor_b32 v7, 0x1000, v6
    v_xor_b32 v8, 64, v6
    v_xor_b32 v9, 64, v7
    v_mul_u32_u24 v13, 288, v3
    v_mul_u32_u24 v14, 2432, v16
    v_lshl_add_u32 v13, v12, 3, v13
    v_add_u32 v13, v13, v14
    v_add_u32 v11, {16384 + 256}, v13
    s_lshl_b32 s24, s14, 7
    s_add_u32 s24, s24, 16384
    v_add_u32 v10, s24, v13
    v_mov_b64 v[16:17], v[6:7]
    v_mov_b64 v[18:19], v[8:9]
    v_mov_b64 v[20:21], v[10:11]
    s_mov_b32 s24, 0
    s_mov_b32 s25, 0
    """)
    for i in range(AF[1], AF[1] + 16, 2): a(f"v_mov_b64 {vr(i,2)}, 0")
    for i in range(BF, 168, 2): a(f"v_mov_b64 {vr(i,2)}, 0")
    def ard(kk, st): return [(f"A{st}{p}", f"ds_read_b128 {vr(AF[st]+8*p+4*e,4)}, v{16+2*kk+p} offset:{512*e}") for p in range(2) for e in range(2)]
    def brd(kk, n, buf): return [(f"B{buf}", f"ds_read_b64_tr_b16 {vr(BF+4*buf+2*m,2)}, v{20 + (n == 4)} offset:{4*2432*kk+4*288*m+32*(n&3)}") for m in range(2)]
    def acc(n, p): return ACC1 + 16 * n + 8 * p
    def mm(n, st, buf):
        return [((f"A{st}{p}", f"B{buf}"), mf16(acc(n, p) + 4 * e, AF[st] + 8 * p + 4 * e, BF + 4 * buf)) for p in range(1 if n == 4 else 2) for e in range(2)]
    class Q:
        def __init__(s, pend): s.pend = list(pend)
        def rd(s, x): a(x[1]); s.pend.append(x[0])
        def need(s, tags):
            last = max([i for i, t in enumerate(s.pend) if t in tags], default=-1)
            if last >= 0:
                n = min(len(s.pend) - 1 - last, 14)
                a(f"s_waitcnt lgkmcnt({n})"); s.pend = s.pend[len(s.pend) - n:] if n else []
        def drain(s): a("s_waitcnt lgkmcnt(0)"); s.pend = []
    def run(q, groups, reads, fill={}, per=1):
        i = 0; reads = list(reads)
        for g in groups:
            for tags, ins in g:
                q.need(tags); a(ins)
                for x in fill.get(i, []):
                    if x == "BAR": q.drain()
                    else: a(x)
                k = 0
                while reads and reads[0][0] <= i and k < per: q.rd(reads.pop(0)[1]); k += 1
                i += 1
        return [r[1] for r in reads]
    order = [4, 0, 1, 2, 3]; last = {4: 1, 0: 5, 1: 9, 2: 13, 3: 17}
    def step_reads(A, items, start):
        r = [(start, x) for x in items[0][1]] + [(start, x) for x in A]
        for buf, it in items[1:]: r += [(last[buf], x) for x in it]
        return r
    NB = o.get("nb", 3)
    regaddr(a, 3)
    a("s_setprio 3\n; STAMP 1")
    a(".p2align 4\nL_gemm:")
    steady = [x[0] for _, x in step_reads(ard(1, 1), [(n, brd(1, n, n)) for n in order], 1)]
    q = Q(steady)
    gs = ["s_cmp_lg_u32 s24, 1\ns_cbranch_scc1 L_gs1\n; STAMP 7\nL_gs1:"] if o.get("gstamp") else []
    left = run(q, [mm(n, 1, n) for n in order], step_reads(ard(0, 0), [(n, brd(0, n, n)) for n in order], NB),
               {NB: ["BAR", "s_barrier"] + gs, 0: [f"s_add_u32 s25, s25, {RS}"], 1: [f"s_cmp_eq_u32 s25, {4*RS}", "s_cselect_b32 s25, 0, s25"], 2: ["s_add_u32 s24, s24, 1"]})
    left = run(q, [mm(n, 0, n) for n in order], [(0, x) for x in left] + step_reads(ard(1, 1), [(n, brd(1, n, n)) for n in order], 1),
               {11: ["v_add_u32 v16, s25, v6"], 12: ["v_add_u32 v17, s25, v7", "s_cmp_lt_u32 s24, 8"], 15: ["v_add_u32 v18, s25, v8", "v_add_u32 v21, s25, v11"], 16: ["v_add_u32 v19, s25, v9"]})
    for x in left: q.rd(x)
    a("v_add_u32 v20, s25, v10\ns_cbranch_scc1 L_gemm")
    seq = [(n, kk) for n in (0, 1, 2, 3, 4) for kk in range(2)]
    bufs = [order[i % 5] for i in range(10)]
    a(regload(3, 4))
    q = Q(steady)
    r = step_reads(ard(0, 0), [(bufs[i], brd(seq[i][1], seq[i][0], bufs[i])) for i in range(5)], NB)
    r = r[:8] + [(NB, x) for x in ard(1, 2)] + r[8:]
    left = run(q, [mm(n, 1, n) for n in order], r, {NB: ["BAR", "s_barrier", "; STAMP 8"]}, per=2)
    def glb_store(n, p): return f"buffer_store_dwordx4 {vr(acc(n,p),4)}, v{SA[n]}, {RW}, s{56+p} offen sc1"
    def tile_out(n, p):
        D = acc(n, p)
        h = [f"v_pk_mul_f32 {vr(D+r,2)}, {vr(D+r,2)}, s[26:27]" for r in range(0, 8, 2)]
        if o.get("mul", 1) == 1 and not (o.get("pkt", 1) and 2 * n + p >= 7): h = [f"v_mul_f32 v{D+r}, s26, v{D+r}\nv_mul_f32 v{D+r+1}, s26, v{D+r+1}" for r in range(0, 8, 2)]
        if o.get("mul") == 2: h = ["s_nop 0"] * 4
        h += [f"v_cvt_pk_bf16_f32 v{D+r}, v{D+2*r}, v{D+2*r+1}" for r in range(4)]
        return h + [f"buffer_store_dwordx4 {vr(D,4)}, v{SA[n]}, {RW}, s{58+2*p} offen"]
    fill = {}
    for n in range(4):
        for p in range(2):
            t = tile_out(n, p); i0 = 8 * n + 10 + 4 * p
            for k in range(4): fill.setdefault(i0 + k, []).extend(t[2*k:2*k+2] + ([t[8]] if k == 3 else []))
    fill.setdefault(8, []).append("s_nop 1"); fill.setdefault(9, []).append("s_nop 1")
    fill.setdefault(24, []).extend(["BAR", "s_barrier                          ; BL"])
    left = run(q, [mm(n, 2 * kk, bufs[i]) for i, (n, kk) in enumerate(seq)],
               [(0, x) for x in left] + [(4 * i + 3, x) for i in range(5) for x in brd(seq[i+5][1], seq[i+5][0], bufs[i])], fill)
    assert not left
    a("; STAMP 2")
    for i in range(36, 44):
        for x in fill.get(i, []): a(x)
    for x in tile_out(4, 0): a(x)
    a(f"v_mov_b32 v6, s{sTAG}\nv_mov_b32 v5, 0\n; STAMP 9")
    regwait(a, 3, 4, preloaded=True)
    a("L_svc:")
    one_lane(a, f"buffer_store_dword v6, v5, {RW}, s61 offen")
    a("; STAMP 10\ns_setprio 3")
    vL16, sZ = 2, 5
    a(f"""
    s_and_b32 s15, s{sM}, 3
    s_lshl2_add_u32 s15, s{sJO}, s15
    s_lshl_b32 s15, s15, 6
    s_mov_b32 s61, 0
    v_mov_b32 v{vM}, {MISC}
    v_mov_b32 v{vONE}, 1
    v_lshlrev_b32 v{vL16}, 4, v1
    s_cmp_lg_u32 s12, 0
    s_cbranch_scc1 L_helper
    """)
    def publish(): a("s_call_b64 s[0:1], L_publish")
    def qpub():
        l = uid("qok")
        a(f"s_cmp_eq_u32 s59, 3\ns_cbranch_scc1 {l}")
        poll(a, f"ds_read_b32 v4, v{vM} offset:{M_MODE}", "v_cmp_eq_u32 vcc, 0, v4", sleep=4)
        a(f"v_cmp_eq_u32 vcc, 1, v4\ns_cbranch_vccnz {l}"); publish(); a(f"{l}:")
    def selwait():
        a(f"s_lshl_b32 s24, s{sJ}, 7\ns_add_u32 s24, s24, {WS_SEL}")
        poll(a, f"buffer_load_dwordx2 v[12:13], v{sZ}, {RW}, s24 offen sc1", "v_min_u32 v4, v12, v13\nv_cmp_eq_u32 vcc, 0, v4", sleep=4)
    def level(n=1): one_lane(a, f"ds_add_u32 v{vM}, v{vONE} offset:{M_FULL}", n)
    def go(): one_lane(a, f"ds_add_u32 v{vM}, v{vONE} offset:{M_GO}")
    def slots(n): a(f"s_movk_i32 s29, {n}\ns_call_b64 s[0:1], L_slots")
    for i in range(5):
        a(f"""
        v_add_u32 v3, {64*i}, v1
        v_mul_u32_u24 v4, 6554, v3
        v_lshrrev_b32 v4, 16, v4
        v_mul_u32_u24 v9, 10, v4
        v_sub_u32 v3, v3, v9
        v_mul_u32_u24 v4, 1152, v4
        v_lshl_add_u32 v4, v3, 4, v4
        v_add_u32 v3, 7, v3
        v_and_b32 v3, 16, v3
        v_lshl_add_u32 v{16+i}, v3, {20 if o.get("wz", 1) else 28}, v4
        """)
        if 0 < i < 4: a(f"v_subrev_u32 v{16+i}, {1024*i}, v{16+i}")
    a(f"""
    v_lshlrev_b32 v21, 3, v1
    v_lshrrev_b32 v3, 2, v1
    v_lshlrev_b32 v3, 10, v3
    v_and_b32 v4, 3, v1
    v_lshl_or_b32 v22, v4, 2, v3
    v_max_u32 v4, 1, v4
    v_bfe_u32 v3, v1, 2, 2
    v_lshlrev_b32 v3, 13, v3
    v_lshl_or_b32 v9, v4, 2, v3
    s_lshl_b32 s28, s{sJ}, 9
    s_add_u32 s28, s28, {WS_FL1}
    s_mul_i32 s13, s{sH}, {HS}
    s_add_u32 s25, s13, {WS_LOC}
    s_mov_b32 s26, 1
    s_mov_b32 s27, {KV0 + SLOT}
    ; STAMP 3
    """)
    poll(a, f"ds_read_b32 v4, v{vM} offset:{M_C0}", f"v_cmp_gt_u32 vcc, {o.get('c0n', 1)}, v4", sleep=1, spin=128)
    loc = f"buffer_load_dwordx2 v[12:13], v21, {RW}, s28 offen sc1"
    locc = f"v_xor_b32 v12, s{sTAG}, v12\nv_xor_b32 v13, s{sTAG}, v13\nv_or_b32 v12, v12, v13\nv_cmp_ne_u32 vcc, 0, v12"
    poll(a, loc, locc, sleep=2, spin=48)
    a(f"s_cbranch_vccnz L_general2\nds_write_b32 v{vM}, v{vONE} offset:{M_MODE}\nL_stage2:\n; STAMP 4")
    slots(3); go()
    a("s_waitcnt vmcnt(36)"); level(); a("; STAMP 5")
    a("s_waitcnt vmcnt(0)"); level(2); a("; STAMP 12")
    def blockwait(x):
        a(f"s_and_b32 s28, s{sM}, 7\ns_lshl_b32 s28, s28, 3\ns_xor_b32 s24, s{sJ}, {x}\ns_add_u32 s28, s28, s24\ns_lshl_b32 s28, s28, 7\ns_add_u32 s28, s28, {WS_FG1 + 32}")
        a("s_mov_b64 exec, 0xffff")
        poll(a, f"buffer_load_dword v4, v9, {RW}, s28 offen sc1", "v_cmp_ne_u32 vcc, 1, v4", sleep=4)
        a("s_mov_b64 exec, -1\ns_mov_b32 s25, s13")
    blockwait(1)
    a("; STAMP 13")
    slots(3)
    final_addr(a, 3)
    a(f"v_and_b32 v{vPR}, 7, v1\nv_lshl_add_u32 v{vPR}, v{vPR}, 2, v{vM}\ns_mov_b32 s25, s13")
    poll(a, prog_rd, f"v_cmp_gt_u32 vcc, 3, v{vF}", sleep=4)
    slots(1)
    a(f"buffer_load_dwordx4 {vr(XD,4)}, v{vXO}, {RA}, 0 offen")
    go(); level()
    poll(a, f"ds_read_b32 v4, v{vM} offset:{M_BLK}", "v_cmp_ne_u32 vcc, 3, v4", sleep=8)
    poll(a, prog_rd, f"v_cmp_gt_u32 vcc, 4, v{vF}", sleep=8)
    go()
    a(f"""
    v_and_b32 v21, 7, v1
    v_bfe_u32 v4, v1, 3, 2
    v_lshlrev_b32 v4, 8, v4
    v_lshl_or_b32 v21, v21, 10, v4
    s_lshr_b32 s28, s{sJ}, 1
    s_lshl_b32 s28, s28, 6
    s_and_b32 s24, s{sJ}, 1
    s_add_u32 s28, s28, s24
    s_lshl_b32 s28, s28, 7
    s_add_u32 s28, s28, {WS_FG1 + 32}
    s_waitcnt vmcnt(0)
    """)
    level(4)
    a("s_mov_b32 exec_hi, 0")
    poll(a, f"buffer_load_dwordx4 v[24:27], v21, {RW}, s28 offen sc1", "v_bitop3_b32 v4, v25, v26, v27 bitop3:0x80\nv_cmp_ne_u32 vcc, 1, v4", sleep=8)
    a("s_mov_b32 exec_hi, -1")
    a("; STAMP 11")
    poll(a, prog_rd, f"v_cmp_gt_u32 vcc, 7, v{vF}", sleep=16)
    if o.get("cpf", 1):
        a(f"s_cmp_lg_u32 s{sM}, 20\ns_cbranch_scc1 L_wo")
        code_pf(a, 3, 35, 1)
    a(f"""
L_wo:
    s_lshr_b32 s26, s{sM}, 2
    s_mul_i32 s26, s26, 144
    s_add_u32 s24, s26, {256*1152}
    s_mov_b32 s25, {L_WO + 8*5120}
    s_mov_b32 s27, {L_WO + 18*5120}
L_wo_loop:
    s_mov_b32 m0, s25
    s_nop 0
    """)
    for i in range(4): a(f"buffer_load_dwordx4 v{16+i}, {RG}, s24 offen offset:{1024*i} lds")
    a(f"""
    s_add_u32 m0, s25, 4096
    s_add_u32 s25, s25, 5120
    buffer_load_dwordx4 v20, {RG}, s24 offen lds
    s_add_u32 s24, s24, {32*1152}
    s_cmp_lt_u32 s25, s27
    s_waitcnt vmcnt(50)
    s_cbranch_scc1 L_wo_loop
    s_cmp_eq_u32 s27, {L_WO + 8*5120}
    s_cbranch_scc1 L_wo_done
    s_add_u32 s24, s{sM}, 10
    s_and_b32 s24, s24, 31
    s_cmp_lt_u32 s24, {0 if o.get('nomoe') else 18}
    s_cselect_b32 s24, 6, 3
    """)
    poll(a, f"ds_read_b32 v4, v{vM} offset:{M_BLK}", "v_cmp_ne_u32 vcc, s24, v4", sleep=8)
    a(f"""
    s_mov_b32 s24, s26
    s_mov_b32 s25, {L_WO}
    s_mov_b32 s27, {L_WO + 8*5120}
    s_branch L_wo_loop
L_wo_done:
    s_waitcnt vmcnt(0) lgkmcnt(0)
    ; STAMP 14
    s_barrier                          ; BE
    ds_read_b32 v4, v{vM} offset:{M_BAD}
    {final_rd}
    s_waitcnt lgkmcnt(0)
    v_cmp_lt_u32 vcc, s61, v4
    s_cbranch_vccnz L_w8_fb
    """)
    final_pre(a)
    a(f"""
    s_branch L_final
L_w8_fb:
    s_barrier
    """)
    blockwait(0)
    a(f"s_mov_b32 s26, 0\ns_mov_b32 s27, {KV0}")
    slots(8)
    a(f"""
    s_waitcnt vmcnt(0)
    s_barrier
    s_mov_b32 s61, -1
    s_barrier
    s_branch L_wo
L_general2:
    v_mov_b32 v4, 2
    ds_write_b32 v{vM}, v4 offset:{M_MODE}
    """)
    qpub()
    a(f"s_lshl_b32 s29, s{sJ}, 7\ns_add_u32 s29, s29, {WS_FG1 + 8192}")
    poll(a, loc + f"\nbuffer_load_dword v4, v22, {RW}, s29 offen sc1", locc + "\ns_lshr_b64 vcc, vcc, 16\ns_lshl_b64 vcc, vcc, 32", sleep=4,
         extra="v_cmp_ne_u32 vcc, 1, v4\ns_cbranch_vccz L_general3")
    a(f"""
    s_branch L_stage2
L_general3:
    s_mov_b32 s25, s13
    s_branch L_stage2
L_publish:
    """)
    for n in range(5):
        for p in range(1 if n == 4 else 2): a(glb_store(n, p))
    a("s_mov_b32 s59, 3\ns_waitcnt vmcnt(0)")
    one_lane(a, f"buffer_store_dword v{vONE}, v{sZ}, {RW}, s62 offen sc1")
    a(f"""
    s_setpc_b64 s[0:1]
L_slots:
    s_xor_b32 s24, s26, s{sJB}
    s_mul_i32 s24, s24, {JS}
    s_mov_b32 m0, s27
    s_add_u32 s24, s24, s25
    """)
    for g in range(5):
        for u in range(4 if g < 4 else 2):
            a(f"buffer_load_dwordx4 v{vL16}, {RW}, s24 offen offset:{1024*u} sc1 lds")
        if g < 4: a(f"s_add_u32 m0, s27, {4096*(g+1)}\ns_add_u32 s24, s24, 4096")
    a(f"""
    s_add_u32 s27, s27, {SLOT}
    s_add_u32 s26, s26, 1
    s_sub_u32 s29, s29, 1
    s_cmp_lg_u32 s29, 0
    s_waitcnt vmcnt(45)
    s_cbranch_scc1 L_slots
    s_setpc_b64 s[0:1]
    """)
    aGU, aXF, aTG1, aTG, aTD, aDN, aP, aHW, aHR, aY, vTK, aPW = 7, 8, 9, 22, 14, 15, 16, 17, 18, 19, 20, 21
    GA = 28; UA = 76; XF = 124; AC = [148, 152, 156, 160]
    a(f"""
L_helper:
    s_sub_u32 s13, s12, 1              ; third
    s_and_b32 s14, s12, 1
    v_lshrrev_b32 v3, 2, v1
    v_mul_u32_u24 v3, 9216, v3
    v_and_b32 v4, 3, v1
    v_lshrrev_b32 v12, 5, v1
    v_lshlrev_b32 v13, 1, v12
    v_xor_b32 v13, v13, v4
    v_lshl_add_u32 v{aGU}, v13, 4, v3
    v_lshlrev_b32 v4, 3, v4            ; 8c
    v_bfe_u32 v28, v1, 2, 2            ; r
    v_lshrrev_b32 v29, 4, v1           ; kg
    s_mul_i32 s31, s13, 12288
    s_add_u32 s31, s31, {KV0}
    v_lshl_add_u32 v3, v29, 3, v28
    v_lshl_or_b32 v13, v3, 6, v4
    v_and_b32 v30, 16, v1
    v_lshl_or_b32 v13, v30, 1, v13
    v_add_u32 v{aTG}, s31, v13
    v_xor_b32 v{aTG1}, 32, v{aTG}
    v_lshl_or_b32 v3, v3, 7, v4
    v_bfe_u32 v13, v1, 3, 2            ; (r>>1) + 2*(kg&1)
    v_lshl_or_b32 v3, v13, 5, v3
    v_add_u32 v{aTD}, s31, v3
    v_lshrrev_b32 v3, 3, v1
    v_mul_u32_u24 v13, 1152, v3
    v_and_b32 v3, 2, v3
    v_and_b32 v4, 7, v1
    v_xor_b32 v4, v4, v3
    v_lshl_add_u32 v{aDN}, v4, 4, v13
    v_lshl_add_u32 v{aP}, v1, 2, v{vM}
    s_lshl_b32 s25, s12, 7
    s_add_u32 s25, s25, {MISC + M_H}
    v_and_b32 v3, 15, v1
    v_lshl_or_b32 v4, v12, 4, v3
    v_and_b32 v28, 16, v1
    v_lshl_add_u32 v4, v28, 1, v4
    v_lshl_add_u32 v{aHW}, v4, 1, s25
    v_and_b32 v4, 4, v1
    v_add_u32 v4, v4, v29
    v_lshl_add_u32 v{aHR}, v4, 4, s25
    v_mul_u32_u24 v4, 2304, v29
    v_lshl_add_u32 v{aY}, v3, 2, v4
    s_mul_i32 s25, s13, 384
    v_lshl_add_u32 v{aXF}, v29, 4, s25
    v_and_b32 v3, {3 if o.get("xz", 1) else 0}, v1
    v_lshl_add_u32 v{aXF}, v3, 24, v{aXF}
    v_lshl_add_u32 v{aHR}, v3, 13, v{aHR}
    v_bfe_i32 v{vTK}, v1, 2, 1
    s_lshl_b32 s25, s13, 9
    v_add_u32 v{aPW}, s25, v{aP}
    v_xor_b32 v164, 64, v{aDN}
    v_xor_b32 v165, 32, v{aTD}
    v_xor_b32 v166, 64, v{aTD}
    v_xor_b32 v167, 0x60, v{aTD}
    v_mov_b64 v[56:57], -1
    v_mov_b64 v[58:59], -1
    v_lshrrev_b32 v3, 3, v1
    s_cmp_eq_u32 s13, 2
    s_cselect_b32 s24, 12, 7
    v_lshlrev_b32 v3, s24, v3
    v_and_b32 v4, 0x70, v{vL16}
    v_or_b32 v60, v3, v4
    v_mul_u32_u24 v3, 57, v1
    v_lshrrev_b32 v3, 9, v3
    v_mul_u32_u24 v3, 63, v3
    v_add_lshl_u32 v30, v3, v1, 7
    s_sub_u32 s28, s{sM}, 8
    s_min_u32 s28, s28, 14
    s_mul_i32 s28, s28, 3
    s_add_u32 s28, s28, s13
    """)
    a("; STAMP 3")
    qpub()
    poll(a, f"ds_read_b64 v[12:13], v{vM} offset:{M_C0}", "v_min_u32 v13, 1, v13\nv_add_u32 v12, v12, v13\nv_cmp_ne_u32 vcc, 9, v12", sleep=2)
    MPF = o.get("mpf", 3)
    def mpf(ptr):
        a(f"""
        s_mul_i32 s25, s28, {14*9216}
        s_mul_i32 s27, s{sJ}, 1152
        s_add_u32 s25, s25, s27
        s_add_u32 s27, s25, {7*9216}
        s_mov_b64 s[52:53], s[{ptr}:{ptr+1}]
        buffer_load_dword v31, v30, {RG}, s25 offen
        buffer_load_dword v31, v30, {RG}, s27 offen
        """)
    a(f"""
    s_mul_i32 s24, s13, 6144
    s_add_u32 s25, s24, {KV0}
    v_add_u32 v4, s25, v{vL16}
    s_setprio 0
    """)
    for i in range(6): a(f"ds_read_b128 {vr(32+4*i,4)}, v4 offset:{1024*i}")
    a(f"""
    s_mul_i32 s25, s{sJB}, {JS}
    s_add_u32 s24, s24, s25
    s_mul_i32 s25, s{sH}, {HS}
    s_add_u32 s24, s24, s25
    s_add_u32 s25, s24, 4096
    s_waitcnt lgkmcnt(0)
    """)
    for i in range(6): a(f"buffer_store_dwordx4 {vr(32+4*i,4)}, v{vL16}, {RW}, s{24 + i//4} offen offset:{1024*(i%4)} sc1")
    a(f"""
    s_lshl_b32 s24, s{sJB}, 8
    s_add_u32 s24, s24, s{sH}
    s_lshl_b32 s25, s24, 10
    s_mul_i32 s26, s13, {3*32768}
    s_add_u32 s25, s25, s26
    s_add_u32 s25, s25, {WS_O}
    s_add_u32 s26, s25, 32768
    s_add_u32 s27, s25, 65536
    s_lshl_b32 s24, s24, 7
    s_add_u32 s24, s24, {WS_O + O_REM}
    s_cmp_eq_u32 s13, 2
    s_cselect_b32 s27, s24, s27
    buffer_store_dwordx4 v[56:59], v{vL16}, {RW}, s25 offen sc1
    buffer_store_dwordx4 v[56:59], v{vL16}, {RW}, s26 offen sc1
    buffer_store_dwordx4 v[56:59], v60, {RW}, s27 offen sc1
    s_setprio 3
    s_waitcnt vmcnt(0)
    """)
    one_lane(a, f"buffer_store_dword v{vONE}, v{sZ}, {RW}, s62 offen offset:32 sc1\nds_add_u32 v{vM}, v{vONE} offset:{M_BLK}")
    if MPF:
        a(f"s_cmp_ge_u32 s28, 42\ns_cbranch_scc1 L_nompf\ns_mov_b32 s54, {WGB}")
        poll(a, f"ds_read_b32 v4, v{vM} offset:{M_GO}", f"v_cmp_gt_u32 vcc, 2, v4", sleep=4)
        if MPF & 1: mpf(pWG)
        if MPF & 2: mpf(pWU)
        if MPF & 4:
            a(f"""
            v_lshlrev_b32 v4, 7, v1
            s_mul_i32 s25, s28, {124*128}
            s_mul_i32 s27, s{sJ}, {576*1152}
            s_add_u32 s25, s25, s27
            s_add_u32 s27, s25, {62*128}
            s_mov_b64 s[52:53], s[{pWD}:{pWD+1}]
            buffer_load_dword v31, v4, {RG}, s25 offen
            buffer_load_dword v31, v4, {RG}, s27 offen
            """)
        a("L_nompf:")
    a(f"""
    s_lshl2_add_u32 s24, s{sM}, s12
    s_cmp_eq_u32 s24, {25*4+3}
    s_cbranch_scc1 L_select
L_selected:
    s_add_u32 s24, s{sM}, 10
    s_and_b32 s24, s24, 31
    s_mul_i32 s29, s{sJ}, 18
    s_add_u32 s29, s29, s24
    s_cmp_lt_u32 s24, {0 if o.get("nomoe") else 18}
    s_cselect_b32 s54, {WGB}, 0
    s_mul_i32 s26, s13, {192*9216}
    s_lshl_b32 s24, s29, 6
    s_add_u32 s26, s26, s24
    """)
    def gowait(n):
        if n > 1: poll(a, f"ds_read_b32 v4, v{vM} offset:{M_GO}", f"v_cmp_gt_u32 vcc, {n}, v4", sleep=8)
    def stage(ptr, addr, off):
        a(f"s_mov_b32 s52, s{ptr}\ns_mov_b32 s53, s{ptr+1}")
        for i in range(12):
            a(f"s_add_u32 m0, s31, {1024*i}\ns_add_u32 s25, s26, {off(i)}\nbuffer_load_dwordx4 v{addr(i)}, {RG}, s25 offen lds")
    selwait()
    a(f"""
    s_cmp_lg_u32 s12, 1
    s_cbranch_scc1 L_nog
    ds_write_b64 v{vM}, v[12:13] offset:{M_SEL}
    s_lshl_b32 s24, s15, 2
    s_add_u32 s24, s24, {WS_G - MISC}
    buffer_load_dword v24, v{aP}, {RW}, s24 offen sc1
    s_waitcnt vmcnt(0)
    ds_write_b32 v{aP}, v24 offset:{M_G}
L_nog:
    """)
    gowait(3)
    if o.get("wb"):
        a(f"s_cmp_lg_u32 s{sM}, 21\ns_cbranch_scc1 L_nowb\ns_cmp_lg_u32 s12, 1\ns_cbranch_scc1 L_nowb")
        poll(a, f"ds_read_b32 v4, v{vM} offset:{M_FULL}", f"v_cmp_gt_u32 vcc, 8, v4", sleep=16)
        a("buffer_wbl2 sc1\nL_nowb:")
    a(f"""
L_sel2:
    ; STAMP 12
    v_readfirstlane_b32 s56, v12
    v_readfirstlane_b32 s57, v13
    s_mov_b32 s60, s29
    s_and_b32 s58, s56, 0x7ff
    s_sub_u32 s58, 2047, s58           ; idx0
    s_and_b32 s59, s57, 0x7ff
    s_sub_u32 s59, 2047, s59           ; idx1
    s_cmp_eq_u32 s54, 0
    s_cbranch_scc1 L_moedone
    s_mul_i32 s25, s58, 1152
    s_mul_i32 s24, s59, 1152
    s_sub_u32 s24, s24, s25
    v_and_b32 v{vTK}, s24, v{vTK}
    v_add3_u32 v{aXF}, v{aXF}, v{vTK}, s25
    """)
    for i in range(6):
        a(f"buffer_load_dwordx4 {vr(XF+4*i,4)}, v{aXF}, {RA}, 0 offen offset:{64*i}")
    MP = o.get("mp", 2)
    def frags(base, gu):
        a("s_waitcnt vmcnt(0)")
        for i in range(12):
            for m in range(2):
                if gu: a(f"ds_read_b64_tr_b16 {vr(base+4*i+2*m,2)}, v{(aTG, aTG1)[i&1]} offset:{2048*(i>>1)+256*m}")
                else: a(f"ds_read_b64_tr_b16 {vr(base+4*i+2*m,2)}, v{(aTD, 165, 166, 167)[i&3]} offset:{4096*(i>>2)+512*m}")
            if i % 2 and o.get("fw", 1): a("s_waitcnt lgkmcnt(0)")
        a("s_waitcnt lgkmcnt(0)")
    def gu_mm(mat, base):
        a(f"s_setprio {MP}")
        for i in range(12): a(mf16(AC[2 * mat + (i & 1)], XF + 4 * (i >> 1), base + 4 * i, 0 if i < 2 else None))
        a("s_setprio 0")
    a("s_setprio 0")
    stage(pWG, lambda i: aGU, lambda i: 16 * 9216 * i)
    frags(GA, True); a("; MSTAMP 2")
    stage(pWU, lambda i: aGU, lambda i: 16 * 9216 * i)
    gu_mm(0, GA)
    frags(UA, True); a("; MSTAMP 1")
    a("s_mul_i32 s25, s60, 36864\ns_mul_i32 s26, s13, 384\ns_add_u32 s26, s25, s26")
    stage(pWD, lambda i: (aDN, 164)[i & 1], lambda i: 128 * (i >> 2) + 9216 * (i & 3))
    gu_mm(1, UA)
    a(f"""
    ; MSTAMP 7
    s_mov_b32 exec_hi, 0
    ds_write_b32 v{aPW}, v{AC[0]} offset:{M_P}
    s_not_b64 exec, exec
    ds_write_b32 v{aPW}, v{AC[1]} offset:{M_P}
    s_nop 3
    ds_write_b32 v{aPW}, v{AC[3]} offset:{M_P + 256}
    s_not_b64 exec, exec
    ds_write_b32 v{aPW}, v{AC[2]} offset:{M_P + 256}
    s_mov_b64 exec, 1
    ds_add_u32 v{vM}, v{vONE} offset:{M_CNT}
    s_mov_b64 exec, -1
    """)
    frags(GA, False)
    one_lane(a, f"ds_add_u32 v{vM}, v{vONE} offset:{M_BLK}")
    a("s_setprio 3")
    poll(a, f"ds_read_b32 v4, v{vM} offset:{M_CNT}", "v_cmp_ne_u32 vcc, 3, v4", sleep=4)
    a("; MSTAMP 9")
    for w in range(6): a(f"ds_read_b32 v{XF+w}, v{aP} offset:{M_P + 256*w}")
    a(f"""
    s_waitcnt lgkmcnt(0)
    v_pk_add_f32 {vr(XF,2)}, {vr(XF,2)}, {vr(XF+2,2)}
    v_pk_add_f32 {vr(XF,2)}, {vr(XF,2)}, {vr(XF+4,2)}
    v_cvt_pk_bf16_f32 v{XF+1}, v{XF}, v{XF+1}
    v_lshlrev_b32 v{XF}, 16, v{XF+1}
    v_mul_f32 v{XF+2}, {f32bits(-LOG2E)}, v{XF}
    v_exp_f32 v{XF+2}, v{XF+2}
    v_and_b32 v{XF+1}, 0xffff0000, v{XF+1}
    v_add_f32 v{XF+2}, 1.0, v{XF+2}
    v_rcp_f32 v{XF+2}, v{XF+2}
    s_and_b32 s25, s60, 7
    v_mul_f32 v{XF}, v{XF}, v{XF+2}
    """)
    rne_bf16(a, XF)
    a(f"""
    v_mul_f32 v{XF}, v{XF}, v{XF+1}
    v_cvt_pk_bf16_f32 v{XF}, v{XF}, v{XF}
    ds_write_b16 v{aHW}, v{XF}
    ds_read_b128 {vr(XF+4,4)}, v{aHR}
    s_setprio {MP}
    s_waitcnt lgkmcnt(0)
    """)
    for n in range(12): a(mf16(UA + 4 * n, XF + 4, GA + 4 * n, 0))
    a("s_setprio 0")
    a(f"""
    s_mul_i32 s25, s25, 4608
    s_mul_i32 s26, s13, 768
    s_add_u32 s25, s25, s26
    s_add_u32 s25, s25, {WS_Y}
    ; MSTAMP 10
    s_mov_b32 exec_hi, 0
    """)
    for n in range(12):
        a(f"buffer_atomic_add_f32 v{UA+4*n}, v{aY}, {RW}, s25 offen offset:{64*n} sc1")
    a(f"""
    s_mov_b64 exec, 1
    s_setprio 3
    s_waitcnt vmcnt(0)
    ds_add_rtn_u32 v4, v{vM}, v{vONE} offset:{M_DONE}
    s_lshl_b32 s25, s{sJ}, 7
    s_add_u32 s25, s25, {WS_DONE}
    s_waitcnt lgkmcnt(0)
    v_cmp_eq_u32 vcc, 2, v4
    s_cbranch_vccz L_notlast
    buffer_atomic_add v{vONE}, v{sZ}, {RW}, s25 offen sc1
L_notlast:
    s_mov_b64 exec, -1
L_moedone:
    ; STAMP 13
    s_cmp_eq_u32 s12, 2
    s_cselect_b32 s26, s58, s59
    s_cselect_b32 s27, s56, s57
    s_andn2_b32 s26, s26, 63
    s_cmp_eq_u32 s15, s26
    s_cselect_b32 s28, 1, 0
    s_cmp_eq_u32 s12, 1
    s_cselect_b32 s28, 0, s28
    {"s_mov_b32 s28, 0" if o.get("nomoe") else ""}
    v_lshrrev_b32 v3, 3, v1
    v_lshlrev_b32 v3, 7, v3
    s_mov_b32 s29, {WS_DONE}
    s_cmp_eq_u32 s28, 0
    s_cbranch_scc1 L_h_wait
    """)
    ydone = f"buffer_load_dword v4, v3, {RW}, s29 offen sc1"
    poll(a, f"ds_read_b32 v12, v{vM} offset:{M_PF if o.get('ylate', 0) else M_PROG}\ns_waitcnt lgkmcnt(0)\nv_cmp_lt_u32 vcc, {0 if o.get('ylate', 0) else 8}, v12\ns_cbranch_vccnz L_h_wait\n" + ydone,
         "v_cmp_ne_u32 vcc, 18, v4", sleep=8, wait="s_waitcnt vmcnt(0)")
    a(f"""
    s_call_b64 s[0:1], L_yprep
L_h_wait:
    s_waitcnt vmcnt(0) lgkmcnt(0)
    ; STAMP 14
    s_barrier                          ; BE
    ds_read_b32 v4, v{vM} offset:{M_BAD}
    s_waitcnt lgkmcnt(0)
    v_cmp_lt_u32 vcc, s61, v4
    s_cbranch_vccnz L_h_fb
    s_cmp_eq_u32 s28, 0
    s_cbranch_scc1 L_h_end
    """)
    poll(a, ydone, "v_cmp_ne_u32 vcc, 18, v4", sleep=2)
    a(f"""
    s_call_b64 s[0:1], L_yprep
    s_waitcnt lgkmcnt(0)
L_h_end:
    s_endpgm
L_h_fb:
    s_barrier
    s_barrier
    s_mov_b32 s61, -1
    s_barrier
    s_branch L_h_wait
L_yprep:
    ; MSTAMP 4
    s_mov_b32 s28, 0
    v_min_u32 v3, 35, v1
    v_lshlrev_b32 v3, 3, v3
    s_lshr_b32 s24, s{sM}, 2
    s_mul_i32 s24, s24, 288
    s_mul_i32 s25, s14, 2304
    s_add_u32 s24, s24, s25
    s_add_u32 s24, s24, {WS_Y}
    """)
    for rp in range(8):
        a(f"buffer_load_dwordx2 {vr(32+2*rp,2)}, v3, {RW}, s24 offen sc1\ns_add_u32 s24, s24, 4608")
    a(f"""
    s_and_b32 s27, s27, 0xfffff800
    s_xor_b32 s24, s27, 0x80000000
    s_not_b32 s25, s27
    s_bitcmp1_b32 s27, 31
    s_cselect_b32 s27, s24, s25
    v_mov_b32 v14, s27
    """)
    rne_bf16(a, 14); sigmoid(a, 14); rne_bf16(a, 14)
    a(f"s_mul_i32 s24, s14, 320\ns_add_u32 s24, s24, {MISC + M_Y}\nv_add_u32 v3, s24, v3\ns_waitcnt vmcnt(0)")
    for rp in range(1, 8): a(f"v_pk_add_f32 v[32:33], v[32:33], {vr(32+2*rp,2)}")
    for i in range(2):
        rne_bf16(a, 32 + i); a(f"v_mul_f32 v{32+i}, v{32+i}, v14"); rne_bf16(a, 32 + i)
    a("ds_write_b64 v3, v[32:33]\ns_setpc_b64 s[0:1]")
    a(f"""
L_idle:
    v_mov_b32 v5, 0
    v_mov_b32 v6, s{sTAG}
    s_barrier                          ; BL
    """)
    regwait(a, 3, 4, sleep=32)
    a(f"""
    s_branch L_svc
L_rg:
    """)
    if o.get("rg8", 1):
        a(f"s_cmp_ge_u32 s12, 2\ns_cbranch_scc1 L_idle\ns_sub_u32 s26, s{sM}, 24\ns_lshl3_add_u32 s26, s{sJO}, s26\ns_lshl1_add_u32 s27, s26, s12")
    else:
        a(f"s_cmp_lt_u32 s{sM}, 28\ns_cbranch_scc1 L_idle\ns_sub_u32 s26, s{sM}, 28\ns_lshl2_add_u32 s26, s{sJO}, s26\ns_lshl2_add_u32 s27, s26, s12")
    a(f"""
    s_lshl_b32 s28, s27, 4
    v_lshrrev_b32 v3, 3, v1
    v_add_u32 v4, s28, v3              ; row
    v_mul_u32_u24 v5, 1152, v4
    v_and_b32 v6, 7, v1
    v_lshlrev_b32 v6, 4, v6
    v_add_u32 v5, v5, v6
    v_add_u32 v7, 9216, v5
    """)
    if o.get("rgl", 1): a("s_barrier                          ; BL")
    for i in range(9): a(f"global_load_dwordx4 {vr(16+4*i,4)}, v5, s[{pX}:{pX+1}] offset:{128*i}")
    for i in range(9): a(f"global_load_dwordx4 {vr(88+4*i,4)}, v6, s[{pWR}:{pWR+1}] offset:{128*i}")
    for i in range(9): a(f"global_load_dwordx4 {vr(124+4*i,4)}, v6, s[{pGW}:{pGW+1}] offset:{128*i}")
    for i in range(9): a(f"global_load_dwordx4 {vr(52+4*i,4)}, v7, s[{pX}:{pX+1}] offset:{128*i}")
    a(f"""
    s_waitcnt lgkmcnt(0)
    v_mov_b64 v[8:9], 0
    v_mov_b64 v[10:11], 0
    {"" if o.get("rgl", 1) else "s_barrier                          ; BL"}
    s_waitcnt vmcnt(0)
    """)
    for i in range(36):
        a(f"v_dot2c_f32_bf16 v8, v{16+i}, v{88+i}")
        a(f"v_dot2c_f32_bf16 v9, v{52+i}, v{88+i}")
        a(f"v_dot2c_f32_bf16 v10, v{16+i}, v{124+i}")
        a(f"v_dot2c_f32_bf16 v11, v{52+i}, v{124+i}")
    a("s_nop 2")
    for mode in ("quad_perm:[1,0,3,2]", "quad_perm:[2,3,0,1]", "row_half_mirror"):
        for v in (8, 9, 10, 11):
            a(f"v_add_f32_dpp v{v}, v{v}, v{v} {mode} row_mask:0xf bank_mask:0xf")
    a("v_and_b32 v12, 1, v1\nv_cmp_eq_u32 vcc, 0, v12\nv_lshlrev_b32 v13, 2, v4\nv_lshl_add_u32 v13, v12, 5, v13\nv_cndmask_b32 v10, v11, v10, vcc")
    rne_bf16(a, 10); sigmoid(a, 10); rne_bf16(a, 10)
    a(f"""
    s_mov_b32 s29, {WS_G}
    buffer_store_dword v10, v13, {RW}, s29 offen sc1
    v_ashrrev_i32 v12, 31, v8
    v_or_b32 v12, 0x80000000, v12
    v_xor_b32 v8, v8, v12
    v_and_b32 v8, 0xfffff800, v8
    v_sub_u32 v12, 2047, v4
    v_or_b32 v8, v8, v12
    v_ashrrev_i32 v12, 31, v9
    v_or_b32 v12, 0x80000000, v12
    v_xor_b32 v9, v9, v12
    v_and_b32 v9, 0xfffff800, v9
    v_sub_u32 v12, 2039, v4
    v_or_b32 v9, v9, v12
    v_max_u32 v14, v8, v9
    v_min_u32 v15, v8, v9
    s_nop 1
    v_mov_b32_dpp v8, v14 row_ror:8 row_mask:0xf bank_mask:0xf
    v_mov_b32_dpp v9, v15 row_ror:8 row_mask:0xf bank_mask:0xf
    v_min_u32 v12, v8, v14
    v_max_u32 v14, v8, v14
    v_max3_u32 v15, v12, v9, v15
    """)
    for sw in ("v_permlane16_swap_b32", "v_permlane32_swap_b32"):
        a(f"""
        v_mov_b32 v8, v14
        v_mov_b32 v9, v15
        s_nop 1
        {sw} v8, v14
        {sw} v9, v15
        s_nop 1
        v_min_u32 v12, v8, v14
        v_max_u32 v14, v8, v14
        v_max3_u32 v15, v12, v9, v15
        """)
    regwait(a, 3, 4, sleep=8)
    a(f"""
    s_lshl_b32 s29, s27, 6
    s_add_u32 s29, s29, {WS_KEY}
    v_mov_b32 v5, 0
    v_mov_b32 v6, s{sTAG}
    v_lshlrev_b32 v3, 3, v1
    s_mov_b64 exec, 0xff
    buffer_store_dwordx2 v[14:15], v3, {RW}, s29 offen sc1
    s_mov_b64 exec, -1
    s_branch L_svc
L_select:
    v_lshlrev_b32 v3, 7, v1
    s_mov_b32 s29, {WS_KEY}
    """)
    poll(a, f"buffer_load_dwordx2 v[32:33], v3, {RW}, s29 offen sc1\nbuffer_load_dwordx2 v[34:35], v3, {RW}, s29 offen offset:64 sc1",
         "v_min_u32 v12, v32, v33\nv_min3_u32 v12, v12, v34, v35\nv_cmp_eq_u32 vcc, 0, v12", sleep=8)
    top2(a, 32, 12, 24)
    a(f"""
    s_lshl_b32 s29, s{sJ}, 7
    s_add_u32 s29, s29, {WS_SEL}
    v_mov_b32 v32, s24
    v_mov_b32 v33, s25
    v_lshlrev_b32 v3, 3, v1
    s_mov_b64 exec, 0xff
    buffer_store_dwordx2 v[32:33], v3, {RW}, s29 offen sc1
    s_mov_b64 exec, -1
    s_branch L_selected
    """)
    a("L_codeend:")
    if o.get("nogemm") or o.get("now") or o.get("nox"):
        i0 = a.L.index("L_gemm:"); i1 = [i for i, l in enumerate(a.L) if "s_cbranch_scc1 L_gemm" in l][0]
        if o.get("nogemm") == 1: a.L = a.L[:i0] + [l for l in a.L[i0:i1] if "v_mfma" not in l and "ds_read" not in l] + a.L[i1:]
        if o.get("nogemm") == 2: a.L = a.L[:i0] + [l for l in a.L[i0:i1] if "ds_read" not in l] + a.L[i1:]
        if o.get("now"): a.L = [l.replace(f"s_mov_b32 s10, {WB}", "s_mov_b32 s10, 0") for l in a.L]
        if o.get("nox"):
            i = [i for i, l in enumerate(a.L) if f"s_mov_b32 s10, {XB}" in l][0]; a.L[i] = "    s_mov_b32 s10, 0"
    if o.get("mstamp"):
        a.L = [l for l in a.L if not any(l.strip() == f"; STAMP {i}" for i in (1, 2, 4, 7, 8, 9, 10))]
        a.L = [l.replace("MSTAMP", "STAMP") for l in a.L]
    hdr = HEADER + f"; @launch grid=(256,1,1) block=(768,1,1) lds={LDS_BYTES}\n"
    return hdr + a.text() + '.section .rodata,"a"\n' + descriptor(NAME, 168, sgpr=64)

if __name__ == "__main__":
    o = dict((k.split("=")[0], int(k.split("=")[1]) if "=" in k else 1) for k in sys.argv[2:])
    open(sys.argv[1], "w").write(gen(o))
```

```python
import sys, math
from gen_common import *

NAME = "gated_mix__mha_block__moe_arch_mod__prompt_kernel"
XB = 2359296; WB = 1990656; WOB = 663552; WGB = 5308416
QSCALE = (18 ** -0.5) * math.log2(math.e)
LOG2E = math.log2(math.e)
JS = 884736; HS = 27648
WS_GLB = 0; WS_LOC = 0x700000
WS_O = 0xE00000
O_REM = 0x200000
WS_FG1 = 0x1280000
WS_FL1 = 0x1288000
WS_SEL = 0x128B000
WS_DONE = 0x128B400
WS_Y = 0x128C000
WS_KEY = 0x1295000
WS_CLR = WS_FG1
WS_G = 0x1298000
WS_END = 0x129A000
KV0 = 9216; SLOT = 18432; L_QS = KV0 + 7 * SLOT; MISC = 156672
M_CNT = 0; M_DONE = 4; M_BAD = 8; M_MODE = 12; M_SEL = 16; M_C0 = 24; M_GO = 28; M_ST1 = 32; M_BLK = 36; M_PROG = 64; M_FULL = 96; M_PF = 128
M_P = 256; M_H = 2304; M_Y = 2816; M_CB7 = 3584; M_G = 6144
L_CB = KV0 + 5 * SLOT; L_WO = KV0; L_A0 = KV0 + 6 * SLOT; L_A1 = KV0 + 7 * SLOT; AS = 288
LDS_BYTES = 163840
SPIN = 1 << 14
pX, pW, pWO, pWR, pWG, pWU, pWD, pGW, pOUT = 32, 34, 36, 40, 42, 44, 46, 48, 50
sWAVE, sJ, sM, sJO, sTAG = 3, 4, 5, 6, 7
sJB, sH = 38, 39
RS = 35840
RA = "s[8:11]"; RW = "s[16:19]"; RD = "s[20:23]"

def mf32(d, a, b, c=None):
    cs = vr(d, 16) if c is None else ("0" if c == 0 else vr(c, 16))
    return f"v_mfma_f32_32x32x16_bf16 {vr(d,16)}, {vr(a,4)}, {vr(b,4)}, {cs}"
def mf16(d, a, b, c=None):
    cs = vr(d, 4) if c is None else ("0" if c == 0 else vr(c, 4))
    return f"v_mfma_f32_16x16x32_bf16 {vr(d,4)}, {vr(a,4)}, {vr(b,4)}, {cs}"
def rne_bf16(a, v):
    a(f"v_cvt_pk_bf16_f32 v{v}, v{v}, v{v}")
    a(f"v_and_b32 v{v}, 0xffff0000, v{v}")
def sigmoid(a, v):
    a(f"v_mul_f32 v{v}, {f32bits(-LOG2E)}, v{v}\nv_exp_f32 v{v}, v{v}\ns_nop 0\nv_add_f32 v{v}, 1.0, v{v}\nv_rcp_f32 v{v}, v{v}\ns_nop 0")
_uid = [0]
def uid(p):
    _uid[0] += 1
    return f"L_{p}{_uid[0]}"
def poll(a, load, check, sleep=0, preloaded=False, spin=SPIN, extra=None, wait=None):
    l = uid("poll"); e = uid("ok"); c = uid("chk")
    a(f"s_movk_i32 s30, {spin}")
    if preloaded: a(f"s_branch {c}")
    a(f"{l}:")
    a(load)
    if preloaded: a(f"{c}:")
    a(wait or ("s_waitcnt lgkmcnt(0)" if load.startswith("ds_") else "s_waitcnt vmcnt(0)"))
    a(check)
    a(f"s_cbranch_vccz {e}")
    if extra: a(extra)
    if sleep: a(f"s_sleep {sleep}")
    a(f"s_sub_u32 s30, s30, 1\ns_cmp_lg_u32 s30, 0\ns_cbranch_scc1 {l}")
    a(f"{e}:")
def regaddr(a, t0): a(f"v_and_b32 v{t0}, 7, v1\nv_lshlrev_b32 v{t0}, 5, v{t0}")
def regload(t0, t1): return f"buffer_load_dword v{t1}, v{t0}, {RD}, 0 offen sc1"
def regwait(a, t0, t1, preloaded=False, sleep=0):
    if not preloaded: regaddr(a, t0)
    poll(a, regload(t0, t1), f"v_cmp_eq_u32 vcc, 0, v{t1}", preloaded=preloaded, sleep=sleep)
def wave_max_u32(a, v, t, sdst):
    for mode in ("quad_perm:[1,0,3,2]", "quad_perm:[2,3,0,1]", "row_half_mirror", "row_mirror"):
        a("s_nop 1")
        a(f"v_max_u32_dpp v{v}, v{v}, v{v} {mode} row_mask:0xf bank_mask:0xf")
    for sw in ("v_permlane16_swap_b32", "v_permlane32_swap_b32"):
        a(f"v_mov_b32 v{t}, v{v}\ns_nop 1\n{sw} v{t}, v{v}\ns_nop 1\nv_max_u32 v{v}, v{t}, v{v}")
    a("s_nop 0")
    a(f"v_readfirstlane_b32 s{sdst}, v{v}")
def top2(a, K, T, so):
    a(f"v_min_u32 v{T}, v{K}, v{K+2}\nv_max_u32 v{K}, v{K}, v{K+2}\nv_max3_u32 v{K+1}, v{T}, v{K+1}, v{K+3}\nv_mov_b32 v{K+2}, v{K}")
    wave_max_u32(a, K + 2, T, so)
    a(f"v_cmp_eq_u32 vcc, v{K+2}, v{K}\ns_nop 1\nv_cndmask_b32 v{K+2}, v{K}, v{K+1}, vcc")
    wave_max_u32(a, K + 2, T, so + 1)
def one_lane(a, x, n=1): a(f"s_mov_b64 exec, {(1 << n) - 1}\n{x}\ns_mov_b64 exec, -1")

aK, aKR, aV, vINC, IDX, vXO, vG, vM, vONE, XD = 2, 3, 4, 5, 6, 7, 8, 10, 11, 12
QM, QR, KR, KM, V, O, S = 16, 24, 26, 28, 32, 40, [72, 104]
cW16, cW8, cR16, cR8, oM, oR, aWm, aWr, aFl, aOm, aOr, aPw, aAr, aG, vKEY, vZ, vPW, vPR, vF = range(140, 159)
OMG = 160; T0 = 162
OF = 16; ACC = 52; XBR = 72; W = [80, 100, 120]
prog_rd = f"ds_read_b32 v{vF}, v{vPR} offset:{M_PROG}"

def final_addr(a, t):
    a(f"""
    v_mul_u32_u24 v{t}, 7282, v0
    v_lshrrev_b32 v{t}, 16, v{t}       ; row
    v_mul_u32_u24 v{t+1}, 9, v{t}
    v_sub_u32 v{t+1}, v0, v{t+1}       ; piece
    s_and_b32 s24, s{sM}, 3
    s_lshl2_add_u32 s24, s{sJO}, s24
    s_lshl_b32 s24, s24, 6
    s_lshr_b32 s25, s{sM}, 2
    s_mul_i32 s25, s25, 144
    v_lshl_add_u32 v{aG}, v{t}, 2, v{vM}
    v_add_u32 v{t}, s24, v{t}
    v_sub_u32 v{vKEY}, 2047, v{t}
    v_mul_u32_u24 v{vXO}, 1152, v{t}
    v_lshl_add_u32 v{vXO}, v{t+1}, 4, v{vXO}
    v_add_u32 v{vXO}, s25, v{vXO}
    v_lshlrev_b32 v{aAr}, 5, v0
    v_add_u32 v{aAr}, {L_A0}, v{aAr}
    """)
final_rd = f"ds_read_b32 v{vG}, v{aG} offset:{M_G}\nds_read_b64 {vr(T0,2)}, v{vM} offset:{M_SEL}"
def final_pre(a):
    for i in range(4):
        a(f"v_lshlrev_b32 v{XBR+2*i}, 16, v{XD+i}\nv_and_b32 v{XBR+2*i+1}, 0xffff0000, v{XD+i}")
    a(f"v_sub_f32 v{OMG}, 1.0, v{vG}")
    rne_bf16(a, OMG)
    a(f"""
    v_and_b32 v{T0}, 0x7ff, v{T0}
    v_and_b32 v{T0+1}, 0x7ff, v{T0+1}
    v_cmp_eq_u32 s[26:27], v{T0}, v{vKEY}
    v_cmp_eq_u32 s[28:29], v{T0+1}, v{vKEY}
    """)
    for i in range(0, 8, 2): a(f"v_pk_mul_f32 {vr(XBR+i,2)}, {vr(XBR+i,2)}, {vr(OMG,2)} op_sel_hi:[1,0]")
    a(f"s_or_b64 s[26:27], s[26:27], s[28:29]\ns_mov_b32 s8, s{pOUT}\ns_mov_b32 s9, s{pOUT+1}")

def roles(a, o):
    a(f"""
    s_getreg_b32 s24, hwreg(HW_REG_XCC_ID)
    s_and_b32 s24, s24, 15
    s_add_u32 s{sTAG}, {"s2" if o.get("slow") else "s24"}, 1
    s_and_b32 s24, s{sJ}, 1
    s_lshr_b32 s25, s{sJ}, 1
    s_lshl2_add_u32 s{sJO}, s24, s25
    s_lshr_b32 s{sJB}, s{sM}, 3
    s_lshl2_add_u32 s{sJB}, s24, s{sJB}
    s_and_b32 s{sH}, s{sM}, 7
    s_lshl3_add_u32 s{sH}, s25, s{sH}
    """)

def code_pf(a, vt, vd, tid):
    l = uid("pc")
    a(f"""
    s_getpc_b64 s[24:25]
{l}:
    s_sub_u32 s24, s24, {l} - {NAME}
    s_subb_u32 s25, s25, 0
    v_min_u32 v{vt}, (L_codeend - {NAME} - 4) / 128, v{tid}
    v_lshlrev_b32 v{vt}, 7, v{vt}
    global_load_dword v{vd}, v{vt}, s[24:25]
    """)

def gen(o={}):
    _uid[0] = 0
    a = Asm()
    a('.amdgcn_target "amdgcn-amd-amdhsa--gfx950"\n.text')
    kernel_begin(a, NAME)
    TS = 104; LD = 130
    a(f"""
    s_load_dwordx2 s[8:9], s[0:1], 0
    s_load_dwordx2 s[12:13], s[0:1], 8
    s_load_dwordx16 s[32:47], s[0:1], 0
    s_load_dwordx2 s[16:17], s[0:1], 88
    s_load_dwordx2 s[20:21], s[0:1], 80
    s_load_dwordx4 s[48:51], s[0:1], 64
    v_lshrrev_b32 v2, 6, v0
    v_and_b32 v1, 63, v0
    s_cmp_ge_u32 s2, 256
    s_cbranch_scc1 L_end
    v_readfirstlane_b32 s{sWAVE}, v2
    s_and_b32 s{sJ}, s2, 7
    s_lshr_b32 s{sM}, s2, 3
    s_mov_b32 s10, {XB}
    s_mov_b32 s11, 0x00020000
    s_mov_b32 s14, {WB}
    s_mov_b32 s15, s11
    s_mov_b32 s18, {WS_END}
    s_mov_b32 s19, s11
    s_movk_i32 s22, 256
    s_mov_b32 s23, s11
    s_cmp_eq_u32 s{sM}, 24
    s_cbranch_scc1 L_clear
L_cleared:
    s_cmp_lt_u32 s{sWAVE}, 8
    s_cbranch_scc1 L_loader
    """)
    if o.get("cpf", 1):
        a(f"s_cmp_lt_u32 s{sM}, {o.get('cpm', 28)}\ns_cbranch_scc1 L_service\nv_and_b32 v3, 0xff, v0")
        code_pf(a, 3, 165, 3)
    a(f"""
    s_branch L_service
L_loader:
    s_cmp_ge_u32 s{sM}, 24
    s_cbranch_scc1 L_ld_none
    s_setprio 3
    s_lshr_b32 s28, s{sM}, 3
    s_mul_i32 s29, s28, 3
    s_add_u32 s29, s29, s{sM}
    {"" if o.get("wr", 1) else "s_mov_b32 s29, 0"}
    s_add_u32 s29, s29, s{sWAVE}
    s_and_b32 s29, s29, 7
    s_and_b32 s26, s{sM}, 7
    s_and_b32 s27, s{sJ}, 1
    s_lshl3_add_u32 s26, s27, s26
    s_lshl3_add_u32 s26, s26, s29
    s_mul_i32 s26, s26, {16*1152}
    s_lshl_b32 s27, s29, 2
    v_lshrrev_b32 v3, 3, v1
    v_mul_u32_u24 v3, 1152, v3
    v_bfe_u32 v12, v1, 4, 1
    v_bitop3_b32 v12, v12, v1, s27 bitop3:0x96
    v_and_b32 v12, 7, v12
    v_lshlrev_b32 v12, 4, v12
    v_add3_u32 v{LD}, v12, v3, s26
    s_movk_i32 s27, 8192
    v_xad_u32 v{LD+1}, v{LD}, 32, s27
    s_mul_i32 s26, s29, {8*12}
    s_lshl2_add_u32 s26, s28, s26
    s_lshr_b32 s27, s{sJ}, 1
    s_add_u32 s26, s26, s27
    s_mul_i32 s26, s26, 288
    v_mul_u32_u24 v3, 57, v1
    v_lshrrev_b32 v3, 10, v3
    v_mul_u32_u24 v3, {3456 - 288}, v3
    v_lshlrev_b32 v12, 4, v1
    v_add3_u32 v{LD+2}, v12, v3, s26
    s_movk_i32 s27, {3*3456 - 864}
    v_add_u32 v{LD+3}, s27, v{LD+2}
    v_add_u32 v{LD+4}, s27, v{LD+3}
    s_lshl_b32 s59, s29, 11
    s_mul_i32 s61, s29, {2432 - 2048}
    s_addk_i32 s61, 16384
    s_mov_b32 s56, s{sJ}
    s_mov_b32 s60, 0
    s_waitcnt lgkmcnt(0)
    ; STAMP 7
L_ldloop:
    """)
    LA = o.get("la", 2); HF = o.get("hf", 0); H0 = o.get("h0", 1)
    xpart = f"""
    s_mov_b32 m0, s59
    s_lshl_b32 s57, s56, 7
    buffer_load_dwordx4 v{LD}, {RA}, s57 offen lds
    buffer_load_dwordx4 v{LD+1}, {RA}, s57 offen offset:1024 lds
    """
    wpart = f"""
    s_add_u32 m0, s59, s61
    s_mul_i32 s57, s56, 221184
    s_mov_b32 exec_hi, 0x3fffff
    buffer_load_dwordx4 v{LD+2}, s[12:15], s57 offen lds
    buffer_load_dwordx4 v{LD+3}, s[12:15], s57 offen offset:864 lds
    s_mov_b32 exec_hi, 15
    buffer_load_dwordx4 v{LD+4}, s[12:15], s57 offen offset:1728 lds
    s_mov_b32 exec_hi, -1
    """
    a(wpart if HF == 2 else xpart)
    if HF:
        a(f"s_cmp_lt_u32 s60, {H0}\ns_cbranch_scc1 L_ldmid\ns_waitcnt vmcnt({HF + 1})\ns_setprio 2\ns_barrier\nL_ldmid:")
    a(xpart if HF == 2 else wpart)
    a(f"""
    s_setprio 1
    s_add_u32 s59, s59, {RS}
    s_cmp_ge_u32 s59, {4*RS}
    s_cselect_b32 s58, {4*RS}, 0
    s_sub_u32 s59, s59, s58
    s_add_u32 s56, s56, 1
    {"s_and_b32 s56, s56, 1" if o.get("same") else ""}
    s_cmp_eq_u32 s56, 9
    s_cselect_b32 s56, 0, s56
    s_add_u32 s60, s60, 1
    """)
    if HF:
        a(f"""
        s_cmp_eq_u32 s60, 9
        s_cbranch_scc1 L_ld_done
        s_sub_u32 s58, s60, 2
        s_cmp_ge_u32 s58, {H0 - 1}
        s_cbranch_scc1 L_ldloop
        s_waitcnt vmcnt(5)
        s_barrier
        s_branch L_ldloop
        """)
    elif LA == 3:
        a("""
        s_bitcmp1_b32 10, s60
        s_cbranch_scc1 L_ldloop
        s_cmp_eq_u32 s60, 9
        s_cbranch_scc1 L_ld_done
        s_waitcnt vmcnt(10)
        s_cmp_lg_u32 s60, 2
        s_cbranch_scc1 L_ldbar
        s_waitcnt vmcnt(5)
L_ldbar:
        s_barrier
        s_branch L_ldloop
        """)
    else:
        a("""
        s_cmp_eq_u32 s60, 1
        s_cbranch_scc1 L_ldloop
        s_cmp_eq_u32 s60, 9
        s_cbranch_scc1 L_ld_done
        s_waitcnt vmcnt(5)
        s_barrier
        s_branch L_ldloop
        """)
    SP = o.get("sp", 0)
    a(f"""
L_clear:
    s_mul_i32 s24, s{sJ}, 12288
    s_add_u32 s24, s24, {WS_CLR}
    v_lshlrev_b32 v3, 4, v0
    v_mov_b64 v[4:5], 0
    v_mov_b64 v[6:7], 0
    v_mov_b32 v8, 1
    s_waitcnt lgkmcnt(0)
    buffer_store_dwordx4 v[4:7], v3, {RW}, s24 offen sc1
    s_lshl_b32 s24, s{sJ}, 5
    s_cmp_lg_u32 s{sWAVE}, 0
    s_waitcnt vmcnt(0)
    s_barrier
    s_cbranch_scc1 L_cleared
    s_mov_b64 exec, 1
    buffer_store_dword v8, v4, {RD}, s24 offen sc1
    s_mov_b64 exec, -1
    s_branch L_cleared
L_ld_none:
    s_and_b32 s26, s{sM}, 7
    s_add_u32 s56, s{sJ}, s{sWAVE}
    s_add_u32 s56, s56, {o.get("pf", 2)}
    s_mul_i32 s27, s56, 57
    s_lshr_b32 s27, s27, 9
    s_mul_i32 s27, s27, 9
    s_sub_u32 s56, s56, s27
    s_lshl3_add_u32 s58, s56, s26
    s_mul_i32 s58, s58, {8*3456}
    s_lshr_b32 s27, s{sJ}, 1
    s_lshl_b32 s27, s27, 8
    s_add_u32 s58, s58, s27
    s_lshl_b32 s56, s56, 7
    s_and_b32 s27, s{sJ}, 1
    s_lshl3_add_u32 s26, s27, s26
    s_mul_i32 s26, s26, {128*1152}
    s_add_u32 s56, s56, s26
    s_add_u32 s57, s56, {64*1152}
    v_mul_u32_u24 v3, 1152, v1
    v_min_u32 v4, 35, v1
    v_mul_u32_u24 v5, 21846, v4
    v_lshrrev_b32 v5, 16, v5
    v_mul_u32_u24 v5, 6, v5
    v_add_lshl_u32 v4, v4, v5, 7
    s_add_u32 s59, s58, {4*3456}
    s_cmp_gt_u32 s{sWAVE}, {8 - o.get("pf", 2)}
    s_waitcnt lgkmcnt(0)
    s_cbranch_scc1 L_ld_done
    {f"buffer_load_dword v{LD}, v3, {RA}, s56 offen" if o.get("pfx", 1) else ""}
    {f"buffer_load_dword v{LD}, v3, {RA}, s57 offen" if o.get("pfx", 1) else ""}
    buffer_load_dword v{LD}, v4, s[12:15], s58 offen
    buffer_load_dword v{LD}, v4, s[12:15], s59 offen
    {"s_waitcnt vmcnt(0)" if o.get("pfwait", 0) else ""}
L_ld_done:
    s_setprio 0
    """)
    roles(a, o)
    a(f"""
    s_mul_i32 s15, s{sJB}, {JS}
    s_mul_i32 s24, s{sH}, {HS}
    s_add_u32 s15, s15, s24
    s_add_u32 s15, s15, {WS_LOC}
    """)
    if not SP:
        a(f"""
        s_mul_i32 s24, s{sWAVE}, {27*128}
        s_add_u32 s24, s24, s15
        v_min_u32 v{TS+7}, 26, v1
        v_lshlrev_b32 v{TS+7}, 7, v{TS+7}
        buffer_load_dword v{TS+7}, v{TS+7}, {RW}, {"0" if o.get("nopre") else "s24"} offen sc1
        """)
    else:
        a(f"""
        s_cmp_lt_u32 s{sM}, 24
        s_cbranch_scc1 L_nopre
        s_lshr_b32 s24, s{sWAVE}, 1
        s_mul_i32 s24, s24, {JS}
        s_sub_u32 s24, s15, s24
        s_and_b32 s25, s{sWAVE}, 1
        s_mul_i32 s25, s25, {108*128}
        s_add_u32 s24, s24, s25
        s_add_u32 s25, s24, {54*128}
        v_min_u32 v{TS+7}, 53, v1
        v_lshlrev_b32 v{TS+7}, 7, v{TS+7}
        {"s_waitcnt vmcnt(0)" if SP == 2 else ""}
        buffer_load_dword v{LD}, v{TS+7}, {RW}, s24 offen sc1
        buffer_load_dword v{LD}, v{TS+7}, {RW}, s25 offen sc1
L_nopre:
        """)
    def chunk_bar(n, stamp=None):
        l = uid("nb")
        a(f"s_cmp_ge_u32 s{sM}, 24\ns_cbranch_scc1 {l}\ns_waitcnt vmcnt({n})\ns_barrier\n{l}:")
        if stamp: a(f"; STAMP {stamp}")
    if LA == 3: chunk_bar(10 if SP else 11)
    if not HF: chunk_bar(5 if SP else 6, 8)
    regaddr(a, TS + 14)
    chunk_bar(0 if SP else 1, 9)
    a(f"""
    {regload(TS + 14, TS + 15)}
    v_lshrrev_b32 v{TS+1}, 3, v1
    v_mul_u32_u24 v{TS+1}, 1152, v{TS+1}
    v_and_b32 v{TS+2}, 7, v1
    v_lshl_add_u32 v{TS+25}, v{TS+2}, 2, v{TS+1}
    v_mov_b32 v{TS+24}, 0x3f803f80
    v_mov_b32 v{vM}, {MISC}
    """)
    final_addr(a, TS + 1)
    for i in range(0, 32, 2): a(f"v_mov_b64 {vr(O+i,2)}, 0")
    a(f"""
    s_barrier
    ds_write_b32 v{TS+25}, v{TS+24}
    """)
    hh, r_, c8, g1, G_ = TS + 16, TS + 17, TS + 18, TS + 19, TS + 20
    a(f"""
    s_lshr_b32 s12, s{sWAVE}, 2        ; kh
    s_and_b32 s13, s{sWAVE}, 3         ; qg
    s_mul_i32 s24, s12, 9216
    s_add_u32 s24, s24, {KV0}
    v_lshrrev_b32 v{hh}, 5, v1
    v_bfe_u32 v{r_}, v1, 2, 2
    v_and_b32 v{c8}, 3, v1
    v_lshlrev_b32 v{c8}, 3, v{c8}
    v_bfe_u32 v{g1}, v1, 4, 1
    v_lshrrev_b32 v{G_}, 4, v1
    v_lshl_add_u32 v{TS+4}, v{hh}, 3, v{r_}
    v_lshl_or_b32 v{TS+4}, v{TS+4}, 5, v{c8}       ; (8hh+r)*32 + 8c
    v_mul_u32_u24 v{TS+5}, 1152, v{g1}
    v_add3_u32 v{aK}, v{TS+5}, v{TS+4}, s24
    v_and_b32 v{TS+1}, 1, v{r_}
    v_lshl_or_b32 v{TS+1}, v{TS+1}, 5, v{c8}
    v_add_u32 v{TS+1}, 512, v{TS+1}                ; (16+(r&1))*32 + 8c
    v_mul_u32_u24 v{TS+5}, 1152, v{G_}
    v_add3_u32 v{aKR}, v{TS+5}, v{TS+1}, s24
    s_mul_i32 s25, s13, 2304
    s_add_u32 s25, s25, {L_QS}
    v_mul_u32_u24 v{TS+5}, 576, v{G_}
    v_add3_u32 v{TS+10}, v{TS+5}, v{TS+1}, s25     ; q rem
    v_mul_u32_u24 v{TS+5}, 576, v{g1}
    v_add3_u32 v{TS+8}, v{TS+5}, v{TS+4}, s25      ; q main
    v_and_b32 v{TS+1}, 31, v1
    v_lshlrev_b32 v{TS+2}, 4, v{hh}
    v_lshl_or_b32 v{TS+3}, v{TS+1}, 5, v{TS+2}
    v_xor_b32 v{TS+2}, 16, v{TS+2}
    v_cmp_gt_u32 vcc, 16, v{TS+1}
    v_lshl_add_u32 v{TS+4}, v{TS+1}, 3, v{TS+2}
    v_add_u32 v{TS+4}, 384, v{TS+4}
    s_add_u32 s24, s24, 576
    v_cndmask_b32 v{TS+3}, v{TS+4}, v{TS+3}, vcc
    v_add_u32 v{TS+3}, s24, v{TS+3}
    s_mov_b32 vcc_lo, 0x0011ffff
    s_mov_b32 vcc_hi, 0x0011ffff
    v_mov_b32 v{TS+4}, {SLOT}
    v_mov_b32 v{IDX}, 0xdddddddd
    v_cndmask_b32 v{aV}, v{TS+2}, v{TS+3}, vcc
    v_cndmask_b32 v{vINC}, 0, v{TS+4}, vcc
    """)
    if o.get("vz", 1) == 2:
        a(f"v_mov_b32_dpp v{TS+4}, v{aV} row_shl:3 row_mask:0xf bank_mask:0xf\nv_mov_b32_dpp v{TS+5}, v{vINC} row_shl:3 row_mask:0xf bank_mask:0xf\ns_mov_b32 vcc_lo, 0x00020000\ns_mov_b32 vcc_hi, 0x00020000\ns_nop 1\nv_cndmask_b32 v{aV}, v{aV}, v{TS+4}, vcc\nv_cndmask_b32 v{vINC}, v{vINC}, v{TS+5}, vcc")
    if o.get("vz", 1):
        mk = ("0x0033ffff", "0x0007ffff", "0x0013ffff")[o.get("vz", 1) - 1]
        a(f"s_mov_b32 vcc_lo, {mk}\ns_mov_b32 vcc_hi, {mk}\nv_mov_b32 v{TS+4}, {LDS_BYTES + 4096}\ns_nop 0\nv_cndmask_b32 v{aV}, v{TS+4}, v{aV}, vcc")
    if o.get("kz"):
        a(f"s_mov_b32 vcc_lo, 0x00ff00ff\ns_mov_b32 vcc_hi, 0x00ff00ff\nv_mov_b32 v{TS+4}, {LDS_BYTES + 16384}\ns_nop 0\nv_cndmask_b32 v{aKR}, v{TS+4}, v{aKR}, vcc")
    a(f"""
    v_lshlrev_b32 v{oR}, 2, v{TS+1}
    v_lshlrev_b32 v{oM}, 4, v1
    """)
    a(f"""
    v_lshrrev_b32 v{TS+22}, 3, v1
    v_min_u32 v{TS+22}, 2, v{TS+22}
    v_and_b32 v{TS+1}, 7, v1
    v_lshl_or_b32 v{TS+22}, v{TS+22}, 5, v{TS+1}
    s_and_b32 s24, s{sM}, 24
    v_add_u32 v{TS+22}, s24, v{TS+22}
    s_lshl_b32 s24, s{sJ}, 9
    s_add_u32 s24, s24, {WS_FL1}
    v_lshl_add_u32 v{TS+11}, v{TS+22}, 2, s24
    v_mov_b32 v{vONE}, 1
    v_mov_b32 v{vZ}, 0
    s_lshl_b32 s24, s{sWAVE}, 2
    s_add_u32 s24, s24, {MISC + M_PROG}
    v_min_u32 v{vPW}, 1, v1
    v_lshl_add_u32 v{vPW}, v{vPW}, 13, s24
    v_min_u32 v{vPR}, 8, v1
    v_lshl_add_u32 v{vPR}, v{vPR}, 2, v{vM}
    s_mul_i32 s24, s13, 2560
    s_add_u32 s24, s24, {L_CB}
    v_add_u32 v{cW16}, s24, v{oM}
    v_lshl_add_u32 v{cW8}, v1, 3, s24
    s_add_u32 s25, s24, {4*2560}
    s_cmp_eq_u32 s13, 3
    s_cselect_b32 s25, {MISC + M_CB7}, s25
    v_add_u32 v{cR16}, s25, v{oM}
    v_lshl_add_u32 v{cR8}, v1, 3, s25
    """)
    a(f"""
    s_bfe_u32 s28, s{sWAVE}, 0x10001
    s_and_b32 s29, s{sWAVE}, 1
    s_lshl1_add_u32 s29, s12, s29
    v_mul_u32_u24 v{TS+1}, 18, v{hh}
    v_lshl_add_u32 v{TS+1}, v{g1}, 2, v{TS+1}
    v_add_u32 v{TS+1}, v{TS+1}, v{r_}
    v_mul_u32_u24 v{TS+1}, 160, v{TS+1}
    s_mul_i32 s24, s28, {288*160}
    s_add_u32 s24, s24, {L_WO}
    v_add3_u32 v{aWm}, v{TS+1}, v{c8}, s24
    v_lshrrev_b32 v{TS+1}, 1, v{r_}
    v_lshl_add_u32 v{TS+1}, v{G_}, 2, v{TS+1}
    v_mul_u32_u24 v{TS+1}, 18, v{TS+1}
    v_and_b32 v{TS+2}, 1, v{r_}
    v_add3_u32 v{TS+1}, v{TS+1}, v{TS+2}, 16
    v_mul_u32_u24 v{TS+1}, 160, v{TS+1}
    v_add3_u32 v{aWr}, v{TS+1}, v{c8}, s24
    v_and_b32 v{TS+1}, 15, v1
    s_and_b32 s24, s29, 1
    s_lshl_b32 s24, s24, 4
    v_add_u32 v{TS+2}, s24, v{TS+1}
    v_lshlrev_b32 v{TS+3}, 9, v{G_}
    v_lshl_add_u32 v{aOr}, v{TS+2}, 2, v{TS+3}
    v_lshl_add_u32 v{aOm}, v{TS+2}, 4, v{TS+3}
    s_lshl_b32 s24, s29, 4
    v_add_u32 v{TS+1}, s24, v{TS+1}
    v_mul_u32_u24 v{TS+1}, {AS}, v{TS+1}
    s_mul_i32 s24, s28, {L_A1 - L_A0}
    s_add_u32 s24, s24, {L_A0}
    v_lshlrev_b32 v{TS+2}, 4, v{G_}
    v_add3_u32 v{aPw}, v{TS+1}, v{TS+2}, s24
    s_lshl2_add_u32 s24, s{sJB}, s13
    s_lshl_b32 s24, s24, 6
    s_add_u32 s24, s24, s{sH}
    s_lshl_b32 s52, s24, 10
    s_add_u32 s52, s52, {WS_O}
    s_lshl_b32 s53, s24, 7
    s_add_u32 s53, s53, {WS_O + O_REM}
    s_and_b32 s24, s{sM}, 3
    s_lshl2_add_u32 s24, s{sJO}, s24
    s_lshr_b32 s25, s29, 1
    s_lshl1_add_u32 s24, s24, s25
    s_lshl1_add_u32 s24, s24, s28
    s_lshl_b32 s24, s24, 4
    s_lshl_b32 s55, s24, 10
    s_add_u32 s55, s55, {WS_O}
    s_lshl_b32 s56, s24, 7
    s_add_u32 s56, s56, {WS_O + O_REM}
    s_add_u32 s57, s55, 4096
    s_add_u32 s58, s55, 8192
    s_add_u32 s59, s55, 12288
    s_lshl_b32 s24, s13, 2
    s_add_u32 s24, s24, {MISC + M_PF}
    v_mov_b32 v{aFl}, s24
    """)
    a(f"""
    v_lshlrev_b32 v{TS+13}, 4, v0
    s_lshl_b32 s25, s{sWAVE}, 10
    s_add_u32 s26, s25, {L_QS - 18432 + 16384}
    s_add_u32 s25, s25, {KV0}
    s_add_u32 s27, s25, 16384
    s_cmp_lt_u32 s{sWAVE}, 2
    s_cselect_b32 s27, s27, s26
    s_mov_b32 s14, 0
    s_mov_b32 s61, 0
    """)
    ONE = o.get("one", 1)
    if ONE: a(f"s_cmp_lg_u32 s{sWAVE}, 0\ns_cbranch_scc1 L_follow")
    regwait(a, TS + 14, TS + 15, preloaded=True, sleep=o.get('s0', 32))
    a("s_mov_b32 exec_hi, 0\n; STAMP 1")
    poll(a, f"buffer_load_dword v{TS+2}, v{TS+11}, {RW}, 0 offen sc1\nds_read_b32 v{TS+3}, v{vM} offset:{M_MODE}",
         f"v_cmp_ne_u32 vcc, s{sTAG}, v{TS+2}",
         extra=f"s_waitcnt lgkmcnt(0)\nv_cmp_eq_u32 vcc, 2, v{TS+3}\ns_cbranch_vccnz L_general1", sleep=o.get("s1", 0))
    a(f"""
L_stage1:
    {f"v_mov_b32 v{TS+2}, s15" if ONE else ""}
    {f"ds_write_b32 v{vM}, v{TS+2} offset:{M_ST1}" if ONE else ""}
    s_mov_b32 exec_hi, -1
L_stage1b:
    ; STAMP 2
    s_mov_b32 m0, s25
    s_add_u32 s24, s15, 8192
    buffer_load_dwordx4 v{TS+13}, {RW}, s15 offen sc1 lds
    s_add_u32 m0, s25, 8192
    s_add_u32 s28, s15, 16384
    buffer_load_dwordx4 v{TS+13}, {RW}, s24 offen sc1 lds
    s_mov_b32 m0, s27
    s_cmp_ge_u32 s{sWAVE}, 3
    buffer_load_dwordx4 v{TS+13}, {RW}, s28 offen sc1 lds
    s_cbranch_scc1 L_no4
    s_add_u32 m0, s26, 8192
    s_add_u32 s28, s15, 24576
    buffer_load_dwordx4 v{TS+13}, {RW}, s28 offen sc1 lds
L_no4:
    s_mov_b64 exec, 1
    s_setprio 2
    s_waitcnt vmcnt(0)
    ; STAMP 14
    ds_add_u32 v{vM}, v{vONE} offset:{M_C0}
    s_mov_b64 exec, -1
    """)
    def toff(t): return t * 2304 if t < 4 else SLOT + (t - 4) * 2304
    def kreads(off): return [f"ds_read_b64_tr_b16 {vr(KM+2*m,2)}, v{aK} offset:{off + m*128}" for m in range(2)]
    def krread(off): return f"ds_read_b64_tr_b16 {vr(KR,2)}, v{aKR} offset:{off}"
    def vread(g, off): return f"ds_read_b128 {vr(V+4*g,4)}, v{aV} offset:{off + g*1152}"
    def m2b(Y, ab, c=None): return f"v_mfma_f32_32x32x4_2b_bf16 {vr(Y,32)}, {vr(KR,2)}, {vr(QR,2)}, {vr(Y,32)} cbsz:1 abid:{ab}"
    def smf(p, i): return f"v_smfmac_f32_32x32x32_bf16 {vr(O+16*(i>>1),16)}, {vr(V+4*(i&1),4)}, {vr(S[p]+8*i,8)}, v{IDX}"
    def exps(p, lo, hi): return [f"v_exp_f32 v{S[p]+i}, v{S[p]+i}" for i in range(lo, hi)]
    first = [f"ds_read_b32 v{T0}, v{vM} offset:{M_C0}"] + kreads(0)
    first += [f"ds_read_b64_tr_b16 {vr(QM+4*t+2*m,2)}, v{TS+8} offset:{t*1152+m*128}" for t in range(2) for m in range(2)]
    first += [f"ds_read_b64_tr_b16 {vr(QR,2)}, v{TS+10}", krread(0)]
    poll(a, "\n".join(first), f"v_cmp_ne_u32 vcc, 8, v{T0}", wait="s_waitcnt lgkmcnt(2)")
    a(mf32(S[0], KM, QM, 0)); a(mf32(S[0] + 16, KM, QM + 4, 0))
    for x in kreads(toff(1)): a(x)
    a(vread(0, 0)); a(vread(1, 0))
    a(f"s_waitcnt lgkmcnt(4)\nv_mov_b32 v{QR+1}, 0\ns_nop 3")
    a(m2b(S[0], 0))
    a("s_setprio 0\ns_nop 15\ns_nop 2")
    a("; STAMP 3")
    a(".p2align 6\nL_att:")
    PP = o.get("pp", 18)
    prog_ck = f"v_cmp_ge_u32 vcc, s14, v{vF}"
    for u in range(4):
        p = u & 1; q = 1 - p
        seq = exps(p, 0, PP) + ["s_setprio 1"] + exps(p, PP, 32)
        seq += ["s_setprio 2", "s_waitcnt lgkmcnt(0)"]
        if u == 3: seq += ["s_cbranch_scc1 L_last"]
        seq += [mf32(S[q], KM, QM, 0)]
        if u == 2: seq += [prog_ck]
        if u == 3: seq += [f"ds_add_u32 v{vPW}, v{vONE}", f"v_add_u32 v{aK}, {SLOT}, v{aK}"]
        seq += [mf32(S[q] + 16, KM, QM + 4, 0)]
        if u == 2: seq += ["s_cbranch_vccnz L_att_wait", "L_att_back:"]
        seq += kreads(toff(u + 2) if u < 3 else toff(1))
        MO = o.get("mo", 0)
        vo = toff(u + 1) if u < 3 else 0
        mid = [[krread(toff(u + 2))], ["s_nop 0"], [krread(toff(u + 2))], [f"v_add_u32 v{aKR}, {SLOT}, v{aKR}"]][u]
        misc = [["s_nop 1"], [prog_rd, "s_nop 0"], ["s_cmp_eq_u32 s14, 6", "s_nop 0"], ["s_add_u32 s14, s14, 1", "s_nop 0"]][u]
        adv = [f"v_add_u32 v{aV}, v{vINC}, v{aV}"] if u == 3 else ["s_nop 0"]
        mb = m2b(S[q], (u + 1) & 1)
        if MO == 0:
            seq += ["s_nop 2", smf(p, 0), "s_nop 3", mb] + mid + adv + ["s_nop 8", smf(p, 2), vread(0, vo), "s_nop 1", smf(p, 1)] + misc + [smf(p, 3), vread(1, vo)]
        if MO == 1:
            seq += ["s_nop 2", smf(p, 0), "s_nop 3", mb] + mid + adv + ["s_nop 8", smf(p, 1)] + misc + [smf(p, 2), vread(0, vo), "s_nop 1", smf(p, 3), vread(1, vo)]
        if MO == 2:
            seq += [smf(p, 0)] + misc + [smf(p, 1), "s_nop 3", mb] + mid + adv + ["s_nop 10", smf(p, 2), vread(0, vo), "s_nop 1", smf(p, 3), vread(1, vo)]
        if MO == 3:
            seq += adv + [smf(p, 0)] + misc + [smf(p, 2), vread(0, vo), "s_nop 1", mb] + mid + ["s_nop 11", smf(p, 1), "s_nop 2", smf(p, 3), vread(1, vo)]
        seq += ["s_setprio 0"]
        for x in seq: a(x)
    a("s_branch L_att\nL_last:")
    KM2, V2, QB = 136, 160, 8
    def kr2(reg, t): return [f"ds_read_b64_tr_b16 {vr(reg+2*m,2)}, v{aK} offset:{t*2304 + m*128}" for m in range(2)]
    def vr2(i, t0): return f"ds_read_b128 {vr((V, V+4, V2, V2+4)[i],4)}, v{aV} offset:{t0*2304 + i*1152}"
    def m2c(Y, qr): return f"v_mfma_f32_32x32x4_2b_bf16 {vr(Y,32)}, {vr(KR,2)}, {vr(qr,2)}, {vr(Y,32)}"
    def sm2(t, p, i): return f"v_smfmac_f32_32x32x32_bf16 {vr(O+16*t,16)}, {vr((V, V+4, V2, V2+4)[i],4)}, {vr(S[p]+8*i,8)}, v{IDX}"
    def eblock(p, lo=0, hi=32): return (exps(p, lo, PP) + ["s_setprio 1"] + exps(p, PP, hi)) if lo < PP <= hi else exps(p, lo, hi)
    seq = kr2(KM2, 0)
    seq = [x.replace(f"offset:{m*128}", f"offset:{toff(5) + m*128}") for m, x in enumerate(seq)]
    seq += [mf32(S[0], KM, QM, 0), f"ds_add_u32 v{vPW}, v{vONE}", f"v_add_u32 v{aK}, {SLOT}, v{aK}", f"v_add_u32 v{aV}, v{vINC}, v{aV}", f"v_mov_b32 v{QB}, v{QR}", f"v_mov_b32 v159, v{QR}"]
    seq += [smf(1, 0)] + kr2(KM, 2) + [f"v_mov_b32 v{QB+1}, 0", f"v_permlane32_swap_b32 v{QR}, v{QB}"]
    seq += [smf(1, 2), vr2(0, 0), vr2(2, 0), "s_waitcnt lgkmcnt(5)", mf32(S[0] + 16, KM2, QM, 0)] + kr2(KM2, 3) + [vr2(3, 0), "s_mov_b32 s14, 7"]
    seq += [smf(1, 1), f"v_add_u32 v{aKR}, {SLOT}, v{aKR}", "s_nop 3", m2c(S[0], QR), krread(4608), "s_nop 15", smf(1, 3), vr2(1, 0), "s_setprio 0"]
    def mblock(p, qt, ot, kn, vn, extra0=[], extra1=[], extra2=[]):
        q = 1 - p
        r = ["s_setprio 2", "s_waitcnt lgkmcnt(0)", mf32(S[q], KM, QM + 4 * qt, 0)] + extra0 + (kr2(KM, kn) if kn is not None else [])
        r += [mf32(S[q] + 16, KM2, QM + 4 * qt, 0)] + extra1 + (kr2(KM2, kn + 1) + ["s_nop 2"] if kn is not None else ["s_nop 4"])
        r += [sm2(ot, p, 0), vr2(0, vn), "s_nop 2", m2c(S[q], (QR, QB)[qt])] + ([krread(kn * 2304), "s_nop 9"] if kn is not None else ["s_nop 10"])
        r += [sm2(ot, p, 1), vr2(1, vn), "s_nop 0", sm2(ot, p, 2), vr2(2, vn), "s_nop 0", sm2(ot, p, 3), vr2(3, vn)] + extra2 + ["s_setprio 0"]
        return r
    def send(t):
        a16, a8 = ((cW16, cW8), (cR16, cR8))[t]; D = O + 16 * t
        return [f"ds_write_b128 v{a16}, {vr(D,4)}", f"ds_write_b128 v{a16}, {vr(D+4,4)} offset:1024", f"ds_write_b64 v{a8}, {vr(D+8,2)} offset:2048",
                f"ds_add_u32 v{vPW}, v{vONE} offset:{M_PF - M_PROG}"]
    def recv(t, P):
        a16, a8 = ((cW16, cW8), (cR16, cR8))[t]
        return [f"ds_read_b32 v{vF}, v{aFl}", f"ds_read_b64 {vr(P[2],2)}, v{a8} offset:2048", f"ds_read_b128 {vr(P[0],4)}, v{a16}", f"ds_read_b128 {vr(P[1],4)}, v{a16} offset:1024"]
    LO = (127 - 40) << 23
    def finish(t, P, expect, check, pad=0, inline=False):
        D = O + 16 * t; R = P[2]; l = uid("fin")
        if inline:
            a(f"s_waitcnt lgkmcnt(0)\nv_cmp_gt_u32 vcc, {expect}, v{vF}\ns_cbranch_vccnz L_retry{t}\nL_got{t}:")
        else:
            poll(a, "\n".join(recv(t, P)), f"v_cmp_gt_u32 vcc, {expect}, v{vF}", preloaded=True)
        if pad: a(f"s_nop {pad - 1}")
        a(f"""
        v_add_f32 v{D+9}, v{R+1}, v{D+9}
        v_add_f32 v{D+8}, v{R}, v{D+8}
        v_rcp_f32 v{R}, v{D+9}
        v_subrev_u32 v{vF}, {LO}, v{D+9}
        v_mul_f32 v{D+8}, v{D+8}, v{R}
        v_mov_b32 v{D+9}, v{D+8}
        v_cmp_lt_u32 vcc, {80 << 23}, v{vF}
        """)
        for i in range(0, 8, 2): a(f"v_pk_add_f32 {vr(D+i,2)}, {vr(P[i//4]+i%4,2)}, {vr(D+i,2)}")
        a(f"v_permlane32_swap_b32 v{D+8}, v{D+9}")
        for i in range(0, 8, 2): a(f"v_pk_mul_f32 {vr(D+i,2)}, {vr(D+i,2)}, {vr(R,2)} op_sel_hi:[1,0]")
        for i in range(5): a(f"v_cvt_pk_bf16_f32 v{D+i}, v{D+2*i}, v{D+2*i+1}")
        if check and not o.get('nochk'): a(f"s_cbranch_vccnz L_bad{t}")
        if t: a("s_add_u32 s24, s52, 32768\ns_add_u32 s25, s53, 4096")
        a(f"buffer_store_dwordx4 {vr(D,4)}, v{oM}, {RW}, s{(52, 24)[t]} offen sc1\nbuffer_store_dword v{D+4}, v{oR}, {RW}, s{(53, 25)[t]} offen sc1")
        if check: a(f"L_nostore{t}:")
    PA = (XD, O + 12, O + 10); PB = (S[0], S[0] + 4, S[0] + 8)
    seq += eblock(0) + mblock(0, 0, 0, 0, 2, extra2=[prog_rd])
    seq += eblock(1) + mblock(1, 1, 0, 2, 0, extra0=[prog_ck], extra1=["s_cbranch_vccnz L_att_wait2", "L_att_back2:"], extra2=["s_cmp_lg_u32 s12, 0"])
    seq += eblock(0, 0, 10) + ["s_cbranch_scc1 L_second"]
    seq += send(0) + eblock(0, 10) + mblock(0, 1, 1, None, 2)
    if o.get("si", 1):
        seq += eblock(1, 0, 26) + ["s_waitcnt lgkmcnt(0)", sm2(1, 1, 0)] + exps(1, 26, 29) + [sm2(1, 1, 1)] + exps(1, 29, 32) + ["s_setprio 2", sm2(1, 1, 2), sm2(1, 1, 3), "s_nop 11"] + send(1)
    else:
        seq += eblock(1) + ["s_setprio 2", "s_waitcnt lgkmcnt(0)"] + [sm2(1, 1, i) for i in range(4)] + ["s_nop 11"] + send(1)
    seq += ["; STAMP 4", "s_waitcnt lgkmcnt(0)", "s_branch L_stored", "L_second:"]
    FA = o.get("fa", 20)
    seq += recv(0, PA) + eblock(0, 10, FA)
    for x in seq: a(x)
    finish(0, PA, 1, True, inline=True)
    seq = ["; STAMP 13"] + eblock(0, FA, 32) + mblock(0, 1, 1, None, 2)
    seq += eblock(1, 0, 18) + ["s_waitcnt lgkmcnt(0)", sm2(1, 1, 0)] + exps(1, 18, 21) + [sm2(1, 1, 1)] + exps(1, 21, 28) + [sm2(1, 1, 2)] + exps(1, 28, 32)
    seq += recv(1, PB) + [sm2(1, 1, 3), "; STAMP 4"]
    for x in seq: a(x)
    finish(1, PB, 2, True, pad=9, inline=True)
    def wreads(s):
        r = []
        for n in range(5):
            for m in range(2):
                reg, off = (aWm, (36 * (s - 1) + 8 * m) * 160 + 32 * n) if s > 0 else (aWr, 36 * m * 160 + 32 * n)
                r.append(f"ds_read_b64_tr_b16 {vr(W[s%3]+4*n+2*m,2)}, v{reg} offset:{off}")
        return r
    a(f"""
L_stored:
    ; STAMP 11
    s_setprio 0
    buffer_load_dwordx4 {vr(XD,4)}, v{vXO}, {RA}, 0 offen
    s_barrier                          ; BE
    ; STAMP 10
    ds_read_b32 v{T0+2}, v{vM} offset:{M_BAD}
    {final_rd}
    s_movk_i32 s54, 1024
    s_waitcnt lgkmcnt(2)
    v_cmp_lt_u32 vcc, s61, v{T0+2}
    s_cbranch_vccnz L_fallback
L_oproj:
    """)
    rem = "\n".join(f"buffer_load_dword v{OF+32+i}, v{aOr}, {RW}, s56 offen offset:{i*128} sc1" for i in range(4))
    a(rem)
    for st in range(3):
        for x in wreads(st): a(x)
    TM = T0 + 3
    poll(a, rem, f"v_max3_u32 v{TM}, v{OF+32}, v{OF+33}, v{OF+34}\nv_max_u32 v{TM}, v{TM}, v{OF+35}\nv_cmp_eq_u32 vcc, -1, v{TM}", sleep=o.get("s2", 0), preloaded=True)
    a("; STAMP 5")
    for st in range(8):
        a(f"buffer_load_dwordx4 {vr(OF+4*st,4)}, v{aOm}, {RW}, s{[55,57,58,59][st//2]} offen offset:{(st%2)*2048} sc1")
    a("s_waitcnt lgkmcnt(0)")
    final_pre(a)
    if o.get("ostamp"): a("; STAMP 2")
    for i in range(9):
        st = (i + 8) % 9
        lg = 0 if i in (0, 8) else (10 if i == 7 else (14 if i >= 3 else 15))
        a(f"s_waitcnt vmcnt({min(8 - i, 8)}) lgkmcnt({lg})")
        if o.get("ostamp") and i in (0, 1, 5, 8): a(f"; STAMP {(7, 8, 9, 13)[(0, 1, 5, 8).index(i)]}")
        r = wreads(i + 3) if i < 6 else []
        for n in range(5):
            a(mf16(ACC + 4 * n, W[i % 3] + 4 * n, OF + 4 * st, 0 if i == 0 else None))
            for x in r[2*n:2*n+2]: a(x)
            if i > 0 and n < 2: a(f"v_max3_u32 v{TM}, v{OF+4*st+2*n}, v{OF+4*st+2*n+1}, v{TM}")
            if i == 8 and n == 2: a(f"v_cmp_eq_u32 vcc, -1, v{TM}")
    a("s_cbranch_vccnz L_oredo\nL_odone:")
    a("; STAMP 12\ns_nop 2")
    for n in range(5):
        if n == 4: a("s_mov_b32 exec_hi, 0")
        a(f"ds_write_b128 v{aPw}, {vr(ACC+4*n,4)} offset:{64*n}")
    a(f"""
    s_mov_b32 exec_hi, -1
L_final:
    s_cmp_lg_u64 s[26:27], 0
    s_waitcnt lgkmcnt(0)
    s_barrier                          ; BA
    ; STAMP 6
    ds_read_b128 v[24:27], v{aAr}
    ds_read_b128 v[32:35], v{aAr} offset:{L_A1 - L_A0}
    ds_read_b128 v[28:31], v{aAr} offset:16
    ds_read_b128 v[36:39], v{aAr} offset:{L_A1 - L_A0 + 16}
    s_cbranch_scc1 L_routed
L_mix:
    """)
    for hf in range(2):
        a(f"s_waitcnt lgkmcnt({2 - 2*hf})")
        for i in (4*hf, 4*hf+2): a(f"v_pk_add_f32 {vr(24+i,2)}, {vr(24+i,2)}, {vr(32+i,2)}")
        for i in (4*hf, 4*hf+2): a(f"v_pk_fma_f32 {vr(24+i,2)}, {vr(24+i,2)}, {vr(vG,2)}, {vr(XBR+i,2)} op_sel_hi:[1,0,1]")
        for i in (2*hf, 2*hf+1): a(f"v_cvt_pk_bf16_f32 v{16+i}, v{24+2*i}, v{25+2*i}")
    a(f"""
    buffer_store_dwordx4 v[16:19], v{vXO}, {RA}, 0 offen {('', 'sc1', 'nt', 'sc0 sc1')[o.get('of', 0)]}
L_end:
    s_endpgm
    """)
    a(f"""
L_follow:
    """)
    poll(a, f"ds_read_b32 v{TS+2}, v{vM} offset:{M_ST1}", f"v_cmp_eq_u32 vcc, -1, v{TS+2}", sleep=o.get("s3", 0), spin=32767)
    a(f"""
    v_readfirstlane_b32 s15, v{TS+2}
    s_nop 3
    s_branch L_stage1b
L_general1:
    v_lshrrev_b32 v{TS+3}, 2, v{TS+22}
    v_lshlrev_b32 v{TS+3}, 10, v{TS+3}
    v_and_b32 v{TS+1}, 3, v1
    v_lshl_or_b32 v{TS+3}, v{TS+1}, 2, v{TS+3}
    s_lshl_b32 s24, s{sJ}, 7
    s_add_u32 s24, s24, {WS_FG1}
    """)
    poll(a, f"buffer_load_dword v{TS+2}, v{TS+3}, {RW}, s24 offen sc1\nbuffer_load_dword v{TS+1}, v{TS+11}, {RW}, 0 offen sc1",
         f"v_cmp_ne_u32 vcc, 1, v{TS+2}", sleep=4, extra=f"v_cmp_ne_u32 vcc, s{sTAG}, v{TS+1}\ns_cbranch_vccz L_stage1")
    a(f"s_sub_u32 s15, s15, {WS_LOC - WS_GLB}\ns_branch L_stage1\nL_att_wait:")
    poll(a, prog_rd, prog_ck, sleep=1)
    a(f"""
    s_branch L_att_back
L_att_wait2:
    """)
    poll(a, prog_rd, prog_ck, sleep=1)
    a(f"""
    s_branch L_att_back2
    """)
    for t, P in ((0, PA), (1, PB)):
        a(f"L_retry{t}:")
        poll(a, "\n".join(recv(t, P)), f"v_cmp_gt_u32 vcc, {t + 1}, v{vF}")
        a(f"s_branch L_got{t}")
    a(f"""
L_bad0:
    ds_write_b32 v{vM}, v{IDX} offset:{M_BAD}
    s_branch L_nostore0
L_bad1:
    ds_write_b32 v{vM}, v{IDX} offset:{M_BAD}
    s_waitcnt lgkmcnt(0)
    s_branch L_nostore1
L_oredo:
    s_sub_u32 s54, s54, 1
    s_cmp_lg_u32 s54, 0
    s_cbranch_scc1 L_oproj
    s_branch L_odone
L_routed:
    v_sub_u32 v20, v{aG}, v{vM}
    v_mul_u32_u24 v20, 72, v20
    v_lshlrev_b32 v21, 5, v0
    v_sub_u32 v20, v21, v20            ; piece * 32
    v_add_u32 v21, {MISC + M_Y + 320}, v20
    v_add_u32 v20, {MISC + M_Y}, v20
    v_cndmask_b32 v20, v20, v21, s[28:29]
    ds_read_b128 v[40:43], v20
    ds_read_b128 v[44:47], v20 offset:16
    s_mov_b64 exec, s[26:27]
    """)
    for i in range(4):
        a(f"v_lshlrev_b32 v{XBR+2*i}, 16, v{XD+i}\nv_and_b32 v{XBR+2*i+1}, 0xffff0000, v{XD+i}")
    a("s_waitcnt lgkmcnt(0)")
    for i in range(8):
        a(f"v_add_f32 v{XBR+i}, v{XBR+i}, v{40+i}")
        rne_bf16(a, XBR + i)
        a(f"v_mul_f32 v{XBR+i}, v{XBR+i}, v{OMG}")
        rne_bf16(a, XBR + i)
    a("s_mov_b64 exec, -1\ns_branch L_mix")
    M0r, M1r = T0 + 4, T0 + 5
    a(f"""
L_fallback:
    s_waitcnt lgkmcnt(0)
    s_barrier
    s_barrier                          ; K/V reloaded
    s_mul_i32 s24, s12, 9216
    s_add_u32 s24, s24, {7 * SLOT}
    v_subrev_u32 v{aK}, s24, v{aK}
    v_subrev_u32 v{aKR}, s24, v{aKR}
    v_mul_u32_u24 v{T0}, 7, v{vINC}
    v_sub_u32 v{aV}, v{aV}, v{T0}
    s_mov_b32 exec_lo, 0
    v_mov_b32 v{QR}, v159
    s_mov_b32 exec_lo, -1
    v_mov_b32 v{M0r}, 0xff800000
    v_mov_b32 v{M1r}, 0xff800000
    s_mov_b32 s14, 0
L_fb_max:
    """)
    for t in range(2):
        for x in kreads(t * 2304): a(x)
        if t == 0: a(krread(0))
        a("s_waitcnt lgkmcnt(0)")
        a(mf32(S[0], KM, QM, 0)); a(mf32(S[0] + 16, KM, QM + 4, 0))
        a("s_nop 9"); a(m2b(S[0], t)); a("s_nop 15\ns_nop 3")
        for i in range(0, 16, 2):
            a(f"v_max3_f32 v{M0r}, v{S[0]+i}, v{S[0]+i+1}, v{M0r}")
            a(f"v_max3_f32 v{M1r}, v{S[0]+16+i}, v{S[0]+17+i}, v{M1r}")
    a(f"""
    v_add_u32 v{aK}, 4608, v{aK}
    v_add_u32 v{aKR}, 4608, v{aKR}
    s_add_u32 s14, s14, 1
    s_cmp_lt_u32 s14, 32
    s_cbranch_scc1 L_fb_max
    v_mov_b32 v{T0}, v{M0r}
    v_mov_b32 v{T0+1}, v{M1r}
    s_mul_i32 s24, s12, 9216
    s_sub_u32 s24, {8 * SLOT}, s24
    v_permlane32_swap_b32 v{T0}, v{M0r}
    v_permlane32_swap_b32 v{T0+1}, v{M1r}
    v_subrev_u32 v{aK}, s24, v{aK}
    v_subrev_u32 v{aKR}, s24, v{aKR}
    v_max_f32 v{M0r}, v{T0}, v{M0r}
    v_max_f32 v{M1r}, v{T0+1}, v{M1r}
    """)
    for i in range(0, 32, 2): a(f"v_mov_b64 {vr(O+i,2)}, 0")
    a("s_mov_b32 s14, 0\nL_fb_pv:")
    for t in range(4):
        for x in kreads(t * 2304): a(x)
        if t % 2 == 0: a(krread(t * 2304))
        a(vread(0, t * 2304)); a(vread(1, t * 2304))
        a("s_waitcnt lgkmcnt(0)")
        a(mf32(S[0], KM, QM, 0)); a(mf32(S[0] + 16, KM, QM + 4, 0))
        a("s_nop 9"); a(m2b(S[0], t & 1)); a("s_nop 15\ns_nop 3")
        for i in range(32):
            a(f"v_sub_f32 v{S[0]+i}, v{S[0]+i}, v{M0r + (i >> 4)}")
        for x in exps(0, 0, 32): a(x)
        a("s_nop 1")
        for i in range(4): a(smf(0, i))
    a(f"""
    v_add_u32 v{aK}, {SLOT}, v{aK}
    v_add_u32 v{aKR}, {SLOT}, v{aKR}
    v_add_u32 v{aV}, v{vINC}, v{aV}
    s_add_u32 s14, s14, 1
    s_cmp_lt_u32 s14, 8
    s_cbranch_scc1 L_fb_pv
    s_mov_b32 s61, -1
    s_nop 7
    s_cmp_lg_u32 s12, 0
    s_barrier
    s_cbranch_scc1 L_fb_second
    """)
    for x in send(0) + send(1): a(x)
    a("s_waitcnt lgkmcnt(0)\ns_branch L_stored\nL_fb_second:")
    for t in range(2):
        for x in recv(t, PB): a(x)
        finish(t, PB, 4, False)
    a("s_branch L_stored")
    RG = "s[52:55]"
    SA = [23, 24, 25, 26, 27]; AF = [28, 44, 60]; BF = 76; ACC1 = 96
    a(f"""
L_service:
    s_waitcnt lgkmcnt(0)
    s_sub_u32 s12, s{sWAVE}, 8         ; sw
    s_lshl_b32 s62, s2, 7
    s_lshl2_add_u32 s62, s12, s62
    s_add_u32 s62, s62, {WS_FG1}
    s_lshr_b32 s13, s12, 1             ; wm
    s_and_b32 s14, s12, 1              ; wn
    s_lshr_b32 s59, s{sM}, 3
    s_mov_b32 s54, {WOB}
    s_mov_b32 s55, 0x00020000
    s_cmp_lg_u32 s12, 0
    s_cbranch_scc1 L_noinit
    v_lshlrev_b32 v8, 2, v1
    v_lshrrev_b32 v9, 3, v1
    v_cmp_eq_u32 vcc, 2, v9
    v_add_u32 v8, {MISC}, v8
    s_nop 0
    v_cndmask_b32 v9, 0, v9, vcc
    v_writelane_b32 v9, -1, {M_ST1 // 4}
    ds_write_b32 v8, v9
    s_waitcnt lgkmcnt(0)
L_noinit:
    s_mov_b32 s52, s{pWO}
    s_mov_b32 s53, s{pWO+1}
    """)
    roles(a, o)
    a(f"""
    s_cmp_eq_u32 s59, 2
    s_cselect_b32 s27, 1, 0            ; is v
    s_movk_i32 s25, 1152
    s_cmp_eq_u32 s59, 0
    s_cselect_b32 s25, 576, s25
    s_cselect_b32 s26, 18432, 0
    s_mov_b32 s28, {HS}
    v_and_b32 v15, 15, v1
    v_bfe_u32 v13, v1, 4, 1
    v_lshrrev_b32 v16, 5, v1
    v_mul_u32_u24 v16, s25, v16
    s_lshl_b32 s24, s14, 6
    """)
    for nt in range(5):
        a(f"""
        {f"v_add3_u32 v3, v15, s24, {16*nt}" if nt < 4 else "v_add_u32 v3, 0x80, v15"}
        v_mul_u32_u24 v12, 3641, v3
        v_lshrrev_b32 v12, 16, v12         ; head
        v_mul_u32_u24 v14, 18, v12
        v_sub_u32 v3, v3, v14              ; d
        v_lshrrev_b32 v14, 4, v3
        v_bitop3_b32 v14, v14, s27, v13 bitop3:0x6a
        v_lshl_add_u32 v14, v14, 4, v16
        v_lshl_add_u32 v3, v3, 5, v14
        v_mad_u32_u24 v{SA[nt]}, v12, s28, v3
        """)
    a(f"""
    s_lshl_b32 s24, s{sJ}, 5
    s_add_u32 s24, s24, s{sM}
    s_lshl2_add_u32 s24, s24, s12
    s_lshl_b32 s24, s24, 2
    s_add_u32 s61, s24, {WS_FL1}
    s_cmp_ge_u32 s{sM}, 24
    s_cbranch_scc1 L_rg
    s_mul_i32 s27, s27, 576
    s_add_u32 s56, s26, s27
    s_and_b32 s24, s{sH}, 24
    s_mul_i32 s24, s24, {HS}
    s_add_u32 s56, s56, s24
    s_bfe_u32 s24, s{sM}, 0x20001
    s_and_b32 s26, s{sJB}, 4
    s_add_u32 s24, s24, s26
    s_mul_i32 s24, s24, {JS}
    s_add_u32 s56, s56, s24
    s_and_b32 s24, s{sM}, 1
    s_lshl2_add_u32 s24, s24, s12
    s_xor_b32 s26, s24, 1              ; p=1
    s_mul_i32 s24, s24, s25
    s_mul_i32 s26, s26, s25
    s_lshl1_add_u32 s57, s26, s56
    s_lshl1_add_u32 s56, s24, s56
    s_add_u32 s58, s56, {WS_LOC}
    s_add_u32 s60, s57, {WS_LOC}
    s_cmp_eq_u32 s59, 0
    s_cselect_b32 s26, {f32bits(QSCALE)}, 1.0
    s_mov_b32 s27, s26
    v_bfe_u32 v3, v1, 2, 2
    v_and_b32 v12, 3, v1
    v_lshl_or_b32 v14, v3, 3, v12
    v_bfe_u32 v15, v1, 1, 3            ; swizzle
    v_lshrrev_b32 v16, 4, v1           ; kg
    v_xor_b32 v15, v15, v16
    v_lshlrev_b32 v15, 4, v15
    v_lshl_or_b32 v14, v14, 7, v15
    s_lshl_b32 s24, s12, 12
    v_add_u32 v6, s24, v14
    v_xor_b32 v7, 0x1000, v6
    v_xor_b32 v8, 64, v6
    v_xor_b32 v9, 64, v7
    v_mul_u32_u24 v13, 288, v3
    v_mul_u32_u24 v14, 2432, v16
    v_lshl_add_u32 v13, v12, 3, v13
    v_add_u32 v13, v13, v14
    v_add_u32 v11, {16384 + 256}, v13
    s_lshl_b32 s24, s14, 7
    s_add_u32 s24, s24, 16384
    v_add_u32 v10, s24, v13
    v_mov_b64 v[16:17], v[6:7]
    v_mov_b64 v[18:19], v[8:9]
    v_mov_b64 v[20:21], v[10:11]
    s_mov_b32 s24, 0
    s_mov_b32 s25, 0
    """)
    for i in range(AF[1], AF[1] + 16, 2): a(f"v_mov_b64 {vr(i,2)}, 0")
    for i in range(BF, 168, 2): a(f"v_mov_b64 {vr(i,2)}, 0")
    def ard(kk, st): return [(f"A{st}{p}", f"ds_read_b128 {vr(AF[st]+8*p+4*e,4)}, v{16+2*kk+p} offset:{512*e}") for p in range(2) for e in range(2)]
    def brd(kk, n, buf): return [(f"B{buf}", f"ds_read_b64_tr_b16 {vr(BF+4*buf+2*m,2)}, v{20 + (n == 4)} offset:{4*2432*kk+4*288*m+32*(n&3)}") for m in range(2)]
    def acc(n, p): return ACC1 + 16 * n + 8 * p
    def mm(n, st, buf):
        return [((f"A{st}{p}", f"B{buf}"), mf16(acc(n, p) + 4 * e, AF[st] + 8 * p + 4 * e, BF + 4 * buf)) for p in range(1 if n == 4 else 2) for e in range(2)]
    class Q:
        def __init__(s, pend): s.pend = list(pend)
        def rd(s, x): a(x[1]); s.pend.append(x[0])
        def need(s, tags):
            last = max([i for i, t in enumerate(s.pend) if t in tags], default=-1)
            if last >= 0:
                n = min(len(s.pend) - 1 - last, 14)
                a(f"s_waitcnt lgkmcnt({n})"); s.pend = s.pend[len(s.pend) - n:] if n else []
        def drain(s): a("s_waitcnt lgkmcnt(0)"); s.pend = []
    def run(q, groups, reads, fill={}, per=1):
        i = 0; reads = list(reads)
        for g in groups:
            for tags, ins in g:
                q.need(tags); a(ins)
                for x in fill.get(i, []):
                    if x == "BAR": q.drain()
                    else: a(x)
                k = 0
                while reads and reads[0][0] <= i and k < per: q.rd(reads.pop(0)[1]); k += 1
                i += 1
        return [r[1] for r in reads]
    order = [4, 0, 1, 2, 3]; last = {4: 1, 0: 5, 1: 9, 2: 13, 3: 17}
    def step_reads(A, items, start):
        r = [(start, x) for x in items[0][1]] + [(start, x) for x in A]
        for buf, it in items[1:]: r += [(last[buf], x) for x in it]
        return r
    NB = o.get("nb", 3)
    regaddr(a, 3)
    a("s_setprio 3\n; STAMP 1")
    a(".p2align 4\nL_gemm:")
    steady = [x[0] for _, x in step_reads(ard(1, 1), [(n, brd(1, n, n)) for n in order], 1)]
    q = Q(steady)
    gs = ["s_cmp_lg_u32 s24, 1\ns_cbranch_scc1 L_gs1\n; STAMP 7\nL_gs1:"] if o.get("gstamp") else []
    left = run(q, [mm(n, 1, n) for n in order], step_reads(ard(0, 0), [(n, brd(0, n, n)) for n in order], NB),
               {NB: ["BAR", "s_barrier"] + gs, 0: [f"s_add_u32 s25, s25, {RS}"], 1: [f"s_cmp_eq_u32 s25, {4*RS}", "s_cselect_b32 s25, 0, s25"], 2: ["s_add_u32 s24, s24, 1"]})
    left = run(q, [mm(n, 0, n) for n in order], [(0, x) for x in left] + step_reads(ard(1, 1), [(n, brd(1, n, n)) for n in order], 1),
               {11: ["v_add_u32 v16, s25, v6"], 12: ["v_add_u32 v17, s25, v7", "s_cmp_lt_u32 s24, 8"], 15: ["v_add_u32 v18, s25, v8", "v_add_u32 v21, s25, v11"], 16: ["v_add_u32 v19, s25, v9"]})
    for x in left: q.rd(x)
    a("v_add_u32 v20, s25, v10\ns_cbranch_scc1 L_gemm")
    seq = [(n, kk) for n in (0, 1, 2, 3, 4) for kk in range(2)]
    bufs = [order[i % 5] for i in range(10)]
    a(regload(3, 4))
    q = Q(steady)
    r = step_reads(ard(0, 0), [(bufs[i], brd(seq[i][1], seq[i][0], bufs[i])) for i in range(5)], NB)
    r = r[:8] + [(NB, x) for x in ard(1, 2)] + r[8:]
    left = run(q, [mm(n, 1, n) for n in order], r, {NB: ["BAR", "s_barrier", "; STAMP 8"]}, per=2)
    def glb_store(n, p): return f"buffer_store_dwordx4 {vr(acc(n,p),4)}, v{SA[n]}, {RW}, s{56+p} offen sc1"
    def tile_out(n, p):
        D = acc(n, p)
        h = [f"v_pk_mul_f32 {vr(D+r,2)}, {vr(D+r,2)}, s[26:27]" for r in range(0, 8, 2)]
        if o.get("mul", 1) == 1: h = [f"v_mul_f32 v{D+r}, s26, v{D+r}\nv_mul_f32 v{D+r+1}, s26, v{D+r+1}" for r in range(0, 8, 2)]
        if o.get("mul") == 2: h = ["s_nop 0"] * 4
        h += [f"v_cvt_pk_bf16_f32 v{D+r}, v{D+2*r}, v{D+2*r+1}" for r in range(4)]
        return h + [f"buffer_store_dwordx4 {vr(D,4)}, v{SA[n]}, {RW}, s{58+2*p} offen"]
    fill = {}
    for n in range(4):
        for p in range(2):
            t = tile_out(n, p); i0 = 8 * n + 10 + 4 * p
            for k in range(4): fill.setdefault(i0 + k, []).extend(t[2*k:2*k+2] + ([t[8]] if k == 3 else []))
    fill.setdefault(8, []).append("s_nop 1"); fill.setdefault(9, []).append("s_nop 1")
    fill.setdefault(24, []).extend(["BAR", "s_barrier                          ; BL"])
    left = run(q, [mm(n, 2 * kk, bufs[i]) for i, (n, kk) in enumerate(seq)],
               [(0, x) for x in left] + [(4 * i + 3, x) for i in range(5) for x in brd(seq[i+5][1], seq[i+5][0], bufs[i])], fill)
    assert not left
    a("; STAMP 2")
    for i in range(36, 44):
        for x in fill.get(i, []): a(x)
    for x in tile_out(4, 0): a(x)
    a(f"v_mov_b32 v6, s{sTAG}\nv_mov_b32 v5, 0\n; STAMP 9")
    regwait(a, 3, 4, preloaded=True)
    a("L_svc:")
    one_lane(a, f"buffer_store_dword v6, v5, {RW}, s61 offen")
    a("; STAMP 10\ns_setprio 3")
    vL16, sZ = 2, 5
    a(f"""
    s_and_b32 s15, s{sM}, 3
    s_lshl2_add_u32 s15, s{sJO}, s15
    s_lshl_b32 s15, s15, 6
    s_mov_b32 s61, 0
    v_mov_b32 v{vM}, {MISC}
    v_mov_b32 v{vONE}, 1
    v_lshlrev_b32 v{vL16}, 4, v1
    s_cmp_lg_u32 s12, 0
    s_cbranch_scc1 L_helper
    """)
    def publish(): a("s_call_b64 s[0:1], L_publish")
    def qpub():
        l = uid("qok")
        a(f"s_cmp_eq_u32 s59, 3\ns_cbranch_scc1 {l}")
        poll(a, f"ds_read_b32 v4, v{vM} offset:{M_MODE}", "v_cmp_eq_u32 vcc, 0, v4", sleep=4)
        a(f"v_cmp_eq_u32 vcc, 1, v4\ns_cbranch_vccnz {l}"); publish(); a(f"{l}:")
    def selwait():
        a(f"s_lshl_b32 s24, s{sJ}, 7\ns_add_u32 s24, s24, {WS_SEL}")
        poll(a, f"buffer_load_dwordx2 v[12:13], v{sZ}, {RW}, s24 offen sc1", "v_min_u32 v4, v12, v13\nv_cmp_eq_u32 vcc, 0, v4", sleep=4)
    def level(n=1): one_lane(a, f"ds_add_u32 v{vM}, v{vONE} offset:{M_FULL}", n)
    def go(): one_lane(a, f"ds_add_u32 v{vM}, v{vONE} offset:{M_GO}")
    def slots(n): a(f"s_movk_i32 s29, {n}\ns_call_b64 s[0:1], L_slots")
    for i in range(5):
        a(f"""
        v_add_u32 v3, {64*i}, v1
        v_mul_u32_u24 v4, 6554, v3
        v_lshrrev_b32 v4, 16, v4
        v_mul_u32_u24 v9, 10, v4
        v_sub_u32 v3, v3, v9
        v_mul_u32_u24 v4, 1152, v4
        v_lshl_add_u32 v4, v3, 4, v4
        v_add_u32 v3, 7, v3
        v_and_b32 v3, 16, v3
        v_lshl_add_u32 v{16+i}, v3, {20 if o.get("wz", 1) else 28}, v4
        """)
        if 0 < i < 4: a(f"v_subrev_u32 v{16+i}, {1024*i}, v{16+i}")
    a(f"""
    v_lshlrev_b32 v21, 3, v1
    v_lshrrev_b32 v3, 2, v1
    v_lshlrev_b32 v3, 10, v3
    v_and_b32 v4, 3, v1
    v_lshl_or_b32 v22, v4, 2, v3
    v_max_u32 v4, 1, v4
    v_bfe_u32 v3, v1, 2, 2
    v_lshlrev_b32 v3, 13, v3
    v_lshl_or_b32 v9, v4, 2, v3
    s_lshl_b32 s28, s{sJ}, 9
    s_add_u32 s28, s28, {WS_FL1}
    s_mul_i32 s13, s{sH}, {HS}
    s_add_u32 s25, s13, {WS_LOC}
    s_mov_b32 s26, 1
    s_mov_b32 s27, {KV0 + SLOT}
    ; STAMP 3
    """)
    poll(a, f"ds_read_b32 v4, v{vM} offset:{M_C0}", f"v_cmp_gt_u32 vcc, {o.get('c0n', 1)}, v4", sleep=1, spin=128)
    loc = f"buffer_load_dwordx2 v[12:13], v21, {RW}, s28 offen sc1"
    locc = f"v_xor_b32 v12, s{sTAG}, v12\nv_xor_b32 v13, s{sTAG}, v13\nv_or_b32 v12, v12, v13\nv_cmp_ne_u32 vcc, 0, v12"
    poll(a, loc, locc, sleep=2, spin=48)
    a(f"s_cbranch_vccnz L_general2\nds_write_b32 v{vM}, v{vONE} offset:{M_MODE}\nL_stage2:\n; STAMP 4")
    slots(3); go()
    a("s_waitcnt vmcnt(36)"); level(); a("; STAMP 5")
    a("s_waitcnt vmcnt(0)"); level(2); a("; STAMP 12")
    def blockwait(x):
        a(f"s_and_b32 s28, s{sM}, 7\ns_lshl_b32 s28, s28, 3\ns_xor_b32 s24, s{sJ}, {x}\ns_add_u32 s28, s28, s24\ns_lshl_b32 s28, s28, 7\ns_add_u32 s28, s28, {WS_FG1 + 32}")
        a("s_mov_b64 exec, 0xffff")
        poll(a, f"buffer_load_dword v4, v9, {RW}, s28 offen sc1", "v_cmp_ne_u32 vcc, 1, v4", sleep=4)
        a("s_mov_b64 exec, -1\ns_mov_b32 s25, s13")
    blockwait(1)
    a("; STAMP 13")
    slots(3)
    final_addr(a, 3)
    a(f"v_and_b32 v{vPR}, 7, v1\nv_lshl_add_u32 v{vPR}, v{vPR}, 2, v{vM}\ns_mov_b32 s25, s13")
    poll(a, prog_rd, f"v_cmp_gt_u32 vcc, 3, v{vF}", sleep=4)
    slots(1)
    a(f"buffer_load_dwordx4 {vr(XD,4)}, v{vXO}, {RA}, 0 offen")
    go(); level()
    poll(a, f"ds_read_b32 v4, v{vM} offset:{M_BLK}", "v_cmp_ne_u32 vcc, 3, v4", sleep=8)
    poll(a, prog_rd, f"v_cmp_gt_u32 vcc, 4, v{vF}", sleep=8)
    go()
    a(f"""
    v_and_b32 v21, 7, v1
    v_bfe_u32 v4, v1, 3, 2
    v_lshlrev_b32 v4, 8, v4
    v_lshl_or_b32 v21, v21, 10, v4
    s_lshr_b32 s28, s{sJ}, 1
    s_lshl_b32 s28, s28, 6
    s_and_b32 s24, s{sJ}, 1
    s_add_u32 s28, s28, s24
    s_lshl_b32 s28, s28, 7
    s_add_u32 s28, s28, {WS_FG1 + 32}
    s_waitcnt vmcnt(0)
    """)
    level(4)
    a("s_mov_b32 exec_hi, 0")
    poll(a, f"buffer_load_dwordx4 v[24:27], v21, {RW}, s28 offen sc1", "v_bitop3_b32 v4, v25, v26, v27 bitop3:0x80\nv_cmp_ne_u32 vcc, 1, v4", sleep=8)
    a("s_mov_b32 exec_hi, -1")
    a("; STAMP 11")
    poll(a, prog_rd, f"v_cmp_gt_u32 vcc, 7, v{vF}", sleep=16)
    if o.get("cpf", 1):
        a(f"s_cmp_lg_u32 s{sM}, 20\ns_cbranch_scc1 L_wo")
        code_pf(a, 3, 35, 1)
    a(f"""
L_wo:
    s_lshr_b32 s26, s{sM}, 2
    s_mul_i32 s26, s26, 144
    s_add_u32 s24, s26, {256*1152}
    s_mov_b32 s25, {L_WO + 8*5120}
    s_mov_b32 s27, {L_WO + 18*5120}
L_wo_loop:
    s_mov_b32 m0, s25
    s_nop 0
    """)
    for i in range(4): a(f"buffer_load_dwordx4 v{16+i}, {RG}, s24 offen offset:{1024*i} lds")
    a(f"""
    s_add_u32 m0, s25, 4096
    s_add_u32 s25, s25, 5120
    buffer_load_dwordx4 v20, {RG}, s24 offen lds
    s_add_u32 s24, s24, {32*1152}
    s_cmp_lt_u32 s25, s27
    s_waitcnt vmcnt(50)
    s_cbranch_scc1 L_wo_loop
    s_cmp_eq_u32 s27, {L_WO + 8*5120}
    s_cbranch_scc1 L_wo_done
    s_add_u32 s24, s{sM}, 10
    s_and_b32 s24, s24, 31
    s_cmp_lt_u32 s24, {0 if o.get('nomoe') else 18}
    s_cselect_b32 s24, 6, 3
    """)
    poll(a, f"ds_read_b32 v4, v{vM} offset:{M_BLK}", "v_cmp_ne_u32 vcc, s24, v4", sleep=8)
    a(f"""
    s_mov_b32 s24, s26
    s_mov_b32 s25, {L_WO}
    s_mov_b32 s27, {L_WO + 8*5120}
    s_branch L_wo_loop
L_wo_done:
    s_waitcnt vmcnt(0) lgkmcnt(0)
    ; STAMP 14
    s_barrier                          ; BE
    ds_read_b32 v4, v{vM} offset:{M_BAD}
    {final_rd}
    s_waitcnt lgkmcnt(0)
    v_cmp_lt_u32 vcc, s61, v4
    s_cbranch_vccnz L_w8_fb
    """)
    final_pre(a)
    a(f"""
    s_branch L_final
L_w8_fb:
    s_barrier
    """)
    blockwait(0)
    a(f"s_mov_b32 s26, 0\ns_mov_b32 s27, {KV0}")
    slots(8)
    a(f"""
    s_waitcnt vmcnt(0)
    s_barrier
    s_mov_b32 s61, -1
    s_barrier
    s_branch L_wo
L_general2:
    v_mov_b32 v4, 2
    ds_write_b32 v{vM}, v4 offset:{M_MODE}
    """)
    qpub()
    a(f"s_lshl_b32 s29, s{sJ}, 7\ns_add_u32 s29, s29, {WS_FG1 + 8192}")
    poll(a, loc + f"\nbuffer_load_dword v4, v22, {RW}, s29 offen sc1", locc + "\ns_lshr_b64 vcc, vcc, 16\ns_lshl_b64 vcc, vcc, 32", sleep=4,
         extra="v_cmp_ne_u32 vcc, 1, v4\ns_cbranch_vccz L_general3")
    a(f"""
    s_branch L_stage2
L_general3:
    s_mov_b32 s25, s13
    s_branch L_stage2
L_publish:
    """)
    for n in range(5):
        for p in range(1 if n == 4 else 2): a(glb_store(n, p))
    a("s_mov_b32 s59, 3\ns_waitcnt vmcnt(0)")
    one_lane(a, f"buffer_store_dword v{vONE}, v{sZ}, {RW}, s62 offen sc1")
    a(f"""
    s_setpc_b64 s[0:1]
L_slots:
    s_xor_b32 s24, s26, s{sJB}
    s_mul_i32 s24, s24, {JS}
    s_mov_b32 m0, s27
    s_add_u32 s24, s24, s25
    """)
    for g in range(5):
        for u in range(4 if g < 4 else 2):
            a(f"buffer_load_dwordx4 v{vL16}, {RW}, s24 offen offset:{1024*u} sc1 lds")
        if g < 4: a(f"s_add_u32 m0, s27, {4096*(g+1)}\ns_add_u32 s24, s24, 4096")
    a(f"""
    s_add_u32 s27, s27, {SLOT}
    s_add_u32 s26, s26, 1
    s_sub_u32 s29, s29, 1
    s_cmp_lg_u32 s29, 0
    s_waitcnt vmcnt(45)
    s_cbranch_scc1 L_slots
    s_setpc_b64 s[0:1]
    """)
    aGU, aXF, aTG1, aTG, aTD, aDN, aP, aHW, aHR, aY, vTK, aPW = 7, 8, 9, 22, 14, 15, 16, 17, 18, 19, 20, 21
    GA = 28; UA = 76; XF = 124; AC = [148, 152, 156, 160]
    a(f"""
L_helper:
    s_sub_u32 s13, s12, 1              ; third
    s_and_b32 s14, s12, 1
    v_lshrrev_b32 v3, 2, v1
    v_mul_u32_u24 v3, 9216, v3
    v_and_b32 v4, 3, v1
    v_lshrrev_b32 v12, 5, v1
    v_lshlrev_b32 v13, 1, v12
    v_xor_b32 v13, v13, v4
    v_lshl_add_u32 v{aGU}, v13, 4, v3
    v_lshlrev_b32 v4, 3, v4            ; 8c
    v_bfe_u32 v28, v1, 2, 2            ; r
    v_lshrrev_b32 v29, 4, v1           ; kg
    s_mul_i32 s31, s13, 12288
    s_add_u32 s31, s31, {KV0}
    v_lshl_add_u32 v3, v29, 3, v28
    v_lshl_or_b32 v13, v3, 6, v4
    v_and_b32 v30, 16, v1
    v_lshl_or_b32 v13, v30, 1, v13
    v_add_u32 v{aTG}, s31, v13
    v_xor_b32 v{aTG1}, 32, v{aTG}
    v_lshl_or_b32 v3, v3, 7, v4
    v_bfe_u32 v13, v1, 3, 2            ; (r>>1) + 2*(kg&1)
    v_lshl_or_b32 v3, v13, 5, v3
    v_add_u32 v{aTD}, s31, v3
    v_lshrrev_b32 v3, 3, v1
    v_mul_u32_u24 v13, 1152, v3
    v_and_b32 v3, 2, v3
    v_and_b32 v4, 7, v1
    v_xor_b32 v4, v4, v3
    v_lshl_add_u32 v{aDN}, v4, 4, v13
    v_lshl_add_u32 v{aP}, v1, 2, v{vM}
    s_lshl_b32 s25, s12, 7
    s_add_u32 s25, s25, {MISC + M_H}
    v_and_b32 v3, 15, v1
    v_lshl_or_b32 v4, v12, 4, v3
    v_and_b32 v28, 16, v1
    v_lshl_add_u32 v4, v28, 1, v4
    v_lshl_add_u32 v{aHW}, v4, 1, s25
    v_and_b32 v4, 4, v1
    v_add_u32 v4, v4, v29
    v_lshl_add_u32 v{aHR}, v4, 4, s25
    v_mul_u32_u24 v4, 2304, v29
    v_lshl_add_u32 v{aY}, v3, 2, v4
    s_mul_i32 s25, s13, 384
    v_lshl_add_u32 v{aXF}, v29, 4, s25
    v_and_b32 v3, {3 if o.get("xz", 1) else 0}, v1
    v_lshl_add_u32 v{aXF}, v3, 24, v{aXF}
    v_lshl_add_u32 v{aHR}, v3, 13, v{aHR}
    v_bfe_i32 v{vTK}, v1, 2, 1
    s_lshl_b32 s25, s13, 9
    v_add_u32 v{aPW}, s25, v{aP}
    v_xor_b32 v164, 64, v{aDN}
    v_xor_b32 v165, 32, v{aTD}
    v_xor_b32 v166, 64, v{aTD}
    v_xor_b32 v167, 0x60, v{aTD}
    v_mov_b64 v[56:57], -1
    v_mov_b64 v[58:59], -1
    v_lshrrev_b32 v3, 3, v1
    s_cmp_eq_u32 s13, 2
    s_cselect_b32 s24, 12, 7
    v_lshlrev_b32 v3, s24, v3
    v_and_b32 v4, 0x70, v{vL16}
    v_or_b32 v60, v3, v4
    v_mul_u32_u24 v3, 57, v1
    v_lshrrev_b32 v3, 9, v3
    v_mul_u32_u24 v3, 63, v3
    v_add_lshl_u32 v30, v3, v1, 7
    s_sub_u32 s28, s{sM}, 8
    s_min_u32 s28, s28, 14
    s_mul_i32 s28, s28, 3
    s_add_u32 s28, s28, s13
    """)
    a("; STAMP 3")
    qpub()
    poll(a, f"ds_read_b64 v[12:13], v{vM} offset:{M_C0}", "v_min_u32 v13, 1, v13\nv_add_u32 v12, v12, v13\nv_cmp_ne_u32 vcc, 9, v12", sleep=2)
    MPF = o.get("mpf", 3)
    def mpf(ptr):
        a(f"""
        s_mul_i32 s25, s28, {14*9216}
        s_mul_i32 s27, s{sJ}, 1152
        s_add_u32 s25, s25, s27
        s_add_u32 s27, s25, {7*9216}
        s_mov_b64 s[52:53], s[{ptr}:{ptr+1}]
        buffer_load_dword v31, v30, {RG}, s25 offen
        buffer_load_dword v31, v30, {RG}, s27 offen
        """)
    a(f"""
    s_mul_i32 s24, s13, 6144
    s_add_u32 s25, s24, {KV0}
    v_add_u32 v4, s25, v{vL16}
    s_setprio 0
    """)
    for i in range(6): a(f"ds_read_b128 {vr(32+4*i,4)}, v4 offset:{1024*i}")
    a(f"""
    s_mul_i32 s25, s{sJB}, {JS}
    s_add_u32 s24, s24, s25
    s_mul_i32 s25, s{sH}, {HS}
    s_add_u32 s24, s24, s25
    s_add_u32 s25, s24, 4096
    s_waitcnt lgkmcnt(0)
    """)
    for i in range(6): a(f"buffer_store_dwordx4 {vr(32+4*i,4)}, v{vL16}, {RW}, s{24 + i//4} offen offset:{1024*(i%4)} sc1")
    a(f"""
    s_lshl_b32 s24, s{sJB}, 8
    s_add_u32 s24, s24, s{sH}
    s_lshl_b32 s25, s24, 10
    s_mul_i32 s26, s13, {3*32768}
    s_add_u32 s25, s25, s26
    s_add_u32 s25, s25, {WS_O}
    s_add_u32 s26, s25, 32768
    s_add_u32 s27, s25, 65536
    s_lshl_b32 s24, s24, 7
    s_add_u32 s24, s24, {WS_O + O_REM}
    s_cmp_eq_u32 s13, 2
    s_cselect_b32 s27, s24, s27
    buffer_store_dwordx4 v[56:59], v{vL16}, {RW}, s25 offen sc1
    buffer_store_dwordx4 v[56:59], v{vL16}, {RW}, s26 offen sc1
    buffer_store_dwordx4 v[56:59], v60, {RW}, s27 offen sc1
    s_setprio 3
    s_waitcnt vmcnt(0)
    """)
    one_lane(a, f"buffer_store_dword v{vONE}, v{sZ}, {RW}, s62 offen offset:32 sc1\nds_add_u32 v{vM}, v{vONE} offset:{M_BLK}")
    if MPF:
        a(f"s_cmp_ge_u32 s28, 42\ns_cbranch_scc1 L_nompf\ns_mov_b32 s54, {WGB}")
        poll(a, f"ds_read_b32 v4, v{vM} offset:{M_GO}", f"v_cmp_gt_u32 vcc, 2, v4", sleep=4)
        if MPF & 1: mpf(pWG)
        if MPF & 2: mpf(pWU)
        if MPF & 4:
            a(f"""
            v_lshlrev_b32 v4, 7, v1
            s_mul_i32 s25, s28, {124*128}
            s_mul_i32 s27, s{sJ}, {576*1152}
            s_add_u32 s25, s25, s27
            s_add_u32 s27, s25, {62*128}
            s_mov_b64 s[52:53], s[{pWD}:{pWD+1}]
            buffer_load_dword v31, v4, {RG}, s25 offen
            buffer_load_dword v31, v4, {RG}, s27 offen
            """)
        a("L_nompf:")
    a(f"""
    s_lshl2_add_u32 s24, s{sM}, s12
    s_cmp_eq_u32 s24, {25*4+3}
    s_cbranch_scc1 L_select
L_selected:
    s_add_u32 s24, s{sM}, 10
    s_and_b32 s24, s24, 31
    s_mul_i32 s29, s{sJ}, 18
    s_add_u32 s29, s29, s24
    s_cmp_lt_u32 s24, {0 if o.get("nomoe") else 18}
    s_cselect_b32 s54, {WGB}, 0
    s_mul_i32 s26, s13, {192*9216}
    s_lshl_b32 s24, s29, 6
    s_add_u32 s26, s26, s24
    """)
    def gowait(n):
        if n > 1: poll(a, f"ds_read_b32 v4, v{vM} offset:{M_GO}", f"v_cmp_gt_u32 vcc, {n}, v4", sleep=8)
    def stage(ptr, addr, off):
        a(f"s_mov_b32 s52, s{ptr}\ns_mov_b32 s53, s{ptr+1}")
        for i in range(12):
            a(f"s_add_u32 m0, s31, {1024*i}\ns_add_u32 s25, s26, {off(i)}\nbuffer_load_dwordx4 v{addr(i)}, {RG}, s25 offen lds")
    selwait()
    a(f"""
    s_cmp_lg_u32 s12, 1
    s_cbranch_scc1 L_nog
    ds_write_b64 v{vM}, v[12:13] offset:{M_SEL}
    s_lshl_b32 s24, s15, 2
    s_add_u32 s24, s24, {WS_G - MISC}
    buffer_load_dword v24, v{aP}, {RW}, s24 offen sc1
    s_waitcnt vmcnt(0)
    ds_write_b32 v{aP}, v24 offset:{M_G}
L_nog:
    """)
    gowait(3)
    if o.get("wb"):
        a(f"s_cmp_lg_u32 s{sM}, 21\ns_cbranch_scc1 L_nowb\ns_cmp_lg_u32 s12, 1\ns_cbranch_scc1 L_nowb")
        poll(a, f"ds_read_b32 v4, v{vM} offset:{M_FULL}", f"v_cmp_gt_u32 vcc, 8, v4", sleep=16)
        a("buffer_wbl2 sc1\nL_nowb:")
    a(f"""
L_sel2:
    ; STAMP 12
    v_readfirstlane_b32 s56, v12
    v_readfirstlane_b32 s57, v13
    s_mov_b32 s60, s29
    s_and_b32 s58, s56, 0x7ff
    s_sub_u32 s58, 2047, s58           ; idx0
    s_and_b32 s59, s57, 0x7ff
    s_sub_u32 s59, 2047, s59           ; idx1
    s_cmp_eq_u32 s54, 0
    s_cbranch_scc1 L_moedone
    s_mul_i32 s25, s58, 1152
    s_mul_i32 s24, s59, 1152
    s_sub_u32 s24, s24, s25
    v_and_b32 v{vTK}, s24, v{vTK}
    v_add3_u32 v{aXF}, v{aXF}, v{vTK}, s25
    """)
    for i in range(6):
        a(f"buffer_load_dwordx4 {vr(XF+4*i,4)}, v{aXF}, {RA}, 0 offen offset:{64*i}")
    MP = o.get("mp", 2)
    def frags(base, gu):
        a("s_waitcnt vmcnt(0)")
        for i in range(12):
            for m in range(2):
                if gu: a(f"ds_read_b64_tr_b16 {vr(base+4*i+2*m,2)}, v{(aTG, aTG1)[i&1]} offset:{2048*(i>>1)+256*m}")
                else: a(f"ds_read_b64_tr_b16 {vr(base+4*i+2*m,2)}, v{(aTD, 165, 166, 167)[i&3]} offset:{4096*(i>>2)+512*m}")
            if i % 2 and o.get("fw", 1): a("s_waitcnt lgkmcnt(0)")
        a("s_waitcnt lgkmcnt(0)")
    def gu_mm(mat, base):
        a(f"s_setprio {MP}")
        for i in range(12): a(mf16(AC[2 * mat + (i & 1)], XF + 4 * (i >> 1), base + 4 * i, 0 if i < 2 else None))
        a("s_setprio 0")
    a("s_setprio 0")
    stage(pWG, lambda i: aGU, lambda i: 16 * 9216 * i)
    frags(GA, True); a("; MSTAMP 2")
    stage(pWU, lambda i: aGU, lambda i: 16 * 9216 * i)
    gu_mm(0, GA)
    frags(UA, True); a("; MSTAMP 1")
    a("s_mul_i32 s25, s60, 36864\ns_mul_i32 s26, s13, 384\ns_add_u32 s26, s25, s26")
    stage(pWD, lambda i: (aDN, 164)[i & 1], lambda i: 128 * (i >> 2) + 9216 * (i & 3))
    gu_mm(1, UA)
    a(f"""
    ; MSTAMP 7
    s_mov_b32 exec_hi, 0
    ds_write_b32 v{aPW}, v{AC[0]} offset:{M_P}
    s_not_b64 exec, exec
    ds_write_b32 v{aPW}, v{AC[1]} offset:{M_P}
    s_nop 3
    ds_write_b32 v{aPW}, v{AC[3]} offset:{M_P + 256}
    s_not_b64 exec, exec
    ds_write_b32 v{aPW}, v{AC[2]} offset:{M_P + 256}
    s_mov_b64 exec, 1
    ds_add_u32 v{vM}, v{vONE} offset:{M_CNT}
    s_mov_b64 exec, -1
    """)
    frags(GA, False)
    one_lane(a, f"ds_add_u32 v{vM}, v{vONE} offset:{M_BLK}")
    a("s_setprio 3")
    poll(a, f"ds_read_b32 v4, v{vM} offset:{M_CNT}", "v_cmp_ne_u32 vcc, 3, v4", sleep=4)
    a("; MSTAMP 9")
    for w in range(6): a(f"ds_read_b32 v{XF+w}, v{aP} offset:{M_P + 256*w}")
    a(f"""
    s_waitcnt lgkmcnt(0)
    v_pk_add_f32 {vr(XF,2)}, {vr(XF,2)}, {vr(XF+2,2)}
    v_pk_add_f32 {vr(XF,2)}, {vr(XF,2)}, {vr(XF+4,2)}
    v_cvt_pk_bf16_f32 v{XF+1}, v{XF}, v{XF+1}
    v_lshlrev_b32 v{XF}, 16, v{XF+1}
    v_mul_f32 v{XF+2}, {f32bits(-LOG2E)}, v{XF}
    v_exp_f32 v{XF+2}, v{XF+2}
    v_and_b32 v{XF+1}, 0xffff0000, v{XF+1}
    v_add_f32 v{XF+2}, 1.0, v{XF+2}
    v_rcp_f32 v{XF+2}, v{XF+2}
    s_and_b32 s25, s60, 7
    v_mul_f32 v{XF}, v{XF}, v{XF+2}
    """)
    rne_bf16(a, XF)
    a(f"""
    v_mul_f32 v{XF}, v{XF}, v{XF+1}
    v_cvt_pk_bf16_f32 v{XF}, v{XF}, v{XF}
    ds_write_b16 v{aHW}, v{XF}
    ds_read_b128 {vr(XF+4,4)}, v{aHR}
    s_setprio {MP}
    s_waitcnt lgkmcnt(0)
    """)
    for n in range(12): a(mf16(UA + 4 * n, XF + 4, GA + 4 * n, 0))
    a("s_setprio 0")
    a(f"""
    s_mul_i32 s25, s25, 4608
    s_mul_i32 s26, s13, 768
    s_add_u32 s25, s25, s26
    s_add_u32 s25, s25, {WS_Y}
    ; MSTAMP 10
    s_mov_b32 exec_hi, 0
    """)
    for n in range(12):
        a(f"buffer_atomic_add_f32 v{UA+4*n}, v{aY}, {RW}, s25 offen offset:{64*n} sc1")
    a(f"""
    s_mov_b64 exec, 1
    s_setprio 3
    s_waitcnt vmcnt(0)
    ds_add_rtn_u32 v4, v{vM}, v{vONE} offset:{M_DONE}
    s_lshl_b32 s25, s{sJ}, 7
    s_add_u32 s25, s25, {WS_DONE}
    s_waitcnt lgkmcnt(0)
    v_cmp_eq_u32 vcc, 2, v4
    s_cbranch_vccz L_notlast
    buffer_atomic_add v{vONE}, v{sZ}, {RW}, s25 offen sc1
L_notlast:
    s_mov_b64 exec, -1
L_moedone:
    ; STAMP 13
    s_cmp_eq_u32 s12, 2
    s_cselect_b32 s26, s58, s59
    s_cselect_b32 s27, s56, s57
    s_andn2_b32 s26, s26, 63
    s_cmp_eq_u32 s15, s26
    s_cselect_b32 s28, 1, 0
    s_cmp_eq_u32 s12, 1
    s_cselect_b32 s28, 0, s28
    {"s_mov_b32 s28, 0" if o.get("nomoe") else ""}
    v_lshrrev_b32 v3, 3, v1
    v_lshlrev_b32 v3, 7, v3
    s_mov_b32 s29, {WS_DONE}
    s_cmp_eq_u32 s28, 0
    s_cbranch_scc1 L_h_wait
    """)
    ydone = f"buffer_load_dword v4, v3, {RW}, s29 offen sc1"
    poll(a, f"ds_read_b32 v12, v{vM} offset:{M_PF if o.get('ylate', 0) else M_PROG}\ns_waitcnt lgkmcnt(0)\nv_cmp_lt_u32 vcc, {0 if o.get('ylate', 0) else 8}, v12\ns_cbranch_vccnz L_h_wait\n" + ydone,
         "v_cmp_ne_u32 vcc, 18, v4", sleep=8, wait="s_waitcnt vmcnt(0)")
    a(f"""
    s_call_b64 s[0:1], L_yprep
L_h_wait:
    s_waitcnt vmcnt(0) lgkmcnt(0)
    ; STAMP 14
    s_barrier                          ; BE
    ds_read_b32 v4, v{vM} offset:{M_BAD}
    s_waitcnt lgkmcnt(0)
    v_cmp_lt_u32 vcc, s61, v4
    s_cbranch_vccnz L_h_fb
    s_cmp_eq_u32 s28, 0
    s_cbranch_scc1 L_h_end
    """)
    poll(a, ydone, "v_cmp_ne_u32 vcc, 18, v4", sleep=2)
    a(f"""
    s_call_b64 s[0:1], L_yprep
    s_waitcnt lgkmcnt(0)
L_h_end:
    s_endpgm
L_h_fb:
    s_barrier
    s_barrier
    s_mov_b32 s61, -1
    s_barrier
    s_branch L_h_wait
L_yprep:
    ; MSTAMP 4
    s_mov_b32 s28, 0
    v_min_u32 v3, 35, v1
    v_lshlrev_b32 v3, 3, v3
    s_lshr_b32 s24, s{sM}, 2
    s_mul_i32 s24, s24, 288
    s_mul_i32 s25, s14, 2304
    s_add_u32 s24, s24, s25
    s_add_u32 s24, s24, {WS_Y}
    """)
    for rp in range(8):
        a(f"buffer_load_dwordx2 {vr(32+2*rp,2)}, v3, {RW}, s24 offen sc1\ns_add_u32 s24, s24, 4608")
    a(f"""
    s_and_b32 s27, s27, 0xfffff800
    s_xor_b32 s24, s27, 0x80000000
    s_not_b32 s25, s27
    s_bitcmp1_b32 s27, 31
    s_cselect_b32 s27, s24, s25
    v_mov_b32 v14, s27
    """)
    rne_bf16(a, 14); sigmoid(a, 14); rne_bf16(a, 14)
    a(f"s_mul_i32 s24, s14, 320\ns_add_u32 s24, s24, {MISC + M_Y}\nv_add_u32 v3, s24, v3\ns_waitcnt vmcnt(0)")
    for rp in range(1, 8): a(f"v_pk_add_f32 v[32:33], v[32:33], {vr(32+2*rp,2)}")
    for i in range(2):
        rne_bf16(a, 32 + i); a(f"v_mul_f32 v{32+i}, v{32+i}, v14"); rne_bf16(a, 32 + i)
    a("ds_write_b64 v3, v[32:33]\ns_setpc_b64 s[0:1]")
    a(f"""
L_idle:
    v_mov_b32 v5, 0
    v_mov_b32 v6, s{sTAG}
    s_barrier                          ; BL
    """)
    regwait(a, 3, 4, sleep=32)
    a(f"""
    s_branch L_svc
L_rg:
    s_cmp_lt_u32 s{sM}, 28
    s_cbranch_scc1 L_idle
    s_sub_u32 s26, s{sM}, 28
    s_lshl2_add_u32 s26, s{sJO}, s26
    s_lshl2_add_u32 s27, s26, s12
    s_lshl_b32 s28, s27, 4
    v_lshrrev_b32 v3, 3, v1
    v_add_u32 v4, s28, v3              ; row
    v_mul_u32_u24 v5, 1152, v4
    v_and_b32 v6, 7, v1
    v_lshlrev_b32 v6, 4, v6
    v_add_u32 v5, v5, v6
    v_add_u32 v7, 9216, v5
    """)
    if o.get("rgl", 1): a("s_barrier                          ; BL")
    for i in range(9): a(f"global_load_dwordx4 {vr(16+4*i,4)}, v5, s[{pX}:{pX+1}] offset:{128*i}")
    for i in range(9): a(f"global_load_dwordx4 {vr(88+4*i,4)}, v6, s[{pWR}:{pWR+1}] offset:{128*i}")
    for i in range(9): a(f"global_load_dwordx4 {vr(124+4*i,4)}, v6, s[{pGW}:{pGW+1}] offset:{128*i}")
    for i in range(9): a(f"global_load_dwordx4 {vr(52+4*i,4)}, v7, s[{pX}:{pX+1}] offset:{128*i}")
    a(f"""
    s_waitcnt lgkmcnt(0)
    v_mov_b64 v[8:9], 0
    v_mov_b64 v[10:11], 0
    {"" if o.get("rgl", 1) else "s_barrier                          ; BL"}
    s_waitcnt vmcnt(0)
    """)
    for i in range(36):
        a(f"v_dot2c_f32_bf16 v8, v{16+i}, v{88+i}")
        a(f"v_dot2c_f32_bf16 v9, v{52+i}, v{88+i}")
        a(f"v_dot2c_f32_bf16 v10, v{16+i}, v{124+i}")
        a(f"v_dot2c_f32_bf16 v11, v{52+i}, v{124+i}")
    a("s_nop 2")
    for mode in ("quad_perm:[1,0,3,2]", "quad_perm:[2,3,0,1]", "row_half_mirror"):
        for v in (8, 9, 10, 11):
            a(f"v_add_f32_dpp v{v}, v{v}, v{v} {mode} row_mask:0xf bank_mask:0xf")
    a("v_and_b32 v12, 1, v1\nv_cmp_eq_u32 vcc, 0, v12\nv_lshlrev_b32 v13, 2, v4\nv_lshl_add_u32 v13, v12, 5, v13\nv_cndmask_b32 v10, v11, v10, vcc")
    rne_bf16(a, 10); sigmoid(a, 10); rne_bf16(a, 10)
    a(f"""
    s_mov_b32 s29, {WS_G}
    buffer_store_dword v10, v13, {RW}, s29 offen sc1
    v_ashrrev_i32 v12, 31, v8
    v_or_b32 v12, 0x80000000, v12
    v_xor_b32 v8, v8, v12
    v_and_b32 v8, 0xfffff800, v8
    v_sub_u32 v12, 2047, v4
    v_or_b32 v8, v8, v12
    v_ashrrev_i32 v12, 31, v9
    v_or_b32 v12, 0x80000000, v12
    v_xor_b32 v9, v9, v12
    v_and_b32 v9, 0xfffff800, v9
    v_sub_u32 v12, 2039, v4
    v_or_b32 v9, v9, v12
    v_max_u32 v14, v8, v9
    v_min_u32 v15, v8, v9
    s_nop 1
    v_mov_b32_dpp v8, v14 row_ror:8 row_mask:0xf bank_mask:0xf
    v_mov_b32_dpp v9, v15 row_ror:8 row_mask:0xf bank_mask:0xf
    v_min_u32 v12, v8, v14
    v_max_u32 v14, v8, v14
    v_max3_u32 v15, v12, v9, v15
    """)
    for sw in ("v_permlane16_swap_b32", "v_permlane32_swap_b32"):
        a(f"""
        v_mov_b32 v8, v14
        v_mov_b32 v9, v15
        s_nop 1
        {sw} v8, v14
        {sw} v9, v15
        s_nop 1
        v_min_u32 v12, v8, v14
        v_max_u32 v14, v8, v14
        v_max3_u32 v15, v12, v9, v15
        """)
    regwait(a, 3, 4, sleep=8)
    a(f"""
    s_lshl_b32 s29, s27, 6
    s_add_u32 s29, s29, {WS_KEY}
    v_mov_b32 v5, 0
    v_mov_b32 v6, s{sTAG}
    v_lshlrev_b32 v3, 3, v1
    s_mov_b64 exec, 0xff
    buffer_store_dwordx2 v[14:15], v3, {RW}, s29 offen sc1
    s_mov_b64 exec, -1
    s_branch L_svc
L_select:
    v_lshlrev_b32 v3, 7, v1
    s_mov_b32 s29, {WS_KEY}
    """)
    poll(a, f"buffer_load_dwordx2 v[32:33], v3, {RW}, s29 offen sc1\nbuffer_load_dwordx2 v[34:35], v3, {RW}, s29 offen offset:64 sc1",
         "v_min_u32 v12, v32, v33\nv_min3_u32 v12, v12, v34, v35\nv_cmp_eq_u32 vcc, 0, v12", sleep=8)
    top2(a, 32, 12, 24)
    a(f"""
    s_lshl_b32 s29, s{sJ}, 7
    s_add_u32 s29, s29, {WS_SEL}
    v_mov_b32 v32, s24
    v_mov_b32 v33, s25
    v_lshlrev_b32 v3, 3, v1
    s_mov_b64 exec, 0xff
    buffer_store_dwordx2 v[32:33], v3, {RW}, s29 offen sc1
    s_mov_b64 exec, -1
    s_branch L_selected
    """)
    a("L_codeend:")
    if o.get("nogemm") or o.get("now") or o.get("nox"):
        i0 = a.L.index("L_gemm:"); i1 = [i for i, l in enumerate(a.L) if "s_cbranch_scc1 L_gemm" in l][0]
        if o.get("nogemm") == 1: a.L = a.L[:i0] + [l for l in a.L[i0:i1] if "v_mfma" not in l and "ds_read" not in l] + a.L[i1:]
        if o.get("nogemm") == 2: a.L = a.L[:i0] + [l for l in a.L[i0:i1] if "ds_read" not in l] + a.L[i1:]
        if o.get("now"): a.L = [l.replace(f"s_mov_b32 s10, {WB}", "s_mov_b32 s10, 0") for l in a.L]
        if o.get("nox"):
            i = [i for i, l in enumerate(a.L) if f"s_mov_b32 s10, {XB}" in l][0]; a.L[i] = "    s_mov_b32 s10, 0"
    if o.get("mstamp"):
        a.L = [l for l in a.L if not any(l.strip() == f"; STAMP {i}" for i in (1, 2, 4, 7, 8, 9, 10))]
        a.L = [l.replace("MSTAMP", "STAMP") for l in a.L]
    hdr = HEADER + f"; @launch grid=(256,1,1) block=(768,1,1) lds={LDS_BYTES}\n"
    return hdr + a.text() + '.section .rodata,"a"\n' + descriptor(NAME, 168, sgpr=64)

if __name__ == "__main__":
    o = dict((k.split("=")[0], int(k.split("=")[1]) if "=" in k else 1) for k in sys.argv[2:])
    open(sys.argv[1], "w").write(gen(o))
```
